```python
import torch

def _softmax(x, axis=-1):
    return torch.softmax(x, dim=axis)
def _gelu(x):
    return torch.nn.functional.gelu(x, approximate="tanh")
def _silu(x):
    return torch.nn.functional.silu(x)
def _sigmoid(x):
    return torch.sigmoid(x)
def _layernorm(x, axis=-1, eps=1e-5):
    m = x.mean(dim=axis, keepdim=True)
    v = x.var(dim=axis, keepdim=True, unbiased=False)
    return (x - m) / torch.sqrt(v + eps)
def _scatter_add(tgt, idx, src, axis=0):
    return tgt.clone().index_add_(axis, idx, src)
def _segment_sum(src, seg, n):
    out = torch.zeros((n,) + src.shape[1:], dtype=src.dtype)
    return out.index_add_(0, seg, src)
def _pad(x, pw):
    flat = tuple(v for pair in reversed(pw) for v in pair)
    return torch.nn.functional.pad(x, flat)

kernel_name = 'recurrent_scan__gqa_block_cached__glu_gated_glu__prompt'

def setup_inputs():

    _w = (lambda a: (lambda t: t.to(torch.bfloat16) if t.is_floating_point() else t)(torch.as_tensor(a)))
    def _A_setup():
        B, Sq, D = 1, 2048, 512
        Hq, Hkv, Sk, Dh = 32, 32, 2048, 128
        assert Hq % Hkv == 0, (Hq, Hkv)
        return {
            "x": _w((lambda *s: torch.randn(*s, dtype=torch.bfloat16) * 0.05)(B, Sq, D)),
            "k_cache": _w((lambda *s: torch.randn(*s, dtype=torch.bfloat16) * 1.6)(B, Hkv, Sk, Dh)),
            "v_cache": _w((lambda *s: torch.randn(*s, dtype=torch.bfloat16) * 0.2)(B, Hkv, Sk, Dh)),
            "wq": _w((lambda *s: torch.randn(*s, dtype=torch.bfloat16) * 1.6)(D, Hq * Dh) * (D ** -0.5)),
            "wo": _w((lambda *s: torch.randn(*s, dtype=torch.bfloat16) * 0.2)(Hq * Dh, D) * ((Hq * Dh) ** -0.5)),
        }
    _A_in = _A_setup()

    def _B_setup():
        B, S, D, F = 1, 2048, 512, 1376
        return {
            "x": _w((lambda *s: torch.randn(*s, dtype=torch.bfloat16) * 0.05)(B, S, D)),
            "w_gate": _w((lambda *s: torch.randn(*s, dtype=torch.bfloat16) * 0.2)(D, F)),
            "w_up": _w((lambda *s: torch.randn(*s, dtype=torch.bfloat16) * 0.1)(D, F)),
            "w_down": _w((lambda *s: torch.randn(*s, dtype=torch.bfloat16) * 0.1)(F, D)),
        }
    _B_in = _B_setup()

    return {
        "A_x": _A_in["x"],
        "A_k_cache": _A_in["k_cache"],
        "A_v_cache": _A_in["v_cache"],
        "A_wq": _A_in["wq"],
        "A_wo": _A_in["wo"],
        "B_x": _B_in["x"],
        "B_w_gate": _B_in["w_gate"],
        "B_w_up": _B_in["w_up"],
        "B_w_down": _B_in["w_down"],
    }

def reference(A_x, A_k_cache, A_v_cache, A_wq, A_wo, B_x, B_w_gate, B_w_up, B_w_down):
    def _A_ref(x, k_cache, v_cache, wq, wo):
        B, Sq, D = x.shape
        Hq, Dh = 32, 128
        Hkv = k_cache.shape[1]
        rep = Hq // Hkv
        q = (lambda x, *d: x.permute(*d))((x @ wq).reshape(B, Sq, Hq, Dh), 0, 2, 1, 3)
        k = (lambda x, n, axis: torch.repeat_interleave(x, n, dim=axis))(k_cache, rep, axis=1)
        v = (lambda x, n, axis: torch.repeat_interleave(x, n, dim=axis))(v_cache, rep, axis=1)
        scores = torch.einsum("bhqd,bhkd->bhqk", q, k) * (Dh ** -0.5)
        p = _softmax(scores, axis=-1)
        o = torch.einsum("bhqk,bhkd->bhqd", p, v)
        return (lambda x, *d: x.permute(*d))(o, 0, 2, 1, 3).reshape(B, Sq, Hq * Dh) @ wo

    def _B_ref(x, w_gate, w_up, w_down):
        g = torch.einsum("bsd,df->bsf", x, w_gate)
        u = torch.einsum("bsd,df->bsf", x, w_up)
        h = _sigmoid(g) * u
        return torch.einsum("bsf,fd->bsd", h, w_down)

    x = A_x
    xn = _layernorm(x, axis=-1)
    s = _A_ref(xn, A_k_cache, A_v_cache, A_wq, A_wo)
    g = _silu(_B_ref(xn, B_w_gate, B_w_up, B_w_down))
    return x + s * g
```

```python
import re

def rng(pfx, b, n):
    return f"{pfx}{b}" if n == 1 else f"{pfx}[{b}:{b+n-1}]"
def v(b, n=1): return rng('v', b, n)
def a(b, n=1): return rng('a', b, n)
def s(b, n=1): return rng('s', b, n)

_reg = re.compile(r'^-?\|?([vas])(\d+)\|?$')
_regr = re.compile(r'^-?([vas])\[(\d+):(\d+)\]$')
def regs_of(op):
    op = op.strip()
    if op.startswith('abs(') or op.startswith('-abs('):
        op = op[op.index('(')+1:-1]
    m = _reg.match(op)
    if m: return [(m.group(1), int(m.group(2)))]
    m = _regr.match(op)
    if m: return [(m.group(1), i) for i in range(int(m.group(2)), int(m.group(3))+1)]
    if op in ('vcc', 'vcc_lo', 'vcc_hi'): return [('vcc', 0)]
    if op in ('m0',): return [('m0', 0)]
    if op in ('exec',): return [('exec', 0)]
    return []

TRANS = ('v_exp_f32', 'v_rcp_f32', 'v_rsq_f32', 'v_log_f32', 'v_sqrt_f32')
class Ins:
    __slots__ = ('text', 'op', 'kind', 'rd', 'wr', 'srcC', 'passes', 'ops', 'mods')
    def __init__(self, text):
        self.text = text
        t = text.split(';')[0].strip()
        self.rd = []; self.wr = []; self.srcC = []; self.passes = 0
        if not t or t.endswith(':') or t.startswith('.'):
            self.op = ''; self.kind = 'label' if t.endswith(':') else 'dir'; return
        parts = t.split(None, 1)
        op = parts[0]; self.op = op
        rest = parts[1] if len(parts) > 1 else ''
        ops = [o.strip() for o in rest.split(',')] if rest else []
        mods = ''
        if ops:
            last = ops[-1].split(None, 1)
            if len(last) > 1: ops[-1] = last[0]; mods = last[1]
        self.ops = ops; self.mods = mods
        R = lambda i: regs_of(ops[i]) if i < len(ops) else []
        allsrc = lambda k: sum((regs_of(o) for o in ops[k:]), [])
        if op.startswith('v_mfma'):
            self.kind = 'mfma'
            self.wr = R(0); self.rd = R(1) + R(2) + R(3); self.srcC = R(3)
            self.passes = {'16x16x32': 4, '32x32x16': 8, '16x16x4': 8, '32x32x2': 16}[re.search(r'_(\d+x\d+x\d+)', op).group(1)]
        elif op.startswith('ds_read') or op.startswith('ds_bpermute'):
            self.kind = 'dsr'; self.wr = R(0); self.rd = allsrc(1)
        elif op.startswith('ds_write') or op.startswith('ds_add') or op.startswith('ds_or'):
            self.kind = 'dsw'; self.rd = allsrc(0)
        elif op.startswith('buffer_load') or op.startswith('global_load'):
            if 'lds' in mods.split() or '_lds_' in op:
                self.kind = 'dma'; self.rd = allsrc(0) + [('m0', 0)]
            else:
                self.kind = 'vld'; self.wr = R(0); self.rd = allsrc(1)
                if 'd16' in op: self.rd += R(0)
        elif op.startswith('buffer_store') or op.startswith('global_store') or op.startswith('buffer_atomic') or op.startswith('global_atomic'):
            self.kind = 'vst'; self.rd = allsrc(0)
        elif op.startswith('buffer_wbl2') or op.startswith('buffer_inv'):
            self.kind = 'vst'
        elif op.startswith('s_load') or op.startswith('s_memtime') or op.startswith('s_memrealtime'):
            self.kind = 'smem'; self.wr = R(0); self.rd = allsrc(1)
        elif op == 's_waitcnt': self.kind = 'wait'
        elif op == 's_nop': self.kind = 'nop'
        elif op == 's_barrier': self.kind = 'bar'
        elif op.startswith('s_cbranch') or op in ('s_branch', 's_endpgm', 's_setpc_b64', 's_call_b64'):
            self.kind = 'br'
        elif op.startswith('s_cmp') or op in ('s_setprio', 's_sleep'):
            self.kind = 'salu'; self.rd = allsrc(0)
        elif op.startswith('s_'):
            self.kind = 'salu'; self.wr = R(0); self.rd = allsrc(1)
            if 'saveexec' in op: self.wr += [('exec', 0)]
        elif op.startswith('v_'):
            self.kind = 'trans' if op.replace('_e32', '').replace('_e64', '') in TRANS else 'valu'
            if op.startswith('v_permlane'):
                self.wr = R(0) + R(1); self.rd = R(0) + R(1)
            elif op.startswith('v_cmp'):
                self.wr = R(0); self.rd = allsrc(1)
            else:
                self.wr = R(0); self.rd = allsrc(1)
                if op.startswith('v_fmac') or op.startswith('v_dot2c'): self.rd += R(0)
                if op.startswith('v_cndmask') and len(ops) == 3: self.rd += [('vcc', 0)]
        else:
            raise ValueError("unknown instruction: " + text)
    def states(self):
        if self.kind in ('label', 'dir'): return 0
        if self.kind == 'nop': return int(self.ops[0], 0) + 1
        return 1

def parse_wait(ins):
    vm = lg = None
    t = ins.text.split(';')[0]
    m = re.search(r'vmcnt\((\d+)\)', t)
    if m: vm = int(m.group(1))
    m = re.search(r'lgkmcnt\((\d+)\)', t)
    if m: lg = int(m.group(1))
    return vm, lg

def check(lines, name='', verbose=True):
    ins = [Ins(l) for l in lines]
    errs = []
    pos = 0
    last_w = {}
    last_cread = {}
    last_stread = {}
    lq = []
    vq = []
    pend = {}
    def err(i, msg): errs.append(f"{name}[{i}] {ins[i].text.strip()}  :: {msg}")
    for i, x in enumerate(ins):
        k = x.kind
        if k in ('label', 'dir'): continue
        if k == 'wait':
            vm, lg = parse_wait(x)
            if lg is not None:
                if any(q.kind == 'smem' for q in lq) and lg != 0: err(i, 'counted lgkmcnt with smem outstanding')
                while len(lq) > lg:
                    q = lq.pop(0)
                    for r in q.wr:
                        if pend.get(r) is q: del pend[r]
            if vm is not None:
                while len(vq) > vm:
                    q = vq.pop(0)
                    for r in q.wr:
                        if pend.get(r) is q: del pend[r]
            pos += 1; continue
        for r in x.rd + x.wr:
            if r in pend: err(i, f'uses {r} while async write pending: {pend[r].text.strip()}')
        isvalu = k in ('valu', 'trans')
        for r in x.rd:
            if r not in last_w: continue
            p, w = last_w[r]; d = pos - p - 1
            wv = w.kind in ('valu', 'trans')
            if w.kind == 'mfma':
                if k == 'mfma':
                    if r in x.srcC and r not in regs_of(x.ops[1]) + regs_of(x.ops[2]):
                        if x.srcC == w.wr and x.passes == w.passes: need = 0 if w.passes >= 4 else 2
                        else: need = {2: 4, 4: 6, 8: 10, 16: 18}[w.passes]
                    else: need = {2: 5, 4: 8, 8: 12, 16: 20}[w.passes]
                else: need = {2: 5, 4: 8, 8: 12, 16: 20}[w.passes]
                if d < need: err(i, f'MFMA result {r} read after {d} < {need} states ({w.text.strip()})')
            elif wv:
                need = 0
                if r[0] in 'va':
                    if k == 'mfma': need = 2
                    if x.op.startswith('v_permlane'): need = 2
                    if x.op.startswith('v_readfirstlane') or x.op.startswith('v_readlane'): need = 1
                    if 'row_' in x.mods or 'quad_perm' in x.mods: need = 2
                    if w.kind == 'trans' and k in ('valu', 'mfma', 'dsw', 'vst'): need = max(need, 1)
                if r[0] in ('s', 'vcc'):
                    if isvalu: need = 2
                    if k in ('vld', 'vst', 'dma'): need = 5
                    if k in ('salu','smem'): need = 1
                if r[0] == 'exec': need = 4
                if d < need: err(i, f'VALU result {r} read after {d} < {need} states ({w.text.strip()})')
            elif w.kind == 'salu':
                if r[0] == 'm0' and k == 'dma' and d < 1: err(i, 'm0 write -> dma needs 1 state')
        for r in x.wr:
            if r in last_w:
                p, w = last_w[r]; d = pos - p - 1
                if w.kind == 'mfma' and k != 'mfma':
                    need = {2: 5, 4: 8, 8: 12, 16: 20}[w.passes]
                    if d < need: err(i, f'WAW on MFMA result {r} after {d} < {need}')
                if w.kind == 'mfma' and k == 'mfma' and not (x.srcC == w.wr):
                    need = {2: 4, 4: 6, 8: 10, 16: 18}[w.passes]
                    if d < need: err(i, f'MFMA WAW on {r} after {d} < {need}')
            if r in last_cread and isvalu:
                p, ps = last_cread[r]; d = pos - p - 1
                need = {2: 1, 4: 3, 8: 7, 16: 15}[ps]
                if d < need: err(i, f'WAR on MFMA srcC {r} after {d} < {need}')
            if r in last_stread:
                d = pos - last_stread[r] - 1
                if d < 2: err(i, f'WAR on store data {r} after {d} < 2')
        if k == 'mfma':
            for r in x.srcC: last_cread[r] = (pos, x.passes)
        if k == 'vst' and ('x4' in x.op or 'x3' in x.op):
            for r in regs_of(x.ops[0]) + (regs_of(x.ops[1]) if x.op.startswith('global') else []): last_stread[r] = pos
        if k in ('dsr', 'dsw', 'smem'):
            lq.append(x)
            for r in x.wr: pend[r] = x
            if len([q for q in lq]) > 15 and False: err(i, 'lgkm > 15')
        elif k in ('vld', 'vst', 'dma'):
            vq.append(x)
            for r in x.wr: pend[r] = x
            if len(vq) > 63: err(i, 'vmcnt > 63 outstanding')
        for r in x.wr:
            last_w[r] = (pos, x)
        pos += x.states()
    if verbose:
        for e in errs[:40]: print("HAZARD:", e)
        if len(errs) > 40: print("...", len(errs) - 40, "more")
    return errs

UNITS = {'mfma': 0, 'valu': 1, 'trans': 2, 'dsr': 1, 'dsw': 2, 'dma': 2, 'vld': 2, 'vst': 2, 'salu': 1, 'wait': 1, 'bar': 2, 'nop': 1, 'br': 2, 'smem': 1, 'label': 0, 'dir': 0}
def gap_report(lines, cap=2):
    over = 0; bad = 0; n = 0; cur = 0; sawv = False; started = False
    for l in lines:
        x = Ins(l)
        if x.kind == 'mfma':
            if started:
                n += 1; over += max(0, cur - cap)
            started = True; cur = 0; sawv = False
        else:
            cur += UNITS[x.kind]
            if x.kind in ('valu', 'trans'): sawv = True
            if x.kind in ('dsr', 'dsw', 'dma', 'vld', 'vst', 'bar', 'br') and sawv: bad += 1
    return n, over, bad

def weave(mfmas, gaps):
    out = []
    for m, g in zip(mfmas, gaps):
        out.append(m); out += g
    return out
```

```python
import sys, os
sys.path.insert(0, os.path.dirname(os.path.abspath(__file__)))
from asmlib import *

OPT = dict(stamp=0)
for arg in sys.argv[2:]:
    k_, v_ = arg.split('='); OPT[k_] = int(v_)

MF = "v_mfma_f32_16x16x32_bf16"
NKS = 171
ACT_RB = NKS * 4096
WT_OFF = 24 << 20
STAMP_OFF = 64 << 20
SCALE = 1.4426950408889634 / (128 ** 0.5)
import struct
def f2u(x): return "0x%08x" % struct.unpack('<I', struct.pack('<f', x))[0]

sW, sHEAD, sQB = 3, 4, 5
SK, SV, SX, SWQ, SGU, SACT, SWO, SWD, SWT = 8, 12, 16, 20, 24, 28, 32, 36, 40
sX0, sX1, sWQo, sGUo, sKV = 44, 45, 46, 47, 48
sMX, sMWQ, sMGU, sMKV, sMW2 = 49, 50, 51, 52, 53
sCNT, sMASK, sT0, sT1, sT2, sPASS = 54, 55, 56, 57, 58, 59
sH0 = 60
SST = 88
sSTo = 92
def srd(d, lo, hi, size):
    return [f"s_mov_b32 s{d}, s{lo}", f"s_mov_b32 s{d+1}, s{hi}", f"s_mov_b32 s{d+2}, {size}", f"s_mov_b32 s{d+3}, 0x00020000"]

stamp_n = [0]
def stamp(tmpv):
    if not OPT['stamp']: return []
    n = stamp_n[0]; stamp_n[0] += 1
    return ["s_memtime s[94:95]", "s_memrealtime s[96:97]", "s_waitcnt lgkmcnt(0)",
            f"v_mov_b32 v{tmpv}, s94", f"v_mov_b32 v{tmpv+1}, s96", f"v_mov_b32 v{tmpv+2}, 0", "s_nop 1",
            f"buffer_store_dwordx2 v[{tmpv}:{tmpv+1}], v{tmpv+2}, s[{SST}:{SST+3}], s{sSTo} offen offset:{n*8}", "s_nop 1"]

class Gaps:
    def __init__(self, n, cap=2):
        self.pre = [[] for _ in range(n)]
        self.post = [[] for _ in range(n)]
        self.cap = cap; self.n = n
    def used(self, g): return sum(UNITS[Ins(x).kind] for x in self.pre[g] + self.post[g])
    def put(self, g, text, force=False):
        k = Ins(text).kind
        assert force or self.used(g) + UNITS[k] <= self.cap, (g, text, self.pre[g], self.post[g])
        (self.post if k in ('valu', 'trans') else self.pre)[g].append(text)
    def fit(self, g0, text, g1=None):
        k = UNITS[Ins(text).kind]
        for g in range(g0, self.n if g1 is None else g1):
            if self.used(g) + k <= self.cap:
                self.put(g, text); return g
        return None
    def out(self): return [p + q for p, q in zip(self.pre, self.post)]

XF = 0
SXA = 64
ONES = 80
SQ = 84
TM = 88
aXD = 92
aXR = 96
aWQD = 98
aWQR = 102
aWQC = 106
aGUD = 107
aGUR = 110
aGUC = 111
aW2R = 112
aL16 = 113
aKD0 = 114
aVD0 = 118
aCS = 120
vLANE = 121
W2T = 32
QACC = 128
WF = 0
CSA = 112
GUA = 128
EF = 224
QF = 0; KF = 64; SB = 128; PB = 144; NEGM = 160; LACC = 176; ONE2 = 192
aKR = 196; aVR = 200; aKD = 208; aVD = 212; aL16b = 214; vLANEb = 215; T2 = 216
OACC = 0; VF = 128

def k1_setup():
    L = []
    e = L.append
    e("s_cmp_ge_u32 s2, 256"); e("s_cbranch_scc1 K1_END")
    e("s_load_dwordx16 s[64:79], s[0:1], 0"); e("s_load_dwordx8 s[80:87], s[0:1], 64")
    e("v_lshrrev_b32 v1, 6, v0"); e(f"v_and_b32 v{vLANE}, 63, v0"); e(f"v_readfirstlane_b32 s{sW}, v1")
    e("s_and_b32 s6, s2, 7"); e("s_lshr_b32 s7, s2, 3")
    e(f"s_lshl_b32 s{sHEAD}, s6, 2"); e("s_and_b32 s6, s7, 3"); e(f"s_add_u32 s{sHEAD}, s{sHEAD}, s6")
    e(f"s_lshr_b32 s{sQB}, s7, 2")
    l = vLANE
    e(f"v_and_b32 v1, 15, v{l}"); e(f"v_lshrrev_b32 v2, 4, v{l}"); e("v_lshrrev_b32 v3, 2, v1"); e(f"v_and_b32 v4, 3, v{l}")
    e(f"v_lshrrev_b32 v5, 3, v{l}"); e(f"v_and_b32 v6, 7, v{l}")
    e("v_lshrrev_b32 v7, 1, v5")
    e("v_xor_b32 v7, v7, v6")
    e("v_lshlrev_b32 v8, 10, v5")
    for i in range(4):
        e(f"v_xor_b32 v9, {4*(i&1)}, v7"); e("v_lshlrev_b32 v9, 4, v9"); e("v_add_u32 v9, v9, v8")
        e(f"v_add_u32 v{aXD+i}, {7168*i}, v9")
    e("s_waitcnt lgkmcnt(0)")
    e(f"s_lshl_b32 s6, s{sHEAD}, 19")
    e("s_add_u32 s66, s66, s6"); e("s_addc_u32 s67, s67, 0"); e("s_add_u32 s68, s68, s6"); e("s_addc_u32 s69, s69, 0")
    L += srd(SK, 66, 67, 524288) + srd(SV, 68, 69, 524288)
    e(f"s_lshl_b32 s6, s{sQB}, 2"); e(f"s_add_u32 s6, s6, s{sW}")
    e("s_lshl_b32 s7, s6, 16"); e("s_add_u32 s64, s64, s7"); e("s_addc_u32 s65, s65, 0")
    L += srd(SX, 64, 65, 65536)
    e(f"s_mul_i32 s7, s6, {ACT_RB}"); e("s_add_u32 s74, s86, s7"); e("s_addc_u32 s75, s87, 0")
    L += srd(SACT, 74, 75, ACT_RB)
    e(f"s_lshl_b32 s6, s{sHEAD}, 8"); e("s_add_u32 s70, s70, s6"); e("s_addc_u32 s71, s71, 0")
    L += srd(SWQ, 70, 71, 0); e(f"s_sub_u32 s{SWQ+2}, {512*8192}, s6")
    e(f"s_cmp_ge_u32 s{sW}, 2"); e("s_cselect_b32 s76, s78, s76"); e("s_cselect_b32 s77, s79, s77")
    e(f"s_mul_i32 s6, s{sHEAD}, 96"); e("s_add_u32 s76, s76, s6"); e("s_addc_u32 s77, s77, 0")
    L += srd(SGU, 76, 77, 0); e(f"s_sub_u32 s{SGU+2}, {512*2752}, s6")
    e(f"s_lshl_b32 s{sMX}, s{sW}, 13"); e(f"s_lshl_b32 s{sMKV}, s{sW}, 12"); e(f"s_add_u32 s{sMWQ}, s{sMKV}, 65536")
    e(f"s_mul_i32 s{sMGU}, s{sW}, 3072"); e(f"s_add_u32 s{sMGU}, s{sMGU}, 81920"); e(f"s_add_u32 s{sMW2}, s{sMX}, 131072")
    e(f"s_mov_b32 s{sX0}, 0"); e(f"s_mov_b32 s{sX1}, 32768"); e(f"s_mov_b32 s{sWQo}, 0"); e(f"s_mov_b32 s{sGUo}, 0")
    e("v_lshlrev_b32 v7, 2, v2"); e("v_xor_b32 v7, v7, v1"); e("v_lshlrev_b32 v7, 4, v7")
    e(f"s_lshl_b32 s6, s{sW}, 4"); e("v_add_u32 v8, s6, v2")
    e("v_lshlrev_b32 v9, 13, v8"); e("v_add_u32 v9, v9, v7")
    for i in range(4): e(f"v_add_u32 v{aWQD+i}, {31744*i}, v9")
    e(f"s_and_b32 s6, s{sW}, 1"); e(f"s_mul_i32 s6, s6, {32*2752}"); e("s_movk_i32 s7, 2752")
    for i in range(3):
        e(f"v_add_u32 v9, {64*i}, v{l}"); e("v_mul_u32_u24 v10, 171, v9"); e("v_lshrrev_b32 v10, 10, v10")
        e("v_mul_u32_u24 v11, 6, v10"); e("v_sub_u32 v11, v9, v11"); e("v_lshlrev_b32 v11, 4, v11")
        e("v_mad_u32_u24 v11, v10, s7, v11"); e("v_add_u32 v11, s6, v11"); e(f"v_subrev_u32 v{aGUD+i}, {1024*i}, v11")
    return L

def stage_dma(buf):
    o = buf * 32768
    L = []
    L.append(f"s_add_u32 m0, s{sMWQ}, {o}")
    for i in range(4): L.append(f"buffer_load_dwordx4 v{aWQD+i}, s[{SWQ}:{SWQ+3}], s{sWQo} offen offset:{1024*i} lds")
    L.append(f"s_add_u32 m0, s{sMX}, {o}")
    for i in range(4): L.append(f"buffer_load_dwordx4 v{aXD+i}, s[{SX}:{SX+3}], s{sX0} offen offset:{1024*i} lds")
    L.append(f"s_add_u32 m0, s{sMX}, {o+4096}")
    for i in range(4): L.append(f"buffer_load_dwordx4 v{aXD+i}, s[{SX}:{SX+3}], s{sX1} offen offset:{1024*i} lds")
    L.append(f"s_add_u32 m0, s{sMGU}, {o}")
    for i in range(3): L.append(f"buffer_load_dwordx4 v{aGUD+i}, s[{SGU}:{SGU+3}], s{sGUo} offen offset:{1024*i} lds")
    L += [f"s_add_u32 s{sX0}, s{sX0}, 128", f"s_add_u32 s{sX1}, s{sX1}, 128",
          f"s_add_u32 s{sWQo}, s{sWQo}, {64*8192}", f"s_add_u32 s{sGUo}, s{sGUo}, {64*2752}"]
    return L

def with_m0_nops(L):
    out = []
    for x in L:
        out.append(x)
        if 'm0,' in x: out.append("s_nop 0")
    return out

def kv_dma(slot, kd, vd):
    L = [f"s_add_u32 m0, s{sMKV}, {slot*16384}"]
    for i in range(4): L.append(f"buffer_load_dwordx4 v{kd+i}, s[{SK}:{SK+3}], s{sKV} offen offset:{1024*i} lds")
    L.append(f"s_add_u32 m0, s{sMKV}, {65536+slot*16384}")
    for i in range(4): L.append(f"buffer_load_dwordx4 v{vd+(i&1)}, s[{SV}:{SV+3}], s{sKV} offen offset:{1024*i} lds")
    L.append(f"s_add_u32 s{sKV}, s{sKV}, 16384")
    return L

def k1_setup2():
    L = []; e = L.append; l = vLANE
    L += srd(SWO, 72, 73, 4096*1024) + srd(SWD, 80, 81, 1376*1024)
    e("s_lshl_b32 s6, s2, 2"); e(f"s_add_u32 s6, s6, s{sW}"); e("s_and_b32 s7, s6, 7"); e("s_lshr_b32 s6, s6, 3")
    e(f"s_mul_i32 s{sT0}, s7, {ACT_RB}"); e(f"s_add_u32 s{sT0}, s{sT0}, {WT_OFF}")
    e(f"s_add_u32 s74, s86, s{sT0}"); e("s_addc_u32 s75, s87, 0")
    L += srd(SWT, 74, 75, ACT_RB)
    e(f"s_lshl_b32 s{sT0}, s6, 15"); e("s_lshl_b32 s7, s7, 7"); e(f"s_add_u32 s{sT0}, s{sT0}, s7")
    e(f"s_lshl_b32 s{sT2}, s6, 12")
    e("v_lshlrev_b32 v7, 10, v5"); e("v_lshl_add_u32 v7, v6, 4, v7")
    e(f"s_mov_b32 m0, s{sMW2}")
    for it, sr in enumerate((SWO, SWD)):
        if it: e(f"s_add_u32 m0, s{sMW2}, 4096")
        for i in range(4):
            e(f"s_add_u32 s{sT1}, s{sT0}, {7168*i}")
            e(f"buffer_load_dwordx4 v7, s[{sr}:{sr+3}], s{sT1} offen offset:{1024*i} lds")
    e("v_lshrrev_b32 v7, 1, v1"); e("v_lshlrev_b32 v8, 7, v1"); e(f"v_add_u32 v8, s{sMX}, v8")
    for ks in range(2):
        e(f"v_add_u32 v9, {4*ks}, v2"); e("v_xor_b32 v9, v9, v7"); e(f"v_lshl_add_u32 v{aXR+ks}, v9, 4, v8")
    e("v_lshl_add_u32 v7, v2, 3, v3")
    e("v_lshlrev_b32 v8, 8, v7"); e("v_lshl_add_u32 v8, v4, 4, v8"); e("v_add_u32 v8, 65536, v8")
    for sp in range(4):
        e(f"v_xor_b32 v9, {sp}, v3"); e(f"v_lshl_add_u32 v{aWQR+sp}, v9, 6, v8")
    e(f"v_xor_b32 v9, s{sW}, v3"); e(f"v_lshl_add_u32 v{aWQC}, v9, 6, v8")
    e("v_mul_u32_u24 v8, 96, v7"); e("v_lshl_add_u32 v8, v4, 3, v8"); e(f"v_add_u32 v{aGUR}, 81920, v8")
    e(f"s_min_u32 s6, s{sW}, 2"); e("s_lshl_b32 s6, s6, 5"); e(f"v_add_u32 v{aGUC}, s6, v{aGUR}")
    e("v_lshl_add_u32 v7, v2, 2, v3"); e("v_lshlrev_b32 v8, 7, v7"); e("v_lshl_add_u32 v8, v4, 3, v8"); e(f"v_add_u32 v{aW2R}, s{sMW2}, v8")
    e(f"v_lshlrev_b32 v{aL16}, 4, v{l}")
    e(f"s_lshl_b32 s6, s{sW}, 4"); e("v_add_u32 v8, s6, v2"); e("v_lshlrev_b32 v8, 8, v8")
    e("v_xor_b32 v9, v1, v2")
    for i in range(4):
        e(f"v_xor_b32 v10, {4*i}, v9"); e(f"v_lshl_add_u32 v{aKD0+i}, v10, 4, v8")
    e("v_lshlrev_b32 v9, 1, v2"); e("v_xor_b32 v9, v9, v1")
    for i in range(2):
        e(f"v_xor_b32 v10, {8*i}, v9"); e(f"v_lshl_add_u32 v{aVD0+i}, v10, 4, v8")
    e(f"v_lshlrev_b32 v{aCS}, 4, v2"); e(f"v_add_u32 v{aCS}, 131072, v{aCS}")
    e(f"s_mov_b32 s{sKV}, 0"); e(f"s_mov_b32 s{sMASK}, 0xffff0000"); e(f"s_mov_b32 s{sPASS}, 0")
    for i in range(4): e(f"v_mov_b32 v{ONES+i}, 0x3f803f80")
    for i in range(4): e(f"v_mov_b32 v{SQ+i}, 0")
    e(f"s_mul_i32 s6, s{sHEAD}, 3")
    for t in range(3):
        e(f"s_add_u32 s7, s6, {t}"); e(f"s_lshr_b32 s{sH0+t}, s7, 1"); e(f"s_add_u32 s{sH0+t}, s{sH0+t}, 128")
        e(f"s_lshl_b32 s{sH0+t}, s{sH0+t}, 12"); e("s_and_b32 s7, s7, 1"); e("s_lshl_b32 s7, s7, 3"); e(f"s_add_u32 s{sH0+t}, s{sH0+t}, s7")
    if OPT['stamp']:
        e(f"s_add_u32 s74, s86, {STAMP_OFF}"); e("s_addc_u32 s75, s87, 0")
        L += srd(SST, 74, 75, 1 << 20)
        e("s_lshl_b32 s6, s2, 2"); e(f"s_add_u32 s6, s6, s{sW}"); e(f"s_lshl_b32 s{sSTo}, s6, 8")
    return L

def rd_x(buf, lb):
    return [f"ds_read_b128 {v(XF+buf*32+(qt*2+ks)*4,4)}, v{aXR+ks} offset:{lb*32768+2048*qt}" for qt in range(4) for ks in range(2)]
def rd_w(m, lb):
    L = []
    for ks in range(2):
        for hh in range(2):
            d = a(WF+(m*2+ks)*4+2*hh, 2)
            if m < 8: L.append(f"ds_read_b64_tr_b16 {d}, v{aWQR+m//2} offset:{lb*32768+ks*8192+hh*1024+8*(m&1)}")
            else:
                z, t = divmod(m-8, 3)
                L.append(f"ds_read_b64_tr_b16 {d}, v{aGUR} offset:{lb*32768+z*6144+ks*3072+hh*384+32*t}")
    return L
def rd_e(lb):
    L = []
    for tl in range(4):
        for ks in range(2):
            for hh in range(2):
                d = a(EF+(tl*2+ks)*4+2*hh, 2)
                if tl < 2: L.append(f"ds_read_b64_tr_b16 {d}, v{aWQC} offset:{lb*32768+ks*8192+hh*1024+8*tl}")
                else: L.append(f"ds_read_b64_tr_b16 {d}, v{aGUC} offset:{lb*32768+(tl-2)*6144+ks*3072+hh*384}")
    return L

def acc_m(m, qt):
    return v(QACC+(m*4+qt)*4, 4) if m < 8 else a(GUA+((m-8)*4+qt)*4, 4)

def w2_ops():
    rd = []; st = []
    for it in range(2):
        for ct in range(4):
            b = XF + (it*4+ct)*4
            for hh in range(2):
                rd.append(f"ds_read_b64_tr_b16 {v(b+2*hh,2)}, v{aW2R} offset:{it*4096+hh*2048+32*ct}")
            st.append((it, f"buffer_store_dwordx4 {v(b,4)}, v{aL16}, s[{SWT}:{SWT+3}], s{sT2 if it==0 else sT1} offen offset:{1024*ct}"))
    return rd, st

def gemm_phase(st, carry):
    xb = st & 1; first = (st == 0)
    mf = []
    def C(acc, ks): return "0" if (first and ks == 0) else acc
    for qt in range(4):
        for ks in range(2):
            d = v(SXA+qt*4, 4); mf.append(f"{MF} {d}, {v(ONES,4)}, {v(XF+xb*32+(qt*2+ks)*4,4)}, {C(d,ks)}")
    for tl in range(4):
        for ks in range(2):
            d = a(CSA+tl*4, 4); mf.append(f"{MF} {d}, {a(EF+(tl*2+ks)*4,4)}, {v(ONES,4)}, {C(d,ks)}")
    for m in range(14):
        for qt in range(4):
            for ks in range(2):
                d = acc_m(m, qt); mf.append(f"{MF} {d}, {a(WF+(m*2+ks)*4,4)}, {v(XF+xb*32+(qt*2+ks)*4,4)}, {C(d,ks)}")
    G = Gaps(128)
    for i, r in enumerate(carry): G.put(i // 2, r)
    BARG = 9
    vm = {0: 8, 7: None}.get(st, 0)
    G.put(BARG, "s_waitcnt " + (f"vmcnt({vm}) " if vm is not None else "") + "lgkmcnt(0)", force=True); G.put(BARG, "s_barrier", force=True)
    nb = (st + 1) & 1
    newcarry = []
    if st < 7:
        for m in range(14):
            rs = rd_w(m, nb)
            p = 16 + 8*m + 8
            if m == 13: newcarry = rs
            else:
                for i, r in enumerate(rs): G.put(p + 2*i, r)
        ex = rd_e(nb) + rd_x(nb, nb)
    if st <= 5: dm = stage_dma(xb)
    elif st == 6: dm = kv_dma(0, aKD0, aVD0) + kv_dma(1, aKD0, aVD0)
    else: dm = kv_dma(2, aKD0, aVD0) + kv_dma(3, aKD0, aVD0)
    g = BARG + 1
    for x in dm:
        if 'lds' in x.split():
            while g % 4 != 3 or G.used(g) > 0: g += 1
            G.put(g, x); g += 1
        else:
            g = G.fit(g, x)
            if 'm0,' in x: g += 1
    if st < 7:
        g = 17
        for r in ex:
            while g % 4 != 1 or G.used(g) > 1: g += 1
            G.put(g, r); g += 1
        G.put(126, "s_waitcnt lgkmcnt(4)")
    tail = []
    if st == 7:
        rd, sts = w2_ops()
        g = 17
        for r in rd:
            while g % 4 != 1 or G.used(g) > 1: g += 1
            G.put(g, r); g += 1
    q = []
    for qt in range(4):
        for dw in range(8):
            w_ = XF + xb*32 + qt*8 + dw; t = TM + 2*(dw & 1)
            q += [f"v_lshlrev_b32 v{t}, 16, v{w_}", f"v_and_b32 v{t+1}, s{sMASK}, v{w_}",
                  f"v_fmac_f32 v{SQ+qt}, v{t}, v{t}", f"v_fmac_f32 v{SQ+qt}, v{t+1}, v{t+1}"]
    g = 0; left = []
    for x in q:
        r = G.fit(g, x)
        if r is None: left.append(x)
        else: g = r
    for x in left: G.put(127, x, force=True)
    return weave(mf, G.out()), newcarry

def xlane_reduce(op, x, t):
    return [f"v_mov_b32 v{t}, v{x}", "s_nop 1", f"v_permlane32_swap_b32 v{x}, v{t}", "s_nop 1", f"{op} v{x}, v{x}, v{t}",
            f"v_mov_b32 v{t}, v{x}", "s_nop 1", f"v_permlane16_swap_b32 v{x}, v{t}", "s_nop 1", f"{op} v{x}, v{x}, v{t}"]

def k1_post_gemm():
    L = []; e = L.append
    rd, sts = w2_ops()
    e("s_waitcnt lgkmcnt(0)")
    e(f"s_add_u32 s{sT1}, s{sT2}, {128*4096}")
    for it, x in sts: e(x)
    e(f"v_add_u32 v{TM}, s{sMX}, v{aCS}")
    e("s_nop 4")
    for tl in range(4): e(f"ds_write_b128 v{TM}, {a(CSA+tl*4,4)} offset:{64*tl}")
    MEAN, RS, CA, CB = 92, 96, 100, 104
    for qt in range(4): L += xlane_reduce("v_add_f32", SQ+qt, TM+1)
    for qt in range(4):
        e(f"v_mul_f32 v{MEAN+qt}, {f2u(1/512)}, v{SXA+qt*4}")
        e(f"v_mul_f32 v{TM+1}, v{MEAN+qt}, v{MEAN+qt}")
        e(f"v_mul_f32 v{TM+2}, {f2u(1/512)}, v{SQ+qt}")
        e(f"v_sub_f32 v{TM+2}, v{TM+2}, v{TM+1}")
        e(f"v_max_f32 v{TM+2}, 0, v{TM+2}")
        e(f"v_add_f32 v{TM+2}, {f2u(1e-5)}, v{TM+2}")
        e(f"v_rsq_f32 v{RS+qt}, v{TM+2}")
        e("s_nop 0")
        e(f"v_mul_f32 v{CA+qt}, {f2u(SCALE)}, v{RS+qt}")
        e(f"v_mul_f32 v{CB+qt}, v{MEAN+qt}, v{CA+qt}")
        e(f"v_sub_f32 v{CB+qt}, 0, v{CB+qt}")
    e("s_waitcnt lgkmcnt(0)"); e("s_barrier")
    CSQ = 32
    for i in range(4): e(f"v_mov_b32 v{64+i}, 0")
    CSG = 68
    CSQ = None
    for m in range(6):
        z, t = divmod(m, 3)
        e(f"ds_read_b128 {v(CSG+4*m,4)}, v{aCS} offset:{t*8192+(2+z)*64}")
    for i in range(8): e(f"v_mfma_f32_32x32x16_bf16 {a(16*i,16)}, v[64:67], v[64:67], 0")
    c0, c1 = 124, 108
    for sp in range(4):
        e(f"ds_read_b128 {v(c0,4)}, v{aCS} offset:{sp*8192}"); e(f"ds_read_b128 {v(c1,4)}, v{aCS} offset:{sp*8192+64}")
        for qt in range(4):
            for b in range(2):
                for r in range(4):
                    x = QACC + ((sp*2+b)*4+qt)*4 + r
                    e(f"v_mul_f32 v{x}, v{x}, v{CA+qt}")
        e("s_waitcnt lgkmcnt(0)")
        for qt in range(4):
            for b in range(2):
                x = QACC + ((sp*2+b)*4+qt)*4
                for r in range(4): e(f"v_fmac_f32 v{x+r}, v{(c0,c1)[b]+r}, v{CB+qt}")
                for h in range(2): e(f"v_cvt_pk_bf16_f32 v{QF+(qt*4+sp)*4+2*b+h}, v{x+2*h}, v{x+2*h+1}")
    LOG2E = 1.4426950408889634
    for qt in range(4):
        e(f"v_mul_f32 v{CA+qt}, {f2u(-LOG2E)}, v{RS+qt}")
        e(f"v_mul_f32 v{CB+qt}, v{MEAN+qt}, v{CA+qt}"); e(f"v_sub_f32 v{CB+qt}, 0, v{CB+qt}")
        e(f"v_mul_f32 v{MEAN+qt}, v{MEAN+qt}, v{RS+qt}"); e(f"v_sub_f32 v{MEAN+qt}, 0, v{MEAN+qt}")
    n = 0
    for t in range(3):
        for qt in range(4):
            G_ = 128 + (n % 4)*12; U_ = G_ + 4; H_ = G_ + 8; n += 1
            for r in range(4): e(f"v_accvgpr_read_b32 v{G_+r}, a{GUA+(t*4+qt)*4+r}")
            for r in range(4): e(f"v_accvgpr_read_b32 v{U_+r}, a{GUA+((3+t)*4+qt)*4+r}")
            for r in range(4): e(f"v_mul_f32 v{G_+r}, v{G_+r}, v{CA+qt}")
            for r in range(4): e(f"v_fmac_f32 v{G_+r}, v{CSG+4*t+r}, v{CB+qt}")
            for r in range(4): e(f"v_exp_f32 v{G_+r}, v{G_+r}")
            for r in range(4): e(f"v_mul_f32 v{U_+r}, v{U_+r}, v{RS+qt}")
            for r in range(4): e(f"v_add_f32 v{G_+r}, 1.0, v{G_+r}")
            for r in range(4): e(f"v_rcp_f32 v{G_+r}, v{G_+r}")
            for r in range(4): e(f"v_fmac_f32 v{U_+r}, v{CSG+12+4*t+r}, v{MEAN+qt}")
            for r in range(4): e(f"v_mul_f32 v{U_+r}, v{U_+r}, v{G_+r}")
            for h in range(2): e(f"v_cvt_pk_bf16_f32 v{H_+h}, v{U_+2*h}, v{U_+2*h+1}")
            e(f"buffer_store_dwordx2 {v(H_,2)}, v{aL16}, s[{SACT}:{SACT+3}], s{sH0+t} offen offset:{1024*qt}")
    l = vLANE
    for i in range(4): e(f"v_mov_b32 v{aKD+i}, v{aKD0+i}")
    for i in range(2): e(f"v_mov_b32 v{aVD+i}, v{aVD0+i}")
    e(f"v_mov_b32 v{aL16b}, v{aL16}"); e(f"v_mov_b32 v{vLANEb}, v{l}")
    t = T2
    e(f"v_and_b32 v{t}, 15, v{l}"); e(f"v_lshrrev_b32 v{t+1}, 4, v{l}"); e(f"v_lshrrev_b32 v{t+2}, 2, v{t}"); e(f"v_and_b32 v{t+3}, 3, v{l}")
    e(f"v_lshlrev_b32 v{t+4}, 8, v{t}")
    for s_ in range(4):
        e(f"v_add_u32 v{t+5}, {4*s_}, v{t+1}"); e(f"v_xor_b32 v{t+5}, v{t+5}, v{t}"); e(f"v_lshl_add_u32 v{aKR+s_}, v{t+5}, 4, v{t+4}")
    e(f"v_lshl_add_u32 v{t+4}, v{t+1}, 2, v{t+2}")
    e(f"v_and_b32 v{t+5}, 7, v{t+4}")
    e(f"v_lshlrev_b32 v{t+4}, 8, v{t+4}"); e(f"v_lshl_add_u32 v{t+4}, v{t+3}, 3, v{t+4}"); e(f"v_add_u32 v{t+4}, 65536, v{t+4}")
    for dt in range(8):
        e(f"v_xor_b32 v{t+6}, {dt}, v{t+5}"); e(f"v_lshl_add_u32 v{aVR+dt}, v{t+6}, 5, v{t+4}")
    for i in range(4): e(f"v_mov_b32 v{ONE2+i}, 0x3f803f80")
    return L

def rd_k(f, slot):
    kt, s_ = divmod(f, 4)
    return f"ds_read_b128 {v(KF+4*f,4)}, v{aKR+s_} offset:{slot*16384+kt*4096}"
def rd_v(buf, slot):
    return [f"ds_read_b64_tr_b16 {a(VF+buf*64+(dt*2+kk)*4+2*hh,2)}, v{aVR+dt} offset:{slot*16384+kk*8192+hh*4096}"
            for dt in range(8) for kk in range(2) for hh in range(2)]
def qk_mfmas(qt, kts=range(4), zero=False):
    L = []
    for kt in kts:
        for s_ in range(4):
            d = v(SB+4*kt, 4)
            c = ("0" if zero else v(NEGM+4*qt, 4)) if s_ == 0 else d
            L.append(f"{MF} {d}, {v(KF+(kt*4+s_)*4,4)}, {v(QF+(qt*4+s_)*4,4)}, {c}")
    return L
def pv_mfmas(qt, vb, pb):
    L = []
    for dt in range(8):
        d = a(OACC+(dt*4+qt)*4, 4)
        for kk in range(2): L.append(f"{MF} {d}, {a(VF+vb*64+(dt*2+kk)*4,4)}, {v(PB+pb*8+kk*4,4)}, {d}")
    d = v(LACC+4*qt, 4)
    for kk in range(2): L.append(f"{MF} {d}, {v(ONE2,4)}, {v(PB+pb*8+kk*4,4)}, {d}")
    return L
EXP = lambda e_: f"v_exp_f32 v{SB+e_}, v{SB+e_}"
CVT = lambda c, pb: f"v_cvt_pk_bf16_f32 v{PB+pb*8+c}, v{SB+2*c}, v{SB+2*c+1}"

def attn_step(jm, u):
    pb = u & 1
    mf = qk_mfmas((u+1) % 4) + pv_mfmas(u, jm & 1, pb)
    G = Gaps(34)
    for k, e_ in enumerate((13, 14, 15)): G.put(2*k, EXP(e_))
    G.put(1, CVT(6, pb)); G.put(5, CVT(7, pb))
    for e_ in range(13): G.put(8+2*e_, EXP(e_))
    for c in range(6): G.put(11+4*c, CVT(c, pb ^ 1))
    ns = (jm+1) % 4
    vr = rd_v((jm+1) & 1, ns)
    dm = kv_dma(jm, aKD, aVD)
    if u == 0:
        G.put(3, "s_waitcnt vmcnt(16) lgkmcnt(0)", force=True); G.put(3, "s_barrier", force=True)
        G.put(6, dm[0])
        for g, x in zip((9, 17, 25, 33), dm[1:5]): G.put(g, x)
        for g, x in zip((7, 11, 13, 15, 19, 21, 23, 27, 29, 31), vr[0:10]): G.put(g, x)
    elif u == 1:
        G.put(6, dm[5]);
        for g, x in zip((9, 17, 25, 33), dm[6:10]): G.put(g, x)
        for g, x in zip((1, 3, 5, 7, 11, 13, 15, 19, 21, 23, 27, 29, 31), vr[10:23]): G.put(g, x)
    elif u == 2:
        G.put(6, dm[10])
        for f in range(16): G.put(2*f+1, rd_k(f, ns))
        G.put(33, "s_waitcnt lgkmcnt(3)")
    else:
        G.put(6, "s_waitcnt lgkmcnt(3)")
        for g, x in zip((1, 3, 5, 7, 9, 11, 13, 15, 17), vr[23:32]): G.put(g, x)
    return weave(mf, G.out())

def attn_entry():
    L = []; e = L.append
    e("K1_ENTRY:")
    e("s_waitcnt vmcnt(24)"); e("s_barrier")
    for f in range(16): e(rd_k(f, 0))
    for i in range(16): e(f"v_mov_b32 v{LACC+i}, 0")
    e("s_waitcnt lgkmcnt(12)")
    e(f"s_cmp_lg_u32 s{sPASS}, 0"); e("s_cbranch_scc1 K1_HAVEMAX")
    for qt in range(4):
        for s_ in range(4):
            d = v(SB+4*qt, 4)
            e(f"{MF} {d}, {v(KF+s_*4,4)}, {v(QF+(qt*4+s_)*4,4)}, {'0' if s_ == 0 else d}")
    e("s_nop 7")
    for qt in range(4):
        b = SB+4*qt
        e(f"v_max3_f32 v{b}, v{b}, v{b+1}, v{b+2}"); e(f"v_max_f32 v{b}, v{b}, v{b+3}")
        L += xlane_reduce("v_max_f32", b, b+1)
        for r in range(4): e(f"v_sub_f32 v{NEGM+4*qt+r}, 0, v{b}")
    e("K1_HAVEMAX:")
    e("s_waitcnt lgkmcnt(0)")
    vr = rd_v(0, 0)
    mf = qk_mfmas(0)
    G = Gaps(16)
    for i, x in enumerate(vr): G.put(i // 2, x)
    L += weave(mf, G.out())
    e("s_nop 7")
    for e_ in range(13): e(EXP(e_))
    for c in range(6): e(CVT(c, 0))
    e(f"s_mov_b32 s{sCNT}, 0")
    return L

def attn_loop():
    L = []
    for jm in range(4):
        for u in range(4): L += attn_step(jm, u)
    return L

def attn_epilogue():
    L = []; e = L.append
    e("s_nop 7")
    for qt in range(4): e(f"v_rcp_f32 v{LACC+4*qt+1}, v{LACC+4*qt}")
    e(f"s_lshl_b32 s{sT0}, s{sHEAD}, 14")
    n = 0
    for i in range(4):
        for qt in range(4):
            t = KF + (n % 4)*12; n += 1
            for b in range(2):
                for r in range(4): e(f"v_accvgpr_read_b32 v{t+4*b+r}, a{OACC+((2*i+b)*4+qt)*4+r}")
            for k in range(8): e(f"v_mul_f32 v{t+k}, v{t+k}, v{LACC+4*qt+1}")
            for k in range(4): e(f"v_cvt_pk_bf16_f32 v{t+8+k}, v{t+2*k}, v{t+2*k+1}")
            e(f"buffer_store_dwordx4 {v(t+8,4)}, v{aL16b}, s[{SACT}:{SACT+3}], s{sT0} offen offset:{1024*qt}")
        e(f"s_add_u32 s{sT0}, s{sT0}, 4096")
    return L

def k1():
    pre = k1_setup() + with_m0_nops(stage_dma(0)) + with_m0_nops(stage_dma(1)) + k1_setup2()
    pre += stamp(8)
    pre += [f"s_waitcnt vmcnt({23 + (1 if OPT['stamp'] else 0)})", "s_barrier"]
    pre += stamp(8)
    rs = rd_x(0, 0) + rd_e(0) + sum((rd_w(m, 0) for m in range(14)), [])
    pre += rs + ["s_waitcnt lgkmcnt(15)"]
    carry = []
    for st in range(8):
        ph, carry = gemm_phase(st, carry)
        n, over, bad = gap_report(ph)
        print(f"; gemm phase {st}: gaps {n} over {over} bad {bad}", file=sys.stderr)
        pre += ph
    pre += stamp(122)
    pre += k1_post_gemm()
    pre += stamp(T2)
    pre += attn_entry()
    pre += stamp(T2)
    body = attn_loop()
    n, over, bad = gap_report(body)
    print(f"; attn loop: gaps {n} over {over} bad {bad}", file=sys.stderr)
    ctl = [f"s_add_u32 s{sCNT}, s{sCNT}, 1", f"s_cmp_lt_u32 s{sCNT}, 8", "s_cbranch_scc1 K1_LOOP"]
    post = stamp(T2) + attn_epilogue() + stamp(T2)
    if OPT['stamp']: post += ["s_waitcnt vmcnt(0)"] + stamp(T2)
    errs = check(pre + body + ctl + body + ctl + post, 'k1')
    assert not errs
    return pre + [".p2align 6", "K1_LOOP:"] + body + ctl + post + ["K1_END:", "s_endpgm"]

def k2():
    L = []; e = L.append
    NB = 7
    ACC = 0
    e("s_cmp_ge_u32 s2, 256"); e("s_cbranch_scc1 K2_END")
    e("s_load_dwordx2 s[64:65], s[0:1], 0"); e("s_load_dwordx2 s[66:67], s[0:1], 72"); e("s_load_dwordx2 s[68:69], s[0:1], 88")
    e("v_lshrrev_b32 v1, 6, v0"); e("v_and_b32 v2, 63, v0"); e("v_readfirstlane_b32 s3, v1")
    e("s_and_b32 s6, s2, 7"); e("s_lshr_b32 s7, s2, 3")
    e("s_lshl_b32 s4, s6, 2"); e("s_and_b32 s6, s7, 3"); e("s_add_u32 s4, s4, s6")
    e("s_lshr_b32 s5, s7, 2")
    e("v_lshlrev_b32 v1, 4, v2")
    e("s_mul_i32 s6, s3, 43"); e("s_min_u32 s6, s6, 128"); e("s_lshl_b32 s6, s6, 12")
    e(f"s_mov_b32 s7, {43*4096}"); e("s_cmp_eq_u32 s3, 2"); e(f"s_cselect_b32 s7, {42*4096}, s7")
    e("s_waitcnt lgkmcnt(0)")
    e(f"s_mul_i32 s20, s4, {ACT_RB}"); e("s_add_u32 s20, s20, s6"); e("s_add_u32 s70, s68, s20"); e("s_addc_u32 s71, s69, 0")
    L += srd(8, 70, 71, 0); e("s_mov_b32 s10, s7")
    e(f"s_mul_i32 s20, s5, {ACT_RB}"); e("s_add_u32 s20, s20, s6"); e(f"s_add_u32 s20, s20, {WT_OFF}")
    e("s_add_u32 s70, s68, s20"); e("s_addc_u32 s71, s69, 0")
    L += srd(12, 70, 71, 0); e("s_mov_b32 s14, s7")
    L += srd(16, 64, 65, 2048*1024) + srd(24, 66, 67, 2048*1024)
    if OPT['stamp']:
        e(f"s_add_u32 s74, s68, {STAMP_OFF + (1<<19)}"); e("s_addc_u32 s75, s69, 0")
        L += srd(SST, 74, 75, 1 << 19)
        e("s_lshl_b32 s6, s2, 2"); e("s_add_u32 s6, s6, s3"); e(f"s_lshl_b32 s{sSTo}, s6, 8")
        stamp_n[0] = 0
        L += stamp(8)
    e("s_mov_b32 s20, 0")
    BUF = 16
    def loads(k):
        b = BUF + (k % NB)*32
        X = []
        for i in range(4):
            X.append(f"buffer_load_dwordx4 {v(b+4*i,4)}, v1, s[12:15], s20 offen offset:{1024*i}")
            X.append(f"buffer_load_dwordx4 {v(b+16+4*i,4)}, v1, s[8:11], s20 offen offset:{1024*i}")
        X.append("s_add_u32 s20, s20, 4096")
        return X
    for k in range(NB): L += loads(k)
    e("v_and_b32 v3, 15, v2"); e("v_lshrrev_b32 v4, 4, v2")
    e("s_lshl_b32 s21, s4, 2"); e("s_add_u32 s21, s21, s3"); e("s_lshl_b32 s21, s21, 14"); e("s_lshl_b32 s22, s5, 7"); e("s_add_u32 s21, s21, s22")
    e("v_lshlrev_b32 v3, 10, v3"); e("v_lshl_add_u32 v3, v4, 3, v3")
    for ct in range(4): e(f"buffer_load_dwordx2 {v(8+2*ct,2)}, v3, s[16:19], s21 offen offset:{32*ct}")
    e("s_lshl_b32 s22, s3, 14"); e("v_add_u32 v5, s22, v1")
    e("s_lshl_b32 s22, s3, 12"); e("v_add_u32 v6, s22, v1")
    for k in range(43):
        outstanding_after = 8 * min(NB - 1, 42 - k) + (4 if k < NB else 0)
        e(f"s_waitcnt vmcnt({outstanding_after})")
        b = BUF + (k % NB)*32
        mf = []
        for ct in range(4):
            for qt in range(4):
                d = a(ACC+(ct*4+qt)*4, 4)
                mf.append(f"{MF} {d}, {v(b+4*ct,4)}, {v(b+16+4*qt,4)}, {'0' if k == 0 else d}")
        L += mf
        if k + NB < 43: L += loads(k + NB)
    L += stamp(240)
    e("s_nop 7")
    for ct in range(4):
        for qt in range(4): e(f"ds_write_b128 v5, {a(ACC+(ct*4+qt)*4,4)} offset:{(qt*4+ct)*1024}")
    e("s_waitcnt lgkmcnt(0)"); e("s_barrier")
    for ct in range(4):
        for w in range(4): e(f"ds_read_b128 {v(16+ct*16+4*w,4)}, v6 offset:{w*16384+ct*1024}")
    for ct in range(4):
        b = 16 + ct*16
        e(f"s_waitcnt lgkmcnt({12-4*ct})")
        for r in range(4): e(f"v_mul_f32 v{80+r}, {f2u(-1.4426950408889634)}, v{b+12+r}")
        for r in range(4): e(f"v_exp_f32 v{80+r}, v{80+r}")
        for r in range(4): e(f"v_add_f32 v{b+r}, v{b+r}, v{b+4+r}")
        for r in range(4): e(f"v_add_f32 v{80+r}, 1.0, v{80+r}")
        for r in range(4): e(f"v_rcp_f32 v{80+r}, v{80+r}")
        for r in range(4): e(f"v_add_f32 v{b+r}, v{b+r}, v{b+8+r}")
        for r in range(4): e(f"v_mul_f32 v{80+r}, v{80+r}, v{b+12+r}")
        e(f"v_lshlrev_b32 v84, 16, v{8+2*ct}"); e(f"v_and_b32 v85, 0xffff0000, v{8+2*ct}")
        e(f"v_lshlrev_b32 v86, 16, v{9+2*ct}"); e(f"v_and_b32 v87, 0xffff0000, v{9+2*ct}")
        for r in range(4): e(f"v_fmac_f32 v{84+r}, v{b+r}, v{80+r}")
        e(f"v_cvt_pk_bf16_f32 v{b}, v84, v85"); e(f"v_cvt_pk_bf16_f32 v{b+1}, v86, v87")
        e(f"buffer_store_dwordx2 {v(b,2)}, v3, s[24:27], s21 offen offset:{32*ct}")
    if OPT['stamp']: L += ["s_waitcnt vmcnt(0)"] + stamp(240)
    errs = check(L, 'k2')
    assert not errs
    return L + ["K2_END:", "s_endpgm"]

def kd(name, nv, acc, ns=102):
    return f""".amdhsa_kernel {name}
  .amdhsa_next_free_vgpr {nv}
  .amdhsa_next_free_sgpr {ns}
  .amdhsa_accum_offset {acc}
  .amdhsa_group_segment_fixed_size 0
  .amdhsa_kernarg_size 96
  .amdhsa_user_sgpr_count 2
  .amdhsa_user_sgpr_kernarg_segment_ptr 1
  .amdhsa_system_sgpr_workgroup_id_x 1
.end_amdhsa_kernel
"""
def fmt(L): return "\n".join(x if (x.endswith(':') or x.startswith('.')) else "    " + x for x in L)

HEAD = """; Fused LayerNorm + Q-projection + GLU-up + attention (kernel 1) and out/down projection + gating (kernel 2).
; @launch kernel=attn_kernel grid=(256,1,1) block=(256,1,1) lds=163840
; @launch kernel=outp_kernel grid=(256,1,1) block=(256,1,1) lds=65536
.amdgcn_target "amdgcn-amd-amdhsa--gfx950"
.text
"""
def kern(name, L):
    return f".globl {name}\n.p2align 8\n.type {name},@function\n{name}:\n" + fmt(L) + "\n"
src = HEAD + kern("attn_kernel", k1()) + kern("outp_kernel", k2())
src += '.section .rodata,"a"\n.p2align 6\n' + kd("attn_kernel", 512, 256) + ".p2align 6\n" + kd("outp_kernel", 320, 256)
open(sys.argv[1], "w").write(src)
```

```python
import sys, os, struct
sys.path.insert(0, os.path.dirname(os.path.abspath(__file__)))
from asmlib import *

OPT = dict(stamp=0, pf=0, wgap=4, thr=40, cpf=1, inv=0, wb=0)
for arg in sys.argv[2:]:
    k_, v_ = arg.split('='); OPT[k_] = int(v_)

MF = "v_mfma_f32_16x16x32_bf16"
EP = "" if OPT["wb"] else " sc1"
TW, TB, TC = 2, 3, 5
NKS = 171
ACT_RB = NKS * 4096
WT_OFF = 24 << 20
FLAG_OFF = 31 << 20
PART_OFF = 32 << 20
STAMP_OFF = 64 << 20
LOG2E = 1.4426950408889634
SCALE = LOG2E / (128 ** 0.5)
def f2u(x): return "0x%08x" % struct.unpack('<I', struct.pack('<f', x))[0]

sW, sHEAD, sQB = 3, 4, 5
SK, SV, SX, SWQ, SGU, SACT, SWO, SWD, SWT = 8, 12, 16, 20, 24, 28, 32, 36, 40
sX0, sX1, sWQo, sGUo, sKV = 44, 45, 46, 47, 48
sMX, sMWQ, sMGU, sMKV, sMW2 = 49, 50, 51, 52, 53
sCNT, sMASK, sT0, sT1, sT2, sPASS = 54, 55, 56, 57, 58, 59
sH0 = 60
sW2S = 63
SST = 88
sSTo = 92
sXP, sA2, sW2, sP2, sFL, sDB, sOUT = 64, 66, 68, 70, 72, 84, 82
sSP, sSZ2, sXO, sFMASK, sFQB = 74, 75, 76, 77, 78
P2ACT, P2WT, P2PART, SFLAG, SDBG, P2X, P2OUT = 16, 20, 24, 32, 36, 8, 12
vD1 = 114
def srd(d, lo, hi, size):
    return [f"s_mov_b32 s{d}, s{lo}", f"s_mov_b32 s{d+1}, s{hi}", f"s_mov_b32 s{d+2}, {size}", f"s_mov_b32 s{d+3}, 0x00020000"]

stamp_n = [0]
def stamp(tmpv):
    if not OPT['stamp']: return []
    n = stamp_n[0]; stamp_n[0] += 1
    return ["s_memtime s[94:95]", "s_memrealtime s[96:97]", "s_waitcnt lgkmcnt(0)",
            f"v_mov_b32 v{tmpv}, s94", f"v_mov_b32 v{tmpv+1}, s96", "s_nop 1",
            f"buffer_store_dwordx2 v[{tmpv}:{tmpv+1}], off, s[{SST}:{SST+3}], s{sSTo} offset:{n*8}", "s_nop 1"]

class Gaps:
    def __init__(self, n, cap=2):
        self.pre = [[] for _ in range(n)]
        self.post = [[] for _ in range(n)]
        self.cap = cap; self.n = n
    def used(self, g): return sum(UNITS[Ins(x).kind] for x in self.pre[g] + self.post[g])
    def put(self, g, text, force=False):
        k = Ins(text).kind
        assert force or self.used(g) + UNITS[k] <= self.cap, (g, text, self.pre[g], self.post[g])
        (self.post if k in ('valu', 'trans') else self.pre)[g].append(text)
    def fit(self, g0, text, g1=None):
        k = UNITS[Ins(text).kind]
        for g in range(g0, self.n if g1 is None else g1):
            if self.used(g) + k <= self.cap:
                self.put(g, text); return g
        return None
    def out(self): return [p + q for p, q in zip(self.pre, self.post)]

XF = 0
SXA = 64
SQ = 80; TM = 84; aWQR = 88; ONES = 96
aXD = 100; aWQD = 104; aGUD = 108; aXR = 112; aWQC = 114; aGUR = 116; aGUC = 117
aL16 = 118; aCS = 119; aKD = 120; aVD = 124; vLANE = 126; vSP = 127; aGUR2 = 127
QACC = 128
WF = 0; CSA = 112; GUA = 128; EF = 224
QF = 0; KF = 128; SB = 192; PB = 208; NEGM = 224; LACC = 240
aKR = 100; aVR = 104; aW2R = 112; T2 = 64
OACC = 0; VF = 128

def k1_setup():
    L = []; e = L.append
    e("s_cmp_ge_u32 s2, 256"); e("s_cbranch_scc1 K1_END")
    if OPT['stamp']: e("s_memtime s[98:99]"); e("s_memrealtime s[100:101]")
    e("s_load_dwordx16 s[64:79], s[0:1], 0"); e("s_load_dwordx8 s[80:87], s[0:1], 64")
    l = vLANE
    e("v_lshrrev_b32 v1, 6, v0"); e(f"v_and_b32 v{l}, 63, v0"); e(f"v_readfirstlane_b32 s{sW}, v1")
    e("s_and_b32 s6, s2, 7"); e("s_lshr_b32 s7, s2, 3")
    e(f"s_lshl_b32 s{sHEAD}, s6, 2"); e(f"s_and_b32 s{sT0}, s7, 3"); e(f"s_add_u32 s{sHEAD}, s{sHEAD}, s{sT0}")
    e(f"s_lshr_b32 s{sQB}, s7, 2")
    e(f"v_and_b32 v1, 15, v{l}"); e(f"v_lshrrev_b32 v2, 4, v{l}"); e("v_lshrrev_b32 v3, 2, v1"); e(f"v_and_b32 v4, 3, v{l}")
    e(f"v_lshrrev_b32 v5, 3, v{l}"); e(f"v_and_b32 v6, 7, v{l}")
    if OPT['pf']:
        e(f"s_lshl_b32 s{sT0}, s7, 2"); e(f"s_add_u32 s{sT0}, s{sT0}, s{sW}"); e(f"s_lshl_b32 s{sT0}, s{sT0}, 14")
        e("v_lshlrev_b32 v12, 10, v1"); e("v_lshl_add_u32 v12, v2, 7, v12")
        e("v_lshlrev_b32 v13, 13, v5"); e("v_lshl_add_u32 v13, v6, 7, v13")
        e(f"v_lshrrev_b32 v14, 2, v{l}"); e("v_mul_u32_u24 v14, 2752, v14"); e("v_lshlrev_b32 v15, 7, v4"); e("v_min_u32 v15, 380, v15"); e("v_add_u32 v14, v14, v15")
        e(f"s_cmp_ge_u32 s{sW}, 2"); e("s_cselect_b64 vcc, -1, 0")
        e(f"s_lshl_b32 s{sT1}, s7, 1"); e(f"s_add_u32 s{sT1}, s{sT1}, s{sW}"); e(f"s_lshl_b32 s{sT1}, s{sT1}, 16"); e(f"s_lshl_b32 s{sT2}, s6, 10"); e(f"s_add_u32 s{sT1}, s{sT1}, s{sT2}")
        e(f"s_mul_i32 s{sT2}, s7, {16*2752}"); e(f"s_mul_i32 s{sCNT}, s6, 384"); e(f"s_add_u32 s{sT2}, s{sT2}, s{sCNT}")
        e("v_cndmask_b32 v13, v13, v14, vcc")
        e(f"s_cmp_ge_u32 s{sW}, 2"); e(f"s_cselect_b32 s{sT1}, s{sT2}, s{sT1}")
    e("s_waitcnt lgkmcnt(0)")
    if OPT['pf']:
        L += srd(SX, 64, 65, 2048*1024)
        e(f"s_cmp_eq_u32 s{sW}, 3"); e(f"s_cselect_b32 s{SGU}, s78, s76"); e(f"s_cselect_b32 s{SGU+1}, s79, s77")
        e(f"s_cmp_ge_u32 s{sW}, 2"); e(f"s_cselect_b32 s{SGU}, s{SGU}, s70"); e(f"s_cselect_b32 s{SGU+1}, s{SGU+1}, s71")
        e(f"s_mov_b32 s{SGU+2}, {512*8192}"); e(f"s_cselect_b32 s{SGU+2}, {512*2752}, s{SGU+2}"); e(f"s_mov_b32 s{SGU+3}, 0x00020000")
        if OPT['pf'] <= 2:
            e(f"buffer_load_dword v{vSP}, v13, s[{SGU}:{SGU+3}], s{sT1} offen")
            e(f"buffer_load_dword v16, v12, s[{SX}:{SX+3}], s{sT0} offen")
        else:
            for i in range(3): e(f"s_mov_b32 s{SWD+i}, s{SGU+i}")
            e(f"s_mov_b32 s{SWD+3}, 0x00020000")
        if OPT['pf'] == 1: e(f"buffer_load_dword v17, v12, s[{SX}:{SX+3}], s{sT0} offen offset:512")
        else: L += srd(SWO, 64, 65, 2048*1024)
    e("v_lshlrev_b32 v7, 1, v2"); e("v_xor_b32 v7, v7, v1")
    e(f"s_lshl_b32 s6, s{sW}, 4"); e("v_add_u32 v8, s6, v2"); e("v_lshlrev_b32 v9, 13, v8")
    for i in range(4):
        e(f"v_xor_b32 v10, {8*(i>>1)}, v7"); e("v_lshl_add_u32 v10, v10, 4, v9"); e(f"v_add_u32 v{aWQD+i}, {31744*i}, v10")
    e(f"s_lshl_b32 s6, s{sHEAD}, 8"); e("s_add_u32 s70, s70, s6"); e("s_addc_u32 s71, s71, 0")
    L += srd(SWQ, 70, 71, 0); e(f"s_sub_u32 s{SWQ+2}, {512*8192}, s6")
    e(f"s_and_b32 s6, s{sW}, 1"); e(f"s_mul_i32 s6, s6, {32*2752}"); e("s_movk_i32 s7, 2752")
    for par in range(2):
        e(f"v_subrev_u32 v9, {8*par}, v{l}"); e("v_cmp_gt_u32 vcc, 48, v9")
        e("v_mul_u32_u24 v10, 171, v9"); e("v_lshrrev_b32 v10, 10, v10")
        e("v_mul_u32_u24 v11, 6, v10"); e("v_sub_u32 v11, v9, v11"); e("v_lshlrev_b32 v11, 4, v11")
        e("v_mad_u32_u24 v11, v10, s7, v11"); e("v_add_u32 v11, s6, v11"); e("v_mov_b32 v10, 0x40000000")
        e("v_cndmask_b32 v11, v10, v11, vcc")
        for i in (par, par+2): e(f"v_add_u32 v{aGUD+i}, {(8*2752-1024)*i}, v11")
    e(f"s_cmp_ge_u32 s{sW}, 2"); e("s_cselect_b32 s76, s78, s76"); e("s_cselect_b32 s77, s79, s77")
    e(f"s_mul_i32 s6, s{sHEAD}, 96"); e("s_add_u32 s76, s76, s6"); e("s_addc_u32 s77, s77, 0")
    L += srd(SGU, 76, 77, 0); e(f"s_sub_u32 s{SGU+2}, {512*2752}, s6")
    e("v_lshrrev_b32 v7, 1, v5"); e("v_xor_b32 v7, v7, v6"); e("v_lshlrev_b32 v8, 10, v5")
    for i in range(4):
        e(f"v_xor_b32 v9, {4*(i&1)}, v7"); e("v_lshl_add_u32 v9, v9, 4, v8"); e(f"v_add_u32 v{aXD+i}, {7168*i}, v9")
    e(f"s_lshl_b32 s6, s{sQB}, 2"); e(f"s_add_u32 s6, s6, s{sW}")
    e("s_lshl_b32 s7, s6, 16"); e("s_add_u32 s74, s64, s7"); e("s_addc_u32 s75, s65, 0")
    L += srd(SX, 74, 75, 65536)
    e(f"s_lshl_b32 s{sMX}, s{sW}, 13"); e(f"s_lshl_b32 s{sMKV}, s{sW}, 12"); e(f"s_add_u32 s{sMWQ}, s{sMKV}, 65536")
    e(f"s_add_u32 s{sMGU}, s{sMKV}, 81920"); e(f"s_add_u32 s{sMW2}, s{sMX}, 131072")
    e(f"s_mov_b32 s{sX0}, 0"); e(f"s_mov_b32 s{sX1}, 32768"); e(f"s_mov_b32 s{sWQo}, 0"); e(f"s_mov_b32 s{sGUo}, 0")
    return L

def dma_w(buf):
    o = buf * 32768
    L = [f"s_add_u32 m0, s{sMWQ}, {o}"]
    for i in range(4): L.append(f"buffer_load_dwordx4 v{aWQD+i}, s[{SWQ}:{SWQ+3}], s{sWQo} offen offset:{1024*i} lds")
    L.append(f"s_add_u32 m0, s{sMGU}, {o}")
    for i in range(4): L.append(f"buffer_load_dwordx4 v{aGUD+i}, s[{SGU}:{SGU+3}], s{sGUo} offen offset:{1024*i} lds")
    L += [f"s_add_u32 s{sWQo}, s{sWQo}, {64*8192}", f"s_add_u32 s{sGUo}, s{sGUo}, {64*2752}"]
    return L
def dma_x(buf):
    o = buf * 32768
    L = [f"s_add_u32 m0, s{sMX}, {o}"]
    for i in range(4): L.append(f"buffer_load_dwordx4 v{aXD+i}, s[{SX}:{SX+3}], s{sX0} offen offset:{1024*i} lds")
    L.append(f"s_add_u32 m0, s{sMX}, {o+4096}")
    for i in range(4): L.append(f"buffer_load_dwordx4 v{aXD+i}, s[{SX}:{SX+3}], s{sX1} offen offset:{1024*i} lds")
    L += [f"s_add_u32 s{sX0}, s{sX0}, 128", f"s_add_u32 s{sX1}, s{sX1}, 128"]
    return L
def with_m0_nops(L):
    out = []
    for x in L:
        out.append(x)
        if 'm0,' in x: out.append("s_nop 0")
    return out
def kv_dma(slot):
    L = [f"s_add_u32 m0, s{sMKV}, {slot*16384}"]
    for i in range(4): L.append(f"buffer_load_dwordx4 v{aKD+i}, s[{SK}:{SK+3}], s{sKV} offen offset:{1024*i} lds")
    L.append(f"s_add_u32 m0, s{sMKV}, {65536+slot*16384}")
    for i in range(4): L.append(f"buffer_load_dwordx4 v{aVD+(i&1)}, s[{SV}:{SV+3}], s{sKV} offen offset:{1024*i} lds")
    L.append(f"s_add_u32 s{sKV}, s{sKV}, 16384")
    return L

def k1_setup2():
    L = []; e = L.append; l = vLANE
    e(f"s_lshl_b32 s6, s{sHEAD}, 19")
    e("s_add_u32 s66, s66, s6"); e("s_addc_u32 s67, s67, 0"); e("s_add_u32 s68, s68, s6"); e("s_addc_u32 s69, s69, 0")
    L += srd(SK, 66, 67, 524288) + srd(SV, 68, 69, 524288)
    e(f"s_lshl_b32 s6, s{sQB}, 2"); e(f"s_add_u32 s6, s6, s{sW}")
    e(f"s_mul_i32 s7, s6, {ACT_RB}"); e("s_add_u32 s74, s86, s7"); e("s_addc_u32 s75, s87, 0")
    L += srd(SACT, 74, 75, ACT_RB)
    L += srd(SWO, 72, 73, 4096*1024) + srd(SWD, 80, 81, 1376*1024)
    e("s_lshl_b32 s6, s2, 2"); e(f"s_add_u32 s6, s6, s{sW}"); e("s_and_b32 s7, s6, 7"); e("s_lshr_b32 s6, s6, 3")
    e(f"s_mul_i32 s{sT0}, s7, {ACT_RB}"); e(f"s_add_u32 s{sT0}, s{sT0}, {WT_OFF}")
    e(f"s_add_u32 s74, s86, s{sT0}"); e("s_addc_u32 s75, s87, 0")
    L += srd(SWT, 74, 75, ACT_RB)
    e(f"s_lshl_b32 s{sW2S}, s6, 15"); e("s_lshl_b32 s7, s7, 7"); e(f"s_add_u32 s{sW2S}, s{sW2S}, s7")
    e(f"s_lshl_b32 s{sT2}, s6, 12")
    e("v_lshrrev_b32 v7, 1, v1"); e("v_lshlrev_b32 v8, 7, v1"); e(f"v_add_u32 v8, s{sMX}, v8")
    for ks in range(2):
        e(f"v_add_u32 v9, {4*ks}, v2"); e("v_xor_b32 v9, v9, v7"); e(f"v_lshl_add_u32 v{aXR+ks}, v9, 4, v8")
    e("v_lshl_add_u32 v7, v2, 3, v3")
    e("v_lshlrev_b32 v8, 8, v7"); e("v_lshl_add_u32 v8, v4, 3, v8"); e("v_add_u32 v8, 65536, v8")
    e("v_and_b32 v10, 1, v2"); e("v_lshl_add_u32 v11, v10, 2, v3")
    for t in range(8):
        e(f"v_xor_b32 v9, {t}, v11"); e(f"v_lshl_add_u32 v{aWQR+t}, v9, 5, v8")
    e(f"s_lshl_b32 s6, s{sW}, 1"); e("v_xor_b32 v9, s6, v11"); e(f"v_lshl_add_u32 v{aWQC}, v9, 5, v8")
    e("v_xor_b32 v9, 1, v9"); e(f"v_lshl_add_u32 v{aWQC+1}, v9, 5, v8")
    e("v_mul_u32_u24 v8, 96, v3"); e("v_lshl_add_u32 v8, v4, 3, v8"); e("v_lshl_add_u32 v8, v2, 10, v8"); e("v_lshl_add_u32 v8, v10, 7, v8")
    e(f"s_and_b32 s6, s{sHEAD}, 1"); e("s_lshl_b32 s7, s6, 5"); e("s_add_u32 s7, s7, 81920"); e(f"v_add_u32 v{aGUR}, s7, v8")
    e("s_lshl_b32 s6, s6, 6"); e(f"s_sub_u32 s6, {81920+64}, s6"); e(f"v_add_u32 v{aGUR2}, s6, v8")
    e(f"s_lshl_b32 s{sT0}, s{sW}, 5"); e(f"s_add_u32 s7, s7, s{sT0}"); e(f"s_cmp_ge_u32 s{sW}, 2"); e("s_cselect_b32 s7, s6, s7"); e(f"v_add_u32 v{aGUC}, s7, v8")
    e(f"v_lshlrev_b32 v{aL16}, 4, v{l}")
    e(f"s_lshl_b32 s6, s{sW}, 4"); e("v_add_u32 v8, s6, v2"); e("v_lshlrev_b32 v8, 8, v8")
    e("v_xor_b32 v9, v1, v2")
    for i in range(4):
        e(f"v_xor_b32 v10, {4*i}, v9"); e(f"v_lshl_add_u32 v{aKD+i}, v10, 4, v8")
    e("v_lshlrev_b32 v9, 1, v2"); e("v_xor_b32 v9, v9, v1")
    for i in range(2):
        e(f"v_xor_b32 v10, {8*i}, v9"); e(f"v_lshl_add_u32 v{aVD+i}, v10, 4, v8")
    e(f"v_lshlrev_b32 v{aCS}, 4, v2"); e(f"v_add_u32 v{aCS}, 131072, v{aCS}")
    e(f"s_mov_b32 s{sKV}, 0"); e(f"s_mov_b32 s{sMASK}, 0xffff0000"); e(f"s_mov_b32 s{sPASS}, 0")
    for i in range(4): e(f"v_mov_b32 v{ONES+i}, 0x3f803f80")
    for i in range(4): e(f"v_mov_b32 v{SQ+i}, 0")
    e(f"s_mul_i32 s6, s{sHEAD}, 3"); e(f"s_and_b32 s7, s{sHEAD}, 1")
    e(f"s_add_u32 s{sH0}, s6, s7"); e(f"s_lshr_b32 s{sH0}, s{sH0}, 1"); e(f"s_add_u32 s{sH0}, s{sH0}, 128"); e(f"s_lshl_b32 s{sH0}, s{sH0}, 12")
    e("s_add_u32 s6, s6, 2"); e("s_lshl_b32 s7, s7, 1"); e("s_sub_u32 s6, s6, s7")
    e(f"s_lshr_b32 s{sH0+1}, s6, 1"); e(f"s_add_u32 s{sH0+1}, s{sH0+1}, 128"); e(f"s_lshl_b32 s{sH0+1}, s{sH0+1}, 12")
    e("s_and_b32 s6, s6, 1"); e("s_lshl_b32 s6, s6, 3"); e(f"s_add_u32 s{sH0+1}, s{sH0+1}, s6")
    if OPT['stamp']:
        e(f"s_add_u32 s74, s86, {STAMP_OFF}"); e("s_addc_u32 s75, s87, 0")
        L += srd(SST, 74, 75, 1 << 20)
        e("s_lshl_b32 s6, s2, 2"); e(f"s_add_u32 s6, s6, s{sW}"); e(f"s_lshl_b32 s{sSTo}, s6, 8")
    e("s_and_b32 s6, s2, 7"); e("s_lshr_b32 s7, s2, 3"); e(f"s_and_b32 s{sSP}, s6, 3")
    e("s_lshr_b32 s79, s6, 2"); e("s_lshl_b32 s79, s79, 3"); e("s_and_b32 s6, s7, 7"); e("s_add_u32 s79, s79, s6"); e("s_lshr_b32 s80, s7, 3")
    e(f"s_mul_i32 s6, s{sSP}, 43"); e("s_min_u32 s6, s6, 128"); e(f"s_lshr_b32 s7, s{sW}, 1"); e("s_add_u32 s6, s6, s7"); e("s_lshl_b32 s6, s6, 12")
    e(f"s_cmp_eq_u32 s{sSP}, 2"); e(f"s_cselect_b32 s{sSZ2}, 42, 43"); e(f"s_sub_u32 s{sSZ2}, s{sSZ2}, s7"); e(f"s_lshl_b32 s{sSZ2}, s{sSZ2}, 12")
    e(f"s_and_b32 s7, s{sW}, 1")
    e("s_lshl_b32 s81, s79, 1"); e("s_add_u32 s81, s81, s7"); e(f"s_mul_i32 s81, s81, {ACT_RB}"); e("s_add_u32 s81, s81, s6")
    e(f"s_add_u32 s{sA2}, s86, s81"); e(f"s_addc_u32 s{sA2+1}, s87, 0")
    e("s_lshl_b32 s81, s80, 1"); e("s_add_u32 s81, s81, s7"); e(f"s_mul_i32 s81, s81, {ACT_RB}"); e("s_add_u32 s81, s81, s6"); e(f"s_add_u32 s81, s81, {WT_OFF}")
    e(f"s_add_u32 s{sW2}, s86, s81"); e(f"s_addc_u32 s{sW2+1}, s87, 0")
    e("s_lshl_b32 s81, s79, 2"); e("s_add_u32 s81, s81, s80"); e("s_lshl_b32 s81, s81, 17"); e(f"s_lshl_b32 s6, s{sW}, 11"); e("s_add_u32 s81, s81, s6")
    e(f"s_add_u32 s81, s81, {PART_OFF}"); e(f"s_add_u32 s{sP2}, s86, s81"); e(f"s_addc_u32 s{sP2+1}, s87, 0")
    e(f"s_add_u32 s{sFL}, s86, {FLAG_OFF}"); e(f"s_addc_u32 s{sFL+1}, s87, 0")
    e("s_lshl_b32 s81, s79, 1"); e(f"s_lshr_b32 s6, s{sW}, 1"); e("s_add_u32 s81, s81, s6"); e("s_lshl_b32 s81, s81, 2"); e(f"s_add_u32 s81, s81, s{sSP}"); e("s_lshl_b32 s81, s81, 14")
    e("s_lshl_b32 s6, s80, 1"); e("s_add_u32 s6, s6, s7"); e("s_lshl_b32 s6, s6, 7"); e(f"s_add_u32 s{sXO}, s81, s6")
    e(f"s_mov_b32 s{sFMASK}, 0x000007ff"); e(f"s_cmp_eq_u32 s{sSP}, 1"); e(f"s_cselect_b32 s{sFMASK}, 0x003ffc00, s{sFMASK}")
    e(f"s_cmp_eq_u32 s{sSP}, 2"); e(f"s_cselect_b32 s{sFMASK}, 0xffe00000, s{sFMASK}"); e(f"s_cmp_eq_u32 s{sSP}, 3"); e(f"s_cselect_b32 s{sFMASK}, 0, s{sFMASK}")
    e(f"s_lshr_b32 s{sFQB}, s79, 1"); e(f"s_lshl_b32 s{sFQB}, s{sFQB}, 7")
    return L

def rd_x(buf):
    return [f"ds_read_b128 {v(XF+buf*32+(qt*2+ks)*4,4)}, v{aXR+ks} offset:{buf*32768+2048*qt}" for qt in range(4) for ks in range(2)]
def rd_w(m, lb):
    L = []
    for ks in range(2):
        for hh in range(2):
            d = a(WF+(m*2+ks)*4+2*hh, 2)
            if m < 8: L.append(f"ds_read_b64_tr_b16 {d}, v{aWQR+m} offset:{lb*32768+ks*8192+hh*1024}")
            else:
                z, t = divmod(m-8, 3)
                L.append(f"ds_read_b64_tr_b16 {d}, v{aGUR if t < 2 else aGUR2} offset:{lb*32768+z*8192+ks*4096+hh*384+32*(t&1)}")
    return L
def rd_e(lb):
    L = []
    for tl in range(4):
        for ks in range(2):
            for hh in range(2):
                d = a(EF+(tl*2+ks)*4+2*hh, 2)
                if tl < 2: L.append(f"ds_read_b64_tr_b16 {d}, v{aWQC+tl} offset:{lb*32768+ks*8192+hh*1024}")
                else: L.append(f"ds_read_b64_tr_b16 {d}, v{aGUC} offset:{lb*32768+(tl-2)*8192+ks*4096+hh*384}")
    return L
def acc_m(m, qt):
    return v(QACC+(m*4+qt)*4, 4) if m < 8 else a(GUA+((m-8)*4+qt)*4, 4)

def loop_addr_setup():
    L = []; e = L.append; l = vLANE; t = 0
    e(f"v_and_b32 v{t}, 15, v{l}"); e(f"v_lshrrev_b32 v{t+1}, 4, v{l}"); e(f"v_lshrrev_b32 v{t+2}, 2, v{t}"); e(f"v_and_b32 v{t+3}, 3, v{l}")
    e(f"v_lshlrev_b32 v{t+4}, 8, v{t}")
    e(f"v_and_b32 v{t+6}, 1, v{t+1}"); e(f"v_lshrrev_b32 v{t+7}, 1, v{t+1}"); e(f"v_lshl_add_u32 v{t+6}, v{t+6}, 1, v{t+7}")
    e(f"v_xor_b32 v{t+6}, v{t+6}, v{t}")
    for s_ in range(4):
        e(f"v_xor_b32 v{t+5}, {4*s_}, v{t+6}"); e(f"v_lshl_add_u32 v{aKR+s_}, v{t+5}, 4, v{t+4}")
    e(f"v_lshl_add_u32 v{t+4}, v{t+1}, 2, v{t+2}")
    e(f"v_and_b32 v{t+5}, 7, v{t+4}")
    e(f"v_lshlrev_b32 v{t+6}, 7, v{t+4}"); e(f"v_lshl_add_u32 v{t+6}, v{t+3}, 3, v{t+6}"); e(f"v_add_u32 v{aW2R}, s{sMW2}, v{t+6}")
    e(f"v_lshlrev_b32 v{t+4}, 8, v{t+4}"); e(f"v_lshl_add_u32 v{t+4}, v{t+3}, 3, v{t+4}"); e(f"v_add_u32 v{t+4}, 65536, v{t+4}")
    for dt in range(8):
        e(f"v_xor_b32 v{t+6}, {dt}, v{t+5}"); e(f"v_lshl_add_u32 v{aVR+dt}, v{t+6}, 5, v{t+4}")
    e(f"v_lshrrev_b32 v{t+5}, 3, v{l}"); e(f"v_and_b32 v{t+6}, 7, v{l}"); e(f"v_lshlrev_b32 v{t+5}, 10, v{t+5}"); e(f"v_lshl_add_u32 v{aW2R+1}, v{t+6}, 4, v{t+5}")
    return L

def place_dma(G, dm, g, step):
    for x in dm:
        if 'lds' in x.split():
            while g % 2 != 1 or G.used(g) > 0: g += 1
            G.put(g, x); g += step - 1
            last = g - step + 2
        else:
            gg = G.fit(last if 'last' in dir() else g, x)
            if 'm0,' in x: g = max(g, gg + 1)
    return g

def gemm_phase(st, carry):
    xb = st & 1; first = (st == 0)
    mf = []
    def C(acc, ks): return "0" if (first and ks == 0) else acc
    for qt in range(4):
        for ks in range(2):
            d = v(SXA+qt*4, 4); mf.append(f"{MF} {d}, {v(ONES,4)}, {v(XF+xb*32+(qt*2+ks)*4,4)}, {C(d,ks)}")
    for tl in range(4):
        for ks in range(2):
            d = a(CSA+tl*4, 4); mf.append(f"{MF} {d}, {a(EF+(tl*2+ks)*4,4)}, {v(ONES,4)}, {C(d,ks)}")
    for m in range(14):
        for qt in range(4):
            for ks in range(2):
                d = acc_m(m, qt); mf.append(f"{MF} {d}, {a(WF+(m*2+ks)*4,4)}, {v(XF+xb*32+(qt*2+ks)*4,4)}, {C(d,ks)}")
    G = Gaps(128)
    for i, r in enumerate(carry): G.put(i // 2, r)
    BARG = 9
    vm = {6: 0, 7: None}.get(st, 8)
    G.put(BARG, "s_waitcnt " + (f"vmcnt({vm}) " if vm is not None else "") + "lgkmcnt(0)", force=True); G.put(BARG, "s_barrier", force=True)
    nb = (st + 1) & 1
    newcarry = []
    if st < 7:
        for m in range(14):
            rs = rd_w(m, nb)
            p = 16 + 8*m + 8
            if m == 13: newcarry = rs
            else:
                for i, r in enumerate(rs): G.put(p + 2*i, r)
        for i, r in enumerate(rd_x(nb)[:7]): G.put(10 + 2*i, r)
    if st <= 5: place_dma(G, dma_w(xb), BARG + 1, OPT['wgap'])
    elif st == 6: place_dma(G, kv_dma(0) + kv_dma(1), BARG + 1, 6)
    else: place_dma(G, kv_dma(2) + kv_dma(3), BARG + 1, 6)
    if st <= 4:
        G.put(60, "s_waitcnt lgkmcnt(4)")
        place_dma(G, dma_x(nb), 61, 8)
    if st < 7:
        g = 13
        for r in rd_x(nb)[7:] + rd_e(nb):
            while g % 2 != 1 or G.used(g) > 1 or (g < 17 and 'tr' in r): g += 1
            G.put(g, r); g += 3
        G.put(126, "s_waitcnt lgkmcnt(4)")
    q = []
    for qt in range(4):
        for dw in range(8):
            w_ = XF + xb*32 + qt*8 + dw; t = TM + 2*(dw & 1)
            q += [f"v_lshlrev_b32 v{t}, 16, v{w_}", f"v_and_b32 v{t+1}, s{sMASK}, v{w_}",
                  f"v_fmac_f32 v{SQ+qt}, v{t}, v{t}", f"v_fmac_f32 v{SQ+qt}, v{t+1}, v{t+1}"]
    if st == 7:
        q += loop_addr_setup()
        q += [f"v_add_u32 v{vSP}, s{sMX}, v{aCS}"]
    g = 0; left = []
    for x in q:
        r = G.fit(g, x)
        if r is None: left.append(x)
        else: g = r
    for x in left: G.put(127, x, force=True)
    if left: print(f"; phase {st}: {len(left)} VALU left over", file=sys.stderr)
    return weave(mf, G.out()), newcarry

def xlane_reduce(op, xs, ts):
    L = []
    for sw in ("v_permlane32_swap_b32", "v_permlane16_swap_b32"):
        for x, t in zip(xs, ts): L.append(f"v_mov_b32 v{t}, v{x}")
        L.append("s_nop 1")
        for x, t in zip(xs, ts): L.append(f"{sw} v{x}, v{t}")
        L.append("s_nop 1")
        for x, t in zip(xs, ts): L.append(f"{op} v{x}, v{x}, v{t}")
    return L

LO = "op_sel_hi:[1,0,1]"; HI = "op_sel:[0,1,0] op_sel_hi:[1,1,1]"
LO2 = "op_sel_hi:[1,0]"; HI2 = "op_sel:[0,1] op_sel_hi:[1,1]"
def k1_post_gemm():
    L = []; e = L.append
    for tl in range(4): e(f"ds_write_b128 v{vSP}, {a(CSA+tl*4,4)} offset:{64*tl}")
    L += xlane_reduce("v_add_f32", [SQ+q for q in range(4)], [TM+q for q in range(4)])
    for qt in range(4): e(f"v_mul_f32 v{SXA+4*qt}, {f2u(-1/512)}, v{SXA+4*qt}")
    for qt in range(4): e(f"v_mul_f32 v{TM+qt}, v{SXA+4*qt}, v{SXA+4*qt}")
    for qt in range(4): e(f"v_mul_f32 v{SQ+qt}, {f2u(1/512)}, v{SQ+qt}")
    for qt in range(4): e(f"v_sub_f32 v{SQ+qt}, v{SQ+qt}, v{TM+qt}")
    for qt in range(4): e(f"v_max_f32 v{SQ+qt}, 0, v{SQ+qt}")
    for qt in range(4): e(f"v_add_f32 v{SQ+qt}, {f2u(1e-5)}, v{SQ+qt}")
    for qt in range(4): e(f"v_rsq_f32 v{TM+qt}, v{SQ+qt}")
    e("s_waitcnt lgkmcnt(0)"); e("s_barrier")
    CSG = 32
    for m in range(6):
        z, t = divmod(m, 3)
        e(f"ds_read_b128 {v(CSG+4*m,4)}, v{aCS} offset:{t*8192+(2+z)*64}")
    for qt in range(4):
        e(f"v_mul_f32 v{SXA+4*qt+1}, {f2u(SCALE)}, v{TM+qt}")
        e(f"v_mul_f32 v{SXA+4*qt+2}, {f2u(-LOG2E)}, v{TM+qt}")
        e(f"v_mul_f32 v{SXA+4*qt+3}, v{SQ+qt}, v{TM+qt}")
    CSQ = 80
    def rdcs(m): return f"ds_read_b128 {v(CSQ+4*(m&3),4)}, v{aCS} offset:{(m>>1)*8192+(m&1)*64}"
    for m in range(4): e(rdcs(m))
    e("s_waitcnt lgkmcnt(4)")
    n = 0
    for qt in range(4):
        for t in (2, 0, 1):
            G_ = (n % 2)*8; U_ = G_ + 4; n += 1
            H_ = 16 + (qt & 1)*8 + (4 if t == 2 else 2*t)
            P0 = v(SXA+4*qt, 2); P1 = v(SXA+4*qt+2, 2)
            for r in range(4): e(f"v_accvgpr_read_b32 v{G_+r}, a{GUA+(t*4+qt)*4+r}")
            for r in range(4): e(f"v_accvgpr_read_b32 v{U_+r}, a{GUA+((3+t)*4+qt)*4+r}")
            for h in (0, 2): e(f"v_pk_fma_f32 {v(G_+h,2)}, {v(CSG+4*t+h,2)}, {P0}, {v(G_+h,2)} {LO}")
            for h in (0, 2): e(f"v_pk_mul_f32 {v(G_+h,2)}, {v(G_+h,2)}, {P1} {LO2}")
            for r in range(4): e(f"v_exp_f32 v{G_+r}, v{G_+r}")
            for h in (0, 2): e(f"v_pk_fma_f32 {v(U_+h,2)}, {v(CSG+12+4*t+h,2)}, {P0}, {v(U_+h,2)} {LO}")
            for h in (0, 2): e(f"v_pk_fma_f32 {v(G_+h,2)}, {v(G_+h,2)}, {P1}, {P1} op_sel:[0,1,1] op_sel_hi:[1,1,1]")
            for r in range(4): e(f"v_rcp_f32 v{G_+r}, v{G_+r}")
            e("s_nop 0")
            for h in (0, 2): e(f"v_pk_mul_f32 {v(U_+h,2)}, {v(U_+h,2)}, {v(G_+h,2)}")
            for h in range(2): e(f"v_cvt_pk_bf16_f32 v{H_+h}, v{U_+2*h}, v{U_+2*h+1}")
            if t == 2: e(f"buffer_store_dwordx2 {v(H_,2)}, v{aL16}, s[{SACT}:{SACT+3}], s{sH0+1} offen offset:{1024*qt} sc1")
            if t == 1: e(f"buffer_store_dwordx4 {v(H_-2,4)}, v{aL16}, s[{SACT}:{SACT+3}], s{sH0} offen offset:{1024*qt} sc1")
    for sp in range(4):
        e(f"s_waitcnt lgkmcnt({2 if sp in (1,2) else 0})")
        for qt in range(4):
            P0 = v(SXA+4*qt, 2)
            for b in range(2):
                m = 2*sp+b; x = QACC + (m*4+qt)*4
                for h in (0, 2): e(f"v_pk_fma_f32 {v(x+h,2)}, {v(CSQ+4*(m&3)+h,2)}, {P0}, {v(x+h,2)} {LO}")
                for h in (0, 2): e(f"v_pk_mul_f32 {v(x+h,2)}, {v(x+h,2)}, {P0} {HI2}")
                for h in range(2): e(f"v_cvt_pk_bf16_f32 v{QF+(qt*4+sp)*4+2*b+h}, v{x+2*h}, v{x+2*h+1}")
        if sp < 2: e(rdcs(2*sp+4)); e(rdcs(2*sp+5))
        else: e("s_nop 1")
        for qt in range(4):
            f = QF+(qt*4+sp)*4
            e(f"v_permlane16_swap_b32 v{f}, v{f+2}"); e(f"v_permlane16_swap_b32 v{f+1}, v{f+3}")
    return L

def rd_k(f, slot):
    kt, s_ = divmod(f, 4)
    return f"ds_read_b128 {v(KF+4*f,4)}, v{aKR+s_} offset:{slot*16384+kt*4096}"
def rd_v(buf, slot):
    return [f"ds_read_b64_tr_b16 {a(VF+buf*64+(dt*2+kk)*4+2*hh,2)}, v{aVR+dt} offset:{slot*16384+kk*8192+hh*4096}"
            for dt in range(8) for kk in range(2) for hh in range(2)]
def qk_mfmas(qt, zero=False):
    L = []
    for kt in range(4):
        for s_ in range(4):
            d = v(SB+4*kt, 4)
            c = ("0" if zero else v(NEGM+4*qt, 4)) if s_ == 0 else d
            L.append(f"{MF} {d}, {v(KF+(kt*4+s_)*4,4)}, {v(QF+(qt*4+s_)*4,4)}, {c}")
    return L
def pv_mfmas(qt, vb, pb):
    L = []
    for dt in range(8):
        d = a(OACC+(dt*4+qt)*4, 4)
        for kk in range(2): L.append(f"{MF} {d}, {a(VF+vb*64+(dt*2+kk)*4,4)}, {v(PB+pb*8+kk*4,4)}, {d}")
    d = v(LACC+4*qt, 4)
    for kk in range(2): L.append(f"{MF} {d}, {v(ONES,4)}, {v(PB+pb*8+kk*4,4)}, {d}")
    return L
EXP = lambda e_: f"v_exp_f32 v{SB+e_}, v{SB+e_}"
CVT = lambda c, pb: f"v_cvt_pk_bf16_f32 v{PB+pb*8+c}, v{SB+2*c}, v{SB+2*c+1}"

def attn_step(jm, u):
    pb = u & 1
    mf = qk_mfmas((u+1) % 4) + pv_mfmas(u, jm & 1, pb)
    G = Gaps(34)
    for k, e_ in enumerate((13, 14, 15)): G.put(2*k, EXP(e_))
    G.put(1, CVT(6, pb)); G.put(5, CVT(7, pb))
    for e_ in range(13): G.put(8+2*e_, EXP(e_))
    for c in range(6): G.put(11+4*c, CVT(c, pb ^ 1))
    ns = (jm+1) % 4
    vr = rd_v((jm+1) & 1, ns)
    dm = kv_dma(jm)
    if u == 0:
        G.put(3, "s_waitcnt vmcnt(16) lgkmcnt(0)", force=True); G.put(3, "s_barrier", force=True)
        G.put(6, dm[0])
        for g, x in zip((9, 17, 25, 33), dm[1:5]): G.put(g, x)
        for g, x in zip((7, 11, 13, 15, 19, 21, 23, 27, 29, 31), vr[0:10]): G.put(g, x)
    elif u == 1:
        G.put(6, dm[5])
        for g, x in zip((9, 17, 25, 33), dm[6:10]): G.put(g, x)
        for g, x in zip((1, 3, 5, 7, 11, 13, 15, 19, 21, 23, 27, 29, 31), vr[10:23]): G.put(g, x)
    elif u == 2:
        G.put(6, dm[10])
        for f in range(16): G.put(2*f+1, rd_k(f, ns))
        G.put(33, "s_waitcnt lgkmcnt(3)")
    else:
        G.put(6, "s_waitcnt lgkmcnt(3)")
        for g, x in zip((1, 3, 5, 7, 9, 11, 13, 15, 17), vr[23:32]): G.put(g, x)
        if jm == 3:
            G.put(25, f"s_add_u32 s{sCNT}, s{sCNT}, 1"); G.put(29, f"s_cmp_lt_u32 s{sCNT}, s{sT0}")
    return weave(mf, G.out())

def attn_entry():
    A = []; e = A.append
    e("s_waitcnt vmcnt(24)"); e("s_barrier")
    for f in range(16): e(rd_k(f, 0))
    for i in range(4): e(f"v_mov_b32 v{PB+i}, 0")
    for i in range(16): e(f"v_mov_b32 v{LACC+i}, 0")
    for i in range(8): e(f"v_mfma_f32_32x32x16_bf16 {a(16*i,16)}, {v(PB,4)}, {v(PB,4)}, 0")
    e("s_waitcnt lgkmcnt(12)")
    e(f"s_cmp_lg_u32 s{sPASS}, 0"); e("s_cbranch_scc1 K1_HAVEMAX")
    B = []; e = B.append
    w2 = []
    for it, sr in enumerate((SWO, SWD)):
        w2.append(f"s_add_u32 m0, s{sMW2}, {4096*it}")
        for i in range(4):
            w2.append(f"s_add_u32 s{sT1}, s{sW2S}, {7168*i}")
            w2.append(f"buffer_load_dwordx4 v{aW2R+1}, s[{sr}:{sr+3}], s{sT1} offen offset:{1024*i} lds")
    k = 0
    for qt in range(4):
        for s_ in range(4):
            d = v(SB+4*qt, 4)
            e(f"{MF} {d}, {v(KF+s_*4,4)}, {v(QF+(qt*4+s_)*4,4)}, {'0' if s_ == 0 else d}")
    B += w2
    for qt in range(4):
        b = SB+4*qt
        e(f"v_max3_f32 v{b}, v{b}, v{b+1}, v{b+2}"); e(f"v_max_f32 v{b}, v{b}, v{b+3}")
    B += xlane_reduce("v_max_f32", [SB+4*q for q in range(4)], [SB+4*q+1 for q in range(4)])
    for qt in range(4):
        for r in range(4): e(f"v_sub_f32 v{NEGM+4*qt+r}, 0, v{SB+4*qt}")
    C_ = []; e = C_.append
    e("s_waitcnt lgkmcnt(0)")
    vr = rd_v(0, 0)
    mf = qk_mfmas(0)
    G = Gaps(16)
    for i, x in enumerate(vr): G.put(i // 2, x)
    C_ += weave(mf, G.out())
    for e_ in range(13): e(EXP(e_))
    for c in range(6): e(CVT(c, 0))
    e(f"s_mov_b32 s{sCNT}, 0")
    e(f"s_cmp_lg_u32 s{sPASS}, 0"); e(f"s_cselect_b32 s{sT0}, 8, 1")
    return A, B, C_

def part_soff(e, dst, store):
    for i in range(1, 4):
        e(f"s_add_u32 s6, s{sSP}, {i}"); e("s_and_b32 s6, s6, 3")
        if store: e("s_lshl_b32 s6, s6, 2"); e(f"s_add_u32 s6, s6, s{sSP}")
        else: e(f"s_lshl_b32 s7, s{sSP}, 2"); e("s_add_u32 s6, s6, s7")
        e(f"s_lshl_b32 s{dst+i-1}, s6, 13")

def block_a():
    L = []; e = L.append
    for it in range(2):
        for ct in range(4):
            b = T2 + (it*4+ct)*4
            for hh in range(2): e(f"ds_read_b64_tr_b16 {v(b+2*hh,2)}, v{aW2R} offset:{it*4096+hh*2048+32*ct}")
    e(f"s_add_u32 s{sT1}, s{sT2}, {128*4096}")
    L += srd(SFLAG, sFL, sFL+1, 1024) + srd(P2PART, sP2, sP2+1, 131072) + srd(SDBG, sDB, sDB+1, 256)
    part_soff(e, sH0, True)
    e(f"s_lshl_b32 s6, s{sQB}, 5"); e(f"s_add_u32 s6, s6, s{sHEAD}"); e(f"s_lshl_b32 s{sW2S}, s6, 2")
    for it in range(2):
        e(f"s_waitcnt lgkmcnt({8-8*it})")
        for ct in range(4):
            b = T2 + (it*4+ct)*4
            e(f"buffer_store_dwordx4 {v(b,4)}, v{aL16}, s[{SWT}:{SWT+3}], s{sT2 if it==0 else sT1} offen offset:{1024*ct} sc1")
    e(f"s_mov_b32 s{sT0}, {TW}")
    return L

def block_b():
    L = []; e = L.append
    e(f"s_mov_b32 s{sT0}, {TC}")
    e(f"s_cmp_lg_u32 s{sW}, 0"); e("s_cbranch_scc1 K1_LOOP")
    e(f"v_mov_b32 v{vSP}, 1"); e("s_and_b32 s6, s2, 15"); e("s_lshl_b32 s6, s6, 4")
    e("s_mov_b64 exec, 1")
    e(f"buffer_atomic_add v{vSP}, off, s[{SDBG}:{SDBG+3}], s6 sc1")
    e("s_mov_b64 exec, -1")
    return L

def block_w():
    L = []; e = L.append
    for i in range(4): e(f"v_mov_b32 v{T2+i}, -1")
    e(f"v_mov_b32 v{vSP}, 0")
    for i in range(3):
        for j in range(2): e(f"buffer_store_dwordx4 {v(T2,4)}, v{aL16}, s[{P2PART}:{P2PART+3}], s{sH0+i} offen offset:{1024*j} sc1")
    L += srd(P2ACT, sA2, sA2+1, 0) + srd(P2WT, sW2, sW2+1, 0)
    e(f"s_mov_b32 s{P2ACT+2}, s{sSZ2}"); e(f"s_mov_b32 s{P2WT+2}, s{sSZ2}")
    e(f"s_mov_b32 s{sT0}, {TB}")
    e(f"s_cmp_lg_u32 s{sW}, 0"); e("s_cbranch_scc1 K1_LOOP")
    e("s_mov_b64 exec, 1")
    e(f"buffer_store_dword v{vSP}, off, s[{SFLAG}:{SFLAG+3}], s{sW2S} sc1")
    e("s_mov_b64 exec, -1")
    return L

def d1_load():
    return [f"v_and_b32 v{vD1+1}, 15, v{vLANE}", f"v_lshlrev_b32 v{vD1+1}, 4, v{vD1+1}",
            f"buffer_load_dword v{vD1}, v{vD1+1}, s[{SDBG}:{SDBG+3}], 0 offen sc1"]
def block_c():
    return d1_load() + [f"s_mov_b32 s{sT0}, 8"]

def attn_check():
    L = []; e = L.append
    e("s_nop 7")
    t = T2
    e(f"v_mov_b32 v{t}, {f2u(2.0**OPT['thr'])}")
    e(f"v_cmp_nle_f32 vcc, v{LACC}, v{t}"); e(f"v_cmp_nle_f32 s[6:7], v{LACC+4}, v{t}")
    e(f"v_cmp_nle_f32 s[44:45], v{LACC+8}, v{t}"); e(f"v_cmp_nle_f32 s[46:47], v{LACC+12}, v{t}")
    e("s_nop 1")
    e("s_or_b64 s[6:7], s[6:7], vcc"); e("s_or_b64 s[44:45], s[44:45], s[46:47]"); e("s_or_b64 s[6:7], s[6:7], s[44:45]")
    e("s_cselect_b32 s6, 1, 0")
    e(f"v_mov_b32 v{t}, s6"); e(f"s_lshl_b32 s7, s{sW}, 2"); e(f"s_add_u32 s7, s7, 131072"); e(f"v_mov_b32 v{t+1}, s7"); e(f"v_mov_b32 v{t+2}, 131072")
    e(f"ds_write_b32 v{t+1}, v{t}"); e("s_waitcnt vmcnt(0) lgkmcnt(0)"); e("s_barrier")
    e(f"ds_read_b128 {v(t+4,4)}, v{t+2}"); e("s_waitcnt lgkmcnt(0)")
    e(f"v_or_b32 v{t+4}, v{t+4}, v{t+5}"); e(f"v_or3_b32 v{t+4}, v{t+4}, v{t+6}, v{t+7}"); e("s_nop 0")
    e(f"v_readfirstlane_b32 s6, v{t+4}"); e("s_nop 1")
    e(f"s_cmp_gt_u32 s6, s{sPASS}"); e("s_cbranch_scc1 K1_SLOW")
    return L

def attn_slow():
    P = []; e = P.append
    MX = T2
    for qt in range(4): e(f"v_mov_b32 v{MX+qt}, 0xff800000")
    e(f"s_mov_b32 s{sKV}, 0"); e("s_waitcnt vmcnt(0)")
    B = []; e = B.append
    e("s_barrier")
    e(f"s_mov_b32 m0, s{sMKV}"); e("s_nop 0")
    for i in range(4): e(f"buffer_load_dwordx4 v{aKD+i}, s[{SK}:{SK+3}], s{sKV} offen offset:{1024*i} lds")
    e("s_waitcnt vmcnt(0)"); e("s_barrier")
    for f in range(16): e(rd_k(f, 0))
    e("s_waitcnt lgkmcnt(0)")
    for qt in range(4):
        B += qk_mfmas(qt, zero=True)
        e("s_nop 7")
        for i in range(8): e(f"v_max3_f32 v{MX+qt}, v{MX+qt}, v{SB+2*i}, v{SB+2*i+1}")
        e("s_nop 3")
    e(f"s_add_u32 s{sKV}, s{sKV}, 16384"); e(f"s_cmp_lt_u32 s{sKV}, 524288")
    Q = []; e = Q.append
    Q += xlane_reduce("v_max_f32", [MX+q for q in range(4)], [MX+4+q for q in range(4)])
    for qt in range(4):
        for r in range(4): e(f"v_sub_f32 v{NEGM+4*qt+r}, 0, v{MX+qt}")
    e(f"s_mov_b32 s{sPASS}, 1"); e(f"s_mov_b32 s{sKV}, 0"); e("s_barrier")
    for s_ in range(4): Q += with_m0_nops(kv_dma(s_))
    return P, B, Q

def attn_epilogue():
    L = []; e = L.append
    for qt in range(4): e(f"v_rcp_f32 v{LACC+4*qt}, v{LACC+4*qt}")
    e(f"s_lshl_b32 s{sT0}, s{sHEAD}, 14")
    n = 0
    mod = " sc1"
    for i in range(4):
        for qt in range(4):
            t = KF + (n % 4)*12; n += 1
            for b in range(2):
                for r in range(4): e(f"v_accvgpr_read_b32 v{t+4*b+r}, a{OACC+((2*i+b)*4+qt)*4+r}")
            for k in range(4): e(f"v_pk_mul_f32 {v(t+2*k,2)}, {v(t+2*k,2)}, {v(LACC+4*qt,2)} {LO2}")
            for k in range(4): e(f"v_cvt_pk_bf16_f32 v{t+8+k}, v{t+2*k}, v{t+2*k+1}")
            e(f"buffer_store_dwordx4 {v(t+8,4)}, v{aL16}, s[{SACT}:{SACT+3}], s{sT0} offen offset:{1024*qt}{mod}")
        e(f"s_add_u32 s{sT0}, s{sT0}, 4096")
    return L

def k1():
    pre = k1_setup() + with_m0_nops(dma_w(0) + dma_x(0))
    if OPT['pf'] == 2: pre += [f"buffer_load_dword v17, v12, s[{SWO}:{SWO+3}], s{sT0} offen offset:512"]
    pf3 = [f"buffer_load_dword v{vSP}, v13, s[{SWD}:{SWD+3}], s{sT1} offen", f"buffer_load_dword v128, v12, s[{SWO}:{SWO+3}], s{sT0} offen",
           f"buffer_load_dword v129, v12, s[{SWO}:{SWO+3}], s{sT0} offen offset:512"]
    if OPT['pf'] == 3: pre += pf3
    pre += with_m0_nops(dma_w(1) + dma_x(1))
    if OPT['pf'] == 4: pre += pf3
    pre += k1_setup2()
    ns = 3 if OPT['pf'] >= 3 else 0
    if OPT['stamp']:
        pre += ["v_mov_b32 v8, s98", "v_mov_b32 v9, s100", "s_nop 1", f"buffer_store_dwordx2 v[8:9], off, s[{SST}:{SST+3}], s{sSTo}", "s_nop 1"]
        stamp_n[0] = 1; ns += 2
    pre += stamp(8)
    pre += [f"s_waitcnt vmcnt({16 + ns})", "s_barrier"]
    pre += stamp(8)
    pre += rd_x(0) + rd_e(0) + ["s_waitcnt lgkmcnt(15)"]
    dx = dma_x(0); rw = sum((rd_w(m, 0) for m in range(14)), [])
    pre += rw[:4]
    for i, x in enumerate(dx):
        pre += [x] + rw[4+4*i:8+4*i]
    pre += rw[4+4*len(dx):] + ["s_waitcnt lgkmcnt(15)"]
    carry = []
    for st in range(8):
        ph, carry = gemm_phase(st, carry)
        n, over, bad = gap_report(ph)
        if over > 1 or bad: print(f"; gemm phase {st}: gaps {n} over {over} bad {bad}", file=sys.stderr)
        pre += ph
        if OPT['stamp'] == 2 and st < 7: pre += stamp(TM)
    pre += stamp(TM)
    pre += k1_post_gemm()
    pre += stamp(T2+24)
    eA, eB, eC = attn_entry()
    eC += stamp(T2+24)
    body = []
    for jm in range(4):
        for u in range(4): body += attn_step(jm, u)
    n, over, bad = gap_report(body)
    print(f"; attn loop: gaps {n} over {over} bad {bad}", file=sys.stderr)
    bA, bB, bC = block_a(), block_b(), block_c()
    chk = stamp(T2+24) + attn_check()
    sP, sB_, sQ = attn_slow()
    post = attn_epilogue() + stamp(T2+24)
    p2t, p2c = phase2()
    if OPT['stamp'] == 4:
        body += ["s_cselect_b32 s93, 1, 0", "s_memtime s[94:95]", "s_memrealtime s[96:97]", "s_waitcnt lgkmcnt(0)", "v_mov_b32 v88, s94", "v_mov_b32 v89, s96",
                 f"s_lshl_b32 s6, s{sCNT}, 3", f"s_add_u32 s6, s6, s{sSTo}", f"buffer_store_dwordx2 v[88:89], off, s[{SST}:{SST+3}], s6 offset:160", "s_cmp_lg_u32 s93, 0"]
    br = ["s_cbranch_scc1 K1_LOOP"]
    mid = [f"s_cmp_eq_u32 s{sCNT}, 8", "s_cbranch_scc1 K1_DONE", f"s_cmp_eq_u32 s{sCNT}, {TB}", "s_cbranch_scc1 K1_BLKB", f"s_cmp_eq_u32 s{sCNT}, {TC}", "s_cbranch_scc1 K1_BLKC"]
    mid += [f"s_cmp_eq_u32 s{sCNT}, {TW}", "s_cbranch_scc1 K1_BLKW"]
    J = ["s_branch K1_LOOP"]
    errs = check(pre + eA + eB + eC + body + br + mid + bA + J + body + br + mid + block_w() + J + body + br + mid[:4] + bB + J + body + br + mid + bC + J + body + br + mid[:2] + chk + post + p2t, 'k1')
    errs += check(body + br + mid[:2] + chk + sP + sB_ + ["s_cbranch_scc1 X"] + sB_ + ["s_cbranch_scc1 X"] + sQ + ["s_branch X"] + eA + eC + body + br + mid[:2] + chk + post, 'k1slow')
    assert not errs
    return (pre + ["K1_ENTRY:"] + eA + eB + ["K1_HAVEMAX:"] + eC + [".p2align 6", "K1_LOOP:"] + body + br + mid + bA + J
            + ["K1_BLKB:"] + bB + J + ["K1_BLKC:"] + bC + J + ["K1_BLKW:"] + block_w() + J
            + ["K1_SLOW:"] + sP + ["K1_SLOWLOOP:"] + sB_ + ["s_cbranch_scc1 K1_SLOWLOOP"] + sQ + ["s_branch K1_ENTRY"]
            + ["K1_DONE:"] + chk + post + p2c + ["K1_END:", "s_endpgm"])

SPIN = 0x20000
def phase2():
    NST = 22; NA = 4; NW = 6; ABASE = 98304
    FR = 128; ACC = 0; aA = 64; aW = 68; aXO = 70; aFL = 71; XR = 72; T = 80
    sAo, sWo = sX0, sX1
    issued = []
    def dma(kind, st):
        if st >= NST: return []
        base, n, sr, so = (ABASE, NA, P2ACT, sAo) if kind == 'a' else (0, NW, P2WT, sWo)
        X = [f"s_add_u32 m0, s{sMKV}, {base + (st % n)*16384}"]
        for i in range(4):
            X.append(f"buffer_load_dwordx4 v{aL16}, s[{sr}:{sr+3}], s{so} offen offset:{1024*i} sc1 lds"); issued.append((kind, st))
        X.append(f"s_add_u32 s{so}, s{so}, 8192")
        return X
    A = []; e = A.append
    e(f"v_cmp_ne_u32 vcc, 16, v{vD1}"); e(f"s_mov_b32 s{sCNT}, 0"); e(f"s_mov_b32 s{sAo}, 0"); e(f"s_mov_b32 s{sWo}, 0")
    e("s_cbranch_vccz P2_D1OK")
    D1 = d1_load() + [f"s_add_u32 s{sCNT}, s{sCNT}, 1", "s_sleep 8", "s_waitcnt vmcnt(0)", f"v_cmp_ne_u32 vcc, 16, v{vD1}",
          f"s_cmp_gt_u32 s{sCNT}, {SPIN}", "s_cbranch_scc1 P2_D1OK", "s_cbranch_vccnz P2_D1POLL"]
    B = []; e = B.append
    for st in range(NW): B += with_m0_nops(dma('w', st))
    e(f"s_waitcnt vmcnt({4*NW})"); e("s_barrier")
    e(f"v_mov_b32 v{T}, 1")
    e(f"s_cmp_lg_u32 s{sW}, 0"); e("s_cbranch_scc1 P2_NOSIG")
    S = ["s_mov_b64 exec, 1", f"buffer_store_dword v{T}, off, s[{SFLAG}:{SFLAG+3}], s{sW2S} sc1", "s_mov_b64 exec, -1"]
    C_ = []; e = C_.append
    C_ += stamp(T+8)
    C_ += srd(P2X, sXP, sXP+1, 2048*1024) + srd(P2OUT, sOUT, sOUT+1, 2048*1024)
    e(f"s_lshr_b32 s6, s{sW}, 1"); e("s_lshl_b32 s6, s6, 12"); e(f"s_add_u32 s6, s6, {ABASE}")
    for i in range(4):
        e(f"s_add_u32 s7, s{sSP}, {i}"); e("s_and_b32 s7, s7, 3")
        e(f"s_cmp_eq_u32 s7, 3"); e(f"s_cselect_b32 s{40+i}, 0, 1.0"); e(f"s_cselect_b32 s{28+i}, 1.0, 0")
        e("s_lshl_b32 s7, s7, 10"); e("s_add_u32 s7, s7, s6"); e(f"v_add_u32 v{aA+i}, s7, v{aL16}")
    e(f"s_and_b32 s6, s{sW}, 1"); e("s_lshl_b32 s6, s6, 12"); e(f"v_add_u32 v{aW}, s6, v{aL16}"); e(f"v_add_u32 v{aW+1}, 65536, v{aW}")
    e(f"v_and_b32 v{T+1}, 15, v{vLANE}"); e(f"v_lshrrev_b32 v{T+2}, 4, v{vLANE}"); e(f"v_lshlrev_b32 v{T+1}, 10, v{T+1}"); e(f"v_lshl_add_u32 v{aXO}, v{T+2}, 3, v{T+1}")
    e(f"v_and_b32 v{aFL}, 31, v{vLANE}"); e(f"v_lshlrev_b32 v{aFL}, 2, v{aFL}")
    part_soff(e, 49, False)
    e(f"s_mov_b32 s{sCNT}, 0")
    P = [f"buffer_load_dword v{T}, v{aFL}, s[{SFLAG}:{SFLAG+3}], s{sFQB} offen sc1", f"s_add_u32 s{sCNT}, s{sCNT}, 1", "s_waitcnt vmcnt(0)",
         f"v_cmp_ne_u32 vcc, 1, v{T}", f"s_cmp_gt_u32 s{sCNT}, {SPIN}", "s_cbranch_scc1 P2_GO", f"s_and_b32 s6, vcc_lo, s{sFMASK}", "s_cbranch_scc1 P2_POLL"]
    L = []; e = L.append
    issued.clear()
    L += stamp(T+8)
    if OPT['stamp']: issued.append(('s', 0))
    for st in range(NA - 1): L += with_m0_nops(dma('a', st))
    def reads(st):
        X = []
        for kk in range(2):
            if 2*st + kk >= 43: continue
            b = FR + (st & 1)*64 + kk*32
            hi, lo = divmod((st % NW)*16384 + kk*8192, 65536)
            for i in range(4):
                X.append(f"ds_read_b128 {v(b+4*i,4)}, v{aW+hi} offset:{lo+1024*i}")
                X.append(f"ds_read_b128 {v(b+16+4*i,4)}, v{aA+i} offset:{(st % NA)*16384 + kk*8192}")
        return X
    def mfmas(st):
        X = []
        b = FR + (st & 1)*64
        for ct in range(4):
            for qt in range(4):
                d = v(ACC+(ct*4+qt)*4, 4)
                for kk in range(2):
                    if 2*st + kk >= 43: continue
                    X.append(f"{MF} {d}, {v(b+kk*32+4*ct,4)}, {v(b+kk*32+16+4*qt,4)}, {'0' if (st == 0 and kk == 0) else d}")
        return X
    for st in range(NST + 1):
        mf = mfmas(st - 1) if st > 0 else []
        if st < NST:
            need = max([i for i, t in enumerate(issued) if t in (('a', st), ('w', st))], default=-1)
            w_ = [f"s_waitcnt vmcnt({len(issued) - 1 - need}) lgkmcnt(0)", "s_barrier"]
            rd = reads(st)
            dm = dma('a', st + NA - 1) + (dma('w', st + NW - 1) if st > 0 else [])
            if st == NST - 3:
                dm = [f"buffer_load_dwordx2 {v(XR+2*ct,2)}, v{aXO}, s[{P2X}:{P2X+3}], s{sXO} offen offset:{32*ct}" for ct in range(4)]
                issued.extend([('x', 0)]*4)
        else:
            w_ = ["s_waitcnt lgkmcnt(0)"]; rd = []; dm = []
        if not mf: L += w_ + rd[:8] + with_m0_nops(dm) + rd[8:]
        else:
            L += w_
            G = Gaps(len(mf))
            g = 0
            for k in range(0, len(rd), 2):
                G.put(g, rd[k]); G.put(g, rd[k+1]); g += 2
            g = 1
            for x in dm:
                if x.startswith('buffer'):
                    while G.used(g) > 0: g += 1
                    G.put(g, x); g += 2 if g < 16 else 1
                else:
                    g = G.fit(g, x)
                    if 'm0,' in x: g += 1
            L += weave(mf, G.out())
    L += stamp(T+8)
    e("s_nop 7")
    PK = FR
    for i in range(1, 4):
        for ct in range(4):
            x = ACC + (ct*4+i)*4; d = PK + (i-1)*8 + 2*ct
            e(f"v_cvt_pk_bf16_f32 v{d}, v{x}, v{x+1}"); e(f"v_cvt_pk_bf16_f32 v{d+1}, v{x+2}, v{x+3}")
        for j in range(2): e(f"buffer_store_dwordx4 {v(PK+(i-1)*8+4*j,4)}, v{aL16}, s[{P2PART}:{P2PART+3}], s{sH0+i-1} offen offset:{1024*j} sc1")
    e(f"s_mov_b32 s{sCNT}, 0")
    RX = FR + 32
    X = []; e = X.append
    for i in range(3):
        for j in range(2): e(f"buffer_load_dwordx4 {v(RX+i*8+4*j,4)}, v{aL16}, s[{P2PART}:{P2PART+3}], s{49+i} offen offset:{1024*j} sc1")
    e(f"s_add_u32 s{sCNT}, s{sCNT}, 1"); e("s_waitcnt vmcnt(0)")
    e(f"v_max3_u32 v{T}, v{RX}, v{RX+1}, v{RX+2}"); e(f"v_max3_u32 v{T+1}, v{RX+3}, v{RX+4}, v{RX+5}")
    for k in range(6, 24, 2): e(f"v_max3_u32 v{T+(k//2)%2}, v{T+(k//2)%2}, v{RX+k}, v{RX+k+1}")
    e(f"v_max_u32 v{T}, v{T}, v{T+1}"); e(f"v_cmp_eq_u32 vcc, -1, v{T}")
    e(f"s_cmp_gt_u32 s{sCNT}, {SPIN}"); e("s_cbranch_scc1 P2_FIN"); e("s_cbranch_vccnz P2_XPOLL")
    F = []; e = F.append
    F += stamp(T+8)
    for ct in range(4):
        S_, D_, T_, U_ = 192 + ct*16, 196 + ct*16, 200 + ct*16, T
        for r in range(4): e(f"v_mul_f32 v{S_+r}, s40, v{ACC+ct*16+r}")
        for r in range(4): e(f"v_mul_f32 v{D_+r}, s28, v{ACC+ct*16+r}")
        for i in range(1, 4):
            for h in range(2):
                p = RX + (i-1)*8 + 2*ct + h
                e(f"v_lshlrev_b32 v{U_+2*h}, 16, v{p}"); e(f"v_and_b32 v{U_+2*h+1}, s{sMASK}, v{p}")
            for r in range(4): e(f"v_fmac_f32 v{S_+r}, s{40+i}, v{U_+r}")
            for r in range(4): e(f"v_fmac_f32 v{D_+r}, s{28+i}, v{U_+r}")
        for r in range(4): e(f"v_mul_f32 v{T_+r}, {f2u(-LOG2E)}, v{D_+r}")
        for r in range(4): e(f"v_exp_f32 v{T_+r}, v{T_+r}")
        e(f"v_lshlrev_b32 v{T_+4}, 16, v{XR+2*ct}"); e(f"v_and_b32 v{T_+5}, s{sMASK}, v{XR+2*ct}")
        for r in range(4): e(f"v_add_f32 v{T_+r}, 1.0, v{T_+r}")
        for r in range(4): e(f"v_rcp_f32 v{T_+r}, v{T_+r}")
        e(f"v_lshlrev_b32 v{T_+6}, 16, v{XR+1+2*ct}"); e(f"v_and_b32 v{T_+7}, s{sMASK}, v{XR+1+2*ct}")
        for r in range(4): e(f"v_mul_f32 v{T_+r}, v{T_+r}, v{D_+r}")
        for r in range(4): e(f"v_fmac_f32 v{T_+4+r}, v{S_+r}, v{T_+r}")
        e(f"v_cvt_pk_bf16_f32 v{S_}, v{T_+4}, v{T_+5}"); e(f"v_cvt_pk_bf16_f32 v{S_+1}, v{T_+6}, v{T_+7}")
        e(f"buffer_store_dwordx2 {v(S_,2)}, v{aXO}, s[{P2OUT}:{P2OUT+3}], s{sXO} offen offset:{32*ct}")
    if OPT['stamp']: F += ["s_waitcnt vmcnt(0)"] + stamp(T+8)
    trace = A + D1 + B + S + C_ + P + P + L + X + X + F
    code = (A + ["P2_D1POLL:"] + D1 + ["P2_D1OK:"] + B + S + ["P2_NOSIG:"] + C_ + ["P2_POLL:"] + P + ["P2_GO:"] + L
            + ["P2_XPOLL:"] + X + ["P2_FIN:"] + F)
    return trace, code

def kd(name, nv, acc, ns=102):
    return f""".amdhsa_kernel {name}
  .amdhsa_next_free_vgpr {nv}
  .amdhsa_next_free_sgpr {ns}
  .amdhsa_accum_offset {acc}
  .amdhsa_group_segment_fixed_size 0
  .amdhsa_kernarg_size 96
  .amdhsa_user_sgpr_count 2
  .amdhsa_user_sgpr_kernarg_segment_ptr 1
  .amdhsa_system_sgpr_workgroup_id_x 1
.end_amdhsa_kernel
"""
def fmt(L): return "\n".join(x if (x.endswith(':') or x.startswith('.')) else "    " + x for x in L)

NAME = "recurrent_scan__gqa_block_cached__glu_gated_glu__prompt_kernel"
HEAD = f"""; One persistent launch (256 workgroups, one per CU): LayerNorm + Q-projection + GLU-up, attention, out/down projection + gating.
; @launch grid=(256,1,1) block=(256,1,1) lds=163840
.amdgcn_target "amdgcn-amd-amdhsa--gfx950"
.text
"""
def kern(name, L):
    return f".globl {name}\n.p2align 8\n.type {name},@function\n{name}:\n" + fmt(L) + "\n"
src = HEAD + kern(NAME, k1())
src += '.section .rodata,"a"\n.p2align 6\n' + kd(NAME, 512, 256)
open(sys.argv[1], "w").write(src)
```

```python
import re

def rng(pfx, b, n):
    return f"{pfx}{b}" if n == 1 else f"{pfx}[{b}:{b+n-1}]"
def v(b, n=1): return rng('v', b, n)
def a(b, n=1): return rng('a', b, n)
def s(b, n=1): return rng('s', b, n)

_reg = re.compile(r'^-?\|?([vas])(\d+)\|?$')
_regr = re.compile(r'^-?([vas])\[(\d+):(\d+)\]$')
def regs_of(op):
    op = op.strip()
    if op.startswith('abs(') or op.startswith('-abs('):
        op = op[op.index('(')+1:-1]
    m = _reg.match(op)
    if m: return [(m.group(1), int(m.group(2)))]
    m = _regr.match(op)
    if m: return [(m.group(1), i) for i in range(int(m.group(2)), int(m.group(3))+1)]
    if op in ('vcc', 'vcc_lo', 'vcc_hi'): return [('vcc', 0)]
    if op in ('m0',): return [('m0', 0)]
    if op in ('exec',): return [('exec', 0)]
    return []

TRANS = ('v_exp_f32', 'v_rcp_f32', 'v_rsq_f32', 'v_log_f32', 'v_sqrt_f32')
class Ins:
    __slots__ = ('text', 'op', 'kind', 'rd', 'wr', 'srcC', 'passes', 'ops', 'mods')
    def __init__(self, text):
        self.text = text
        t = text.split(';')[0].strip()
        self.rd = []; self.wr = []; self.srcC = []; self.passes = 0
        if not t or t.endswith(':') or t.startswith('.'):
            self.op = ''; self.kind = 'label' if t.endswith(':') else 'dir'; return
        parts = t.split(None, 1)
        op = parts[0]; self.op = op
        rest = parts[1] if len(parts) > 1 else ''
        mods = ''
        mm = re.search(r'\s(op_sel|quad_perm|row_\w+|offen|offset\d?:|sc0|sc1|nt|lds|bound_ctrl|bank_mask|clamp)', rest)
        if mm: mods = rest[mm.start():].strip(); rest = rest[:mm.start()]
        ops = [o.strip() for o in rest.split(',')] if rest else []
        self.ops = ops; self.mods = mods
        R = lambda i: regs_of(ops[i]) if i < len(ops) else []
        allsrc = lambda k: sum((regs_of(o) for o in ops[k:]), [])
        if op.startswith('v_mfma'):
            self.kind = 'mfma'
            self.wr = R(0); self.rd = R(1) + R(2) + R(3); self.srcC = R(3)
            self.passes = {'16x16x32': 4, '32x32x16': 8, '16x16x4': 8, '32x32x2': 16}[re.search(r'_(\d+x\d+x\d+)', op).group(1)]
        elif op.startswith('ds_read') or op.startswith('ds_bpermute'):
            self.kind = 'dsr'; self.wr = R(0); self.rd = allsrc(1)
        elif op.startswith('ds_write') or op.startswith('ds_add') or op.startswith('ds_or'):
            self.kind = 'dsw'; self.rd = allsrc(0)
        elif op.startswith('buffer_load') or op.startswith('global_load'):
            if 'lds' in mods.split() or '_lds_' in op:
                self.kind = 'dma'; self.rd = allsrc(0) + [('m0', 0)]
            else:
                self.kind = 'vld'; self.wr = R(0); self.rd = allsrc(1)
                if 'd16' in op: self.rd += R(0)
        elif op.startswith('buffer_store') or op.startswith('global_store') or op.startswith('buffer_atomic') or op.startswith('global_atomic'):
            self.kind = 'vst'; self.rd = allsrc(0)
        elif op.startswith('buffer_wbl2') or op.startswith('buffer_inv'):
            self.kind = 'vst'
        elif op.startswith('s_load') or op.startswith('s_memtime') or op.startswith('s_memrealtime'):
            self.kind = 'smem'; self.wr = R(0); self.rd = allsrc(1)
        elif op == 's_waitcnt': self.kind = 'wait'
        elif op == 's_nop': self.kind = 'nop'
        elif op == 's_barrier': self.kind = 'bar'
        elif op.startswith('s_cbranch') or op in ('s_branch', 's_endpgm', 's_setpc_b64', 's_call_b64'):
            self.kind = 'br'
        elif op.startswith('s_cmp') or op in ('s_setprio', 's_sleep'):
            self.kind = 'salu'; self.rd = allsrc(0)
        elif op.startswith('s_'):
            self.kind = 'salu'; self.wr = R(0); self.rd = allsrc(1)
            if 'saveexec' in op: self.wr += [('exec', 0)]
        elif op.startswith('v_'):
            self.kind = 'trans' if op.replace('_e32', '').replace('_e64', '') in TRANS else 'valu'
            if op.startswith('v_permlane'):
                self.wr = R(0) + R(1); self.rd = R(0) + R(1)
            elif op.startswith('v_cmp'):
                self.wr = R(0); self.rd = allsrc(1)
            else:
                self.wr = R(0); self.rd = allsrc(1)
                if op.startswith('v_fmac') or op.startswith('v_dot2c'): self.rd += R(0)
                if op.startswith('v_cndmask') and len(ops) == 3: self.rd += [('vcc', 0)]
        else:
            raise ValueError("unknown instruction: " + text)
    def states(self):
        if self.kind in ('label', 'dir'): return 0
        if self.kind == 'nop': return int(self.ops[0], 0) + 1
        return 1

def parse_wait(ins):
    vm = lg = None
    t = ins.text.split(';')[0]
    m = re.search(r'vmcnt\((\d+)\)', t)
    if m: vm = int(m.group(1))
    m = re.search(r'lgkmcnt\((\d+)\)', t)
    if m: lg = int(m.group(1))
    return vm, lg

def check(lines, name='', verbose=True):
    ins = [Ins(l) for l in lines]
    errs = []
    pos = 0
    last_w = {}
    last_cread = {}
    last_stread = {}
    lq = []
    vq = []
    pend = {}
    def err(i, msg): errs.append(f"{name}[{i}] {ins[i].text.strip()}  :: {msg}")
    for i, x in enumerate(ins):
        k = x.kind
        if k in ('label', 'dir'): continue
        if k == 'wait':
            vm, lg = parse_wait(x)
            if lg is not None:
                if any(q.kind == 'smem' for q in lq) and lg != 0: err(i, 'counted lgkmcnt with smem outstanding')
                while len(lq) > lg:
                    q = lq.pop(0)
                    for r in q.wr:
                        if pend.get(r) is q: del pend[r]
            if vm is not None:
                while len(vq) > vm:
                    q = vq.pop(0)
                    for r in q.wr:
                        if pend.get(r) is q: del pend[r]
            pos += 1; continue
        for r in x.rd + x.wr:
            if r in pend: err(i, f'uses {r} while async write pending: {pend[r].text.strip()}')
        isvalu = k in ('valu', 'trans')
        for r in x.rd:
            if r not in last_w: continue
            p, w = last_w[r]; d = pos - p - 1
            wv = w.kind in ('valu', 'trans')
            if w.kind == 'mfma':
                if k == 'mfma':
                    if r in x.srcC and r not in regs_of(x.ops[1]) + regs_of(x.ops[2]):
                        if x.srcC == w.wr and x.passes == w.passes: need = 0 if w.passes >= 4 else 2
                        else: need = {2: 4, 4: 6, 8: 10, 16: 18}[w.passes]
                    else: need = {2: 5, 4: 8, 8: 12, 16: 20}[w.passes]
                else: need = {2: 5, 4: 8, 8: 12, 16: 20}[w.passes]
                if d < need: err(i, f'MFMA result {r} read after {d} < {need} states ({w.text.strip()})')
            elif wv:
                need = 0
                if r[0] in 'va':
                    if k == 'mfma': need = 2
                    if x.op.startswith('v_permlane'): need = 2
                    if x.op.startswith('v_readfirstlane') or x.op.startswith('v_readlane'): need = 1
                    if 'row_' in x.mods or 'quad_perm' in x.mods: need = 2
                    if w.op.startswith('v_dot2') and x.op != w.op: need = max(need, 3)
                    if w.kind == 'trans' and k in ('valu', 'mfma', 'dsw', 'vst'): need = max(need, 1)
                if r[0] in ('s', 'vcc'):
                    if isvalu: need = 2
                    if k in ('vld', 'vst', 'dma'): need = 5
                    if k in ('salu','smem'): need = 1
                if r[0] == 'exec': need = 4
                if d < need: err(i, f'VALU result {r} read after {d} < {need} states ({w.text.strip()})')
            elif w.kind == 'salu':
                if r[0] == 'm0' and k == 'dma' and d < 1: err(i, 'm0 write -> dma needs 1 state')
        for r in x.wr:
            if r in last_w:
                p, w = last_w[r]; d = pos - p - 1
                if w.kind == 'mfma' and k != 'mfma':
                    need = {2: 5, 4: 8, 8: 12, 16: 20}[w.passes]
                    if d < need: err(i, f'WAW on MFMA result {r} after {d} < {need}')
                if w.kind == 'mfma' and k == 'mfma' and not (x.srcC == w.wr):
                    need = {2: 4, 4: 6, 8: 10, 16: 18}[w.passes]
                    if d < need: err(i, f'MFMA WAW on {r} after {d} < {need}')
            if r in last_cread and isvalu:
                p, ps = last_cread[r]; d = pos - p - 1
                need = {2: 1, 4: 3, 8: 7, 16: 15}[ps]
                if d < need: err(i, f'WAR on MFMA srcC {r} after {d} < {need}')
            if r in last_stread:
                d = pos - last_stread[r] - 1
                if d < 2: err(i, f'WAR on store data {r} after {d} < 2')
        if k == 'mfma':
            for r in x.srcC: last_cread[r] = (pos, x.passes)
        if k == 'vst' and ('x4' in x.op or 'x3' in x.op):
            for r in regs_of(x.ops[0]) + (regs_of(x.ops[1]) if x.op.startswith('global') else []): last_stread[r] = pos
        if k in ('dsr', 'dsw', 'smem'):
            lq.append(x)
            for r in x.wr: pend[r] = x
            if len([q for q in lq]) > 15 and False: err(i, 'lgkm > 15')
        elif k in ('vld', 'vst', 'dma'):
            vq.append(x)
            for r in x.wr: pend[r] = x
            if len(vq) > 63: err(i, 'vmcnt > 63 outstanding')
        for r in x.wr:
            last_w[r] = (pos, x)
        pos += x.states()
    grp = None
    for i, x in enumerate(ins):
        if x.kind == 'salu' and ('m0', 0) in x.wr:
            if grp is not None and len(grp) != 4: err(i, f'm0 rewritten after {len(grp)} DMAs')
            grp = []
        elif x.kind == 'dma':
            if grp is None: continue
            off = re.search(r'offset:(\d+)', x.text); off = int(off.group(1)) if off else 0
            if off != 1024*len(grp) or (grp and grp[0] != x.ops[1]): err(i, 'DMA does not belong to the current m0 group')
            grp.append(x.ops[1])
    if verbose:
        for e in errs[:40]: print("HAZARD:", e)
        if len(errs) > 40: print("...", len(errs) - 40, "more")
    return errs

UNITS = {'mfma': 0, 'valu': 1, 'trans': 2, 'dsr': 1, 'dsw': 2, 'dma': 2, 'vld': 2, 'vst': 2, 'salu': 1, 'wait': 1, 'bar': 2, 'nop': 1, 'br': 2, 'smem': 1, 'label': 0, 'dir': 0}
def gap_report(lines, cap=2):
    over = 0; bad = 0; n = 0; cur = 0; sawv = False; started = False
    for l in lines:
        x = Ins(l)
        if x.kind == 'mfma':
            if started:
                n += 1; over += max(0, cur - cap)
            started = True; cur = 0; sawv = False
        else:
            cur += UNITS[x.kind]
            if x.kind in ('valu', 'trans'): sawv = True
            if x.kind in ('dsr', 'dsw', 'dma', 'vld', 'vst', 'bar', 'br') and sawv: bad += 1
    return n, over, bad

def weave(mfmas, gaps):
    out = []
    for m, g in zip(mfmas, gaps):
        out.append(m); out += g
    return out
```

```python
import sys, os, struct
sys.path.insert(0, os.path.dirname(os.path.abspath(__file__)))
from asmlib import *

OPT = dict(stamp=0, wgap=4, thr=40, cpf=1, rot=1, barg0=31, kvpf=0, w2blk=1, ecap=40, sigi=5, polli=6, dstart=3, dmax=2, fearly=1, dlate=5, kvsc=1, wpre=5, nrs=0, alead=0)
for arg in sys.argv[2:]:
    k_, v_ = arg.split('='); OPT[k_] = int(v_)

MF = "v_mfma_f32_16x16x32_bf16"
TA, TW, TV, TB, TC = (2, 3, 4, 5, 6) if OPT['w2blk'] else (1, 2, 3, 4, 6)
NKS = 171
ACT_RB = NKS * 4096
WT_OFF = 24 << 20
FLAG_OFF = 31 << 20
PART_OFF = 32 << 20
STAMP_OFF = 64 << 20
STAT_OFF = 30 << 20
CS_OFF = STAT_OFF + 65536
OOB = '0x40000000'
LOG2E = 1.4426950408889634
SCALE = LOG2E / (128 ** 0.5)
def f2u(x): return "0x%08x" % struct.unpack('<I', struct.pack('<f', x))[0]

sW, sHEAD, sQB = 3, 4, 5
SK, SV, SX, SWQ, SGU, SACT, SWO, SWD, SWT = 8, 12, 16, 20, 24, 28, 32, 36, 40
sX0, sX1, sWQo, sGUo, sKV = 44, 45, 46, 47, 48
sMX, sMWQ, sMGU, sMKV, sMW2 = 49, 50, 51, 52, 53
sCNT, sMASK, sT0, sT1, sT2, sPASS = 54, 55, 56, 57, 58, 59
sH0 = 60
sW2S = 63
SWS = 88
SDBG = 84
SST = SWS; sSTo = 92
sXP, sA2, sW2, sOUT = 64, 66, 68, 82
sP2, sCSo, sSTAo = 70, 71, 93
sSP, sSZ2, sXO, sINC, sFQB = 74, 75, 76, 77, 78
P2ACT, P2WT, P2X, P2OUT = 12, 8, 16, 20
P2PART = SFLAG = SWS
sKVB = 98
CHK_LDS = 8*16384 + 8192
def srd(d, lo, hi, size):
    return [f"s_mov_b32 s{d}, s{lo}", f"s_mov_b32 s{d+1}, s{hi}", f"s_mov_b32 s{d+2}, {size}", f"s_mov_b32 s{d+3}, 0x00020000"]

stamp_n = [0]
def stamp(tmpv, force=False):
    if not OPT['stamp'] or (OPT['stamp'] == 9 and not force): return []
    n = stamp_n[0]; stamp_n[0] += 1
    return ["s_memtime s[94:95]", "s_memrealtime s[96:97]", "s_waitcnt lgkmcnt(0)",
            f"v_mov_b32 v{tmpv}, s94", f"v_mov_b32 v{tmpv+1}, s96", "s_nop 1",
            f"buffer_store_dwordx2 v[{tmpv}:{tmpv+1}], off, s[{SST}:{SST+3}], s{sSTo} offset:{n*8}", "s_nop 1"]

def units(xs): return sum(UNITS[Ins(x).kind] for x in xs)
class Gaps:
    def __init__(self, n, cap=2):
        self.pre = [[] for _ in range(n)]
        self.post = [[] for _ in range(n)]
        self.cap = cap; self.n = n
    def used(self, g): return units(self.pre[g] + self.post[g])
    def put(self, g, text, force=False):
        k = Ins(text).kind
        assert force or self.used(g) + UNITS[k] <= self.cap, (g, text, self.pre[g], self.post[g])
        (self.post if k in ('valu', 'trans') else self.pre)[g].append(text)
    def fit(self, g0, text, g1=None):
        k = UNITS[Ins(text).kind]
        for g in range(g0, self.n if g1 is None else g1):
            if self.used(g) + k <= self.cap:
                self.put(g, text); return g
        return None
    def stream(self, g, q, g1=None):
        g1 = self.n if g1 is None else g1
        while q:
            k = 1
            while k < len(q) and q[k].split()[0] in ('s_addc_u32', 's_cselect_b32', 's_cselect_b64'): k += 1
            grp = q[:k]; u = units(grp)
            mem = Ins(grp[0]).kind in ('dsr', 'dsw', 'vld', 'vst', 'dma')
            while g < g1 and not ((self.used(g) + u <= self.cap or (u > self.cap and self.used(g) == 0))
                                  and not (mem and any(Ins(x).kind in ('valu', 'trans') for x in self.post[g]))): g += 1
            if g >= g1: return g
            self.post[g] += grp; del q[:k]
        return g
    def out(self): return [p + q for p, q in zip(self.pre, self.post)]

def vm_after(trace, tags):
    ops = [x for x in trace if Ins(x).kind in ('dma', 'vld', 'vst')]
    idx = [i for i, x in enumerate(ops) if any(x.endswith('@' + t) for t in tags)]
    return None if not idx else len(ops) - 1 - max(idx)

XF = 0
SXA = 64
TM = 80; aWQR = 88; ONES = 96
aXD = 100; aWQD = 104; aGUD = 108; aXR = 112; aWQC = 114; aGUR = 116; aGUC = 117
aL16 = 118; aCS = 119; aKD = 120; aVD = 124; vLANE = 126; aGUR2 = 127; vSP = 127
vD1 = 114
QACC = 128
GUA = 0; CSA = 96; WF = 128
def EFr(tl, ks): return (112 if tl < 2 else 224) + (tl*2+ks)*4
def gua(zt, qt): return GUA + (qt*6+zt)*4
QF = 0; KF = 128; SB = 192; PB = 208; NEGM = 224; LACC = 240
aKR = 100; aVR = 104; aW2R = 112; T2 = 64
OACC = 0; VF = 128
aA = 64; aW = 76; aXO = 79; XR = 80; aFL = 116; vFL = 117

def k1_setup():
    L = []; e = L.append
    e("s_cmp_ge_u32 s2, 256"); e("s_cbranch_scc1 K1_END")
    if OPT['stamp']: e("s_memtime s[98:99]"); e("s_memrealtime s[100:101]")
    e("s_load_dwordx16 s[64:79], s[0:1], 0"); e("s_load_dwordx8 s[80:87], s[0:1], 64")
    l = vLANE
    e("v_lshrrev_b32 v1, 6, v0"); e(f"v_and_b32 v{l}, 63, v0"); e(f"v_readfirstlane_b32 s{sW}, v1")
    e("s_and_b32 s6, s2, 7"); e("s_lshr_b32 s7, s2, 3")
    e(f"s_lshl_b32 s{sHEAD}, s6, 2"); e(f"s_and_b32 s{sT0}, s7, 3"); e(f"s_add_u32 s{sHEAD}, s{sHEAD}, s{sT0}")
    e(f"s_lshr_b32 s{sQB}, s7, 2")
    if OPT['cpf']:
        e(f"s_getpc_b64 s[{SWO}:{SWO+1}]"); e("KPC:"); e(f"s_mov_b32 s{SWO+2}, K1_END-KPC"); e(f"s_mov_b32 s{SWO+3}, 0x00020000")
        e(f"s_lshl_b32 s{sT0}, s7, 2"); e(f"s_add_u32 s{sT0}, s{sT0}, s{sW}"); e(f"s_lshl_b32 s{sT0}, s{sT0}, 7")
        e(f"v_lshlrev_b32 v12, 14, v{l}")
        e(f"buffer_load_dword v16, v12, s[{SWO}:{SWO+3}], s{sT0} offen")
    e(f"v_and_b32 v1, 15, v{l}"); e(f"v_lshrrev_b32 v2, 4, v{l}"); e("v_lshrrev_b32 v3, 2, v1"); e(f"v_and_b32 v4, 3, v{l}")
    e(f"v_lshrrev_b32 v5, 3, v{l}"); e(f"v_and_b32 v6, 7, v{l}"); e(f"v_lshlrev_b32 v{aL16}, 4, v{l}")
    e("v_lshlrev_b32 v7, 1, v2"); e("v_xor_b32 v7, v7, v1")
    e(f"s_lshl_b32 s6, s{sW}, 4"); e("v_add_u32 v8, s6, v2"); e("v_lshlrev_b32 v9, 13, v8")
    for i in range(4):
        e(f"v_xor_b32 v10, {8*(i>>1)}, v7"); e("v_lshl_add_u32 v10, v10, 4, v9"); e(f"v_add_u32 v{aWQD+i}, {31744*i}, v10")
    e("v_lshrrev_b32 v7, 1, v5"); e("v_xor_b32 v7, v7, v6"); e("v_lshlrev_b32 v8, 10, v5")
    for i in range(4):
        e(f"v_xor_b32 v9, {4*(i&1)}, v7"); e("v_lshl_add_u32 v9, v9, 4, v8"); e(f"v_add_u32 v{aXD+i}, {7168*i}, v9")
    e(f"s_lshl_b32 s{sMX}, s{sW}, 13"); e(f"s_lshl_b32 s{sMKV}, s{sW}, 12"); e(f"s_add_u32 s{sMWQ}, s{sMKV}, 65536")
    e(f"s_add_u32 s{sMGU}, s{sMKV}, 81920")
    e(f"s_lshl_b32 s{sX0}, s{sQB}, 7"); e(f"s_add_u32 s{sX1}, s{sX0}, 32768"); e(f"s_lshl_b32 s{sWQo}, s{sQB}, 19"); e(f"s_mul_i32 s{sGUo}, s{sQB}, {64*2752}")
    e(f"s_lshl_b32 s{sT1}, s{sQB}, 5"); e(f"s_add_u32 s{sT1}, s{sT1}, s{sHEAD}"); e(f"s_lshl_b32 s{sT1}, s{sT1}, 2"); e(f"s_add_u32 s{sT1}, s{sT1}, s{sW}")
    e(f"s_lshl_b32 s{sT2}, s{sT1}, 11")
    e("s_waitcnt lgkmcnt(0)")
    L += srd(SWD, 64, 65, 2048*1024)
    e(f"buffer_load_dwordx4 v[20:23], v{aL16}, s[{SWD}:{SWD+3}], s{sT2} offen"); e(f"buffer_load_dwordx4 v[24:27], v{aL16}, s[{SWD}:{SWD+3}], s{sT2} offen offset:1024 ; @st")
    e(f"s_lshl_b32 s6, s{sHEAD}, 8"); e(f"s_add_u32 s{SWQ}, s70, s6"); e(f"s_addc_u32 s{SWQ+1}, s71, 0")
    e(f"s_sub_u32 s{SWQ+2}, {512*8192}, s6"); e(f"s_mov_b32 s{SWQ+3}, 0x00020000")
    L += with_m0_nops(dma_w(0, 0)[:5])
    e(f"s_lshl_b32 s6, s{sQB}, 2"); e(f"s_add_u32 s6, s6, s{sW}"); e("s_lshl_b32 s7, s6, 16")
    e(f"s_add_u32 s{SX}, s64, s7"); e(f"s_addc_u32 s{SX+1}, s65, 0"); e(f"s_mov_b32 s{SX+2}, 65536"); e(f"s_mov_b32 s{SX+3}, 0x00020000")
    L += with_m0_nops(dma_x(0, 0))
    e(f"s_and_b32 s6, s{sW}, 1"); e(f"s_mul_i32 s6, s6, {32*2752}"); e("s_movk_i32 s7, 2752")
    for par in range(2):
        e(f"v_subrev_u32 v9, {8*par}, v{l}"); e("v_cmp_gt_u32 vcc, 48, v9")
        e("v_mul_u32_u24 v10, 171, v9"); e("v_lshrrev_b32 v10, 10, v10")
        e("v_mul_u32_u24 v11, 6, v10"); e("v_sub_u32 v11, v9, v11"); e("v_lshlrev_b32 v11, 4, v11")
        e("v_mad_u32_u24 v11, v10, s7, v11"); e("v_add_u32 v11, s6, v11"); e(f"v_mov_b32 v10, {OOB}")
        e("v_cndmask_b32 v11, v10, v11, vcc")
        for i in (par, par+2): e(f"v_add_u32 v{aGUD+i}, {(8*2752-1024)*i}, v11")
    e(f"s_cmp_ge_u32 s{sW}, 2"); e("s_cselect_b32 s76, s78, s76"); e("s_cselect_b32 s77, s79, s77")
    e(f"s_mul_i32 s6, s{sHEAD}, 96"); e(f"s_add_u32 s{SGU}, s76, s6"); e(f"s_addc_u32 s{SGU+1}, s77, 0")
    e(f"s_sub_u32 s{SGU+2}, {512*2752}, s6"); e(f"s_mov_b32 s{SGU+3}, 0x00020000")
    L += with_m0_nops(dma_w(0, 0)[5:])
    return L

def dma_w(buf, st):
    o = buf * 32768
    L = [f"s_add_u32 m0, s{sMWQ}, {o}"]
    for i in range(4): L.append(f"buffer_load_dwordx4 v{aWQD+i}, s[{SWQ}:{SWQ+3}], s{sWQo} offen offset:{1024*i} lds ; @W{st}")
    L.append(f"s_add_u32 m0, s{sMGU}, {o}")
    for i in range(4): L.append(f"buffer_load_dwordx4 v{aGUD+i}, s[{SGU}:{SGU+3}], s{sGUo} offen offset:{1024*i} lds ; @W{st}")
    L += [f"s_add_u32 s{sWQo}, s{sWQo}, {64*8192}", f"s_and_b32 s{sWQo}, s{sWQo}, {512*8192-1}",
          f"s_lshr_b32 s{sGUo}, s{sWQo}, 19", f"s_mul_i32 s{sGUo}, s{sGUo}, {64*2752}"]
    return L
def dma_x(buf, st):
    o = buf * 32768
    L = [f"s_add_u32 m0, s{sMX}, {o}"]
    for i in range(4): L.append(f"buffer_load_dwordx4 v{aXD+i}, s[{SX}:{SX+3}], s{sX0} offen offset:{1024*i} lds ; @X{st}")
    L.append(f"s_add_u32 m0, s{sMX}, {o+4096}")
    for i in range(4): L.append(f"buffer_load_dwordx4 v{aXD+i}, s[{SX}:{SX+3}], s{sX1} offen offset:{1024*i} lds ; @X{st}")
    L += [f"s_add_u32 s{sX0}, s{sX0}, 128", f"s_and_b32 s{sX0}, s{sX0}, 1023", f"s_add_u32 s{sX1}, s{sX0}, 32768"]
    return L
def with_m0_nops(L):
    out = []
    for x in L:
        out.append(x)
        if 'm0,' in x: out.append("s_nop 0")
    return out
def kv_dma(slot, tag=""):
    sc = " sc1" if OPT['kvsc'] else ""
    L = [f"s_add_u32 m0, s{sMKV}, {slot*16384}"]
    for i in range(4): L.append(f"buffer_load_dwordx4 v{aKD+i}, s[{SK}:{SK+3}], s{sKV} offen offset:{1024*i}{sc} lds{tag}")
    L.append(f"s_add_u32 m0, s{sMKV}, {65536+slot*16384}")
    for i in range(4): L.append(f"buffer_load_dwordx4 v{aVD+(i&1)}, s[{SV}:{SV+3}], s{sKV} offen offset:{1024*i}{sc} lds{tag}")
    L.append(f"s_add_u32 s{sKV}, s{sKV}, s{sINC}")
    return L
def kv_voff(n, gg, t):
    L = []; e = L.append
    e(f"s_lshl_b32 s6, s{sW}, 4"); e(f"v_add_u32 v{t}, s6, v{gg}"); e(f"v_lshlrev_b32 v{t}, 8, v{t}")
    e(f"v_xor_b32 v{t+1}, v{n}, v{gg}")
    for i in range(4):
        e(f"v_xor_b32 v{t+2}, {4*i}, v{t+1}"); e(f"v_lshl_add_u32 v{aKD+i}, v{t+2}, 4, v{t}")
    e(f"v_lshlrev_b32 v{t+1}, 1, v{gg}"); e(f"v_xor_b32 v{t+1}, v{t+1}, v{n}")
    for i in range(2):
        e(f"v_xor_b32 v{t+2}, {8*i}, v{t+1}"); e(f"v_lshl_add_u32 v{aVD+i}, v{t+2}, 4, v{t}")
    return L

def xlane_reduce(op, xs, ts):
    L = []
    for sw in ("v_permlane32_swap_b32", "v_permlane16_swap_b32"):
        for x, t in zip(xs, ts): L.append(f"v_mov_b32 v{t}, v{x}")
        if len(xs) < 3: L.append("s_nop 1")
        for x, t in zip(xs, ts): L.append(f"{sw} v{x}, v{t}")
        for x, t in zip(xs, ts): L.append(f"{op} v{x}, v{x}, v{t}")
    return L
DPP = "row_mask:0xf bank_mask:0xf"

def k1_setup2(pre):
    L = []; e = L.append; l = vLANE
    e("v_lshrrev_b32 v7, 1, v1"); e("v_lshlrev_b32 v8, 7, v1"); e(f"v_add_u32 v8, s{sMX}, v8")
    for ks in range(2):
        e(f"v_add_u32 v9, {4*ks}, v2"); e("v_xor_b32 v9, v9, v7"); e(f"v_lshl_add_u32 v{aXR+ks}, v9, 4, v8")
    e("v_lshl_add_u32 v7, v2, 3, v3")
    e("v_lshlrev_b32 v8, 8, v7"); e("v_lshl_add_u32 v8, v4, 3, v8"); e("v_add_u32 v8, 65536, v8")
    e("v_and_b32 v10, 1, v2"); e("v_lshl_add_u32 v11, v10, 2, v3")
    for t in range(8):
        e(f"v_xor_b32 v9, {t}, v11"); e(f"v_lshl_add_u32 v{aWQR+t}, v9, 5, v8")
    e(f"s_lshl_b32 s6, s{sW}, 1"); e("v_xor_b32 v9, s6, v11"); e(f"v_lshl_add_u32 v{aWQC}, v9, 5, v8")
    e("v_xor_b32 v9, 1, v9"); e(f"v_lshl_add_u32 v{aWQC+1}, v9, 5, v8")
    e("v_mul_u32_u24 v8, 96, v3"); e("v_lshl_add_u32 v8, v4, 3, v8"); e("v_lshl_add_u32 v8, v2, 10, v8"); e("v_lshl_add_u32 v8, v10, 7, v8")
    e(f"s_and_b32 s6, s{sHEAD}, 1"); e("s_lshl_b32 s7, s6, 5"); e("s_add_u32 s7, s7, 81920"); e(f"v_add_u32 v{aGUR}, s7, v8")
    e("s_lshl_b32 s6, s6, 6"); e(f"s_sub_u32 s6, {81920+64}, s6"); e(f"v_add_u32 v{aGUR2}, s6, v8")
    e(f"s_lshl_b32 s{sT0}, s{sW}, 5"); e(f"s_add_u32 s7, s7, s{sT0}"); e(f"s_cmp_ge_u32 s{sW}, 2"); e("s_cselect_b32 s7, s6, s7"); e(f"v_add_u32 v{aGUC}, s7, v8")
    for i in range(4): e(f"v_mov_b32 v{ONES+i}, 0x3f803f80")
    L += srd(SWS, 86, 87, 1 << 28)
    e(f"s_movk_i32 s{SDBG+2}, 256"); e(f"s_mov_b32 s{SDBG+3}, 0x00020000")
    if OPT['stamp']:
        e("s_lshl_b32 s6, s2, 2"); e(f"s_add_u32 s6, s6, s{sW}"); e(f"s_lshl_b32 s{sSTo}, s6, 8"); e(f"s_add_u32 s{sSTo}, s{sSTo}, {STAMP_OFF}")
    e(f"v_mov_b32 v10, {OOB}"); e("v_lshlrev_b32 v9, 4, v2"); e("v_cmp_eq_u32 vcc, 0, v1"); e(f"v_cmp_eq_u32 s[6:7], 0, v{l}"); e("v_mov_b32 v12, 0")
    e(f"v_cndmask_b32 v{TM}, v10, v9, vcc"); e(f"v_cndmask_b32 v{TM+1}, v10, v12, s[6:7]"); e("v_cmp_eq_u32 vcc, 0, v0")
    for i in range(4): e(f"v_mov_b32 v{28+i}, 0")
    e(f"v_cndmask_b32 v{TM+2}, v10, v12, vcc")
    e(f"s_lshl_b32 s{sT1}, s{sT1}, 4"); e(f"s_add_u32 s{sT1}, s{sT1}, {STAT_OFF}")
    e(f"s_waitcnt vmcnt({vm_after(pre + L, ['st'])})")
    for k in range(4):
        for rw in range(2):
            e(f"v_dot2c_f32_bf16 v{28+2*rw}, v{20+4*rw+k}, v{ONES}"); e(f"v_dot2c_f32_bf16 v{29+2*rw}, v{20+4*rw+k}, v{20+4*rw+k}")
    e("s_nop 1")
    for rot in (8, 4, 2, 1):
        for i in range(4): e(f"v_add_f32_dpp v{28+i}, v{28+i}, v{28+i} row_ror:{rot} {DPP}")
    L += xlane_reduce("v_add_f32", [28, 29, 30, 31], [20, 21, 22, 23])
    for rw in range(2):
        s_, q_ = 28+2*rw, 29+2*rw
        e(f"v_mul_f32 v{s_}, {f2u(-1/512)}, v{s_}"); e(f"v_mul_f32 v{q_}, {f2u(1/512)}, v{q_}")
        e(f"v_fma_f32 v{q_}, -v{s_}, v{s_}, v{q_}"); e(f"v_max_f32 v{q_}, 0, v{q_}"); e(f"v_add_f32 v{q_}, {f2u(1e-5)}, v{q_}")
    e(f"buffer_store_dwordx4 v[28:31], v{TM+1}, s[{SWS}:{SWS+3}], s{sT1} offen sc1 ; @pub")
    return L

def k1_setup3():
    L = []; e = L.append; l = vLANE
    e(f"s_lshl_b32 s6, s{sHEAD}, 19")
    e(f"s_add_u32 s{SK}, s66, s6"); e(f"s_addc_u32 s{SK+1}, s67, 0"); e(f"s_add_u32 s{SV}, s68, s6"); e(f"s_addc_u32 s{SV+1}, s69, 0")
    for d in (SK, SV): e(f"s_mov_b32 s{d+2}, 524288"); e(f"s_mov_b32 s{d+3}, 0x00020000")
    e(f"s_mov_b64 s[{sKVB}:{sKVB+1}], s[{SK}:{SK+1}]"); e(f"s_mov_b64 s[{sKVB+2}:{sKVB+3}], s[{SV}:{SV+1}]")
    e(f"s_lshl_b32 s6, s{sQB}, 2"); e(f"s_add_u32 s6, s6, s{sW}")
    e(f"s_lshl_b32 s{sSTAo}, s6, 9"); e(f"s_add_u32 s{sSTAo}, s{sSTAo}, {STAT_OFF}")
    e(f"s_mul_i32 s7, s6, {ACT_RB}"); e(f"s_add_u32 s{SACT}, s{SWS}, s7"); e(f"s_addc_u32 s{SACT+1}, s{SWS+1}, 0")
    e(f"s_mov_b32 s{SACT+2}, {ACT_RB}"); e(f"s_mov_b32 s{SACT+3}, 0x00020000")
    L += srd(SWO, 72, 73, 4096*1024) + srd(SWD, 80, 81, 1376*1024)
    e("s_lshl_b32 s6, s2, 2"); e(f"s_add_u32 s6, s6, s{sW}"); e("s_and_b32 s7, s6, 7"); e("s_lshr_b32 s6, s6, 3")
    e(f"s_mul_i32 s{sT0}, s7, {ACT_RB}"); e(f"s_add_u32 s{sT0}, s{sT0}, {WT_OFF}")
    e(f"s_add_u32 s{SWT}, s{SWS}, s{sT0}"); e(f"s_addc_u32 s{SWT+1}, s{SWS+1}, 0"); e(f"s_mov_b32 s{SWT+2}, {ACT_RB}"); e(f"s_mov_b32 s{SWT+3}, 0x00020000")
    e(f"s_lshl_b32 s{sW2S}, s6, 15"); e("s_lshl_b32 s7, s7, 7"); e(f"s_add_u32 s{sW2S}, s{sW2S}, s7")
    e(f"s_lshl_b32 s{sT2}, s6, 12")
    e(f"s_add_u32 s{sMW2}, s{sMX}, 131072")
    e(f"v_and_b32 v{TM+3}, 15, v{l}"); e(f"v_lshrrev_b32 v{TM+4}, 4, v{l}")
    L += kv_voff(TM+3, TM+4, TM+5)
    e(f"v_lshlrev_b32 v{aCS}, 4, v{TM+4}"); e(f"v_add_u32 v{aCS}, 131072, v{aCS}")
    e(f"s_mov_b32 s{sKV}, 0"); e(f"s_mov_b32 s{sMASK}, 0xffff0000"); e(f"s_mov_b32 s{sPASS}, 0")
    e(f"s_mul_i32 s6, s{sHEAD}, 3"); e(f"s_and_b32 s7, s{sHEAD}, 1")
    e(f"s_add_u32 s{sH0}, s6, s7"); e(f"s_lshr_b32 s{sH0}, s{sH0}, 1"); e(f"s_add_u32 s{sH0}, s{sH0}, 128"); e(f"s_lshl_b32 s{sH0}, s{sH0}, 12")
    e("s_add_u32 s6, s6, 2"); e("s_lshl_b32 s7, s7, 1"); e("s_sub_u32 s6, s6, s7")
    e(f"s_lshr_b32 s{sH0+1}, s6, 1"); e(f"s_add_u32 s{sH0+1}, s{sH0+1}, 128"); e(f"s_lshl_b32 s{sH0+1}, s{sH0+1}, 12")
    e("s_and_b32 s6, s6, 1"); e("s_lshl_b32 s6, s6, 3"); e(f"s_add_u32 s{sH0+1}, s{sH0+1}, s6")
    e("s_and_b32 s6, s2, 7"); e("s_lshr_b32 s7, s2, 3")
    e("s_lshr_b32 s79, s6, 2"); e(f"s_lshl_b32 s{sSP}, s79, 1"); e(f"s_add_u32 s{sSP}, s{sSP}, s6"); e(f"s_add_u32 s{sSP}, s{sSP}, 1"); e(f"s_and_b32 s{sSP}, s{sSP}, 3")
    e("s_lshl_b32 s79, s79, 3"); e("s_and_b32 s6, s7, 7"); e("s_add_u32 s79, s79, s6"); e("s_lshr_b32 s80, s7, 3")
    e(f"s_lshr_b32 s7, s{sW}, 1"); e("s_lshl_b32 s6, s7, 12"); e(f"s_sub_u32 s{sSZ2}, {ACT_RB}, s6")
    e(f"s_and_b32 s7, s{sW}, 1")
    e("s_lshl_b32 s81, s79, 1"); e("s_add_u32 s81, s81, s7"); e(f"s_mul_i32 s81, s81, {ACT_RB}"); e("s_add_u32 s81, s81, s6")
    e(f"s_add_u32 s{sA2}, s{SWS}, s81"); e(f"s_addc_u32 s{sA2+1}, s{SWS+1}, 0")
    e("s_lshl_b32 s81, s80, 1"); e("s_add_u32 s81, s81, s7"); e(f"s_mul_i32 s81, s81, {ACT_RB}"); e("s_add_u32 s81, s81, s6"); e(f"s_add_u32 s81, s81, {WT_OFF}")
    e(f"s_add_u32 s{sW2}, s{SWS}, s81"); e(f"s_addc_u32 s{sW2+1}, s{SWS+1}, 0")
    e("s_lshl_b32 s81, s79, 2"); e("s_add_u32 s81, s81, s80"); e("s_lshl_b32 s81, s81, 18"); e(f"s_lshl_b32 s6, s{sW}, 12"); e("s_add_u32 s81, s81, s6")
    e(f"s_add_u32 s{sP2}, s81, {PART_OFF}")
    e("s_lshl_b32 s81, s79, 1"); e(f"s_lshr_b32 s6, s{sW}, 1"); e("s_add_u32 s81, s81, s6"); e("s_lshl_b32 s81, s81, 2"); e(f"s_add_u32 s81, s81, s{sSP}"); e("s_lshl_b32 s81, s81, 14")
    e("s_lshl_b32 s6, s80, 1"); e("s_add_u32 s6, s6, s7"); e("s_lshl_b32 s6, s6, 7"); e(f"s_add_u32 s{sXO}, s81, s6")
    e(f"s_movk_i32 s{sINC}, 16384")
    e(f"s_lshr_b32 s{sFQB}, s79, 1"); e(f"s_lshl_b32 s{sFQB}, s{sFQB}, 2"); e(f"s_add_u32 s{sFQB}, s{sFQB}, s{sSP}"); e(f"s_lshl_b32 s{sFQB}, s{sFQB}, 7")
    e(f"s_add_u32 s{sFQB}, s{sFQB}, {FLAG_OFF}")
    return L

def rd_x(buf):
    return [f"ds_read_b128 {v(XF+buf*32+(qt*2+ks)*4,4)}, v{aXR+ks} offset:{buf*32768+2048*qt}" for qt in range(4) for ks in range(2)]
def rd_w(m, lb):
    L = []
    for ks in range(2):
        for hh in range(2):
            d = a(WF+(m*2+ks)*4+2*hh, 2)
            if m < 8: L.append(f"ds_read_b64_tr_b16 {d}, v{aWQR+m} offset:{lb*32768+ks*8192+hh*1024}")
            else:
                z, t = divmod(m-8, 3)
                L.append(f"ds_read_b64_tr_b16 {d}, v{aGUR if t < 2 else aGUR2} offset:{lb*32768+z*8192+ks*4096+hh*384+32*(t&1)}")
    return L
def rd_e(lb):
    L = []
    for tl in range(4):
        for ks in range(2):
            for hh in range(2):
                d = a(EFr(tl, ks)+2*hh, 2)
                if tl < 2: L.append(f"ds_read_b64_tr_b16 {d}, v{aWQC+tl} offset:{lb*32768+ks*8192+hh*1024}")
                else: L.append(f"ds_read_b64_tr_b16 {d}, v{aGUC} offset:{lb*32768+(tl-2)*8192+ks*4096+hh*384}")
    return L
def acc_m(m, qt):
    return v(QACC+(m*4+qt)*4, 4) if m < 8 else a(gua(m-8, qt), 4)

def loop_addr_setup(t):
    L = []; e = L.append; l = vLANE
    e(f"v_and_b32 v{t}, 15, v{l}"); e(f"v_lshrrev_b32 v{t+1}, 4, v{l}"); e(f"v_lshrrev_b32 v{t+2}, 2, v{t}"); e(f"v_and_b32 v{t+3}, 3, v{l}")
    e(f"v_lshlrev_b32 v{t+4}, 8, v{t}")
    e(f"v_and_b32 v{t+6}, 1, v{t+1}"); e(f"v_lshrrev_b32 v{t+7}, 1, v{t+1}"); e(f"v_lshl_add_u32 v{t+6}, v{t+6}, 1, v{t+7}")
    e(f"v_xor_b32 v{t+6}, v{t+6}, v{t}")
    for s_ in range(4):
        e(f"v_xor_b32 v{t+5}, {4*s_}, v{t+6}"); e(f"v_lshl_add_u32 v{aKR+s_}, v{t+5}, 4, v{t+4}")
    e(f"v_lshl_add_u32 v{t+4}, v{t+1}, 2, v{t+2}")
    e(f"v_and_b32 v{t+5}, 7, v{t+4}")
    e(f"v_lshlrev_b32 v{t+6}, 7, v{t+4}"); e(f"v_lshl_add_u32 v{t+6}, v{t+3}, 3, v{t+6}"); e(f"v_add_u32 v{aW2R}, s{sMW2}, v{t+6}")
    e(f"v_lshlrev_b32 v{t+4}, 8, v{t+4}"); e(f"v_lshl_add_u32 v{t+4}, v{t+3}, 3, v{t+4}"); e(f"v_add_u32 v{t+4}, 65536, v{t+4}")
    for dt in range(8):
        e(f"v_xor_b32 v{t+6}, {dt}, v{t+5}"); e(f"v_lshl_add_u32 v{aVR+dt}, v{t+6}, 5, v{t+4}")
    e(f"v_lshrrev_b32 v{t+5}, 3, v{l}"); e(f"v_and_b32 v{t+6}, 7, v{l}"); e(f"v_lshlrev_b32 v{t+5}, 10, v{t+5}"); e(f"v_lshl_add_u32 v{aW2R+1}, v{t+6}, 4, v{t+5}")
    return L

def place_dma(G, dm, g, step):
    last = g
    for x in dm:
        if x.startswith('buffer'):
            while g % 2 != 1 or G.used(g) > 0: g += 1
            G.put(g, x); last = g + 1; g += step - 1
        else:
            gg = G.fit(last, x); last = gg
            if 'm0,' in x: g = max(g, gg + 1)
    return g

def d_load(off):
    return [f"v_and_b32 v{vD1+1}, 15, v{vLANE}", f"v_lshlrev_b32 v{vD1+1}, 4, v{vD1+1}",
            f"buffer_load_dword v{vD1}, v{vD1+1}, s[{SDBG}:{SDBG+3}], 0 offen offset:{off} sc1"]
def d1_load(): return d_load(0)
SPIN = 0x20000
WAITMARK = "s_waitcnt vmcnt(63) ; WAIT "
def resolve_waits(pre, ph):
    out = []
    for x in ph:
        if x.startswith(WAITMARK):
            tags, _, extra = x[len(WAITMARK):].partition('|')
            n = vm_after(pre + out, tags.split())
            x = "s_waitcnt " + " ".join(([f"vmcnt({n})"] if n is not None else []) + ([extra] if extra else []))
        out.append(x)
    return out

def gemm_phase(st, carry, bg):
    xb = st & 1; first = (st == 0); nb = (st + 1) & 1
    mf = []
    def C(acc, ks): return "0" if (first and ks == 0) else acc
    if first:
        for tl in range(4):
            for ks in range(2):
                d = a(CSA+tl*4, 4); mf.append(f"{MF} {d}, {a(EFr(tl,ks),4)}, {v(ONES,4)}, {C(d,ks)}")
    P0 = len(mf)
    for m in range(14):
        for qt in range(4):
            for ks in range(2):
                d = acc_m(m, qt); mf.append(f"{MF} {d}, {a(WF+(m*2+ks)*4,4)}, {v(XF+xb*32+(qt*2+ks)*4,4)}, {C(d,ks)}")
    N = len(mf)
    G = Gaps(N)
    for i, r in enumerate(carry): G.put(i // 2, r)
    BARG = OPT['barg0'] if first else 7
    tags = {0: "W1", 1: "W2 X2 pub", 6: "W7 X7 d0", 7: ""}.get(st, f"W{st+1} X{st+1}")
    G.put(BARG, WAITMARK + tags + "|lgkmcnt(0)", force=True); G.put(BARG, "s_barrier", force=True)
    if first:
        G.put(7, "s_waitcnt lgkmcnt(8)"); G.put(15, "s_waitcnt lgkmcnt(0)")
    if st == 6:
        G.put(BARG+1, f"v_cmp_gt_u32 vcc, 16, v{vD1}"); G.put(BARG+2, "s_cbranch_vccnz K1_D0POLL"); G.put(BARG+2, "K1_D0OK:")
    newcarry = []
    xg = 50 if first else BARG + 2
    if st < 7:
        g = BARG + 1
        for m in range(14):
            rs = rd_w(m, nb)
            if m == 13: newcarry = rs; break
            for i, r in enumerate(rs):
                g = max(g, P0 + 8*m + 8 + 2*i)
                while g % 2 != 0 or G.used(g) > 1: g += 1
                G.put(g, r)
    dm = []
    if first:
        place_dma(G, [f"buffer_store_dwordx4 {a(CSA+4*tl,4)}, v{TM}, s[{SWS}:{SWS+3}], s{sCSo} offen offset:{64*tl} sc1 ; @pub" for tl in range(4)], 15, 4)
    if st == 1: dm += [f"buffer_atomic_add v{TM+1}, v{TM+2}, s[{SDBG}:{SDBG+3}], s{sT1} offen offset:4 sc1"]
    if st == 6:
        dm += [f"buffer_load_dwordx4 {v(TM+4*j,4)}, v{vD1+1}, s[{SWS}:{SWS+3}], s{sCSo} offen offset:{128*j} sc1 ; @cs" for j in range(2)]
        dm += [f"buffer_load_dwordx2 {v(SXA+4*qt,2)}, v{aGUC}, s[{SWS}:{SWS+3}], s{sSTAo} offen offset:{128*qt} sc1 ; @cs" for qt in range(4)]
    if st <= 5: place_dma(G, dm + dma_w(xb, st+2), BARG + 1, OPT['wgap'])
    elif st == 6: place_dma(G, dm + kv_dma(0, " ; @KV0") + kv_dma(1), BARG + 3, 4)
    else: place_dma(G, kv_dma(2) + kv_dma(3), BARG + 1, 6)
    if st < 7:
        g = xg
        if first: g = G.fit(g, WAITMARK + "X1|") + 1
        for r in rd_x(nb):
            while G.used(g) > 1 or any(Ins(x).kind == 'dma' for x in G.pre[g]): g += 1
            G.put(g, r); g += 2
        xdone = g
    if st <= 4:
        w = G.fit(max(52, xdone + 8), "s_waitcnt lgkmcnt(2)")
        place_dma(G, dma_x(nb, st+3), w + 1, 6 if not first else 4)
    if st < 7: G.fit(N - 3, "s_waitcnt lgkmcnt(4)")
    q = []
    if st == 0:
        q = [f"s_lshl_b32 s6, s{sHEAD}, 3", f"s_add_u32 s6, s6, s{sQB}", "s_lshl_b32 s6, s6, 2", f"s_add_u32 s6, s6, s{sW}", "s_lshl_b32 s6, s6, 8",
             f"s_add_u32 s{sCSo}, s6, {CS_OFF}", f"s_and_b32 s{sT1}, s2, 15", f"s_lshl_b32 s{sT1}, s{sT1}, 4"]
        G.stream(0, q, 14); assert not q
        q = [f"v_mov_b32 v{TM+1}, 1"]; G.stream(40, q)
    if st in (1, 2, 3, 4) and OPT['kvpf']:
        t = SXA + 4
        q = []
        if st == 1:
            q = [f"v_and_b32 v{t}, 3, v{vLANE}", f"v_lshlrev_b32 v{t}, 7, v{t}", f"s_lshl_b32 s{sCNT}, s{sQB}, 2", f"s_add_u32 s{sCNT}, s{sCNT}, s{sW}", f"s_lshl_b32 s{sCNT}, s{sCNT}, 9"]
        q += [f"buffer_load_dword v{t+1+2*(st&1)}, v{t}, s[{SK}:{SK+3}], s{sCNT} offen", f"buffer_load_dword v{t+2+2*(st&1)}, v{t}, s[{SV}:{SV+3}], s{sCNT} offen",
              f"s_add_u32 s{sCNT}, s{sCNT}, 16384"]
        pos = OPT['kvpf']
        k = 0
        for x in q:
            while G.used(pos) + UNITS[Ins(x).kind] > 2 or (Ins(x).kind == 'vld' and G.post[pos]): pos += 1
            G.post[pos].append(x)
    if st in (1, 2, 3, 4): G.stream(BARG + 4 if st == 1 else 0, bg)
    if st == 5:
        assert not bg, len(bg)
        q = d_load(4); q[-1] += " ; @d0"
        t = TM
        q += [f"v_and_b32 v{t}, 7, v{vLANE}", f"v_bfe_u32 v{t+1}, v{vLANE}, 3, 1", f"v_lshrrev_b32 v{t+2}, 4, v{vLANE}", f"v_lshlrev_b32 v{t+2}, 4, v{t+2}",
              f"v_lshl_add_u32 v{t+2}, v{t+1}, 6, v{t+2}", f"v_lshl_add_u32 v{vD1+1}, v{t}, 10, v{t+2}",
              f"v_add_u32 v{SXA+2}, s{sMW2}, v{t+2}",
              f"v_and_b32 v{aGUC}, 15, v{vLANE}", f"v_lshlrev_b32 v{aGUC}, 3, v{aGUC}",
              f"s_lshl_b32 s6, s{sHEAD}, 13", f"s_lshl_b32 s7, s{sW}, 8", "s_add_u32 s6, s6, s7", f"s_add_u32 s{sCSo}, s6, {CS_OFF}"]
        G.stream(60, q); assert not q
    if st == 6:
        q = [WAITMARK + "cs|"]
        for pat in ("quad_perm:[1,0,3,2]", "quad_perm:[2,3,0,1]", "row_half_mirror"):
            q += [f"v_add_f32_dpp v{TM+i}, v{TM+i}, v{TM+i} {pat} {DPP}" for i in range(8)]
        q += [f"ds_write_b128 v{SXA+2}, {v(TM+4*j,4)} offset:{128*j}" for j in range(2)]
        for qt in range(4): q += [f"v_rsq_f32 v{SXA+4*qt+2}, v{SXA+4*qt+1}"]
        for qt in range(4):
            q += [f"v_mul_f32 v{SXA+4*qt+3}, v{SXA+4*qt+1}, v{SXA+4*qt+2}", f"v_mul_f32 v{SXA+4*qt+1}, {f2u(SCALE)}, v{SXA+4*qt+2}",
                  f"v_mul_f32 v{SXA+4*qt+2}, {f2u(-LOG2E)}, v{SXA+4*qt+2}"]
        G.stream(50, q)
        for x in q: G.post[N-1].append(x)
        if q: print(f"; phase 6: {len(q)} left over", file=sys.stderr)
    if st == 7:
        g = BARG + 1
        for m in range(8):
            g = G.fit(g, f"ds_read_b128 {v(4*m,4)}, v{aCS} offset:{(m>>1)*8192+(m&1)*64}")
        q = loop_addr_setup(TM); g = G.stream(0, q, 40); assert not q
        g = G.fit(max(g, 20), "s_waitcnt lgkmcnt(0)") + 1
        left = []
        for m in range(8):
            q = [f"v_fmac_f32 v{QACC+(m*4+qt)*4+r}, v{4*m+r}, v{SXA+4*qt}" for qt in range(4) for r in range(4)]
            g = G.stream(max(g, 8*m + 12), q); left += q
        for x in left: G.post[N-1].append(x)
        if left: print(f"; phase 7: {len(left)} left over", file=sys.stderr)
    return weave(mf, G.out()), newcarry

LO = "op_sel_hi:[1,0,1]"; HI = "op_sel:[0,1,0] op_sel_hi:[1,1,1]"
LO2 = "op_sel_hi:[1,0]"; HI2 = "op_sel:[0,1] op_sel_hi:[1,1]"
def zero_o(i): return f"v_mfma_f32_32x32x16_bf16 {a(16*i,16)}, {v(LACC,4)}, {v(LACC,4)}, 0"
def max_mfmas():
    return [f"{MF} {v(SB+4*qt,4)}, {v(KF+s_*4,4)}, {v(QF+(qt*4+s_)*4,4)}, {'0' if s_ == 0 else v(SB+4*qt,4)}" for qt in range(4) for s_ in range(4)]
def k1_post_gemm():
    L = []; e = L.append
    CSG = 208
    vr = rd_v(0, 0)
    w2 = []
    for it, sr in enumerate((SWO, SWD)):
        for i in range(4):
            w2.append(([f"s_add_u32 m0, s{sMW2}, {4096*it}"] if i == 0 else []) + [f"s_add_u32 s{sT1}, s{sW2S}, {7168*i}",
                       f"buffer_load_dwordx4 v{aW2R+1}, s[{sr}:{sr+3}], s{sT1} offen offset:{1024*i} lds"])
    for sp in (2, 3, 0, 1):
        for qt in range(4):
            P0 = v(SXA+4*qt, 2)
            for b in range(2):
                m = 2*sp+b; x = QACC + (m*4+qt)*4
                for h in (0, 2): e(f"v_pk_mul_f32 {v(x+h,2)}, {v(x+h,2)}, {P0} {HI2}")
                for h in range(2): e(f"v_cvt_pk_bf16_f32 v{QF+(qt*4+sp)*4+2*b+h}, v{x+2*h}, v{x+2*h+1}")
        if sp == 3:
            for m in range(6):
                z, t = divmod(m, 3)
                e(f"ds_read_b128 {v(CSG+4*m,4)}, v{aCS} offset:{t*8192+(2+z)*64}")
        elif sp == 0:
            e(WAITMARK + "KV0|lgkmcnt(0)"); e("s_barrier")
            for f in range(8): e(rd_k(f, 0))
            L += vr[:16]
        elif sp == 1:
            for f in range(8, 16): e(rd_k(f, 0))
            L += vr[16:]
        else: e("s_nop 1")
        for qt in range(4):
            f = QF+(qt*4+sp)*4
            e(f"v_permlane16_swap_b32 v{f}, v{f+2}"); e(f"v_permlane16_swap_b32 v{f+1}, v{f+3}")
    for i in range(16): e(f"v_mov_b32 v{LACC+i}, 0")
    e("s_waitcnt lgkmcnt(15)")
    if OPT['stamp'] == 2: L += stamp(TM)
    mx = max_mfmas(); zs = [6, 7]
    n = 0
    for qt in range(4):
        for t in (2, 0, 1):
            G_ = TM + (n % 2)*8; U_ = G_ + 4; n += 1
            H_ = 232 + (4 if t == 2 else 2*t)
            P0 = v(SXA+4*qt, 2); P1 = v(SXA+4*qt+2, 2)
            if mx: e(mx.pop(0))
            elif zs: e(zero_o(zs.pop(0)))
            if t != 1 and w2 and not OPT['w2blk']: L += w2.pop(0)
            for r in range(4): e(f"v_accvgpr_read_b32 v{G_+r}, a{gua(t, qt)+r}")
            if mx: e(mx.pop(0))
            for r in range(4): e(f"v_accvgpr_read_b32 v{U_+r}, a{gua(3+t, qt)+r}")
            for h in (0, 2): e(f"v_pk_fma_f32 {v(G_+h,2)}, {v(CSG+4*t+h,2)}, {P0}, {v(G_+h,2)} {LO}")
            for h in (0, 2): e(f"v_pk_mul_f32 {v(G_+h,2)}, {v(G_+h,2)}, {P1} {LO2}")
            if mx: e(mx.pop(0))
            elif zs: e(zero_o(zs.pop(0)))
            for r in range(4): e(f"v_exp_f32 v{G_+r}, v{G_+r}")
            for h in (0, 2): e(f"v_pk_fma_f32 {v(U_+h,2)}, {v(CSG+12+4*t+h,2)}, {P0}, {v(U_+h,2)} {LO}")
            for h in (0, 2): e(f"v_pk_fma_f32 {v(G_+h,2)}, {v(G_+h,2)}, {P1}, {P1} op_sel:[0,1,1] op_sel_hi:[1,1,1]")
            if mx: e(mx.pop(0))
            for r in range(4): e(f"v_rcp_f32 v{G_+r}, v{G_+r}")
            e("s_nop 0")
            for h in (0, 2): e(f"v_pk_mul_f32 {v(U_+h,2)}, {v(U_+h,2)}, {v(G_+h,2)}")
            for h in range(2): e(f"v_cvt_pk_bf16_f32 v{H_+h}, v{U_+2*h}, v{U_+2*h+1}")
            if t == 2: e(f"buffer_store_dwordx2 {v(H_,2)}, v{aL16}, s[{SACT}:{SACT+3}], s{sH0+1} offen offset:{1024*qt} sc1")
            if t == 1: e(f"buffer_store_dwordx4 {v(H_-2,4)}, v{aL16}, s[{SACT}:{SACT+3}], s{sH0} offen offset:{1024*qt} sc1")
        zs += {0: [0], 1: [1, 2], 2: [3], 3: [4, 5]}[qt]
    if OPT['stamp'] == 2: L += stamp(TM)
    for z in zs: e(zero_o(z))
    for qt in range(4):
        b = SB+4*qt
        e(f"v_max3_f32 v{b}, v{b}, v{b+1}, v{b+2}"); e(f"v_max_f32 v{b}, v{b}, v{b+3}")
    L += xlane_reduce("v_max_f32", [SB+4*q for q in range(4)], [SB+4*q+1 for q in range(4)])
    for qt in range(4):
        for r in range(4): e(f"v_sub_f32 v{NEGM+4*qt+r}, 0, v{SB+4*qt}")
    return L

def rd_k(f, slot):
    kt, s_ = divmod(f, 4)
    return f"ds_read_b128 {v(KF+4*f,4)}, v{aKR+s_} offset:{slot*16384+kt*4096}"
def rd_v(buf, slot):
    return [f"ds_read_b64_tr_b16 {a(VF+buf*64+(dt*2+kk)*4+2*hh,2)}, v{aVR+dt} offset:{slot*16384+kk*8192+hh*4096}"
            for dt in range(8) for kk in range(2) for hh in range(2)]
def qk_mfmas(qt, zero=False):
    L = []
    for kt in range(4):
        for s_ in range(4):
            d = v(SB+4*kt, 4)
            c = ("0" if zero else v(NEGM+4*qt, 4)) if s_ == 0 else d
            L.append(f"{MF} {d}, {v(KF+(kt*4+s_)*4,4)}, {v(QF+(qt*4+s_)*4,4)}, {c}")
    return L
def pv_mfmas(qt, vb, pb):
    L = []
    for dt in range(8):
        d = a(OACC+(dt*4+qt)*4, 4)
        for kk in range(2): L.append(f"{MF} {d}, {a(VF+vb*64+(dt*2+kk)*4,4)}, {v(PB+pb*8+kk*4,4)}, {d}")
    d = v(LACC+4*qt, 4)
    for kk in range(2): L.append(f"{MF} {d}, {v(ONES,4)}, {v(PB+pb*8+kk*4,4)}, {d}")
    return L
EXP = lambda e_: f"v_exp_f32 v{SB+e_}, v{SB+e_}"
CVT = lambda c, pb: f"v_cvt_pk_bf16_f32 v{PB+pb*8+c}, v{SB+2*c}, v{SB+2*c+1}"

def attn_step(jm, u):
    pb = u & 1
    mf = qk_mfmas((u+1) % 4) + pv_mfmas(u, jm & 1, pb)
    G = Gaps(34)
    for k, e_ in enumerate((13, 14, 15)): G.put(2*k, EXP(e_))
    G.put(1, CVT(6, pb)); G.put(5, CVT(7, pb))
    for e_ in range(13): G.put(8+2*e_, EXP(e_))
    for c in range(6): G.put(11+4*c, CVT(c, pb ^ 1))
    ns = (jm+1) % 4
    vr = rd_v((jm+1) & 1, ns)
    dm = kv_dma(jm)
    if u == 0:
        G.put(3, "s_waitcnt vmcnt(16) lgkmcnt(0)", force=True); G.put(3, "s_barrier", force=True)
        G.put(6, dm[0])
        for g, x in zip((9, 17, 25, 33), dm[1:5]): G.put(g, x)
        for g, x in zip((7, 11, 13, 15, 19, 21, 23, 27, 29, 31), vr[0:10]): G.put(g, x)
    elif u == 1:
        G.put(6, dm[5])
        for g, x in zip((9, 17, 25, 33), dm[6:10]): G.put(g, x)
        for g, x in zip((1, 3, 5, 7, 11, 13, 15, 19, 21, 23, 27, 29, 31), vr[10:23]): G.put(g, x)
    elif u == 2:
        G.put(6, dm[10])
        for f in range(16): G.put(2*f+1, rd_k(f, ns))
        G.put(33, "s_waitcnt lgkmcnt(3)")
    else:
        G.put(6, "s_waitcnt lgkmcnt(3)")
        for g, x in zip((1, 3, 5, 7, 9, 11, 13, 15, 17), vr[23:32]): G.put(g, x)
        if jm == 3:
            G.put(25, f"s_add_u32 s{sCNT}, s{sCNT}, 1"); G.put(29, f"s_cmp_lt_u32 s{sCNT}, s{sT0}")
    return weave(mf, G.out())

def attn_entry():
    A = []; e = A.append
    e("s_waitcnt vmcnt(24)"); e("s_barrier")
    for f in range(16): e(rd_k(f, 0))
    A += rd_v(0, 0)
    for i in range(16): e(f"v_mov_b32 v{LACC+i}, 0")
    for i in range(8): e(zero_o(i))
    C_ = []; e = C_.append
    e("s_waitcnt lgkmcnt(0)")
    mf = qk_mfmas(0)
    G = Gaps(16)
    G.put(0, f"s_mov_b32 s{sCNT}, 0"); G.put(1, f"s_cmp_lg_u32 s{sPASS}, 0"); G.put(1, f"s_cselect_b32 s{sT0}, 7, 1")
    for g_ in (4, 5, 6, 7): G.put(g_, "s_nop 0")
    for e_ in range(8): G.put(8 + e_, EXP(e_))
    C_ += weave(mf, G.out())
    for c in range(4): e(CVT(c, 0))
    for e_ in range(8, 13): e(EXP(e_))
    for c in range(4, 6): e(CVT(c, 0))
    return A, C_

def part_soff(e, dst, store):
    for i in range(1, 4):
        e(f"s_add_u32 s6, s{sSP}, {i}"); e("s_and_b32 s6, s6, 3")
        if store: e("s_lshl_b32 s6, s6, 2"); e(f"s_add_u32 s6, s6, s{sSP}")
        else: e(f"s_lshl_b32 s7, s{sSP}, 2"); e("s_add_u32 s6, s6, s7")
        e("s_lshl_b32 s6, s6, 14"); e(f"s_add_u32 s{dst+i-1}, s6, s{sP2}")

def block_d():
    L = []
    for it, sr in enumerate((SWO, SWD)):
        L.append(f"s_add_u32 m0, s{sMW2}, {4096*it}")
        for i in range(4):
            L += [f"s_add_u32 s{sT1}, s{sW2S}, {7168*i}", f"buffer_load_dwordx4 v{aW2R+1}, s[{sr}:{sr+3}], s{sT1} offen offset:{1024*i} lds"]
    return L + [f"s_mov_b32 s{sT0}, {TA}"]

def block_a():
    L = []; e = L.append
    for it in range(2):
        for ct in range(4):
            b = T2 + (it*4+ct)*4
            for hh in range(2): e(f"ds_read_b64_tr_b16 {v(b+2*hh,2)}, v{aW2R} offset:{it*4096+hh*2048+32*ct}")
    e(f"s_add_u32 s{sT1}, s{sT2}, {128*4096}")
    part_soff(e, sH0, True)
    e(f"s_lshl_b32 s6, s{sQB}, 2"); e(f"s_lshr_b32 s7, s{sHEAD}, 3"); e("s_add_u32 s6, s6, s7"); e("s_lshl_b32 s6, s6, 5"); e(f"s_and_b32 s7, s{sHEAD}, 7"); e("s_add_u32 s6, s6, s7"); e("s_lshl_b32 s6, s6, 2"); e(f"s_add_u32 s{sW2S}, s6, {FLAG_OFF}")
    for it in range(2):
        e(f"s_waitcnt lgkmcnt({8-8*it})")
        for ct in range(4):
            b = T2 + (it*4+ct)*4
            e(f"buffer_store_dwordx4 {v(b,4)}, v{aL16}, s[{SWT}:{SWT+3}], s{sT2 if it==0 else sT1} offen offset:{1024*ct} sc1")
    e(f"s_mov_b32 s{sT0}, {TW}")
    return L

def block_b():
    L = []; e = L.append
    e(f"s_mov_b32 s{sT0}, {TC}")
    e(f"s_cmp_lg_u32 s{sW}, 0"); e("s_cbranch_scc1 K1_LOOP")
    e(f"v_mov_b32 v{vSP}, 1"); e("s_and_b32 s6, s2, 15"); e("s_lshl_b32 s6, s6, 4")
    e("s_mov_b64 exec, 1")
    e(f"buffer_atomic_add v{vSP}, off, s[{SDBG}:{SDBG+3}], s6 sc1")
    e("s_mov_b64 exec, -1")
    return L

def block_w():
    L = []; e = L.append
    for i in range(4): e(f"v_mov_b32 v{T2+i}, -1")
    e(f"v_mov_b32 v{vSP}, 0")
    for i in range(3):
        for j in range(2): e(f"buffer_store_dwordx4 {v(T2,4)}, v{aL16}, s[{P2PART}:{P2PART+3}], s{sH0+i} offen offset:{1024*j} sc1")
    e(f"s_mov_b32 s{sT0}, {TV}")
    e(f"s_cmp_lg_u32 s{sW}, 0"); e("s_cbranch_scc1 K1_LOOP")
    e("s_mov_b64 exec, 1")
    e(f"buffer_store_dword v{vSP}, off, s[{SFLAG}:{SFLAG+3}], s{sW2S} sc1")
    e("s_mov_b64 exec, -1")
    return L
def block_v():
    L = [f"buffer_store_dwordx4 {v(T2,4)}, v{aL16}, s[{P2PART}:{P2PART+3}], s{sH0+i} offen offset:{2048+1024*j} sc1" for i in range(3) for j in range(2)]
    return L + [f"s_mov_b32 s{sT0}, {TB}"]

def block_c():
    return d1_load() + [f"s_mov_b32 s{sT0}, 7"]
def block_l():
    A = [f"v_cmp_gt_u32 vcc, 16, v{vD1}", f"s_mov_b32 s{sT1}, 0", "s_cbranch_vccz K1_D1OK"]
    D1 = d1_load() + [f"s_add_u32 s{sT1}, s{sT1}, 1", "s_sleep 8", "s_waitcnt vmcnt(0)", f"v_cmp_gt_u32 vcc, 16, v{vD1}",
          f"s_cmp_gt_u32 s{sT1}, {SPIN}", "s_cbranch_scc1 K1_D1OK", "s_cbranch_vccnz K1_D1POLL"]
    B = []; e = B.append
    B += srd(P2ACT, sA2, sA2+1, 0) + srd(P2WT, sW2, sW2+1, 0)
    e(f"s_mov_b32 s{P2ACT+2}, s{sSZ2}"); e(f"s_mov_b32 s{P2WT+2}, s{sSZ2}")
    for r in list(range(aKD, aKD+4)) + [aVD, aVD+1]: e(f"v_mov_b32 v{r}, v{aL16}")
    e(f"s_mul_i32 s{sKV}, s{sSP}, {11*4096}"); e(f"s_add_u32 s{sKV}, s{sKV}, {128*4096}"); e(f"s_movk_i32 s{sINC}, 8192")
    e(f"s_add_u32 s{sT1}, s{sKV}, {4*8192}")
    for k, sr in enumerate((P2WT, P2ACT)):
        e(f"s_add_u32 m0, s{sMKV}, {(8+k)*16384}"); e("s_nop 0")
        for i in range(4): e(f"buffer_load_dwordx4 v{aL16}, s[{sr}:{sr+3}], s{sT1} offen offset:{1024*i} sc1 lds")
    e(f"s_lshr_b32 s6, s{sW}, 1"); e("s_lshl_b32 s6, s6, 12")
    for i in range(4):
        e(f"s_add_u32 s7, s{sSP}, {i}"); e("s_and_b32 s7, s7, 3")
        e("s_lshl_b32 s7, s7, 10"); e("s_add_u32 s7, s7, s6"); e(f"v_add_u32 v{aA+i}, s7, v{aL16}")
    e(f"s_and_b32 s6, s{sW}, 1"); e("s_lshl_b32 s6, s6, 12"); e(f"v_add_u32 v{aW}, s6, v{aL16}")
    for hi in (1, 2):
        for i in range(4): e(f"v_add_u32 v{aA+4*hi+i}, {65536*hi}, v{aA+i}")
        e(f"v_add_u32 v{aW+hi}, {65536*hi}, v{aW}")
    e(f"v_and_b32 v{aFL}, 7, v{vLANE}"); e(f"v_lshlrev_b32 v{aFL}, 2, v{aFL}")
    e(f"s_mov_b32 s{sT0}, 8")
    return A, D1, B

def attn_check():
    L = []; e = L.append
    e("s_nop 7")
    t = 88
    e(f"v_mov_b32 v{t}, {f2u(2.0**OPT['thr'])}")
    e(f"v_cmp_nle_f32 vcc, v{LACC}, v{t}"); e(f"v_cmp_nle_f32 s[6:7], v{LACC+4}, v{t}")
    e(f"v_cmp_nle_f32 s[44:45], v{LACC+8}, v{t}"); e(f"v_cmp_nle_f32 s[46:47], v{LACC+12}, v{t}")
    e("s_nop 1")
    e("s_or_b64 s[6:7], s[6:7], vcc"); e("s_or_b64 s[44:45], s[44:45], s[46:47]"); e("s_or_b64 s[6:7], s[6:7], s[44:45]")
    e("s_cselect_b32 s6, 1, 0")
    e(f"v_mov_b32 v{t}, s6"); e(f"s_lshl_b32 s7, s{sW}, 2"); e(f"s_add_u32 s7, s7, {CHK_LDS}"); e(f"v_mov_b32 v{t+1}, s7"); e(f"v_mov_b32 v{t+2}, {CHK_LDS}")
    e(f"ds_write_b32 v{t+1}, v{t}"); e("s_waitcnt vmcnt(0) lgkmcnt(0)"); e("s_barrier")
    e(f"ds_read_b128 {v(t+4,4)}, v{t+2}"); e("s_waitcnt lgkmcnt(0)")
    e(f"v_or_b32 v{t+4}, v{t+4}, v{t+5}"); e(f"v_or3_b32 v{t+4}, v{t+4}, v{t+6}, v{t+7}"); e("s_nop 0")
    e(f"v_readfirstlane_b32 s6, v{t+4}"); e("s_nop 1")
    e(f"s_cmp_gt_u32 s6, s{sPASS}"); e("s_cbranch_scc1 K1_SLOW")
    return L

def attn_slow():
    P = []; e = P.append
    MX = T2
    for qt in range(4): e(f"v_mov_b32 v{MX+qt}, 0xff800000")
    e(f"s_mov_b32 s{sKV}, 0"); e("s_waitcnt vmcnt(0)")
    P += srd(SK, sKVB, sKVB+1, 524288) + srd(SV, sKVB+2, sKVB+3, 524288)
    e(f"s_movk_i32 s{sINC}, 16384")
    e(f"v_and_b32 v{T2+8}, 15, v{vLANE}"); e(f"v_lshrrev_b32 v{T2+9}, 4, v{vLANE}")
    P += kv_voff(T2+8, T2+9, T2+10)
    B = []; e = B.append
    e("s_barrier")
    e(f"s_mov_b32 m0, s{sMKV}"); e("s_nop 0")
    for i in range(4): e(f"buffer_load_dwordx4 v{aKD+i}, s[{SK}:{SK+3}], s{sKV} offen offset:{1024*i} lds")
    e("s_waitcnt vmcnt(0)"); e("s_barrier")
    for f in range(16): e(rd_k(f, 0))
    e("s_waitcnt lgkmcnt(0)")
    for qt in range(4):
        B += qk_mfmas(qt, zero=True)
        e("s_nop 7")
        for i in range(8): e(f"v_max3_f32 v{MX+qt}, v{MX+qt}, v{SB+2*i}, v{SB+2*i+1}")
        e("s_nop 3")
    e(f"s_add_u32 s{sKV}, s{sKV}, 16384"); e(f"s_cmp_lt_u32 s{sKV}, 524288")
    Q = []; e = Q.append
    Q += xlane_reduce("v_max_f32", [MX+q for q in range(4)], [MX+4+q for q in range(4)])
    for qt in range(4):
        for r in range(4): e(f"v_sub_f32 v{NEGM+4*qt+r}, 0, v{MX+qt}")
    e(f"s_mov_b32 s{sPASS}, 1"); e(f"s_mov_b32 s{sKV}, 0"); e("s_barrier")
    for s_ in range(4): Q += with_m0_nops(kv_dma(s_))
    return P, B, Q

def attn_epilogue():
    L = []; e = L.append
    for qt in range(4): e(f"v_rcp_f32 v{LACC+4*qt}, v{LACC+4*qt}")
    e(f"s_lshl_b32 s{sT0}, s{sHEAD}, 14")
    n = 0
    mod = " sc1"
    for i in range(4):
        for qt in range(4):
            t = (n % 4)*12; n += 1
            for b in range(2):
                for r in range(4): e(f"v_accvgpr_read_b32 v{t+4*b+r}, a{OACC+((2*i+b)*4+qt)*4+r}")
            for k in range(4): e(f"v_pk_mul_f32 {v(t+2*k,2)}, {v(t+2*k,2)}, {v(LACC+4*qt,2)} {LO2}")
            for k in range(4): e(f"v_cvt_pk_bf16_f32 v{t+8+k}, v{t+2*k}, v{t+2*k+1}")
            e(f"buffer_store_dwordx4 {v(t+8,4)}, v{aL16}, s[{SACT}:{SACT+3}], s{sT0} offen offset:{1024*qt}{mod} ; @o")
        e(f"s_add_u32 s{sT0}, s{sT0}, 4096")
    return L

def k1():
    pre = k1_setup()
    pre += k1_setup2(pre)
    if OPT['stamp']:
        pre += ["v_mov_b32 v8, s98", "v_mov_b32 v9, s100", "s_nop 1", f"buffer_store_dwordx2 v[8:9], off, s[{SST}:{SST+3}], s{sSTo}", "s_nop 1"]
        stamp_n[0] = 1
    pre += with_m0_nops(dma_w(1, 1))
    pre += stamp(8)
    pre += [f"s_waitcnt vmcnt({vm_after(pre, ['W0', 'X0'])})", "s_barrier"]
    pre += stamp(8)
    rw = rd_e(0) + rd_x(0) + sum((rd_w(m, 0) for m in range(14)), [])
    dx = dma_x(1, 1)
    for i, x in enumerate(dx): pre += rw[3*i:3*i+3] + [x]
    k = 3*len(dx)
    pre += ["s_waitcnt lgkmcnt(12)"]
    dx = dma_x(0, 2)
    for i, x in enumerate(dx): pre += rw[k+3*i:k+3*i+3] + [x]
    pre += rw[k+3*len(dx):]
    carry = []; bg = k1_setup3()
    for st in range(8):
        ph, carry = gemm_phase(st, carry, bg)
        ph = resolve_waits(pre, ph)
        n, over, bad = gap_report(ph)
        if over > 1 or bad: print(f"; gemm phase {st}: gaps {n} over {over} bad {bad}", file=sys.stderr)
        pre += ph
        if OPT['stamp'] == 2 and st < 7: pre += stamp(SXA+14 if st < 6 else TM)
    pre += stamp(TM)
    pre += resolve_waits(pre, k1_post_gemm())
    pre += stamp(T2+24)
    eA, eC = attn_entry()
    eC += stamp(T2+24)
    d0 = [f"s_mov_b32 s{sCNT}, 0", f"v_and_b32 v{TM}, 15, v{vLANE}", f"v_lshlrev_b32 v{TM}, 4, v{TM}", "K1_D0LOOP:",
          f"buffer_load_dword v{vD1}, v{TM}, s[{SDBG}:{SDBG+3}], 0 offen offset:4 sc1", f"s_add_u32 s{sCNT}, s{sCNT}, 1", "s_sleep 4", "s_waitcnt vmcnt(0)",
          f"v_cmp_gt_u32 vcc, 16, v{vD1}", f"s_cmp_gt_u32 s{sCNT}, {SPIN}", "s_cbranch_scc1 K1_D0OK", "s_cbranch_vccnz K1_D0LOOP", "s_branch K1_D0OK"]
    body = []
    for jm in range(4):
        for u in range(4): body += attn_step(jm, u)
    n, over, bad = gap_report(body)
    print(f"; attn loop: gaps {n} over {over} bad {bad}", file=sys.stderr)
    bA, bB, bC = block_a(), block_b(), block_c()
    chk = stamp(T2+24, True) + attn_check()
    sP, sB_, sQ = attn_slow()
    post = stamp(98)
    p2t, p2t2, p2c = phase2(attn_epilogue())
    lA, lD, lB = block_l()
    if OPT['stamp'] == 4:
        body += ["s_cselect_b32 s93, 1, 0", "s_memtime s[94:95]", "s_memrealtime s[96:97]", "s_waitcnt lgkmcnt(0)", "v_mov_b32 v88, s94", "v_mov_b32 v89, s96",
                 f"s_lshl_b32 s6, s{sCNT}, 3", f"s_add_u32 s6, s6, s{sSTo}", f"buffer_store_dwordx2 v[88:89], off, s[{SST}:{SST+3}], s6 offset:160", "s_cmp_lg_u32 s93, 0"]
    br = ["s_cbranch_scc1 K1_LOOP"]
    mid = [f"s_cmp_eq_u32 s{sCNT}, 8", "s_cbranch_scc1 K1_DONE", f"s_cmp_eq_u32 s{sCNT}, {TB}", "s_cbranch_scc1 K1_BLKB", f"s_cmp_eq_u32 s{sCNT}, {TC}", "s_cbranch_scc1 K1_BLKC"]
    mid += [f"s_cmp_eq_u32 s{sCNT}, {TW}", "s_cbranch_scc1 K1_BLKW", f"s_cmp_eq_u32 s{sCNT}, {TV}", "s_cbranch_scc1 K1_BLKV", f"s_cmp_eq_u32 s{sCNT}, 7", "s_cbranch_scc1 K1_BLKL"]
    J = ["s_branch K1_LOOP"]
    if OPT['w2blk']: mid += [f"s_cmp_eq_u32 s{sCNT}, 1", "s_cbranch_scc1 K1_BLKD"]
    errs = check(pre + eC + (body + br + mid + block_d() + J if OPT['w2blk'] else []) + body + br + mid + bA + J + body + br + mid + block_w() + J + body + br + mid + block_v() + J + body + br + mid[:4] + bB + J + body + br + mid + bC + J + body + br + mid + lA + lD + lB + J + body + br + mid[:2] + chk + post + p2t, 'k1')
    errs += check(body + br + mid[:2] + chk + sP + sB_ + ["s_cbranch_scc1 X"] + sB_ + ["s_cbranch_scc1 X"] + sQ + ["s_branch X"] + eA + eC + body + br + mid + lA + lB + J + body + br + mid[:2] + chk + post + p2t2, 'k1slow')
    assert not errs
    return (pre + ["K1_HAVEMAX:"] + eC + [".p2align 6", "K1_LOOP:"] + body + br + mid + bA + J
            + ["K1_BLKD:"] + block_d() + J + ["K1_BLKB:"] + bB + J + ["K1_BLKC:"] + bC + J + ["K1_BLKW:"] + block_w() + J + ["K1_BLKV:"] + block_v() + J + ["K1_BLKL:"] + lA + ["K1_D1POLL:"] + lD + ["K1_D1OK:"] + lB + J
            + ["K1_SLOW:"] + sP + ["K1_SLOWLOOP:"] + sB_ + ["s_cbranch_scc1 K1_SLOWLOOP"] + sQ + eA + ["s_branch K1_HAVEMAX"] + ["K1_D0POLL:"] + d0
            + ["K1_DONE:"] + chk + post + p2c + ["K1_END:", "s_endpgm"])

def phase2(epi):
    NH = 6; NST = 22
    FR = 128
    SA = 0; DA = 128
    T = 88; STV = 98
    PKD = 192; RXD = 216; PKS = 192; RXS = 216
    sAo, sWo = sX0, sX1
    SIGI, POLLI = OPT['sigi'], OPT['polli']
    nk = lambda st: 1 if st == 4 else 2
    slot = {}
    for st in range(4): slot[('w', st)] = st; slot[('a', st)] = 4 + st
    slot[('w', 4)] = 8; slot[('a', 4)] = 9
    free = []
    nxt = {'w': 5, 'a': 5}
    def dma(kind):
        st = nxt[kind]; nxt[kind] += 1
        sl = free.pop(0); slot[(kind, st)] = sl
        sr, so = (P2ACT, sAo) if kind == 'a' else (P2WT, sWo)
        X = [f"s_add_u32 m0, s{sMKV}, {sl*16384}"]
        for i in range(4): X.append(f"buffer_load_dwordx4 v{aL16}, s[{sr}:{sr+3}], s{so} offen offset:{1024*i} sc1 lds ; @{kind}{st}")
        X.append(f"s_add_u32 s{so}, s{so}, 8192" if st != NH - 1 else f"s_lshl_b32 s{so}, s{sSP}, 17")
        return X
    done = []
    S = ["s_mov_b64 exec, 1", f"buffer_store_dword v{T}, off, s[{SFLAG}:{SFLAG+3}], s{sW2S} sc1", "s_mov_b64 exec, -1"]
    FLD = f"buffer_load_dword v{vFL}, v{aFL}, s[{SFLAG}:{SFLAG+3}], s{sFQB} offen sc1"
    P = [FLD, f"s_add_u32 s{sCNT}, s{sCNT}, 1", "s_waitcnt vmcnt(0)",
         f"v_cmp_ne_u32 vcc, 1, v{vFL}", f"s_cmp_gt_u32 s{sCNT}, {SPIN}", "s_cbranch_scc1 P2_GO", "s_cbranch_vccnz P2_POLL"]
    q = list(epi); e = q.append
    q += srd(P2X, sXP, sXP+1, 2048*1024) + srd(P2OUT, sOUT, sOUT+1, 2048*1024)
    e(f"v_and_b32 v{T+1}, 15, v{vLANE}"); e(f"v_lshrrev_b32 v{T+2}, 4, v{vLANE}"); e(f"v_lshlrev_b32 v{T+1}, 10, v{T+1}"); e(f"v_lshl_add_u32 v{aXO}, v{T+2}, 3, v{T+1}")
    part_soff(e, 49, False)
    e(f"v_mov_b32 v{T}, 1")
    L = []; e = L.append
    e(f"s_add_u32 s{sAo}, s{sKV}, 4096"); e(f"s_mov_b32 s{sWo}, s{sAo}")
    def reads(st):
        X = []
        for kk in range(nk(st)):
            b = FR + (st & 1)*64 + kk*32
            hw, lw = divmod(slot[('w', st)]*16384 + kk*8192, 65536)
            ha, la = divmod(slot[('a', st)]*16384 + kk*8192, 65536)
            for i in range(4):
                if not (NH <= st < NH + OPT['nrs']): X.append(f"ds_read_b128 {a(b+4*i,4)}, v{aW+hw} offset:{lw+1024*i}")
                X.append(f"ds_read_b128 {a(b+16+4*i,4)}, v{aA+4*ha+i} offset:{la}")
        return X
    def mfmas(st):
        X = []
        b = FR + (st & 1)*64; acc = DA if st < NH else SA
        for qt in (1, 2, 3, 0):
            for ct in range(4):
                d = v(acc+(ct*4+qt)*4, 4)
                for kk in range(nk(st)):
                    wf = (st-NH)*32 + kk*16 + 4*ct if NH <= st < NH + OPT['nrs'] else b+kk*32+4*ct
                    X.append(f"{MF} {d}, {a(wf,4)}, {a(b+kk*32+16+4*qt,4)}, {'0' if (st in (0, NH) and kk == 0) else d}")
        return X
    def pack(acc, pk, i):
        X = []
        for ct in range(4):
            x = acc + (ct*4+i)*4; d = pk + (i-1)*8 + 2*ct
            X += [f"v_cvt_pk_bf16_f32 v{d}, v{x}, v{x+1}", f"v_cvt_pk_bf16_f32 v{d+1}, v{x+2}, v{x+3}"]
        return X
    def pst(pk, i, half): return [f"buffer_store_dwordx4 {v(pk+(i-1)*8+4*j,4)}, v{aL16}, s[{P2PART}:{P2PART+3}], s{sH0+i-1} offen offset:{2048*half+1024*j} sc1" for j in range(2)]
    def pld(rx, half): return [f"buffer_load_dwordx4 {v(rx+i*8+4*j,4)}, v{aL16}, s[{P2PART}:{P2PART+3}], s{49+i} offen offset:{2048*half+1024*j} sc1" for i in range(3) for j in range(2)]
    def pchk(rx):
        X = [f"v_max3_u32 v{T}, v{rx}, v{rx+1}, v{rx+2}", f"v_max3_u32 v{T+1}, v{rx+3}, v{rx+4}, v{rx+5}"]
        for k in range(6, 24, 2): X.append(f"v_max3_u32 v{T+(k//2)%2}, v{T+(k//2)%2}, v{rx+k}, v{rx+k+1}")
        return X + [f"v_max_u32 v{T}, v{T}, v{T+1}", f"v_cmp_eq_u32 vcc, -1, v{T}"]
    segs = []
    NRS = OPT['nrs']
    staged = list(range(NH, NH + NRS))
    def stage_reads(st):
        X = []
        for kk in range(2):
            hw, lw = divmod(slot[('w', st)]*16384 + kk*8192, 65536)
            for i in range(4): X.append(f"ds_read_b128 {a((st-NH)*32+kk*16+4*i,4)}, v{aW+hw} offset:{lw+1024*i}")
        return X
    def body(mf, rd, dm, val, last=False):
        nonlocal q
        nd = sum(UNITS[Ins(x).kind] for x in dm) + len(rd)
        G = Gaps(len(mf), cap=max(2, -(-(nd + 8) // len(mf))))
        g = 0
        step = 2 if len(rd) <= len(mf) else 1
        for k in range(0, len(rd), 2):
            G.put(g, rd[k]); G.put(g, rd[k+1]); g += step
        g = 0
        for x in dm:
            if x.startswith('buffer'):
                while G.used(g) > G.cap - 2: g += 1
                G.put(g, x)
            else:
                g = G.fit(g, x)
                if 'm0,' in x: G.put(g, "s_nop 0", force=True) if G.cap > 2 else None; g += (G.cap == 2)
        if last:
            for i in (1, 2):
                g = 8*i + 4
                for x in pack(last[0], last[1], i): g = G.fit(g, x)
                for x in pst(last[1], i, last[2]): g = G.fit(g + 1, x)
        gaps = G.out()
        if q:
            for gi in range(len(mf)):
                u = sum(UNITS[Ins(x).kind] for x in gaps[gi]); first = True
                while q:
                    k = Ins(q[0]).kind
                    if u + UNITS[k] > OPT['ecap'] or (k == 'vst' and not first): break
                    gaps[gi].append(q.pop(0)); u += UNITS[k]; first = False
        return weave(mf, gaps)
    def sync(tags):
        n = vm_after(done + L, tags)
        return ["s_waitcnt " + (f"vmcnt({n}) " if n is not None else "") + "lgkmcnt(0)", "s_barrier"]
    L += reads(0)
    while Ins(q[0]).kind != 'vst': L.append(q.pop(0))
    for st in range(1, NH + 1):
        if st == SIGI: L += q; q = []
        L += sync(([f"a{st}", f"w{st}"] if st < NH else []) + (['o'] if st == SIGI else []) + (['f'] if st == POLLI else []))
        free += [slot[('w', st-1)], slot[('a', st-1)]]
        if st == SIGI:
            L += [f"s_cmp_lg_u32 s{sW}, 0", "s_cbranch_scc1 P2_NOSIG"]
            segs.append(L); done += L; L = stamp(STV); e = L.append
        rd = reads(st) if st < NH else []
        dm = []
        if st == 1: L += with_m0_nops(dma('w') + dma('a'))
        elif st >= OPT['dstart']:
            while len(free) > 0 and nxt['w'] < NH + OPT['wpre'] and len(dm) < OPT['dmax']*6: dm += dma('w')
        if st == POLLI - OPT['fearly']: dm = [FLD + " ; @f"] + dm
        if st == POLLI:
            L += [f"v_cmp_ne_u32 vcc, 1, v{vFL}", f"s_mov_b32 s{sCNT}, 0", "s_cbranch_vccz P2_GO"]
            segs.append(L); done += L; L = stamp(STV); e = L.append
        if st >= POLLI:
            while free: dm += dma('a')
        L += body(mfmas(st - 1), rd, dm, [], last=False)
    L += ["s_nop 3"]
    for i in (1, 2, 3): L += pack(DA, PKD, i) + (pst(PKD, i, 1) if not OPT['dlate'] else [])
    for st in range(NH, NST + 1):
        dm = []; rd = []
        if st < NST:
            L += sync([f"a{st}", f"w{st}"])
            if st > NH:
                free += [slot[('a', st-1)]] + ([slot[('w', st-1)]] if st-1 not in staged else [])
            rd = reads(st)
            while free and (nxt['a'] < NST or nxt['w'] < NST):
                k = 'a' if (nxt['a'] <= nxt['w'] + OPT['alead'] or nxt['w'] >= NST) and nxt['a'] < NST else 'w'
                dm += dma(k)
            if st == NST - 3: dm += [f"buffer_load_dwordx2 {v(XR+2*ct,2)}, v{aXO}, s[{P2X}:{P2X+3}], s{sXO} offen offset:{32*ct}" for ct in range(4)]
            if OPT['dlate'] and st in (NST - OPT['dlate'], NST - OPT['dlate'] + 1): dm += (pst(PKD, 1, 1) + pst(PKD, 2, 1) + pst(PKD, 3, 1))[3*(st - NST + OPT['dlate']):][:3]
            if st == NST - (1 if OPT['dlate'] else 2): dm += pld(RXD, 1)
        else:
            L += ["s_waitcnt lgkmcnt(0)"]
        if OPT['stamp'] == 5 and st % 2 == 0: L += stamp(STV)
        if st == NH: L += rd + with_m0_nops(dm)
        else: L += body(mfmas(st - 1), rd, dm, [], last=(SA, PKS, 0) if st == NST else False)
    L += stamp(STV)
    L += pack(SA, PKS, 3) + pst(PKS, 3, 0)
    e(f"s_mov_b32 s{sCNT}, 0"); e("s_waitcnt vmcnt(6)")
    L += pchk(RXD); e("s_cbranch_vccz P2_DOK")
    XD = pld(RXD, 1) + [f"s_add_u32 s{sCNT}, s{sCNT}, 1", "s_waitcnt vmcnt(0)"] + pchk(RXD) + [f"s_cmp_gt_u32 s{sCNT}, {SPIN}", "s_cbranch_scc1 P2_DOK", "s_cbranch_vccnz P2_DPOLL"]
    M = []; e = M.append
    def accum(acc, rx, ct):
        for i in range(3):
            for h in range(2):
                p = rx + i*8 + 2*ct + h
                e(f"v_lshlrev_b32 v{T+2*h}, 16, v{p}"); e(f"v_and_b32 v{T+2*h+1}, s{sMASK}, v{p}")
            for h in range(2): e(f"v_pk_add_f32 {v(acc+ct*16+2*h,2)}, {v(acc+ct*16+2*h,2)}, {v(T+2*h,2)}")
    for ct in range(4): accum(DA, RXD, ct)
    M += pld(RXS, 0)
    for ct in range(4):
        D_ = DA + ct*16; T_ = D_ + 4; X_ = D_ + 8
        for r in range(4): e(f"v_mul_f32 v{T_+r}, {f2u(-LOG2E)}, v{D_+r}")
        for r in range(4): e(f"v_exp_f32 v{T_+r}, v{T_+r}")
        e(f"v_lshlrev_b32 v{X_}, 16, v{XR+2*ct}"); e(f"v_and_b32 v{X_+1}, s{sMASK}, v{XR+2*ct}")
        for r in range(4): e(f"v_add_f32 v{T_+r}, 1.0, v{T_+r}")
        for r in range(4): e(f"v_rcp_f32 v{T_+r}, v{T_+r}")
        e(f"v_lshlrev_b32 v{X_+2}, 16, v{XR+1+2*ct}"); e(f"v_and_b32 v{X_+3}, s{sMASK}, v{XR+1+2*ct}")
        for h in (0, 2): e(f"v_pk_mul_f32 {v(T_+h,2)}, {v(T_+h,2)}, {v(D_+h,2)}")
    e(f"s_mov_b32 s{sCNT}, 0"); e("s_waitcnt vmcnt(0)")
    M += pchk(RXS); e("s_cbranch_vccz P2_FIN")
    XS = pld(RXS, 0) + [f"s_add_u32 s{sCNT}, s{sCNT}, 1", "s_waitcnt vmcnt(0)"] + pchk(RXS) + [f"s_cmp_gt_u32 s{sCNT}, {SPIN}", "s_cbranch_scc1 P2_FIN", "s_cbranch_vccnz P2_SPOLL"]
    F = []; e = F.append
    F += stamp(STV)
    for ct in range(4):
        accum(SA, RXS, ct)
        S_ = SA + ct*16; T_ = DA + ct*16 + 4; X_ = T_ + 4
        for h in (0, 2): e(f"v_pk_fma_f32 {v(X_+h,2)}, {v(S_+h,2)}, {v(T_+h,2)}, {v(X_+h,2)}")
        e(f"v_cvt_pk_bf16_f32 v{S_+4}, v{X_}, v{X_+1}"); e(f"v_cvt_pk_bf16_f32 v{S_+5}, v{X_+2}, v{X_+3}")
        e(f"buffer_store_dwordx2 {v(S_+4,2)}, v{aXO}, s[{P2OUT}:{P2OUT+3}], s{sXO} offen offset:{32*ct}")
    if OPT['stamp']: F += ["s_waitcnt vmcnt(0)"] + stamp(STV, True)
    assert len(segs) == 2 and SIGI <= POLLI
    trace = segs[0] + segs[1] + L + M + F
    trace2 = segs[0] + S + segs[1] + P + P + L + XD + M + XS + F
    code = (segs[0] + S + ["P2_NOSIG:"] + segs[1] + ["P2_POLL:"] + P + ["P2_GO:"] + L
            + ["P2_DPOLL:"] + XD + ["P2_DOK:"] + M + ["P2_SPOLL:"] + XS + ["P2_FIN:"] + F)
    return trace, trace2, code

def kd(name, nv, acc, ns=102):
    return f""".amdhsa_kernel {name}
  .amdhsa_next_free_vgpr {nv}
  .amdhsa_next_free_sgpr {ns}
  .amdhsa_accum_offset {acc}
  .amdhsa_group_segment_fixed_size 0
  .amdhsa_kernarg_size 96
  .amdhsa_user_sgpr_count 2
  .amdhsa_user_sgpr_kernarg_segment_ptr 1
  .amdhsa_system_sgpr_workgroup_id_x 1
.end_amdhsa_kernel
"""
def fmt(L): return "\n".join(x if (x.endswith(':') or x.startswith('.')) else "    " + x for x in L)

NAME = "recurrent_scan__gqa_block_cached__glu_gated_glu__prompt_kernel"
HEAD = f"""; One persistent launch (256 workgroups, one per CU): LayerNorm + Q-projection + GLU-up, attention, out/down projection + gating.
; @launch grid=(256,1,1) block=(256,1,1) lds=163840
.amdgcn_target "amdgcn-amd-amdhsa--gfx950"
.text
"""
def kern(name, L):
    return f".globl {name}\n.p2align 8\n.type {name},@function\n{name}:\n" + fmt(L) + "\n"
src = HEAD + kern(NAME, k1())
src += '.section .rodata,"a"\n.p2align 6\n' + kd(NAME, 512, 256)
open(sys.argv[1], "w").write(src)
```

```python
import re

def rng(pfx, b, n):
    return f"{pfx}{b}" if n == 1 else f"{pfx}[{b}:{b+n-1}]"
def v(b, n=1): return rng('v', b, n)
def a(b, n=1): return rng('a', b, n)
def s(b, n=1): return rng('s', b, n)

_reg = re.compile(r'^-?\|?([vas])(\d+)\|?$')
_regr = re.compile(r'^-?([vas])\[(\d+):(\d+)\]$')
def regs_of(op):
    op = op.strip()
    if op.startswith('abs(') or op.startswith('-abs('):
        op = op[op.index('(')+1:-1]
    m = _reg.match(op)
    if m: return [(m.group(1), int(m.group(2)))]
    m = _regr.match(op)
    if m: return [(m.group(1), i) for i in range(int(m.group(2)), int(m.group(3))+1)]
    if op in ('vcc', 'vcc_lo', 'vcc_hi'): return [('vcc', 0)]
    if op in ('m0',): return [('m0', 0)]
    if op in ('exec',): return [('exec', 0)]
    return []

TRANS = ('v_exp_f32', 'v_rcp_f32', 'v_rsq_f32', 'v_log_f32', 'v_sqrt_f32')
class Ins:
    __slots__ = ('text', 'op', 'kind', 'rd', 'wr', 'srcC', 'passes', 'ops', 'mods')
    def __init__(self, text):
        self.text = text
        t = text.split(';')[0].strip()
        self.rd = []; self.wr = []; self.srcC = []; self.passes = 0
        if not t or t.endswith(':') or t.startswith('.'):
            self.op = ''; self.kind = 'label' if t.endswith(':') else 'dir'; return
        parts = t.split(None, 1)
        op = parts[0]; self.op = op
        rest = parts[1] if len(parts) > 1 else ''
        mods = ''
        mm = re.search(r'\s(op_sel|quad_perm|row_\w+|offen|offset\d?:|sc0|sc1|nt|lds|bound_ctrl|bank_mask|clamp)', rest)
        if mm: mods = rest[mm.start():].strip(); rest = rest[:mm.start()]
        ops = [o.strip() for o in rest.split(',')] if rest else []
        self.ops = ops; self.mods = mods
        R = lambda i: regs_of(ops[i]) if i < len(ops) else []
        allsrc = lambda k: sum((regs_of(o) for o in ops[k:]), [])
        if op.startswith('v_smfmac'):
            self.kind = 'mfma'
            self.wr = R(0); self.rd = R(0) + R(1) + R(2) + R(3); self.srcC = R(0); self.passes = 8
        elif op.startswith('v_mfma'):
            self.kind = 'mfma'
            self.wr = R(0); self.rd = R(1) + R(2) + R(3); self.srcC = R(3)
            self.passes = {'16x16x32': 4, '32x32x16': 8, '16x16x4': 8, '32x32x2': 16}[re.search(r'_(\d+x\d+x\d+)', op).group(1)]
        elif op.startswith('ds_read') or op.startswith('ds_bpermute'):
            self.kind = 'dsr'; self.wr = R(0); self.rd = allsrc(1)
        elif op.startswith('ds_write') or op.startswith('ds_add') or op.startswith('ds_or'):
            self.kind = 'dsw'; self.rd = allsrc(0)
        elif op.startswith('buffer_load') or op.startswith('global_load'):
            if 'lds' in mods.split() or '_lds_' in op:
                self.kind = 'dma'; self.rd = allsrc(0) + [('m0', 0)]
            else:
                self.kind = 'vld'; self.wr = R(0); self.rd = allsrc(1)
                if 'd16' in op: self.rd += R(0)
        elif op.startswith('buffer_store') or op.startswith('global_store') or op.startswith('buffer_atomic') or op.startswith('global_atomic'):
            self.kind = 'vst'; self.rd = allsrc(0)
        elif op.startswith('buffer_wbl2') or op.startswith('buffer_inv'):
            self.kind = 'vst'
        elif op.startswith('s_load') or op.startswith('s_memtime') or op.startswith('s_memrealtime'):
            self.kind = 'smem'; self.wr = R(0); self.rd = allsrc(1)
        elif op == 's_waitcnt': self.kind = 'wait'
        elif op == 's_nop': self.kind = 'nop'
        elif op == 's_barrier': self.kind = 'bar'
        elif op.startswith('s_cbranch') or op in ('s_branch', 's_endpgm', 's_setpc_b64', 's_call_b64'):
            self.kind = 'br'
        elif op.startswith('s_cmp') or op in ('s_setprio', 's_sleep'):
            self.kind = 'salu'; self.rd = allsrc(0)
        elif op.startswith('s_'):
            self.kind = 'salu'; self.wr = R(0); self.rd = allsrc(1)
            if 'saveexec' in op: self.wr += [('exec', 0)]
        elif op.startswith('v_'):
            self.kind = 'trans' if op.replace('_e32', '').replace('_e64', '') in TRANS else 'valu'
            if op.startswith('v_permlane'):
                self.wr = R(0) + R(1); self.rd = R(0) + R(1)
            elif op.startswith('v_cmp'):
                self.wr = R(0); self.rd = allsrc(1)
            else:
                self.wr = R(0); self.rd = allsrc(1)
                if op.startswith('v_fmac') or op.startswith('v_dot2c') or op.startswith('v_writelane'): self.rd += R(0)
                if op.startswith('v_cndmask') and len(ops) == 3: self.rd += [('vcc', 0)]
        else:
            raise ValueError("unknown instruction: " + text)
    def states(self):
        if self.kind in ('label', 'dir'): return 0
        if self.kind == 'nop': return int(self.ops[0], 0) + 1
        return 1

def parse_wait(ins):
    vm = lg = None
    t = ins.text.split(';')[0]
    m = re.search(r'vmcnt\((\d+)\)', t)
    if m: vm = int(m.group(1))
    m = re.search(r'lgkmcnt\((\d+)\)', t)
    if m: lg = int(m.group(1))
    return vm, lg

def check(lines, name='', verbose=True):
    ins = [Ins(l) for l in lines]
    errs = []
    pos = 0
    last_w = {}
    last_cread = {}
    last_stread = {}
    lq = []
    vq = []
    pend = {}
    def err(i, msg): errs.append(f"{name}[{i}] {ins[i].text.strip()}  :: {msg}")
    for i, x in enumerate(ins):
        k = x.kind
        if k in ('label', 'dir'): continue
        if k == 'wait':
            vm, lg = parse_wait(x)
            if lg is not None:
                if any(q.kind == 'smem' for q in lq) and lg != 0: err(i, 'counted lgkmcnt with smem outstanding')
                while len(lq) > lg:
                    q = lq.pop(0)
                    for r in q.wr:
                        if pend.get(r) is q: del pend[r]
            if vm is not None:
                while len(vq) > vm:
                    q = vq.pop(0)
                    for r in q.wr:
                        if pend.get(r) is q: del pend[r]
            pos += 1; continue
        for r in x.rd + x.wr:
            if r in pend: err(i, f'uses {r} while async write pending: {pend[r].text.strip()}')
        isvalu = k in ('valu', 'trans')
        for r in x.rd:
            if r not in last_w: continue
            p, w = last_w[r]; d = pos - p - 1
            wv = w.kind in ('valu', 'trans')
            if w.kind == 'mfma':
                if k == 'mfma':
                    if r in x.srcC and r not in regs_of(x.ops[1]) + regs_of(x.ops[2]):
                        if x.srcC == w.wr and x.passes == w.passes: need = 0 if w.passes >= 4 else 2
                        else: need = {2: 4, 4: 6, 8: 10, 16: 18}[w.passes]
                    else: need = {2: 5, 4: 8, 8: 12, 16: 20}[w.passes]
                else: need = {2: 5, 4: 8, 8: 12, 16: 20}[w.passes]
                if d < need: err(i, f'MFMA result {r} read after {d} < {need} states ({w.text.strip()})')
            elif wv:
                need = 0
                if r[0] in 'va':
                    if k == 'mfma': need = 2
                    if x.op.startswith('v_permlane'): need = 2
                    if x.op.startswith('v_readfirstlane') or x.op.startswith('v_readlane'): need = 1
                    if 'row_' in x.mods or 'quad_perm' in x.mods: need = 2
                    if w.op.startswith('v_dot2') and x.op != w.op: need = max(need, 3)
                    if w.kind == 'trans' and k in ('valu', 'mfma', 'dsw', 'vst'): need = max(need, 1)
                if r[0] in ('s', 'vcc'):
                    if isvalu: need = 2
                    if k in ('vld', 'vst', 'dma'): need = 5
                    if k in ('salu','smem'): need = 1
                if r[0] == 'exec': need = 4
                if d < need: err(i, f'VALU result {r} read after {d} < {need} states ({w.text.strip()})')
            elif w.kind == 'salu':
                if r[0] == 'm0' and k == 'dma' and d < 1: err(i, 'm0 write -> dma needs 1 state')
        for r in x.wr:
            if r in last_w:
                p, w = last_w[r]; d = pos - p - 1
                if w.kind == 'mfma' and k != 'mfma':
                    need = {2: 5, 4: 8, 8: 12, 16: 20}[w.passes]
                    if d < need: err(i, f'WAW on MFMA result {r} after {d} < {need}')
                if w.kind == 'mfma' and k == 'mfma' and not (x.srcC == w.wr):
                    need = {2: 4, 4: 6, 8: 10, 16: 18}[w.passes]
                    if d < need: err(i, f'MFMA WAW on {r} after {d} < {need}')
            if r in last_cread and isvalu:
                p, ps = last_cread[r]; d = pos - p - 1
                need = {2: 1, 4: 3, 8: 7, 16: 15}[ps]
                if d < need: err(i, f'WAR on MFMA srcC {r} after {d} < {need}')
            if r in last_stread:
                d = pos - last_stread[r] - 1
                if d < 2: err(i, f'WAR on store data {r} after {d} < 2')
        if k == 'mfma':
            for r in x.srcC: last_cread[r] = (pos, x.passes)
        if k == 'vst' and ('x4' in x.op or 'x3' in x.op):
            for r in regs_of(x.ops[0]) + (regs_of(x.ops[1]) if x.op.startswith('global') else []): last_stread[r] = pos
        if k in ('dsr', 'dsw', 'smem'):
            lq.append(x)
            for r in x.wr: pend[r] = x
            if len([q for q in lq]) > 15 and False: err(i, 'lgkm > 15')
        elif k in ('vld', 'vst', 'dma'):
            vq.append(x)
            for r in x.wr: pend[r] = x
            if len(vq) > 63: err(i, 'vmcnt > 63 outstanding')
        for r in x.wr:
            last_w[r] = (pos, x)
        pos += x.states()
    grp = None
    for i, x in enumerate(ins):
        if x.kind == 'salu' and ('m0', 0) in x.wr:
            if grp is not None and len(grp) != 4: err(i, f'm0 rewritten after {len(grp)} DMAs')
            grp = []
        elif x.kind == 'dma':
            if grp is None: continue
            off = re.search(r'offset:(\d+)', x.text); off = int(off.group(1)) if off else 0
            if off != 1024*len(grp) or (grp and grp[0] != x.ops[1]): err(i, 'DMA does not belong to the current m0 group')
            grp.append(x.ops[1])
    if verbose:
        for e in errs[:6]: print("HAZARD:", e)
        if len(errs) > 6: print("...", len(errs) - 6, "more")
    return errs

UNITS = {'mfma': 0, 'valu': 1, 'trans': 2, 'dsr': 1, 'dsw': 2, 'dma': 2, 'vld': 2, 'vst': 2, 'salu': 1, 'wait': 1, 'bar': 2, 'nop': 1, 'br': 2, 'smem': 1, 'label': 0, 'dir': 0}
def gap_report(lines, cap=2):
    over = 0; bad = 0; n = 0; cur = 0; sawv = False; started = False
    for l in lines:
        x = Ins(l)
        if x.kind == 'mfma':
            if started:
                n += 1; over += max(0, cur - cap)
            started = True; cur = 0; sawv = False
        else:
            cur += UNITS[x.kind]
            if x.kind in ('valu', 'trans'): sawv = True
            if x.kind in ('dsr', 'dsw', 'dma', 'vld', 'vst', 'bar', 'br') and sawv: bad += 1
    return n, over, bad

def weave(mfmas, gaps):
    out = []
    for m, g in zip(mfmas, gaps):
        out.append(m); out += g
    return out
```

```python
import sys, os, struct
sys.path.insert(0, os.path.dirname(os.path.abspath(__file__)))
from asmlib import *

OPT = dict(stamp=0, wgap=4, thr=40, cpf=1, rot=8, stpos=0, barg0=31, pois=45, sched=0, sq=1, opk=1, lcap=4, xw=60, xg=30, kvs=0, d0g=8, pstep=12, ecap=40, sigi=4, polli=6, dstart=2, searly=2, a0=2, a1=1, gmax=2, dst0=9, pace=160, aoff=0, poff=24, base=0, la=2, slp=0, dmax=2, fearly=1, dlate=5, kvsc=1, wpre=8, nrs=4, alead=0)
for arg in sys.argv[2:]:
    k_, v_ = arg.split('='); OPT[k_] = int(v_)

MF = "v_mfma_f32_16x16x32_bf16"
TB, TC = 1, 5
NKS = 171
ACT_RB = NKS * 4096
WT_OFF = 24 << 20
FLAG_OFF = 31 << 20
PART_OFF = 32 << 20
STAMP_OFF = 64 << 20
STAT_OFF = 30 << 20
CS_OFF = STAT_OFF + 65536
OOB = '0x40000000'
BASE = OPT['base'] << 20
ACT_OFF = BASE + (OPT['aoff'] << 10)
PART_OFF = BASE + (OPT['poff'] << 20)
STAT_OFF = BASE + (22 << 20); CS_OFF = STAT_OFF + 65536; FLAG_OFF = BASE + (23 << 20)
LOG2E = 1.4426950408889634
SCALE = LOG2E / (128 ** 0.5)
def f2u(x): return "0x%08x" % struct.unpack('<I', struct.pack('<f', x))[0]

sW, sHEAD, sQB = 3, 4, 5
SK, SV, SX, SWQ, SGU, SACT, SWO, SWD, SWT = 8, 12, 16, 20, 24, 28, 32, 36, 40
sX0, sX1, sWQo, sGUo, sKV = 44, 45, 46, 47, 48
sMX, sMWQ, sMGU, sMKV, sMW2 = 49, 50, 51, 52, 53
sCNT, sMASK, sT0, sT1, sT2, sPASS = 54, 55, 56, 57, 58, 59
sH0 = 60
sW2S = 63
SWS = 88
SDBG = 84
SST = SWS; sSTo = 92
sXP, sA2, sOUT = 64, 66, 82
sPS = 40
sNON = 62
sKV2 = 43; sINC2 = 58; sPFo = 68
sP2, sCSo, sSTAo = 70, 71, 93
sSP, sSZ2, sXO, sINC, sFQB = 74, 75, 76, 77, 78
P2ACT, P2WT, P2X, P2OUT = 12, 8, 16, 20
P2PART = SFLAG = SWS
sKVB = 98
CHK_LDS = 8*16384 + 8192
def srd(d, lo, hi, size):
    return [f"s_mov_b32 s{d}, s{lo}", f"s_mov_b32 s{d+1}, s{hi}", f"s_mov_b32 s{d+2}, {size}", f"s_mov_b32 s{d+3}, 0x00020000"]

stamp_n = [0]
def stamp(tmpv, force=False):
    if not OPT['stamp'] or (OPT['stamp'] == 9 and not force): return []
    n = stamp_n[0]; stamp_n[0] += 1
    return ["s_memtime s[94:95]", "s_memrealtime s[96:97]", "s_waitcnt lgkmcnt(0)",
            f"v_mov_b32 v{tmpv}, s94", f"v_mov_b32 v{tmpv+1}, s96", "s_nop 1",
            f"buffer_store_dwordx2 v[{tmpv}:{tmpv+1}], off, s[{SST}:{SST+3}], s{sSTo} offset:{n*8}", "s_nop 1"]

def units(xs): return sum(UNITS[Ins(x).kind] for x in xs)
class Gaps:
    def __init__(self, n, cap=2):
        self.pre = [[] for _ in range(n)]
        self.post = [[] for _ in range(n)]
        self.cap = cap; self.n = n
    def used(self, g): return units(self.pre[g] + self.post[g])
    def put(self, g, text, force=False):
        k = Ins(text).kind
        assert force or self.used(g) + UNITS[k] <= self.cap, (g, text, self.pre[g], self.post[g])
        (self.post if k in ('valu', 'trans') else self.pre)[g].append(text)
    def fit(self, g0, text, g1=None):
        k = UNITS[Ins(text).kind]
        for g in range(g0, self.n if g1 is None else g1):
            if self.used(g) + k <= self.cap:
                self.put(g, text); return g
        return None
    def stream(self, g, q, g1=None):
        g1 = self.n if g1 is None else g1
        while q:
            k = 1
            while k < len(q) and q[k].split()[0] in ('s_addc_u32', 's_cselect_b32', 's_cselect_b64'): k += 1
            grp = q[:k]; u = units(grp)
            mem = Ins(grp[0]).kind in ('dsr', 'dsw', 'vld', 'vst', 'dma')
            while g < g1 and not ((self.used(g) + u <= self.cap or (u > self.cap and self.used(g) == 0))
                                  and not (mem and any(Ins(x).kind in ('valu', 'trans') for x in self.post[g]))): g += 1
            if g >= g1: return g
            self.post[g] += grp; del q[:k]
        return g
    def out(self): return [p + q for p, q in zip(self.pre, self.post)]

def vm_after(trace, tags):
    ops = [x for x in trace if Ins(x).kind in ('dma', 'vld', 'vst')]
    idx = [i for i, x in enumerate(ops) if any(x.endswith('@' + t) for t in tags)]
    return None if not idx else len(ops) - 1 - max(idx)

XF = 0
SXA = 64
TM = 80; aWQR = 88; ONES = 96
aXD = 100; aWQD = 104; aGUD = 108; aXR = 112; aWQC = 114; aGUR = 116; aGUC = 117
aL16 = 118; aCS = 112; aKD = 120; aVD = 124; vLANE = 126; aGUR2 = 127; vSP = 127
vD1 = 114; vIDX = 119
QACC = 128
GUA = 0; CSA = 96; WF = 128
def EFr(tl, ks): return (112 if tl < 2 else 224) + (tl*2+ks)*4
def gua(zt, qt): return GUA + (qt*6+zt)*4
QF = 0; KF = 128; SB = 192; PB = 208; NEGM = 224; LACC = 240
aKR = 100; aVR = 104; aW2R = 112; T2 = 64
OACC = 0; VF = 128
aA = 64; aW = 76; aXO = 112; XR = 100; aFL = 116; vFL = 117

def k1_setup():
    L = []; e = L.append
    e("s_cmp_ge_u32 s2, 256"); e("s_cbranch_scc1 K1_END")
    if OPT['stamp']: e("s_memtime s[98:99]"); e("s_memrealtime s[100:101]")
    e("s_load_dwordx16 s[64:79], s[0:1], 0"); e("s_load_dwordx8 s[80:87], s[0:1], 64")
    l = vLANE
    e("v_lshrrev_b32 v1, 6, v0"); e(f"v_and_b32 v{l}, 63, v0"); e(f"v_readfirstlane_b32 s{sW}, v1")
    e("s_and_b32 s6, s2, 7"); e("s_lshr_b32 s7, s2, 3")
    e(f"s_lshl_b32 s{sHEAD}, s6, 2"); e(f"s_and_b32 s{sT0}, s7, 3"); e(f"s_add_u32 s{sHEAD}, s{sHEAD}, s{sT0}")
    e(f"s_lshr_b32 s{sQB}, s7, 2")
    if OPT['cpf']:
        e(f"s_getpc_b64 s[{SWO}:{SWO+1}]"); e("KPC:"); e(f"s_mov_b32 s{SWO+2}, K1_END-KPC"); e(f"s_mov_b32 s{SWO+3}, 0x00020000")
        e(f"s_lshl_b32 s{sT0}, s7, 2"); e(f"s_add_u32 s{sT0}, s{sT0}, s{sW}"); e(f"s_lshl_b32 s{sT0}, s{sT0}, 7")
        e(f"v_lshlrev_b32 v12, 14, v{l}")
        e(f"buffer_load_dword v16, v12, s[{SWO}:{SWO+3}], s{sT0} offen")
    e(f"v_and_b32 v1, 15, v{l}"); e(f"v_lshrrev_b32 v2, 4, v{l}"); e("v_lshrrev_b32 v3, 2, v1"); e(f"v_and_b32 v4, 3, v{l}")
    e(f"v_lshrrev_b32 v5, 3, v{l}"); e(f"v_and_b32 v6, 7, v{l}"); e(f"v_lshlrev_b32 v{aL16}, 4, v{l}")
    e("v_lshlrev_b32 v7, 1, v2"); e("v_xor_b32 v7, v7, v1")
    e(f"s_lshl_b32 s6, s{sW}, 4"); e("v_add_u32 v8, s6, v2"); e("v_lshlrev_b32 v9, 13, v8")
    for i in range(4):
        e(f"v_xor_b32 v10, {8*(i>>1)}, v7"); e("v_lshl_add_u32 v10, v10, 4, v9"); e(f"v_add_u32 v{aWQD+i}, {31744*i}, v10")
    e("v_lshrrev_b32 v7, 1, v5"); e("v_xor_b32 v7, v7, v6"); e("v_lshlrev_b32 v8, 10, v5")
    for i in range(4):
        e(f"v_xor_b32 v9, {4*(i&1)}, v7"); e("v_lshl_add_u32 v9, v9, 4, v8"); e(f"v_add_u32 v{aXD+i}, {7168*i}, v9")
    e(f"s_lshl_b32 s{sMX}, s{sW}, 13"); e(f"s_lshl_b32 s{sMKV}, s{sW}, 12"); e(f"s_add_u32 s{sMWQ}, s{sMKV}, 65536")
    e(f"s_add_u32 s{sMGU}, s{sMKV}, 81920")
    R = OPT['rot']
    e(f"s_and_b32 s6, s{sQB}, {R-1}"); e(f"s_mul_i32 s6, s6, {8//R}")
    e(f"s_lshl_b32 s{sX0}, s6, 7"); e(f"s_add_u32 s{sX1}, s{sX0}, 32768"); e(f"s_lshl_b32 s{sWQo}, s6, 19"); e(f"s_mul_i32 s{sGUo}, s6, {64*2752}")
    e(f"s_lshl_b32 s{sT1}, s{sQB}, 5"); e(f"s_add_u32 s{sT1}, s{sT1}, s{sHEAD}"); e(f"s_lshl_b32 s{sT1}, s{sT1}, 2"); e(f"s_add_u32 s{sT1}, s{sT1}, s{sW}")
    e(f"s_lshl_b32 s{sT2}, s{sT1}, 11")
    e("s_waitcnt lgkmcnt(0)")
    e(f"s_lshl_b32 s6, s{sHEAD}, 8"); e(f"s_add_u32 s{SWQ}, s70, s6"); e(f"s_addc_u32 s{SWQ+1}, s71, 0")
    e(f"s_sub_u32 s{SWQ+2}, {512*8192}, s6"); e(f"s_mov_b32 s{SWQ+3}, 0x00020000")
    L += with_m0_nops(dma_w(0, 0)[:5])
    e(f"s_lshl_b32 s6, s{sQB}, 2"); e(f"s_add_u32 s6, s6, s{sW}"); e("s_lshl_b32 s7, s6, 16")
    e(f"s_add_u32 s{SX}, s64, s7"); e(f"s_addc_u32 s{SX+1}, s65, 0"); e(f"s_mov_b32 s{SX+2}, 65536"); e(f"s_mov_b32 s{SX+3}, 0x00020000")
    L += with_m0_nops(dma_x(0, 0))
    e(f"s_and_b32 s6, s{sW}, 1"); e(f"s_mul_i32 s6, s6, {32*2752}"); e("s_movk_i32 s7, 2752")
    for par in range(2):
        e(f"v_subrev_u32 v9, {8*par}, v{l}"); e("v_cmp_gt_u32 vcc, 48, v9")
        e("v_mul_u32_u24 v10, 171, v9"); e("v_lshrrev_b32 v10, 10, v10")
        e("v_mul_u32_u24 v11, 6, v10"); e("v_sub_u32 v11, v9, v11"); e("v_lshlrev_b32 v11, 4, v11")
        e("v_mad_u32_u24 v11, v10, s7, v11"); e("v_add_u32 v11, s6, v11"); e(f"v_mov_b32 v10, {OOB}")
        e("v_cndmask_b32 v11, v10, v11, vcc")
        for i in (par, par+2): e(f"v_add_u32 v{aGUD+i}, {(8*2752-1024)*i}, v11")
    e(f"s_cmp_ge_u32 s{sW}, 2"); e("s_cselect_b32 s76, s78, s76"); e("s_cselect_b32 s77, s79, s77")
    e(f"s_mul_i32 s6, s{sHEAD}, 96"); e(f"s_add_u32 s{SGU}, s76, s6"); e(f"s_addc_u32 s{SGU+1}, s77, 0")
    e(f"s_sub_u32 s{SGU+2}, {512*2752}, s6"); e(f"s_mov_b32 s{SGU+3}, 0x00020000")
    L += with_m0_nops(dma_w(0, 0)[5:])
    L += srd(SWD, 64, 65, 2048*1024)
    if OPT['stpos'] == 0: L += st_loads()
    return L
def st_loads(): return [f"buffer_load_dwordx4 v[40:43], v{aL16}, s[{SWD}:{SWD+3}], s{sT2} offen", f"buffer_load_dwordx4 v[44:47], v{aL16}, s[{SWD}:{SWD+3}], s{sT2} offen offset:1024 ; @st"]

def dma_w(buf, st):
    o = buf * 32768
    L = [f"s_add_u32 m0, s{sMWQ}, {o}"]
    for i in range(4): L.append(f"buffer_load_dwordx4 v{aWQD+i}, s[{SWQ}:{SWQ+3}], s{sWQo} offen offset:{1024*i} lds ; @W{st}")
    L.append(f"s_add_u32 m0, s{sMGU}, {o}")
    for i in range(4): L.append(f"buffer_load_dwordx4 v{aGUD+i}, s[{SGU}:{SGU+3}], s{sGUo} offen offset:{1024*i} lds ; @W{st}")
    L += [f"s_add_u32 s{sWQo}, s{sWQo}, {64*8192}", f"s_and_b32 s{sWQo}, s{sWQo}, {512*8192-1}",
          f"s_lshr_b32 s{sGUo}, s{sWQo}, 19", f"s_mul_i32 s{sGUo}, s{sGUo}, {64*2752}"]
    return L
def dma_x(buf, st):
    o = buf * 32768
    L = [f"s_add_u32 m0, s{sMX}, {o}"]
    for i in range(4): L.append(f"buffer_load_dwordx4 v{aXD+i}, s[{SX}:{SX+3}], s{sX0} offen offset:{1024*i} lds ; @X{st}")
    L.append(f"s_add_u32 m0, s{sMX}, {o+4096}")
    for i in range(4): L.append(f"buffer_load_dwordx4 v{aXD+i}, s[{SX}:{SX+3}], s{sX1} offen offset:{1024*i} lds ; @X{st}")
    L += [f"s_add_u32 s{sX0}, s{sX0}, 128", f"s_and_b32 s{sX0}, s{sX0}, 1023", f"s_add_u32 s{sX1}, s{sX0}, 32768"]
    return L
def with_m0_nops(L):
    out = []
    for x in L:
        out.append(x)
        if 'm0,' in x: out.append("s_nop 0")
    return out
def kv_dma(slot, tag=""):
    sc = " sc1" if OPT['kvsc'] else ""
    L = [f"s_add_u32 m0, s{sMKV}, {slot*16384}"]
    for i in range(4): L.append(f"buffer_load_dwordx4 v{aKD+i}, s[{SK}:{SK+3}], s{sKV} offen offset:{1024*i}{sc} lds{tag}")
    L.append(f"s_add_u32 m0, s{sMKV}, {65536+slot*16384}")
    for i in range(4): L.append(f"buffer_load_dwordx4 v{aVD+(i&1)}, s[{SV}:{SV+3}], s{sKV2} offen offset:{1024*i}{sc} lds{tag}")
    L.append(f"s_add_u32 s{sKV}, s{sKV}, s{sINC}"); L.append(f"s_add_u32 s{sKV2}, s{sKV2}, s{sINC2}")
    return L
def kv_voff(n, gg, t):
    L = []; e = L.append
    e(f"s_lshl_b32 s6, s{sW}, 4"); e(f"v_add_u32 v{t}, s6, v{gg}"); e(f"v_lshlrev_b32 v{t}, 8, v{t}")
    e(f"v_xor_b32 v{t+1}, v{n}, v{gg}")
    for i in range(4):
        e(f"v_xor_b32 v{t+2}, {4*i}, v{t+1}"); e(f"v_lshl_add_u32 v{aKD+i}, v{t+2}, 4, v{t}")
    e(f"v_lshlrev_b32 v{t+1}, 1, v{gg}"); e(f"v_xor_b32 v{t+1}, v{t+1}, v{n}")
    for i in range(2):
        e(f"v_xor_b32 v{t+2}, {8*i}, v{t+1}"); e(f"v_lshl_add_u32 v{aVD+i}, v{t+2}, 4, v{t}")
    return L

def xlane_reduce(op, xs, ts):
    L = []
    for sw in ("v_permlane32_swap_b32", "v_permlane16_swap_b32"):
        for x, t in zip(xs, ts): L.append(f"v_mov_b32 v{t}, v{x}")
        if len(xs) < 3: L.append("s_nop 1")
        for x, t in zip(xs, ts): L.append(f"{sw} v{x}, v{t}")
        for x, t in zip(xs, ts): L.append(f"{op} v{x}, v{x}, v{t}")
    return L
DPP = "row_mask:0xf bank_mask:0xf"

def k1_setup2(pre):
    L = []; e = L.append; l = vLANE
    e("v_lshrrev_b32 v7, 1, v1"); e("v_lshlrev_b32 v8, 7, v1"); e(f"v_add_u32 v8, s{sMX}, v8")
    for ks in range(2):
        e(f"v_add_u32 v9, {4*ks}, v2"); e("v_xor_b32 v9, v9, v7"); e(f"v_lshl_add_u32 v{aXR+ks}, v9, 4, v8")
    e("v_lshl_add_u32 v7, v2, 3, v3")
    e("v_lshlrev_b32 v8, 8, v7"); e("v_lshl_add_u32 v8, v4, 3, v8"); e("v_add_u32 v8, 65536, v8")
    e("v_and_b32 v10, 1, v2"); e("v_lshl_add_u32 v11, v10, 2, v3")
    for t in range(8):
        e(f"v_xor_b32 v9, {t}, v11"); e(f"v_lshl_add_u32 v{aWQR+t}, v9, 5, v8")
    e(f"s_lshl_b32 s6, s{sW}, 1"); e("v_xor_b32 v9, s6, v11"); e(f"v_lshl_add_u32 v{aWQC}, v9, 5, v8")
    e("v_xor_b32 v9, 1, v9"); e(f"v_lshl_add_u32 v{aWQC+1}, v9, 5, v8")
    e("v_mul_u32_u24 v8, 96, v3"); e("v_lshl_add_u32 v8, v4, 3, v8"); e("v_lshl_add_u32 v8, v2, 10, v8"); e("v_lshl_add_u32 v8, v10, 7, v8")
    e(f"s_and_b32 s6, s{sHEAD}, 1"); e("s_lshl_b32 s7, s6, 5"); e("s_add_u32 s7, s7, 81920"); e(f"v_add_u32 v{aGUR}, s7, v8")
    e("s_lshl_b32 s6, s6, 6"); e(f"s_sub_u32 s6, {81920+64}, s6"); e(f"v_add_u32 v{aGUR2}, s6, v8")
    e(f"s_lshl_b32 s{sT0}, s{sW}, 5"); e(f"s_add_u32 s7, s7, s{sT0}"); e(f"s_cmp_ge_u32 s{sW}, 2"); e("s_cselect_b32 s7, s6, s7"); e(f"v_add_u32 v{aGUC}, s7, v8")
    for i in range(4): e(f"v_mov_b32 v{ONES+i}, 0x3f803f80")
    L += srd(SWS, 86, 87, 1 << 28)
    e(f"s_movk_i32 s{SDBG+2}, 256"); e(f"s_mov_b32 s{SDBG+3}, 0x00020000")
    if OPT['stamp']:
        e("s_lshl_b32 s6, s2, 2"); e(f"s_add_u32 s6, s6, s{sW}"); e(f"s_lshl_b32 s{sSTo}, s6, 8"); e(f"s_add_u32 s{sSTo}, s{sSTo}, {STAMP_OFF}")
    e(f"v_mov_b32 v10, {OOB}"); e("v_lshlrev_b32 v9, 4, v1"); e("v_cmp_eq_u32 vcc, 0, v2"); e(f"v_cmp_eq_u32 s[6:7], 0, v{l}"); e("v_mov_b32 v12, 0")
    e(f"v_cndmask_b32 v{TM}, v10, v9, vcc"); e(f"v_cndmask_b32 v{TM+1}, v10, v12, s[6:7]"); e("v_cmp_eq_u32 vcc, 0, v0")
    for i in range(4): e(f"v_mov_b32 v{48+i}, 0")
    e(f"v_cndmask_b32 v{TM+2}, v10, v12, vcc")
    e("s_memrealtime s[6:7]"); e(f"s_lshl_b32 s{sT0}, s2, 8"); e("s_waitcnt lgkmcnt(0)"); e("s_or_b32 s6, s6, 1"); e("v_mov_b32 v13, s6")
    e(f"buffer_store_dword v13, v{TM+2}, s[{SDBG}:{SDBG+3}], s{sT0} offen sc1")
    e(f"s_lshl_b32 s{sW2S}, s2, 7"); e(f"s_add_u32 s{sW2S}, s{sW2S}, {FLAG_OFF}")
    e(f"s_lshl_b32 s{sT1}, s{sT1}, 4"); e(f"s_add_u32 s{sT1}, s{sT1}, {STAT_OFF}")
    e(f"v_and_b32 v{vIDX}, 1, v{vLANE}"); e(f"v_mul_u32_u24 v{vIDX}, 0xaaaa, v{vIDX}"); e(f"v_add_u32 v{vIDX}, 0x4444, v{vIDX}"); e(f"v_lshl_or_b32 v{vIDX}, v{vIDX}, 16, v{vIDX}")
    for i in range(16): e(f"v_accvgpr_write_b32 a{CSA+i}, 0")
    return L

def k1_stats(pre):
    L = []; e = L.append
    e(f"s_waitcnt vmcnt({vm_after(pre, ['st'])})")
    for k in range(4):
        for rw in range(2):
            e(f"v_dot2c_f32_bf16 v{48+2*rw}, v{40+4*rw+k}, v{ONES}"); e(f"v_dot2c_f32_bf16 v{49+2*rw}, v{40+4*rw+k}, v{40+4*rw+k}")
    e("s_nop 1")
    for rot in (8, 4, 2, 1):
        for i in range(4): e(f"v_add_f32_dpp v{48+i}, v{48+i}, v{48+i} row_ror:{rot} {DPP}")
    L += xlane_reduce("v_add_f32", [48, 49, 50, 51], [40, 41, 42, 43])
    for rw in range(2):
        s_, q_ = 48+2*rw, 49+2*rw
        e(f"v_mul_f32 v{s_}, {f2u(-1/512)}, v{s_}"); e(f"v_mul_f32 v{q_}, {f2u(1/512)}, v{q_}")
        e(f"v_fma_f32 v{q_}, -v{s_}, v{s_}, v{q_}"); e(f"v_max_f32 v{q_}, 0, v{q_}"); e(f"v_add_f32 v{q_}, {f2u(1e-5)}, v{q_}")
    e(f"buffer_store_dwordx4 v[48:51], v{TM+1}, s[{SWS}:{SWS+3}], s{sT1} offen sc1 ; @pub")
    return L

def k1_setup3():
    L = []; e = L.append; l = vLANE
    e(f"s_lshl_b32 s6, s{sHEAD}, 19")
    e(f"s_add_u32 s{SK}, s66, s6"); e(f"s_addc_u32 s{SK+1}, s67, 0"); e(f"s_add_u32 s{SV}, s68, s6"); e(f"s_addc_u32 s{SV+1}, s69, 0")
    for d in (SK, SV): e(f"s_mov_b32 s{d+2}, 524288"); e(f"s_mov_b32 s{d+3}, 0x00020000")
    e(f"s_mov_b64 s[{sKVB}:{sKVB+1}], s[{SK}:{SK+1}]"); e(f"s_mov_b64 s[{sKVB+2}:{sKVB+3}], s[{SV}:{SV+1}]")
    for i in range(4): e(f"v_mov_b32 v{SXA+8+i}, -1")
    c2, t = sT0, sCNT
    e("s_and_b32 s6, s2, 7"); e("s_lshr_b32 s7, s2, 3")
    e("s_lshr_b32 s79, s6, 2"); e(f"s_lshl_b32 s{sSP}, s79, 1"); e(f"s_add_u32 s{sSP}, s{sSP}, s6"); e(f"s_add_u32 s{sSP}, s{sSP}, 1"); e(f"s_and_b32 s{sSP}, s{sSP}, 3")
    e("s_lshl_b32 s79, s79, 3"); e("s_and_b32 s6, s7, 7"); e("s_add_u32 s79, s79, s6"); e(f"s_lshr_b32 s{c2}, s7, 3")
    e("s_lshl_b32 s7, s7, 2"); e(f"s_add_u32 s7, s7, s{sW}")
    e(f"s_lshl_b32 s{sPFo}, s{sSP}, 7"); e(f"s_add_u32 s{sPFo}, s{sPFo}, s7"); e(f"s_lshl_b32 s{sPFo}, s{sPFo}, 13")
    e(f"s_mul_i32 s{sPFo+1}, s{sSP}, 352"); e("s_mul_i32 s7, s7, 3"); e(f"s_add_u32 s{sPFo+1}, s{sPFo+1}, s7"); e(f"s_lshl_b32 s{sPFo+1}, s{sPFo+1}, 10")
    e(f"s_lshl_b32 s{t}, s79, 2"); e(f"s_add_u32 s{t}, s{t}, s{c2}"); e(f"s_lshl_b32 s{t}, s{t}, 18"); e(f"s_lshl_b32 s6, s{sW}, 12"); e(f"s_add_u32 s{t}, s{t}, s6")
    e(f"s_add_u32 s{sP2}, s{t}, {PART_OFF}")
    part_soff(e, sPS, True)
    e(f"s_lshr_b32 s7, s{sW}, 1"); e("s_lshl_b32 s6, s7, 12"); e(f"s_sub_u32 s{sSZ2}, {ACT_RB}, s6")
    e(f"s_and_b32 s7, s{sW}, 1")
    e(f"s_lshl_b32 s{t}, s79, 1"); e(f"s_add_u32 s{t}, s{t}, s7"); e(f"s_mul_i32 s{t}, s{t}, {ACT_RB}"); e(f"s_add_u32 s{t}, s{t}, s6"); e(f"s_add_u32 s{t}, s{t}, {ACT_OFF}")
    e(f"s_add_u32 s{sA2}, s{SWS}, s{t}"); e(f"s_addc_u32 s{sA2+1}, s{SWS+1}, 0")
    e(f"s_lshl_b32 s{t}, s{c2}, 1"); e(f"s_add_u32 s{t}, s{t}, s7"); e(f"s_lshl_b32 s{t}, s{t}, 7"); e("s_lshl_b32 s6, s6, 3"); e(f"s_add_u32 s6, s6, s{t}")
    e(f"s_add_u32 s{SWO}, s72, s6"); e(f"s_addc_u32 s{SWO+1}, s73, 0"); e(f"s_sub_u32 s{SWO+2}, {4096*1024}, s6"); e(f"s_mov_b32 s{SWO+3}, 0x00020000")
    e(f"s_add_u32 s{SWD}, s80, s6"); e(f"s_addc_u32 s{SWD+1}, s81, 0"); e(f"s_sub_u32 s{SWD+2}, {1376*1024}, s6"); e(f"s_mov_b32 s{SWD+3}, 0x00020000")
    e("s_lshl_b32 s7, s79, 1"); e(f"s_lshr_b32 s6, s{sW}, 1"); e("s_add_u32 s7, s7, s6"); e("s_lshl_b32 s7, s7, 2"); e(f"s_add_u32 s7, s7, s{sSP}"); e("s_lshl_b32 s7, s7, 14")
    e(f"s_add_u32 s{sXO}, s7, s{t}")
    e(f"s_movk_i32 s{sINC}, 16384")
    e(f"s_lshr_b32 s{sFQB}, s79, 1")
    e(f"s_lshl_b32 s6, s{sQB}, 2"); e(f"s_add_u32 s6, s6, s{sW}")
    e(f"s_lshl_b32 s{sSTAo}, s6, 9"); e(f"s_add_u32 s{sSTAo}, s{sSTAo}, {STAT_OFF}")
    e(f"s_mul_i32 s7, s6, {ACT_RB}"); e(f"s_add_u32 s7, s7, {ACT_OFF}"); e(f"s_add_u32 s{SACT}, s{SWS}, s7"); e(f"s_addc_u32 s{SACT+1}, s{SWS+1}, 0")
    e(f"s_mov_b32 s{SACT+2}, {ACT_RB}"); e(f"s_mov_b32 s{SACT+3}, 0x00020000")
    e(f"s_add_u32 s{sMW2}, s{sMX}, 131072")
    e(f"v_and_b32 v{TM+3}, 15, v{l}"); e(f"v_lshrrev_b32 v{TM+4}, 4, v{l}")
    L += kv_voff(TM+3, TM+4, TM+5)
    e(f"s_mov_b32 s{sKV}, 0"); e(f"s_mov_b32 s{sKV2}, 0"); e(f"s_movk_i32 s{sINC2}, 16384"); e(f"s_mov_b32 s{sMASK}, 0xffff0000"); e(f"s_mov_b32 s{sPASS}, 0")
    e(f"s_mul_i32 s6, s{sHEAD}, 3"); e(f"s_and_b32 s7, s{sHEAD}, 1")
    e(f"s_add_u32 s{sH0}, s6, s7"); e(f"s_lshr_b32 s{sH0}, s{sH0}, 1"); e(f"s_add_u32 s{sH0}, s{sH0}, 128"); e(f"s_lshl_b32 s{sH0}, s{sH0}, 12")
    e("s_add_u32 s6, s6, 2"); e("s_lshl_b32 s7, s7, 1"); e("s_sub_u32 s6, s6, s7")
    e(f"s_lshr_b32 s{sH0+1}, s6, 1"); e(f"s_add_u32 s{sH0+1}, s{sH0+1}, 128"); e(f"s_lshl_b32 s{sH0+1}, s{sH0+1}, 12")
    e("s_and_b32 s6, s6, 1"); e("s_lshl_b32 s6, s6, 3"); e(f"s_add_u32 s{sH0+1}, s{sH0+1}, s6")
    return L

def rd_x(buf):
    return [f"ds_read_b128 {v(XF+buf*32+(qt*2+ks)*4,4)}, v{aXR+ks} offset:{buf*32768+2048*qt}" for qt in range(4) for ks in range(2)]
def rd_w(m, lb):
    L = []
    for ks in range(2):
        for hh in range(2):
            d = a(WF+(m*2+ks)*4+2*hh, 2)
            if m < 8: L.append(f"ds_read_b64_tr_b16 {d}, v{aWQR+m} offset:{lb*32768+ks*8192+hh*1024}")
            else:
                z, t = divmod(m-8, 3)
                L.append(f"ds_read_b64_tr_b16 {d}, v{aGUR if t < 2 else aGUR2} offset:{lb*32768+z*8192+ks*4096+hh*384+32*(t&1)}")
    return L
def rd_e(lb):
    L = []
    for tl in range(4):
        for ks in range(2):
            for hh in range(2):
                d = a(EFr(tl, ks)+2*hh, 2)
                if tl < 2: L.append(f"ds_read_b64_tr_b16 {d}, v{aWQC+tl} offset:{lb*32768+ks*8192+hh*1024}")
                else: L.append(f"ds_read_b64_tr_b16 {d}, v{aGUC} offset:{lb*32768+(tl-2)*8192+ks*4096+hh*384}")
    return L
def acc_m(m, qt):
    return v(QACC+(m*4+qt)*4, 4) if m < 8 else a(gua(m-8, qt), 4)

def loop_addr_setup(t):
    L = []; e = L.append; l = vLANE
    e(f"v_and_b32 v{t}, 15, v{l}"); e(f"v_lshrrev_b32 v{t+1}, 4, v{l}"); e(f"v_lshrrev_b32 v{t+2}, 2, v{t}"); e(f"v_and_b32 v{t+3}, 3, v{l}")
    e(f"v_lshlrev_b32 v{t+4}, 8, v{t}")
    e(f"v_and_b32 v{t+6}, 1, v{t+1}"); e(f"v_lshrrev_b32 v{t+7}, 1, v{t+1}"); e(f"v_lshl_add_u32 v{t+6}, v{t+6}, 1, v{t+7}")
    e(f"v_xor_b32 v{t+6}, v{t+6}, v{t}")
    for s_ in range(4):
        e(f"v_xor_b32 v{t+5}, {4*s_}, v{t+6}"); e(f"v_lshl_add_u32 v{aKR+s_}, v{t+5}, 4, v{t+4}")
    e(f"v_lshl_add_u32 v{t+4}, v{t+1}, 2, v{t+2}")
    e(f"v_and_b32 v{t+5}, 7, v{t+4}")
    e(f"v_lshlrev_b32 v{t+4}, 8, v{t+4}"); e(f"v_lshl_add_u32 v{t+4}, v{t+3}, 3, v{t+4}"); e(f"v_add_u32 v{t+4}, 65536, v{t+4}")
    for dt in range(8):
        e(f"v_xor_b32 v{t+6}, {dt}, v{t+5}"); e(f"v_lshl_add_u32 v{aVR+dt}, v{t+6}, 5, v{t+4}")
    return L

def place_dma(G, dm, g, step):
    last = g
    for x in dm:
        if x.startswith('buffer'):
            while g % 2 != 1 or G.used(g) > 0: g += 1
            G.put(g, x); last = g + 1; g += step - 1
        else:
            gg = G.fit(last, x); last = gg
            if 'm0,' in x: g = max(g, gg + 1)
    return max(g, last + 1)

def bid_of(dst, head, qb, t):
    return [f"v_and_b32 v{t}, 3, v{head}", f"v_lshl_add_u32 v{t}, {qb}, 2, v{t}", f"v_lshrrev_b32 v{dst}, 2, v{head}", f"v_lshl_add_u32 v{dst}, v{t}, 3, v{dst}",
            f"v_lshlrev_b32 v{dst}, 7, v{dst}", f"v_add_u32 v{dst}, {FLAG_OFF}, v{dst}"]
def d0_addr(dst, t):
    return [f"v_cmp_gt_u32 vcc, 32, v{vLANE}", f"v_mov_b32 v{t}, s{sHEAD}", f"v_and_b32 v{t+1}, {OPT['rot']-1}, v{vLANE}", f"v_mov_b32 v{dst}, s{sQB}",
            f"v_cndmask_b32 v{t}, v{t}, v{vLANE}, vcc", f"v_cndmask_b32 v{t+1}, v{t+1}, v{dst}, vcc"] + bid_of(dst, t, f"v{t+1}", vD0)
def d1_addr(dst, t):
    return ([f"v_and_b32 v{t}, 31, v{vLANE}"] + bid_of(dst, t, f"s{sFQB}", t+1)
            + ["s_and_b32 s6, s2, 0xfc", f"v_and_b32 v{t}, 3, v{vLANE}", f"v_add_u32 v{t}, s6, v{t}", f"v_cmp_gt_u32 vcc, 32, v{vLANE}",
               f"v_lshlrev_b32 v{t}, 7, v{t}", f"v_add_u32 v{t}, {FLAG_OFF}, v{t}", f"v_cndmask_b32 v{dst}, v{t}, v{dst}, vcc"])
def f_load(dst, addr, k): return f"buffer_load_dword v{dst}, v{addr}, s[{SWS}:{SWS+3}], 0 offen offset:{4*k} sc1"
def f_cmp(x): return f"v_cmp_ne_u32 vcc, s{sNON}, v{x}"
SPIN = 0x20000
WAITMARK = "s_waitcnt vmcnt(63) ; WAIT "
def resolve_waits(pre, ph):
    out = []
    for x in ph:
        if x.startswith(WAITMARK):
            tags, _, extra = x[len(WAITMARK):].partition('|')
            n = vm_after(pre + out, tags.split())
            x = "s_waitcnt " + " ".join(([f"vmcnt({n})"] if n is not None else []) + ([extra] if extra else []))
        out.append(x)
    return out

vD0 = 114; aSTA = 117; aCL = 115; aD0 = SXA + 14
def cs_mfmas(): return [f"v_smfmac_f32_16x16x64_bf16 {a(CSA+tl*4,4)}, {v(ONES,4)}, {a(EFr(tl,0),8)}, v{vIDX}" for tl in range(4)]
W_, X_ = (lambda s: ('W', s)), (lambda s: ('x', s))
SCHED = {
    0: [[W_(2), X_(2)], [W_(3), X_(3)], [W_(4), X_(4)], [W_(5), X_(5)], [W_(6), X_(6)], [W_(7), X_(7)], []],
    1: [[W_(2), X_(2)], [W_(3), X_(3), X_(4)], [W_(4), W_(5), X_(5)], [W_(6), X_(6)], [W_(7), X_(7)], [], []],
    2: [[W_(2), X_(2)], [W_(3), X_(3), X_(4)], [W_(4), X_(5)], [W_(5), X_(6)], [W_(6), X_(7)], [W_(7)], []],
    3: [[W_(2), X_(2)], [W_(3), X_(3), W_(4)], [X_(4), W_(5)], [X_(5), W_(6)], [X_(6), W_(7)], [X_(7)], []],
}[OPT['sched']]
def gemm_phase(st, carry, bg):
    xb = st & 1; first = (st == 0); nb = (st + 1) & 1
    wb = (st + 1) % 3; wo = wb if wb < 2 else 0
    mf = []
    def C(acc, ks): return "0" if (first and ks == 0) else acc
    if first: mf += cs_mfmas()
    pos = {}; doE = first and OPT['rot'] == 4; SIGP = 1 if OPT['rot'] == 8 else 2
    CSM = 12 if first else 8
    for m in range(14):
        if m == CSM and doE: csp = len(mf); mf += cs_mfmas()
        pos[m] = len(mf)
        for qt in range(4):
            for ks in range(2):
                d = acc_m(m, qt); mf.append(f"{MF} {d}, {a(WF+(m*2+ks)*4,4)}, {v(XF+xb*32+(qt*2+ks)*4,4)}, {C(d,ks)}")
    N = len(mf)
    G = Gaps(N)
    for i, r in enumerate(carry): G.put(i // 2, r)
    BARG = OPT['barg0'] if first else 7
    xlate = first or (st < 7 and ('x', st+1) in SCHED[st-1])
    tags = {1: "non", 5: "d0", 6: "cs"}.get(st, "") + f" W{st+1}" + ("" if xlate else f" X{st+1}") + (" pub" if st == SIGP else "")
    G.put(BARG, WAITMARK + tags + "|lgkmcnt(0)", force=True); G.put(BARG, "s_barrier", force=True)
    if first:
        G.put(3, "s_waitcnt lgkmcnt(8)"); G.put(11, "s_waitcnt lgkmcnt(0)")
    if st == 5:
        G.put(BARG+1, f_cmp(vD0)); G.put(BARG+2, "s_cbranch_vccnz K1_D0POLL"); G.put(BARG+2, "K1_D0OK:"); G.put(BARG+3, f"s_add_u32 s{sCNT}, s{sCSo}, 4096")
    if st == 1:
        G.put(BARG+1, f"v_cmp_eq_u32 vcc, 0, v{TM+1}"); G.put(BARG+2, "s_cbranch_vccnz K1_NPOLL"); G.put(BARG+2, "K1_NOK:")
        G.put(BARG+3, f"v_readfirstlane_b32 s{sNON}, v{TM+1}")
    if st < 7: G.put(N - 1, "s_waitcnt lgkmcnt(4)")
    adj = []
    if st < 7 and (wb == 2 or (wb == 0 and st > 0)):
        op = "v_add_u32" if wb == 2 else "v_subrev_u32"
        adj = [f"{op} v{r}, 0x10000, v{r}" for r in list(range(aWQR, aWQR+8)) + [aGUR, aGUR2]]
        G.stream(2, adj, BARG)
    newcarry = []
    if st < 7:
        g = BARG + 1
        for m in range(14):
            rs = rd_w(m, wo)
            if m == 13: newcarry = rs; break
            for i, r in enumerate(rs):
                g = max(g, pos[m] + 8 + 2*i)
                while g % 2 != 0 or G.used(g) > 1: g += 1
                G.put(g, r)
    dm = []
    if first: dm += [f"buffer_load_dword v{TM+1}, off, s[{SDBG}:{SDBG+3}], 0 sc1 ; @non"]
    if st == SIGP: dm += [f"buffer_store_dword v{TM+1}, v{TM+2}, s[{SWS}:{SWS+3}], s{sW2S} offen sc1"]
    if st == 5: dm += [f"buffer_load_dwordx4 {v(TM+4*j,4)}, v{aCL}, s[{SWS}:{SWS+3}], s{sCSo if j == 0 else sCNT} offen sc1 ; @cs" for j in range(OPT['rot']//4)]
    if st == 5: dm += [f"buffer_load_dwordx2 {v(SXA+4*qt,2)}, v{aSTA}, s[{SWS}:{SWS+3}], s{sSTAo} offen offset:{128*qt} sc1 ; @cs" for qt in range(4)]
    if st <= 5: pass
    elif st == 6:
        if OPT['kvs'] == 0: place_dma(G, kv_dma(0, " ; @KV0") + kv_dma(1), BARG + 1, 6)
        else: place_dma(G, kv_dma(0, " ; @KV0"), BARG + 1, 12)
    elif OPT['kvs'] == 0: place_dma(G, kv_dma(2) + kv_dma(3), BARG + 1, 6)
    elif OPT['kvs'] == 1: place_dma(G, kv_dma(1), BARG + 1, 12)
    else: place_dma(G, kv_dma(1) + kv_dma(2), BARG + 1, 6)
    if adj: G.stream(BARG + 1, adj, BARG + 30); assert not adj
    if st <= 5:
        grp = SCHED[st]
        early = [x for x in grp if x != ('x', st+3)]
        span = (N - 4 if len(early) == len(grp) else OPT['xw'] + 8)
        step = max(2, (span // max(1, 8*len(early) + len(dm))) & ~1); step = min(step, OPT['wgap'])
        g = 2; misc = list(dm)
        for kind, s_ in early:
            if (kind == 'W' and s_ == st + 3) or (g > BARG and misc):
                g = max(g, BARG + 3)
                g = place_dma(G, misc, g, step); misc = []
            g = place_dma(G, dma_w(s_ % 3, s_) if kind == 'W' else dma_x(s_ & 1, s_), g, step)
        if misc: g = place_dma(G, misc, max(g, BARG + 3), step)
        gdma = g
    if st < 7:
        g = 50 if first else OPT['xg'] if xlate else BARG + 2
        if xlate: g = G.fit(g, WAITMARK + f"X{st+1}|") + 1
        for r in rd_x(nb):
            while G.used(g) > 1 or G.post[g]: g += 1
            G.put(g, r); g += 2
        xdone = g
        g = BARG + 2
        if doE:
            for r in rd_e(wo):
                while G.used(g) > 1 or G.post[g]: g += 1
                G.put(g, r); g += 1
            assert g < csp - 8, (st, g, csp)
        if doE or ('x', st+3) in SCHED[st]:
            w = G.fit(max(OPT['xw'], xdone + 8, g + 6), "s_waitcnt lgkmcnt(2)"); assert not doE or w < csp
        if st <= 5 and ('x', st+3) in SCHED[st]: place_dma(G, dma_x(nb, st+3), max(w + 1, gdma), 4)
    if st in (2, 3, 4) and OPT['pois']:
        assert not any(f"s{sPS+st-2}," in x for x in bg)
        ps = [f"buffer_store_dwordx4 {v(SXA+8,4)}, v{aL16}, s[{SWS}:{SWS+3}], s{sPS+st-2} offen offset:{1024*j} sc1" for j in range(4)]
        g = OPT['pois']
        for x in ps:
            while g % 2 != 1 or G.used(g) > 0: g += 1
            G.put(g, x); g += OPT['pstep']
    if st == SIGP - 1:
        t = SXA
        q = [f"s_lshl_b32 s6, s{sHEAD}, 3", f"s_add_u32 s6, s6, s{sQB}", "s_lshl_b32 s6, s6, 2", f"s_add_u32 s6, s6, s{sW}", "s_lshl_b32 s6, s6, 8", f"s_add_u32 s{sCSo}, s6, {CS_OFF}"]
        for tl in range(4): q += [f"v_accvgpr_read_b32 v{t+tl}, a{CSA+4*tl}", f"v_accvgpr_read_b32 v{t+4+tl}, a{CSA+4*tl+1}"]
        for tl in range(4): q += [f"v_add_f32 v{t+tl}, v{t+tl}, v{t+4+tl}"]
        q += [f"buffer_store_dwordx4 {v(t,4)}, v{TM}, s[{SWS}:{SWS+3}], s{sCSo} offen sc1 ; @pub"]
        g0 = G.stream(12 if first else BARG + 4, q); assert not q
    if st in (1, 2, 3): G.stream((g0 + 1 if SIGP == 2 else BARG + 4) if st == 1 else 0, bg)
    if st == 4:
        assert not bg, len(bg)
        q = d0_addr(aD0, TM+6) + [f_load(vD0, aD0, 0) + " ; @d0", f"v_and_b32 v{aSTA}, 15, v{vLANE}",
             f"v_lshrrev_b32 v{aCL}, 4, v{vLANE}", f"v_lshlrev_b32 v{aCL}, 10, v{aCL}", f"v_lshl_add_u32 v{aCL}, v{aSTA}, 4, v{aCL}", f"v_lshlrev_b32 v{aSTA}, 3, v{aSTA}",
             f"s_lshl_b32 s6, s{sHEAD}, 13", f"s_lshl_b32 s7, s{sW}, 8", "s_add_u32 s6, s6, s7", f"s_add_u32 s{sCSo}, s6, {CS_OFF}"]
        G.stream(OPT['d0g'], q); assert not q
    if st == 6:
        q = []
        for qt in range(4): q += [f"v_rsq_f32 v{SXA+4*qt+2}, v{SXA+4*qt+1}"]
        for qt in range(4):
            q += [f"v_mul_f32 v{SXA+4*qt+3}, v{SXA+4*qt+1}, v{SXA+4*qt+2}", f"v_mul_f32 v{SXA+4*qt+1}, {f2u(SCALE)}, v{SXA+4*qt+2}",
                  f"v_mul_f32 v{SXA+4*qt+2}, {f2u(-LOG2E)}, v{SXA+4*qt+2}"]
        if OPT['rot'] == 8: q += [f"v_add_f32 v{TM+i}, v{TM+i}, v{TM+4+i}" for i in range(4)]
        q += xlane_reduce("v_add_f32", [TM+i for i in range(4)], [TM+4+i for i in range(4)])
        q += [f"v_lshrrev_b32 v{aCL}, 1, v{aSTA}", f"v_add_u32 v{aCL}, s{sMW2}, v{aCL}"]
        for tl in range(4): q += [f"ds_write_b32 v{aCL}, v{TM+tl} offset:{64*tl}"]
        q += loop_addr_setup(TM)
        g = G.stream(BARG + 1, q)
        q += [f"v_lshrrev_b32 v{aCS}, 4, v{vLANE}", f"v_lshlrev_b32 v{aCS}, 4, v{aCS}", f"v_add_u32 v{aCS}, 131072, v{aCS}"]
        G.stream(max(g, xdone), q)
        for x in q: G.post[N-1].append(x)
        if q: print(f"; phase 6: {len(q)} left over", file=sys.stderr)
    if st == 7:
        g = BARG + 1
        for m in range(8):
            g = G.fit(g, f"ds_read_b128 {v(4*m,4)}, v{aCS} offset:{(m>>1)*8192+(m&1)*64}")
        g = G.fit(g + 6, "s_waitcnt lgkmcnt(0)") + 1
        left = []
        for m in range(8):
            q = [f"v_fmac_f32 v{QACC+(m*4+qt)*4+r}, v{4*m+r}, v{SXA+4*qt}" for qt in range(4) for r in range(4)]
            g = G.stream(max(g, 8*m + 12), q); left += q
        for x in left: G.post[N-1].append(x)
        if left: print(f"; phase 7: {len(left)} left over", file=sys.stderr)
    return weave(mf, G.out()), newcarry

LO = "op_sel_hi:[1,0,1]"; HI = "op_sel:[0,1,0] op_sel_hi:[1,1,1]"
LO2 = "op_sel_hi:[1,0]"; HI2 = "op_sel:[0,1] op_sel_hi:[1,1]"
def zero_o(i): return f"v_mfma_f32_32x32x16_bf16 {a(16*i,16)}, {v(LACC,4)}, {v(LACC,4)}, 0"
def max_mfmas():
    return [f"{MF} {v(SB+4*qt,4)}, {v(KF+s_*4,4)}, {v(QF+(qt*4+s_)*4,4)}, {'0' if s_ == 0 else v(SB+4*qt,4)}" for qt in range(4) for s_ in range(4)]
def k1_post_gemm():
    L = []; e = L.append
    CSG = 208
    vr = rd_v(0, 0)
    for sp in (2, 3, 0, 1):
        for qt in range(4):
            P0 = v(SXA+4*qt, 2)
            for b in range(2):
                m = 2*sp+b; x = QACC + (m*4+qt)*4
                for h in (0, 2): e(f"v_pk_mul_f32 {v(x+h,2)}, {v(x+h,2)}, {P0} {HI2}")
                for h in range(2): e(f"v_cvt_pk_bf16_f32 v{QF+(qt*4+sp)*4+2*b+h}, v{x+2*h}, v{x+2*h+1}")
        if sp == 3:
            for m in range(6):
                z, t = divmod(m, 3)
                e(f"ds_read_b128 {v(CSG+4*m,4)}, v{aCS} offset:{t*8192+(2+z)*64}")
        elif sp == 0:
            e(WAITMARK + "KV0|lgkmcnt(0)"); e("s_barrier")
            for f in range(8): e(rd_k(f, 0))
            L += vr[:16]
        elif sp == 1:
            for f in range(8, 16): e(rd_k(f, 0))
            L += vr[16:]
        else: e("s_nop 1")
        for qt in range(4):
            f = QF+(qt*4+sp)*4
            e(f"v_permlane16_swap_b32 v{f}, v{f+2}"); e(f"v_permlane16_swap_b32 v{f+1}, v{f+3}")
    for i in range(16): e(f"v_mov_b32 v{LACC+i}, 0")
    e("s_waitcnt lgkmcnt(15)")
    if OPT['stamp'] == 2: L += stamp(TM)
    mx = max_mfmas(); zs = [6, 7]
    kv = with_m0_nops({0: [], 1: kv_dma(2) + kv_dma(3), 2: kv_dma(3)}[OPT['kvs']])
    def kv_next():
        while kv:
            x = kv.pop(0); e(x)
            if x.startswith('buffer'): break
    n = 0
    for qt in range(4):
        for t in (2, 0, 1):
            G_ = TM + (n % 2)*8; U_ = G_ + 4; n += 1
            H_ = 232 + (4 if t == 2 else 2*t)
            P0 = v(SXA+4*qt, 2); P1 = v(SXA+4*qt+2, 2)
            if mx: e(mx.pop(0))
            elif zs: e(zero_o(zs.pop(0)))
            kv_next()
            for r in range(4): e(f"v_accvgpr_read_b32 v{G_+r}, a{gua(t, qt)+r}")
            if mx: e(mx.pop(0))
            for r in range(4): e(f"v_accvgpr_read_b32 v{U_+r}, a{gua(3+t, qt)+r}")
            for h in (0, 2): e(f"v_pk_fma_f32 {v(G_+h,2)}, {v(CSG+4*t+h,2)}, {P0}, {v(G_+h,2)} {LO}")
            for h in (0, 2): e(f"v_pk_mul_f32 {v(G_+h,2)}, {v(G_+h,2)}, {P1} {LO2}")
            if mx: e(mx.pop(0))
            elif zs: e(zero_o(zs.pop(0)))
            if t == 0 and OPT['kvs'] == 1: kv_next()
            for r in range(4): e(f"v_exp_f32 v{G_+r}, v{G_+r}")
            for h in (0, 2): e(f"v_pk_fma_f32 {v(U_+h,2)}, {v(CSG+12+4*t+h,2)}, {P0}, {v(U_+h,2)} {LO}")
            for h in (0, 2): e(f"v_pk_fma_f32 {v(G_+h,2)}, {v(G_+h,2)}, {P1}, {P1} op_sel:[0,1,1] op_sel_hi:[1,1,1]")
            if mx: e(mx.pop(0))
            for r in range(4): e(f"v_rcp_f32 v{G_+r}, v{G_+r}")
            e("s_nop 0")
            for h in (0, 2): e(f"v_pk_mul_f32 {v(U_+h,2)}, {v(U_+h,2)}, {v(G_+h,2)}")
            for h in range(2): e(f"v_cvt_pk_bf16_f32 v{H_+h}, v{U_+2*h}, v{U_+2*h+1}")
            if t == 2: e(f"buffer_store_dwordx2 {v(H_,2)}, v{aL16}, s[{SACT}:{SACT+3}], s{sH0+1} offen offset:{1024*qt} sc1")
            if t == 1: e(f"buffer_store_dwordx4 {v(H_-2,4)}, v{aL16}, s[{SACT}:{SACT+3}], s{sH0} offen offset:{1024*qt} sc1")
        zs += {0: [0], 1: [1, 2], 2: [3], 3: [4, 5]}[qt]
    if OPT['stamp'] == 2: L += stamp(TM)
    L += kv
    for z in zs: e(zero_o(z))
    for qt in range(4):
        b = SB+4*qt
        e(f"v_max3_f32 v{b}, v{b}, v{b+1}, v{b+2}"); e(f"v_max_f32 v{b}, v{b}, v{b+3}")
    L += xlane_reduce("v_max_f32", [SB+4*q for q in range(4)], [SB+4*q+1 for q in range(4)])
    for qt in range(4):
        for r in range(4): e(f"v_sub_f32 v{NEGM+4*qt+r}, 0, v{SB+4*qt}")
    return L

def ks_of(p):
    kt, s_ = divmod(p, 4)
    return kt, (3 - s_ if (kt & 1 and OPT['sq']) else s_)
def rd_k(f, slot):
    kt, s_ = ks_of(f)
    return f"ds_read_b128 {v(KF+4*f,4)}, v{aKR+s_} offset:{slot*16384+kt*4096}"
def rd_v(buf, slot):
    return [f"ds_read_b64_tr_b16 {a(VF+buf*64+(dt*2+kk)*4+2*hh,2)}, v{aVR+dt} offset:{slot*16384+kk*8192+hh*4096}"
            for dt in range(8) for kk in range(2) for hh in range(2)]
def qk_mfmas(qt, zero=False):
    L = []
    for p in range(16):
        kt, s_ = ks_of(p)
        d = v(SB+4*kt, 4)
        c = ("0" if zero else v(NEGM+4*qt, 4)) if p % 4 == 0 else d
        L.append(f"{MF} {d}, {v(KF+p*4,4)}, {v(QF+(qt*4+s_)*4,4)}, {c}")
    return L
def pv_mfmas(qt, vb, pb):
    L = []
    for dt in range(8):
        d = a(OACC+(dt*4+qt)*4, 4)
        for kk in range(2): L.append(f"{MF} {d}, {a(VF+vb*64+(dt*2+kk)*4,4)}, {v(PB+pb*8+kk*4,4)}, {d}")
    L.append(f"v_smfmac_f32_16x16x64_bf16 {v(LACC+4*qt,4)}, {v(ONES,4)}, {v(PB+pb*8,8)}, v{vIDX}")
    return L
EXP = lambda e_: f"v_exp_f32 v{SB+e_}, v{SB+e_}"
CVT = lambda c, pb: f"v_cvt_pk_bf16_f32 v{PB+pb*8+c}, v{SB+2*c}, v{SB+2*c+1}"

def attn_step(jm, u):
    pb = u & 1
    mf = qk_mfmas((u+1) % 4) + pv_mfmas(u, jm & 1, pb)
    G = Gaps(33)
    for k, e_ in enumerate((13, 14, 15)): G.put(2*k+1, EXP(e_))
    G.put(2, CVT(6, pb)); G.put(6, CVT(7, pb))
    for e_ in range(13): G.put(8+2*e_, EXP(e_))
    for c in range(6): G.put(11+4*c, CVT(c, pb ^ 1))
    ns = (jm+1) % 4
    vr = rd_v((jm+1) & 1, ns)
    dm = kv_dma(jm)
    if u == 0:
        G.put(4, "s_waitcnt vmcnt(16) lgkmcnt(0)", force=True); G.put(4, "s_barrier", force=True)
        G.put(7, dm[0])
        for g, x in zip((9, 17, 21, 29), dm[1:5]): G.put(g, x)
        for g, x in zip((6, 7, 11, 13, 15, 19, 23, 25, 27, 31), vr[0:10]): G.put(g, x)
    elif u == 1:
        G.put(0, dm[5])
        for g, x in zip((4, 13, 21, 29), dm[6:10]): G.put(g, x)
        for g, x in zip((0, 2, 6, 7, 9, 11, 15, 17, 19, 23, 25, 27, 31), vr[10:23]): G.put(g, x)
    elif u == 2:
        G.put(0, dm[10]); G.put(0, dm[11])
        for f, g in enumerate((2, 4, 4, 6, 7, 9, 11, 13, 15, 17, 19, 21, 23, 25, 27, 29)): G.put(g, rd_k(f, ns))
        G.put(31, "s_waitcnt lgkmcnt(3)")
    else:
        G.put(7, "s_waitcnt lgkmcnt(4)")
        for g, x in zip((0, 2, 4, 6, 9, 11, 13, 15, 17), vr[23:32]): G.put(g, x)
        if jm == 3:
            G.put(25, f"s_add_u32 s{sCNT}, s{sCNT}, 1"); G.put(29, f"s_cmp_lt_u32 s{sCNT}, s{sT0}")
        if jm == 2: G.put(29, f"s_cmp_eq_u32 s{sCNT}, 7")
    if jm == 3 and u == 0: G.put(0, "s_cbranch_scc1 K1_LAST")
    return weave(mf, G.out())

def l_fin(qt): return [f"v_add_f32 v{LACC+4*qt}, v{LACC+4*qt}, v{LACC+4*qt+1}", f"v_rcp_f32 v{LACC+4*qt+2}, v{LACC+4*qt}"]
def o_stream(qt):
    L = []; e = L.append
    l = LACC + 4*qt
    for i in range(4):
        t = 88; p = 100 + 4*((qt*4+i) % 3)
        for b in range(2):
            for r in range(4): e(f"v_accvgpr_read_b32 v{t+4*b+r}, a{OACC+((2*i+b)*4+qt)*4+r}")
        if i == 0 and qt < 3: L += l_fin(qt)
        e(f"s_add_u32 s{sT1}, s{sT0}, {4096*i}")
        if OPT['opk']:
            for k in range(4): e(f"v_pk_mul_f32 {v(t+2*k,2)}, {v(t+2*k,2)}, {v(l+2,2)} {LO2}")
        else:
            for k in range(8): e(f"v_mul_f32 v{t+k}, v{t+k}, v{l+2}")
        for k in range(4): e(f"v_cvt_pk_bf16_f32 v{p+k}, v{t+2*k}, v{t+2*k+1}")
        e(f"buffer_store_dwordx4 {v(p,4)}, v{aL16}, s[{SACT}:{SACT+3}], s{sT1} offen offset:{1024*qt} sc1 ; @o")
    return L

def fill(gaps, q, g0, cap):
    for gi in range(g0, len(gaps)):
        u = units(gaps[gi])
        if q and Ins(q[0]).kind == 'vst': gaps[gi].insert(0, q.pop(0)); u += 2
        while q:
            k = Ins(q[0]).kind
            if u + UNITS[k] > cap or k == 'vst': break
            gaps[gi].append(q.pop(0)); u += UNITS[k]

def attn_last():
    L = []
    for u in range(4):
        pb = u & 1
        q = o_stream(u - 1) if u else []
        if u < 3:
            mf = qk_mfmas(u + 1) + pv_mfmas(u, 1, pb)
            G = Gaps(33)
            for k, e_ in enumerate((13, 14, 15)): G.put(2*k+1, EXP(e_))
            G.put(2, CVT(6, pb)); G.put(6, CVT(7, pb))
            for e_ in range(13): G.put(8+2*e_, EXP(e_))
            for c in range(6): G.put(11+4*c, CVT(c, pb ^ 1))
            if u == 0:
                dm = kv_dma(3, " ; @a3")
                G.put(4, "s_waitcnt lgkmcnt(0)", force=True); G.put(4, "s_barrier", force=True)
                G.put(6, dm[0])
                for g, x in zip((7, 9, 13, 17), dm[1:5]): G.put(g, x)
                G.put(19, dm[5])
                for g, x in zip((21, 25, 29), dm[6:9]): G.put(g, x)
                G.put(31, dm[9], force=True); G.put(11, f"s_lshl_b32 s{sT0}, s{sHEAD}, 14")
                tail = dm[10:]
            gaps = G.out()
            if u == 1: gaps[0] += tail
            fill(gaps, q, 0, OPT['lcap'])
            w = weave(mf, gaps)
            L += (w[1:] if u == 0 else w) + q
        else:
            mf = pv_mfmas(3, 1, pb)
            L += [EXP(13), EXP(14), EXP(15), CVT(6, pb), CVT(7, pb)]
            k = 2
            L += q[:k]; q = q[k:]
            gaps = [[] for _ in mf]
            fill(gaps, q, 0, OPT['lcap'])
            L += weave(mf, gaps) + q
    return L

def attn_entry():
    A = []; e = A.append
    e("s_waitcnt vmcnt(24)"); e("s_barrier")
    for f in range(16): e(rd_k(f, 0))
    A += rd_v(0, 0)
    for i in range(16): e(f"v_mov_b32 v{LACC+i}, 0")
    for i in range(8): e(zero_o(i))
    C_ = []; e = C_.append
    e("s_waitcnt lgkmcnt(0)")
    mf = qk_mfmas(0)
    G = Gaps(16)
    G.put(0, f"s_mov_b32 s{sCNT}, 0"); G.put(1, f"s_cmp_lg_u32 s{sPASS}, 0"); G.put(1, f"s_cselect_b32 s{sT0}, 7, 1")
    for g_ in (4, 5, 6, 7): G.put(g_, "s_nop 0")
    for e_ in range(8): G.put(8 + e_, EXP(e_))
    C_ += weave(mf, G.out())
    for c in range(4): e(CVT(c, 0))
    for e_ in range(8, 13): e(EXP(e_))
    for c in range(4, 6): e(CVT(c, 0))
    return A, C_

def part_soff(e, dst, store):
    for i in range(1, 4):
        e(f"s_add_u32 s6, s{sSP}, {i}"); e("s_and_b32 s6, s6, 3")
        if store: e("s_lshl_b32 s6, s6, 2"); e(f"s_add_u32 s6, s6, s{sSP}")
        else: e(f"s_lshl_b32 s7, s{sSP}, 2"); e("s_add_u32 s6, s6, s7")
        e("s_lshl_b32 s6, s6, 14"); e(f"s_add_u32 s{dst+i-1}, s6, s{sP2}")

def block_b():
    L = []; e = L.append
    e(f"s_mov_b32 s{sT0}, {TC}")
    e(f"s_cmp_lg_u32 s{sW}, 0"); e("s_cbranch_scc1 K1_LOOP")
    e(f"v_mov_b32 v{vSP}, s{sNON}")
    e("s_mov_b64 exec, 1")
    e(f"buffer_store_dword v{vSP}, off, s[{SWS}:{SWS+3}], s{sW2S} offset:4 sc1")
    e("s_mov_b64 exec, -1")
    return L

def block_c():
    L = srd(P2X, 72, 73, 4096*1024) + srd(P2OUT, 80, 81, 1376*1024)
    L += [f"v_lshlrev_b32 v{T2}, 7, v{vLANE}", f"v_min_u32 v{T2+1}, {23*128}, v{T2}",
          f"buffer_load_dword v{T2+2}, v{T2}, s[{P2X}:{P2X+3}], s{sPFo} offen", f"buffer_load_dword v{T2+3}, v{T2+1}, s[{P2OUT}:{P2OUT+3}], s{sPFo+1} offen"]
    return L + d1_addr(vD1+1, T2+4) + [f_load(vD1, vD1+1, 1), f"s_mov_b32 s{sT0}, 7"]
def block_l():
    A = [f_cmp(vD1), f"s_mov_b32 s{sT1}, 0", "s_cbranch_vccz K1_D1OK"]
    D1 = [f_load(vD1, vD1+1, 1), f"s_add_u32 s{sT1}, s{sT1}, 1", "s_sleep 8", "s_waitcnt vmcnt(0)", f_cmp(vD1),
          f"s_cmp_gt_u32 s{sT1}, {SPIN}", "s_cbranch_scc1 K1_D1OK", "s_cbranch_vccnz K1_D1POLL"]
    B = []; e = B.append
    B += srd(P2ACT, sA2, sA2+1, 0); e(f"s_mov_b32 s{P2ACT+2}, s{sSZ2}")
    for i in range(3): e(f"s_mov_b32 s{P2WT+i}, s{SWD+i}")
    t = 88
    e(f"v_lshrrev_b32 v{t}, 3, v{vLANE}"); e(f"v_and_b32 v{t+1}, 7, v{vLANE}"); e(f"v_and_b32 v{t+2}, 6, v{t}"); e(f"v_xor_b32 v{t+1}, v{t+1}, v{t+2}")
    e(f"v_lshlrev_b32 v{t}, 10, v{t}"); e(f"v_lshl_add_u32 v{aKD}, v{t+1}, 4, v{t}")
    for i in range(1, 4): e(f"v_add_u32 v{aKD+i}, {7168*i}, v{aKD}")
    for r in (aVD, aVD+1): e(f"v_mov_b32 v{r}, v{aL16}")
    e(f"s_mul_i32 s{sKV}, s{sSP}, {11*32768}"); e(f"s_mov_b32 s{sINC}, 65536")
    e(f"s_mul_i32 s{sKV2}, s{sSP}, {11*4096}"); e(f"s_add_u32 s{sKV2}, s{sKV2}, {128*4096}"); e(f"s_movk_i32 s{sINC2}, 8192")
    e(f"s_add_u32 s{sT1}, s{sKV}, {4*65536}"); e(f"s_add_u32 m0, s{sMKV}, {8*16384}"); e(f"s_add_u32 s6, s{sKV2}, {4*8192}")
    for i in range(4): e(f"buffer_load_dwordx4 v{aKD+i}, s[{P2WT}:{P2WT+3}], s{sT1} offen offset:{1024*i} lds")
    e(f"s_add_u32 m0, s{sMKV}, {9*16384}"); e("s_nop 0")
    for i in range(4): e(f"buffer_load_dwordx4 v{aL16}, s[{P2ACT}:{P2ACT+3}], s6 offen offset:{1024*i} sc1 lds")
    e(f"s_lshr_b32 s6, s{sW}, 1"); e("s_lshl_b32 s6, s6, 12")
    for i in range(4):
        e(f"s_add_u32 s7, s{sSP}, {i}"); e("s_and_b32 s7, s7, 3")
        e("s_lshl_b32 s7, s7, 10"); e("s_add_u32 s7, s7, s6"); e(f"v_add_u32 v{aA+i}, s7, v{aL16}")
    e(f"s_and_b32 s6, s{sW}, 1"); e("s_lshl_b32 s6, s6, 12")
    e(f"v_lshrrev_b32 v{t}, 2, v{vLANE}"); e(f"v_and_b32 v{t+1}, 3, v{vLANE}"); e(f"v_bfe_u32 v{t+2}, v{vLANE}, 3, 2")
    e(f"v_lshlrev_b32 v{t}, 7, v{t}"); e(f"v_lshl_add_u32 v{t}, v{t+1}, 3, v{t}"); e(f"v_add_u32 v{t}, s6, v{t}")
    for ct in range(4):
        e(f"v_xor_b32 v{t+1}, {ct}, v{t+2}"); e(f"v_lshl_add_u32 v{aW+ct}, v{t+1}, 5, v{t}")
    for hi in (1, 2):
        for i in range(4): e(f"v_add_u32 v{aA+4*hi+i}, {65536*hi}, v{aA+i}"); e(f"v_add_u32 v{aW+4*hi+i}, {65536*hi}, v{aW+i}")
    e(f"v_and_b32 v{t}, 7, v{vLANE}"); e(f"v_lshl_add_u32 v{t}, s{sSP}, 3, v{t}")
    B += bid_of(aFL, t, f"s{sFQB}", t+1)
    e(f"s_mov_b32 s{sT0}, 8")
    return A, D1, B

def attn_check():
    L = []; e = L.append
    e("s_nop 11")
    t = 88
    L += l_fin(3)
    e(f"v_mov_b32 v{t}, {f2u(2.0**OPT['thr'])}")
    e(f"v_cmp_nle_f32 vcc, v{LACC}, v{t}"); e(f"v_cmp_nle_f32 s[6:7], v{LACC+4}, v{t}")
    e(f"v_cmp_nle_f32 s[44:45], v{LACC+8}, v{t}"); e(f"v_cmp_nle_f32 s[46:47], v{LACC+12}, v{t}")
    e("s_nop 1")
    e("s_or_b64 s[6:7], s[6:7], vcc"); e("s_or_b64 s[44:45], s[44:45], s[46:47]"); e("s_or_b64 s[6:7], s[6:7], s[44:45]")
    e("s_cselect_b32 s6, 1, 0")
    e(f"v_mov_b32 v{t}, s6"); e(f"s_lshl_b32 s7, s{sW}, 2"); e(f"s_add_u32 s7, s7, {CHK_LDS}"); e(f"v_mov_b32 v{t+1}, s7"); e(f"v_mov_b32 v{t+2}, {CHK_LDS}")
    e(f"ds_write_b32 v{t+1}, v{t}"); e(WAITMARK + "a3|lgkmcnt(0)"); e("s_barrier")
    e(f"ds_read_b128 {v(t+4,4)}, v{t+2}"); e("s_waitcnt lgkmcnt(0)")
    e(f"v_or_b32 v{t+4}, v{t+4}, v{t+5}"); e(f"v_or3_b32 v{t+4}, v{t+4}, v{t+6}, v{t+7}"); e("s_nop 0")
    e(f"v_readfirstlane_b32 s6, v{t+4}"); e("s_nop 1")
    e(f"s_cmp_gt_u32 s6, s{sPASS}"); e("s_cbranch_scc1 K1_SLOW")
    return L

def attn_slow():
    P = []; e = P.append
    MX = T2
    for qt in range(4): e(f"v_mov_b32 v{MX+qt}, 0xff800000")
    e(f"s_mov_b32 s{sKV}, 0"); e("s_waitcnt vmcnt(0)")
    P += srd(SK, sKVB, sKVB+1, 524288) + srd(SV, sKVB+2, sKVB+3, 524288)
    e(f"s_movk_i32 s{sINC}, 16384"); e(f"s_movk_i32 s{sINC2}, 16384"); e(f"s_mov_b32 s{sKV2}, 0")
    e(f"v_and_b32 v{T2+8}, 15, v{vLANE}"); e(f"v_lshrrev_b32 v{T2+9}, 4, v{vLANE}")
    P += kv_voff(T2+8, T2+9, T2+10) + loop_addr_setup(T2+8)
    B = []; e = B.append
    e("s_barrier")
    e(f"s_mov_b32 m0, s{sMKV}"); e("s_nop 0")
    for i in range(4): e(f"buffer_load_dwordx4 v{aKD+i}, s[{SK}:{SK+3}], s{sKV} offen offset:{1024*i} lds")
    e("s_waitcnt vmcnt(0)"); e("s_barrier")
    for f in range(16): e(rd_k(f, 0))
    e("s_waitcnt lgkmcnt(0)")
    for qt in range(4):
        B += qk_mfmas(qt, zero=True)
        e("s_nop 7")
        for i in range(8): e(f"v_max3_f32 v{MX+qt}, v{MX+qt}, v{SB+2*i}, v{SB+2*i+1}")
        e("s_nop 3")
    e(f"s_add_u32 s{sKV}, s{sKV}, 16384"); e(f"s_cmp_lt_u32 s{sKV}, 524288")
    Q = []; e = Q.append
    Q += xlane_reduce("v_max_f32", [MX+q for q in range(4)], [MX+4+q for q in range(4)])
    for qt in range(4):
        for r in range(4): e(f"v_sub_f32 v{NEGM+4*qt+r}, 0, v{MX+qt}")
    e(f"s_mov_b32 s{sPASS}, 1"); e(f"s_mov_b32 s{sKV}, 0"); e("s_barrier")
    for s_ in range(4): Q += with_m0_nops(kv_dma(s_))
    return P, B, Q

def k1():
    pre = k1_setup()
    pre += k1_setup2(pre)
    if OPT['stamp']:
        pre += ["v_mov_b32 v8, s98", "v_mov_b32 v9, s100", "s_nop 1", f"buffer_store_dwordx2 v[8:9], off, s[{SST}:{SST+3}], s{sSTo}", "s_nop 1"]
        stamp_n[0] = 1
    pre += with_m0_nops(dma_w(1, 1))
    if OPT['stpos'] == 1: pre += st_loads()
    pre += stamp(8)
    pre += [f"s_waitcnt vmcnt({vm_after(pre, ['W0', 'X0'])})", "s_barrier"]
    pre += stamp(8)
    rw = rd_e(0) + rd_x(0) + sum((rd_w(m, 0) for m in range(14)), [])
    dx = dma_x(1, 1)
    for i, x in enumerate(dx): pre += rw[3*i:3*i+3] + [x]
    k = 3*len(dx)
    pre += rw[k:]
    pre += k1_stats(pre) + ["s_waitcnt lgkmcnt(15)"]
    carry = []; bg = k1_setup3()
    for st in range(8):
        ph, carry = gemm_phase(st, carry, bg)
        ph = resolve_waits(pre, ph)
        n, over, bad = gap_report(ph)
        if over > 1 or bad: print(f"; gemm phase {st}: gaps {n} over {over} bad {bad}", file=sys.stderr)
        pre += ph
        if OPT['stamp'] == 2 and st < 7: pre += stamp(SXA+6 if st < 6 else TM)
    pre += stamp(TM)
    pre += resolve_waits(pre, k1_post_gemm())
    pre += stamp(T2+24)
    eA, eC = attn_entry()
    eC += stamp(T2+24)
    d0 = [f"s_mov_b32 s{sCNT}, 0", "K1_D0LOOP:", f_load(vD0, aD0, 0), f"s_add_u32 s{sCNT}, s{sCNT}, 1", "s_sleep 4", "s_waitcnt vmcnt(0)", f_cmp(vD0),
          f"s_cmp_gt_u32 s{sCNT}, {SPIN}", "s_cbranch_scc1 K1_D0OK", "s_cbranch_vccnz K1_D0LOOP", "s_branch K1_D0OK",
          "K1_NPOLL:", f"s_mov_b32 s{sCNT}, 0", "K1_NLOOP:", f"buffer_load_dword v{TM+1}, off, s[{SDBG}:{SDBG+3}], 0 sc1", f"s_add_u32 s{sCNT}, s{sCNT}, 1",
          "s_sleep 4", "s_waitcnt vmcnt(0)", f"v_cmp_eq_u32 vcc, 0, v{TM+1}", f"s_cmp_gt_u32 s{sCNT}, {SPIN}", "s_cbranch_scc1 K1_NOK", "s_cbranch_vccnz K1_NLOOP", "s_branch K1_NOK"]
    body = []
    for jm in range(4):
        for u in range(4): body += attn_step(jm, u)
    n, over, bad = gap_report(body)
    print(f"; attn loop: gaps {n} over {over} bad {bad}", file=sys.stderr)
    bB, bC = block_b(), block_c()
    last = attn_last()
    chk = stamp(T2+24+6, True) + attn_check()
    chk = resolve_waits(last, chk)
    sP, sB_, sQ = attn_slow()
    post = stamp(98)
    p2t, p2t2, p2c = phase2(o_stream(3), last + chk + post)
    lA, lD, lB = block_l()
    if OPT['stamp'] == 4:
        body += ["s_cselect_b32 s93, 1, 0", "s_memtime s[94:95]", "s_memrealtime s[96:97]", "s_waitcnt lgkmcnt(0)", "v_mov_b32 v88, s94", "v_mov_b32 v89, s96",
                 f"s_lshl_b32 s6, s{sCNT}, 3", f"s_add_u32 s6, s6, s{sSTo}", f"buffer_store_dwordx2 v[88:89], off, s[{SST}:{SST+3}], s6 offset:160", "s_cmp_lg_u32 s93, 0"]
    m0_ = body[0]; body = body[1:] + [m0_]; eC = eC + [m0_]
    cut = body.index("s_cbranch_scc1 K1_LAST") + 1
    br = ["s_cbranch_scc1 K1_LOOP"]
    mid = [f"s_cmp_eq_u32 s{sCNT}, 7", "s_cbranch_scc1 K1_BLKL", f"s_cmp_eq_u32 s{sCNT}, {TC}", "s_cbranch_scc1 K1_BLKC"]
    J = ["s_branch K1_LOOP"]
    errs = check(pre + eC + body + br + mid + bB + J + body + br + mid + bC + J + body + br + mid[:2] + lA + lD + lB + J + body[:cut] + last + chk + post + p2t, 'k1')
    errs += check(body[:cut] + last + chk + sP + sB_ + ["s_cbranch_scc1 X"] + sB_ + ["s_cbranch_scc1 X"] + sQ + ["s_branch X"] + eA + eC + body + br + mid[:2] + lA + lB + J + body[:cut] + last + chk + post + p2t2, 'k1slow')
    assert not errs
    return (pre + ["K1_HAVEMAX:"] + eC + [".p2align 6", "K1_LOOP:"] + body + br + mid + bB + J
            + ["K1_BLKC:"] + bC + J + ["K1_BLKL:"] + lA + ["K1_D1POLL:"] + lD + ["K1_D1OK:"] + lB + J
            + ["K1_SLOW:"] + sP + ["K1_SLOWLOOP:"] + sB_ + ["s_cbranch_scc1 K1_SLOWLOOP"] + sQ + eA + ["s_branch K1_HAVEMAX"] + ["K1_D0POLL:"] + d0
            + ["K1_LAST:"] + last + chk + post + p2c + ["K1_END:", "s_endpgm"])

def phase2(epi, before):
    NH = 6; NST = 22
    FR = 128
    SA = 0; DA = 128
    T = 88; STV = 98
    PKD = 192; RXD = 216; PKS = 192; RXS = 216
    sAo, sWo = sX0, sX1
    SIGI, POLLI = OPT['sigi'], OPT['polli']
    nk = lambda st: 1 if st == 4 else 2
    slot = {}
    for st in range(4): slot[('w', st)] = st; slot[('a', st)] = 4 + st
    slot[('w', 4)] = 8; slot[('a', 4)] = 9
    free = []
    nxt = {'w': 5, 'a': 5}
    def dma(kind):
        st = nxt[kind]; nxt[kind] += 1
        sl = free.pop(0); slot[(kind, st)] = sl
        X = [f"s_add_u32 m0, s{sMKV}, {sl*16384}"]
        if kind == 'a':
            for i in range(4): X.append(f"buffer_load_dwordx4 v{aL16}, s[{P2ACT}:{P2ACT+3}], s{sAo} offen offset:{1024*i} sc1 lds ; @{kind}{st}")
            X.append(f"s_add_u32 s{sAo}, s{sAo}, 8192" if st != NH - 1 else f"s_lshl_b32 s{sAo}, s{sSP}, 17")
        else:
            sr = SWD if st < NH else SWO
            for i in range(4): X.append(f"buffer_load_dwordx4 v{aKD+i}, s[{sr}:{sr+3}], s{sWo} offen offset:{1024*i} lds ; @{kind}{st}")
            X.append(f"s_add_u32 s{sWo}, s{sWo}, 65536" if st != NH - 1 else f"s_lshl_b32 s{sWo}, s{sSP}, 20")
        return X
    done = list(before)
    S = ["s_mov_b64 exec, 1", f"buffer_store_dword v{T}, off, s[{SWS}:{SWS+3}], s{sW2S} offset:8 sc1", "s_mov_b64 exec, -1"]
    FLD = f_load(vFL, aFL, 2)
    P = [FLD, f"s_add_u32 s{sCNT}, s{sCNT}, 1", "s_waitcnt vmcnt(0)",
         f_cmp(vFL), f"s_cmp_gt_u32 s{sCNT}, {SPIN}", "s_cbranch_scc1 P2_GO", "s_cbranch_vccnz P2_POLL"]
    q = list(epi); e = q.append
    q += srd(P2X, sXP, sXP+1, 2048*1024) + srd(P2OUT, sOUT, sOUT+1, 2048*1024)
    e(f"v_and_b32 v{T+1}, 15, v{vLANE}"); e(f"v_lshrrev_b32 v{T+2}, 4, v{vLANE}"); e(f"v_lshlrev_b32 v{T+1}, 10, v{T+1}"); e(f"v_lshl_add_u32 v{aXO}, v{T+2}, 3, v{T+1}")
    part_soff(e, 49, False)
    e(f"v_mov_b32 v{T}, s{sNON}")
    L = []; e = L.append
    e(f"s_add_u32 s{sAo}, s{sKV2}, 4096"); e(f"s_add_u32 s{sWo}, s{sKV}, 32768")
    def reads(st):
        X = []
        for kk in range(nk(st)):
            b = FR + (st & 1)*64 + kk*32
            hw, lw = divmod(slot[('w', st)]*16384 + kk*8192, 65536)
            ha, la = divmod(slot[('a', st)]*16384 + kk*8192, 65536)
            for i in range(4):
                if not (NH <= st < NH + OPT['nrs']):
                    for hh in range(2): X.append(f"ds_read_b64_tr_b16 {a(b+4*i+2*hh,2)}, v{aW+4*hw+i} offset:{lw+2048*hh}")
                X.append(f"ds_read_b128 {a(b+16+4*i,4)}, v{aA+4*ha+i} offset:{la}")
        return X
    def mfmas(st):
        X = []
        b = FR + (st & 1)*64; acc = DA if st < NH else SA
        for qt in (1, 2, 3, 0):
            for ct in range(4):
                d = v(acc+(ct*4+qt)*4, 4)
                for kk in range(nk(st)):
                    wf = (st-NH)*32 + kk*16 + 4*ct if NH <= st < NH + OPT['nrs'] else b+kk*32+4*ct
                    X.append(f"{MF} {d}, {a(wf,4)}, {a(b+kk*32+16+4*qt,4)}, {'0' if (st in (0, NH) and kk == 0) else d}")
        return X
    def pack(acc, pk, i):
        X = []
        for ct in range(4):
            x = acc + (ct*4+i)*4; d = pk + (i-1)*8 + 2*ct
            X += [f"v_cvt_pk_bf16_f32 v{d}, v{x}, v{x+1}", f"v_cvt_pk_bf16_f32 v{d+1}, v{x+2}, v{x+3}"]
        return X
    def pst(pk, i, half): return [f"buffer_store_dwordx4 {v(pk+(i-1)*8+4*j,4)}, v{aL16}, s[{P2PART}:{P2PART+3}], s{sPS+i-1} offen offset:{2048*half+1024*j} sc1" for j in range(2)]
    rD = lambda i, k: RXD + i*8 + k
    rS = lambda i, k: SA + ((k >> 2)*4 + i + 1)*4 + (k & 3)
    def pld(rx, half): return [f"buffer_load_dwordx4 {v(rx(i, 4*j),4)}, v{aL16}, s[{P2PART}:{P2PART+3}], s{49+i} offen offset:{2048*half+1024*j} sc1" for i in range(3) for j in range(2)]
    def pchk(rx):
        R = [rx(i, k) for i in range(3) for k in range(8)]
        X = [f"v_max3_u32 v{T}, v{R[0]}, v{R[1]}, v{R[2]}", f"v_max3_u32 v{T+1}, v{R[3]}, v{R[4]}, v{R[5]}"]
        for k in range(6, 24, 2): X.append(f"v_max3_u32 v{T+(k//2)%2}, v{T+(k//2)%2}, v{R[k]}, v{R[k+1]}")
        return X + [f"v_max_u32 v{T}, v{T}, v{T+1}", f"v_cmp_eq_u32 vcc, -1, v{T}"]
    segs = []
    NRS = OPT['nrs']
    staged = list(range(NH, NH + NRS)); half = (NRS + 1) // 2
    def stage_reads(st):
        X = []
        for kk in range(2):
            hw, lw = divmod(slot[('w', st)]*16384 + kk*8192, 65536)
            for i in range(4):
                for hh in range(2): X.append(f"ds_read_b64_tr_b16 {a((st-NH)*32+kk*16+4*i+2*hh,2)}, v{aW+4*hw+i} offset:{lw+2048*hh}")
        return X
    def body(mf, rd, dm, last=False):
        nonlocal q
        n = len(mf); gaps = [[] for _ in mf]
        ev = list(range(0, n - 6, 2)); od = list(range(1, n, 2))
        per = -(-len(rd) // len(ev)) if rd else 0
        per = max(per, 2)
        for k, x in enumerate(rd): gaps[ev[k // per]].append(x)
        nv = sum(x.startswith('buffer') for x in dm); ng = sum('m0,' in x for x in dm)
        roomy = nv + ng <= len(od)
        pv = 1 if roomy else -(-nv // len(od))
        gi = 0; cnt = 0
        for x in dm:
            if x.startswith('buffer'):
                gaps[od[gi]].append(x); cnt += 1
                if cnt == pv: gi = min(gi + 1, len(od) - 1); cnt = 0
            else:
                gaps[od[gi]].append(x)
                if 'm0,' in x:
                    if roomy: gi += 1
                    else: gaps[od[gi]].append("s_nop 0")
        if last:
            for i in (1, 2):
                for k, x in enumerate(pack(last[0], last[1], i)): gaps[8*i + 4 + k//2].append(x)
                if last[2] is not None:
                    for k, x in enumerate(pst(last[1], i, last[2])): gaps[8*i + 8 + k].insert(0, x)
        if q: fill(gaps, q, 0, OPT['ecap'])
        return weave(mf, gaps)
    def sync(tags):
        n = vm_after(done + L, tags)
        return ["s_waitcnt " + (f"vmcnt({n}) " if n is not None else "") + "lgkmcnt(0)", "s_barrier"]
    L += reads(0)
    while Ins(q[0]).kind != 'vst': L.append(q.pop(0))
    for st in range(1, NH + 1):
        if st == SIGI: L += q; q = []
        sr = staged[:half] if st == NH - 1 else staged[half:] if st == NH else []
        L += sync(([f"a{st}", f"w{st}"] if st < NH else []) + (['o'] if st == SIGI else []) + [f"w{s_}" for s_ in sr])
        free += [slot[('w', st-1)], slot[('a', st-1)]]
        if st == NH: free += [slot[('w', s_)] for s_ in staged[:half]]
        if st == SIGI:
            L += [f"s_cmp_lg_u32 s{sW}, 0", "s_cbranch_scc1 P2_NOSIG"]
            segs.append(L); done += L; L = stamp(STV); e = L.append
        rd = (reads(st) if st < NH else []) + sum((stage_reads(s_) for s_ in sr), [])
        dm = []
        if st == 1: L += with_m0_nops(dma('w') + dma('a'))
        elif st >= OPT['dstart']:
            while len(free) > 0 and nxt['w'] < NH + OPT['wpre'] and len(dm) < OPT['dmax']*6: dm += dma('w')
        if st == NH: dm = [FLD + " ; @f"] + dm
        assert not (q and sr)
        L += body(mfmas(st - 1), rd, dm, last=(DA, PKD, None) if st == NH else False)
    L += pack(DA, PKD, 3)
    L += sync(['f'])
    free += [slot[('w', s_)] for s_ in staged[half:]]
    dst = pst(PKD, 1, 1) + pst(PKD, 2, 1) + pst(PKD, 3, 1)
    L += [f_cmp(vFL), f"s_mov_b32 s{sCNT}, 0", f"v_mov_b32 v{T+1}, v{aL16}", "s_cbranch_vccz P2_GO"]
    segs.append(L); done += L
    segs.append(dst + [f"v_mov_b32 v{T+1}, {OOB}"])
    L = stamp(STV); e = L.append
    for _ in range(OPT['a0']): L += with_m0_nops(dma('a'))
    dst = [x.replace(f"v{aL16},", f"v{T+1},") for x in dst]
    for st in range(NH, NST + 1):
        dm = []; rd = []
        if st < NST:
            L += sync([f"a{st}", f"w{st}"])
            if st > NH:
                free += [slot[('a', st-1)]] + ([slot[('w', st-1)]] if st-1 not in staged else [])
            rd = reads(st)
            def more():
                if st == NH: return len(dm) < 6*OPT['a1']
                if min(nxt['a'], nxt['w']) <= st + OPT['la']: return True
                return len(dm) < 6*OPT['gmax'] and (nxt['a'] + nxt['w'] - base) * 100 < OPT['pace'] * (st - NH)
            if st == NH + 1: base = nxt['a'] + nxt['w']
            while free and (nxt['a'] < NST or nxt['w'] < NST) and more():
                k = 'a' if (nxt['a'] <= nxt['w'] + OPT['alead'] or nxt['w'] >= NST) and nxt['a'] < NST else 'w'
                dm += dma(k)
            if st >= OPT['dst0'] and dst: dm += dst[:2]; dst = dst[2:]
            if st == NST - 3: dm += [f"buffer_load_dwordx2 {v(XR+2*ct,2)}, v{aXO}, s[{P2X}:{P2X+3}], s{sXO} offen offset:{32*ct}" for ct in range(4)]
            if st == NST - 2: dm += pld(rD, 1)
        else:
            L += ["s_waitcnt lgkmcnt(0)"]
        if (OPT['stamp'] == 5 and st % 2 == 0) or (OPT['stamp'] == 6 and st in (10, 14, 17, 19, 21)): L += stamp(STV)
        if st == NH: L += rd + with_m0_nops(dm)
        else: L += body(mfmas(st - 1), rd, dm, last=(SA, PKS, 0) if st == NST else False)
    L += stamp(STV)
    L += pack(SA, PKS, 3) + pst(PKS, 3, 0)
    if OPT['searly'] == 1: L += pld(rS, 0)
    e(f"s_mov_b32 s{sCNT}, 0"); e(f"s_waitcnt vmcnt({12 if OPT['searly'] == 1 else 6})")
    L += pchk(rD); e("s_cbranch_vccz P2_DOK")
    XD = pld(rD, 1) + [f"s_add_u32 s{sCNT}, s{sCNT}, 1", "s_waitcnt vmcnt(0)"] + pchk(rD) + [f"s_cmp_gt_u32 s{sCNT}, {SPIN}", "s_cbranch_scc1 P2_DOK", "s_cbranch_vccnz P2_DPOLL"]
    M = []; e = M.append
    def accum(acc, rx, ct):
        for i in range(3):
            for h in range(2):
                p = rx(i, 2*ct + h)
                e(f"v_lshlrev_b32 v{T+2*h}, 16, v{p}"); e(f"v_and_b32 v{T+2*h+1}, s{sMASK}, v{p}")
            for h in range(2): e(f"v_pk_add_f32 {v(acc+ct*16+2*h,2)}, {v(acc+ct*16+2*h,2)}, {v(T+2*h,2)}")
    for ct in range(4): accum(DA, rD, ct)
    light = OPT['searly'] == 2
    LP = [f"buffer_load_dword v{T+4+i}, off, s[{P2PART}:{P2PART+3}], s{49+i} offset:2044 sc1" for i in range(3)]
    LC = [f"v_max3_u32 v{T+4}, v{T+4}, v{T+5}, v{T+6}", f"v_cmp_eq_u32 vcc, -1, v{T+4}"]
    if not OPT['searly']: M += pld(rS, 0)
    for ct in range(4):
        D_ = DA + ct*16; T_ = D_ + 4; X_ = D_ + 8
        for r in range(4): e(f"v_mul_f32 v{T_+r}, {f2u(-LOG2E)}, v{D_+r}")
        for r in range(4): e(f"v_exp_f32 v{T_+r}, v{T_+r}")
        e(f"v_lshlrev_b32 v{X_}, 16, v{XR+2*ct}"); e(f"v_and_b32 v{X_+1}, s{sMASK}, v{XR+2*ct}")
        for r in range(4): e(f"v_add_f32 v{T_+r}, 1.0, v{T_+r}")
        for r in range(4): e(f"v_rcp_f32 v{T_+r}, v{T_+r}")
        e(f"v_lshlrev_b32 v{X_+2}, 16, v{XR+1+2*ct}"); e(f"v_and_b32 v{X_+3}, s{sMASK}, v{XR+1+2*ct}")
        for h in (0, 2): e(f"v_pk_mul_f32 {v(T_+h,2)}, {v(T_+h,2)}, {v(D_+h,2)}")
    e(f"s_mov_b32 s{sCNT}, 0")
    if light:
        M += ["P2_LPOLL:"] + LP + [f"s_add_u32 s{sCNT}, s{sCNT}, 1"] + ([f"s_sleep {OPT['slp']}"] if OPT['slp'] else []) + ["s_waitcnt vmcnt(0)"] + LC
        M += [f"s_cmp_gt_u32 s{sCNT}, {SPIN}", "s_cbranch_scc1 P2_SPOLL", "s_cbranch_vccnz P2_LPOLL"]
    else:
        e("s_waitcnt vmcnt(0)")
        M += pchk(rS); e("s_cbranch_vccz P2_FIN")
    XS = pld(rS, 0) + [f"s_add_u32 s{sCNT}, s{sCNT}, 1", "s_waitcnt vmcnt(0)"] + pchk(rS) + [f"s_cmp_gt_u32 s{sCNT}, {SPIN}", "s_cbranch_scc1 P2_FIN", "s_cbranch_vccnz P2_SPOLL"]
    F = []; e = F.append
    F += stamp(STV)
    for ct in range(4):
        accum(SA, rS, ct)
        S_ = SA + ct*16; T_ = DA + ct*16 + 4; X_ = T_ + 4
        for h in (0, 2): e(f"v_pk_fma_f32 {v(X_+h,2)}, {v(S_+h,2)}, {v(T_+h,2)}, {v(X_+h,2)}")
        e(f"v_cvt_pk_bf16_f32 v{S_}, v{X_}, v{X_+1}"); e(f"v_cvt_pk_bf16_f32 v{S_+1}, v{X_+2}, v{X_+3}")
        e(f"buffer_store_dwordx2 {v(S_,2)}, v{aXO}, s[{P2OUT}:{P2OUT+3}], s{sXO} offen offset:{32*ct}")
    if OPT['stamp']: F += ["s_waitcnt vmcnt(0)"] + stamp(STV, True)
    assert len(segs) == 3
    trace = segs[0] + segs[1] + L + M + (XS if light else []) + F
    trace2 = segs[0] + S + segs[1] + segs[2] + P + P + L + XD + M + XS + F
    code = (segs[0] + S + ["P2_NOSIG:"] + segs[1] + segs[2] + ["P2_POLL:"] + P + ["P2_GO:"] + L
            + ["P2_DPOLL:"] + XD + ["P2_DOK:"] + M + ["P2_SPOLL:"] + XS + ["P2_FIN:"] + F)
    return trace, trace2, code

def kd(name, nv, acc, ns=102):
    return f""".amdhsa_kernel {name}
  .amdhsa_next_free_vgpr {nv}
  .amdhsa_next_free_sgpr {ns}
  .amdhsa_accum_offset {acc}
  .amdhsa_group_segment_fixed_size 0
  .amdhsa_kernarg_size 96
  .amdhsa_user_sgpr_count 2
  .amdhsa_user_sgpr_kernarg_segment_ptr 1
  .amdhsa_system_sgpr_workgroup_id_x 1
.end_amdhsa_kernel
"""
def fmt(L): return "\n".join(x if (x.endswith(':') or x.startswith('.')) else "    " + x for x in L)

NAME = "recurrent_scan__gqa_block_cached__glu_gated_glu__prompt_kernel"
HEAD = f"""; One persistent launch (256 workgroups, one per CU): LayerNorm + Q-projection + GLU-up, attention, out/down projection + gating.
; Kernarg layout (96 bytes): 0 A_x, 8 A_k_cache, 16 A_v_cache, 24 A_wq, 32 A_wo, 40 B_x, 48 B_w_gate, 56 B_w_up,
; @launch grid=(256,1,1) block=(256,1,1) lds=163840
.amdgcn_target "amdgcn-amd-amdhsa--gfx950"
.text
"""
def kern(name, L):
    return f".globl {name}\n.p2align 8\n.type {name},@function\n{name}:\n" + fmt(L) + "\n"
src = HEAD + kern(NAME, k1())
src += '.section .rodata,"a"\n.p2align 6\n' + kd(NAME, 512, 256)
open(sys.argv[1], "w").write(src)
```

```python
import sys, os, struct
sys.path.insert(0, os.path.dirname(os.path.abspath(__file__)))
from asmlib import *

OPT = dict(stamp=0, wgap=4, thr=40, cpf=1, rot=8, stpos=0, barg0=39, pois=45, sched=4, sq=1, opk=1, lcap=4, xw=60, xg=30, kvs=0, d0g=70, pstep=12, ecap=40, sigi=4, polli=6, dstart=2, searly=2, a0=4, a1=1, gmax=2, dst0=9, pace=175, aoff=0, poff=24, base=0, twice=0, wpf=1, spread=1, ea=1, xearly=0, fast0=1, xg0=56, pzq=1, lpz=1, kvpf=0, echo=0, la=3, slp=0, dmax=2, fearly=1, dlate=5, kvsc=1, wpre=8, nrs=4, alead=0)
for arg in sys.argv[2:]:
    k_, v_ = arg.split('='); OPT[k_] = int(v_)

MF = "v_mfma_f32_16x16x32_bf16"
TB, TC = 1, 5
NKS = 171
ACT_RB = NKS * 4096
WT_OFF = 24 << 20
FLAG_OFF = 31 << 20
PART_OFF = 32 << 20
STAMP_OFF = 64 << 20
STAT_OFF = 30 << 20
CS_OFF = STAT_OFF + 65536
OOB = '0x40000000'
BASE = OPT['base'] << 20
ACT_OFF = BASE + (OPT['aoff'] << 10)
PART_OFF = BASE + (OPT['poff'] << 20)
STAT_OFF = BASE + (22 << 20); CS_OFF = STAT_OFF + 65536; FLAG_OFF = BASE + (23 << 20)
LOG2E = 1.4426950408889634
SCALE = LOG2E / (128 ** 0.5)
def f2u(x): return "0x%08x" % struct.unpack('<I', struct.pack('<f', x))[0]

sW, sHEAD, sQB = 3, 4, 5
SK, SV, SX, SWQ, SGU, SACT, SWO, SWD, SWT = 8, 12, 16, 20, 24, 28, 32, 36, 40
sX0, sX1, sWQo, sGUo, sKV = 44, 45, 46, 47, 48
sMX, sMWQ, sMGU, sMKV, sMW2 = 49, 50, 51, 52, 53
sCNT, sMASK, sT0, sT1, sT2, sPASS = 54, 55, 56, 57, 58, 59
sH0 = 60
sW2S = 63
SWS = 88
SDBG = 84
SST = SWS; sSTo = 92
sXP, sA2, sOUT = 64, 66, 82
sPS = 40
sPZ, sPZD = 46, 47
sNON = 62
sKV2 = 43; sINC2 = 58; sPFo = 68
sP2, sCSo, sSTAo = 70, 71, 93
sSP, sSZ2, sXO, sINC, sFQB = 74, 75, 76, 77, 78
P2ACT, P2WT, P2X, P2OUT = 12, 8, 16, 20
P2PART = SFLAG = SWS
sKVB = 98
CHK_LDS = 8*16384 + 8192
def srd(d, lo, hi, size):
    return [f"s_mov_b32 s{d}, s{lo}", f"s_mov_b32 s{d+1}, s{hi}", f"s_mov_b32 s{d+2}, {size}", f"s_mov_b32 s{d+3}, 0x00020000"]

stamp_n = [0]
echo_n = [0]
def stamp(tmpv, force=False):
    if OPT['echo']:
        echo_n[0] += 1
        return ["s_memrealtime s[94:95]", "s_waitcnt lgkmcnt(0)", "s_mov_b32 s97, s94"] if echo_n[0] == OPT['echo'] else []
    if not OPT['stamp'] or (OPT['stamp'] == 9 and not force): return []
    n = stamp_n[0]; stamp_n[0] += 1
    return ["s_memtime s[94:95]", "s_memrealtime s[96:97]", "s_waitcnt lgkmcnt(0)",
            f"v_mov_b32 v{tmpv}, s94", f"v_mov_b32 v{tmpv+1}, s96", "s_nop 1",
            f"buffer_store_dwordx2 v[{tmpv}:{tmpv+1}], off, s[{SST}:{SST+3}], s{sSTo} offset:{n*8}", "s_nop 1"]

def units(xs): return sum(UNITS[Ins(x).kind] for x in xs)
class Gaps:
    def __init__(self, n, cap=2):
        self.pre = [[] for _ in range(n)]
        self.post = [[] for _ in range(n)]
        self.cap = cap; self.n = n
    def used(self, g): return units(self.pre[g] + self.post[g])
    def put(self, g, text, force=False):
        k = Ins(text).kind
        assert force or self.used(g) + UNITS[k] <= self.cap, (g, text, self.pre[g], self.post[g])
        (self.post if k in ('valu', 'trans') else self.pre)[g].append(text)
    def fit(self, g0, text, g1=None):
        k = UNITS[Ins(text).kind]
        for g in range(g0, self.n if g1 is None else g1):
            if self.used(g) + k <= self.cap:
                self.put(g, text); return g
        return None
    def stream(self, g, q, g1=None):
        g1 = self.n if g1 is None else g1
        while q:
            k = 1
            while k < len(q) and q[k].split()[0] in ('s_addc_u32', 's_cselect_b32', 's_cselect_b64'): k += 1
            grp = q[:k]; u = units(grp)
            mem = Ins(grp[0]).kind in ('dsr', 'dsw', 'vld', 'vst', 'dma')
            while g < g1 and not ((self.used(g) + u <= self.cap or (u > self.cap and self.used(g) == 0))
                                  and not (mem and any(Ins(x).kind in ('valu', 'trans') for x in self.post[g]))): g += 1
            if g >= g1: return g
            self.post[g] += grp; del q[:k]
        return g
    def out(self): return [p + q for p, q in zip(self.pre, self.post)]

def vm_after(trace, tags):
    ops = [x for x in trace if Ins(x).kind in ('dma', 'vld', 'vst')]
    idx = [i for i, x in enumerate(ops) if any(x.endswith('@' + t) for t in tags)]
    return None if not idx else len(ops) - 1 - max(idx)

XF = 0
SXA = 64
TM = 80; aWQR = 88; ONES = 96
aXD = 100; aWQD = 104; aGUD = 108; aXR = 112; aWQC = 114; aGUR = 116; aGUC = 117
aL16 = 118; aCS = 112; aKD = 120; aVD = 124; vLANE = 126; aGUR2 = 127; vSP = 127
vD1 = 114; vIDX = 119
QACC = 128
GUA = 0; CSA = 96; WF = 128
def EFr(tl, ks): return (112 if tl < 2 else 224) + (tl*2+ks)*4
def gua(zt, qt): return GUA + (qt*6+zt)*4
QF = 0; KF = 128; SB = 192; PB = 208; NEGM = 224; LACC = 240
aKR = 100; aVR = 104; aW2R = 112; T2 = 64
OACC = 0; VF = 128
aPF = 114; vPF = 115
aA = 64; aW = 76; aXO = 112; XR = 100; aFL = 116; vFL = 117

def k1_setup():
    L = []; e = L.append
    e("s_cmp_ge_u32 s2, 256"); e("s_cbranch_scc1 K1_END")
    if OPT['stamp']: e("s_memtime s[98:99]"); e("s_memrealtime s[100:101]")
    if OPT['echo']: e("s_memrealtime s[96:97]")
    e("s_load_dwordx16 s[64:79], s[0:1], 0"); e("s_load_dwordx8 s[80:87], s[0:1], 64")
    l = vLANE
    e("v_lshrrev_b32 v1, 6, v0"); e(f"v_and_b32 v{l}, 63, v0"); e(f"v_readfirstlane_b32 s{sW}, v1")
    e("s_and_b32 s6, s2, 7"); e("s_lshr_b32 s7, s2, 3")
    e(f"s_lshl_b32 s{sHEAD}, s6, 2"); e(f"s_and_b32 s{sT0}, s7, 3"); e(f"s_add_u32 s{sHEAD}, s{sHEAD}, s{sT0}")
    e(f"s_lshr_b32 s{sQB}, s7, 2")
    if OPT['cpf']:
        e(f"s_getpc_b64 s[{SWO}:{SWO+1}]"); e("KPC:"); e(f"s_mov_b32 s{SWO+2}, K1_END-KPC"); e(f"s_mov_b32 s{SWO+3}, 0x00020000")
        e(f"s_lshl_b32 s{sT0}, s7, 2"); e(f"s_add_u32 s{sT0}, s{sT0}, s{sW}"); e(f"s_lshl_b32 s{sT0}, s{sT0}, 7")
        e(f"v_lshlrev_b32 v12, 14, v{l}")
        e(f"buffer_load_dword v16, v12, s[{SWO}:{SWO+3}], s{sT0} offen")
    e(f"v_and_b32 v1, 15, v{l}"); e(f"v_lshrrev_b32 v2, 4, v{l}"); e("v_lshrrev_b32 v3, 2, v1"); e(f"v_and_b32 v4, 3, v{l}")
    e(f"v_lshrrev_b32 v5, 3, v{l}"); e(f"v_and_b32 v6, 7, v{l}"); e(f"v_lshlrev_b32 v{aL16}, 4, v{l}")
    e("v_lshlrev_b32 v7, 1, v2"); e("v_xor_b32 v7, v7, v1")
    e(f"s_lshl_b32 s6, s{sW}, 4"); e("v_add_u32 v8, s6, v2"); e("v_lshlrev_b32 v9, 13, v8")
    for i in range(4):
        e(f"v_xor_b32 v10, {8*(i>>1)}, v7"); e("v_lshl_add_u32 v10, v10, 4, v9"); e(f"v_add_u32 v{aWQD+i}, {31744*i}, v10")
    e("v_lshrrev_b32 v7, 1, v5"); e("v_xor_b32 v7, v7, v6"); e("v_lshlrev_b32 v8, 10, v5")
    for i in range(4):
        e(f"v_xor_b32 v9, {4*(i&1)}, v7"); e("v_lshl_add_u32 v9, v9, 4, v8"); e(f"v_add_u32 v{aXD+i}, {7168*i}, v9")
    e(f"s_lshl_b32 s{sMX}, s{sW}, 13"); e(f"s_lshl_b32 s{sMKV}, s{sW}, 12"); e(f"s_add_u32 s{sMWQ}, s{sMKV}, 65536")
    e(f"s_add_u32 s{sMGU}, s{sMKV}, 81920")
    R = OPT['rot']
    e(f"s_and_b32 s6, s{sQB}, {R-1}"); e(f"s_mul_i32 s6, s6, {8//R}")
    e(f"s_lshl_b32 s{sX0}, s6, 7"); e(f"s_add_u32 s{sX1}, s{sX0}, 32768"); e(f"s_lshl_b32 s{sWQo}, s6, 19"); e(f"s_mul_i32 s{sGUo}, s6, {64*2752}")
    e(f"s_lshl_b32 s{sT1}, s{sQB}, 5"); e(f"s_add_u32 s{sT1}, s{sT1}, s{sHEAD}"); e(f"s_lshl_b32 s{sT1}, s{sT1}, 2"); e(f"s_add_u32 s{sT1}, s{sT1}, s{sW}")
    e(f"s_lshl_b32 s{sT2}, s{sT1}, 11")
    e("s_waitcnt lgkmcnt(0)")
    e(f"s_lshl_b32 s6, s{sHEAD}, 8"); e(f"s_add_u32 s{SWQ}, s70, s6"); e(f"s_addc_u32 s{SWQ+1}, s71, 0")
    e(f"s_sub_u32 s{SWQ+2}, {512*8192}, s6"); e(f"s_mov_b32 s{SWQ+3}, 0x00020000")
    L += with_m0_nops(dma_w(0, 0)[:5])
    e(f"s_lshl_b32 s6, s{sQB}, 2"); e(f"s_add_u32 s6, s6, s{sW}"); e("s_lshl_b32 s7, s6, 16")
    e(f"s_add_u32 s{SX}, s64, s7"); e(f"s_addc_u32 s{SX+1}, s65, 0"); e(f"s_mov_b32 s{SX+2}, 65536"); e(f"s_mov_b32 s{SX+3}, 0x00020000")
    L += with_m0_nops(dma_x(0, 0))
    e(f"s_and_b32 s6, s{sW}, 1"); e(f"s_mul_i32 s6, s6, {32*2752}"); e("s_movk_i32 s7, 2752")
    for par in range(2):
        e(f"v_subrev_u32 v9, {8*par}, v{l}"); e("v_cmp_gt_u32 vcc, 48, v9")
        e("v_mul_u32_u24 v10, 171, v9"); e("v_lshrrev_b32 v10, 10, v10")
        e("v_mul_u32_u24 v11, 6, v10"); e("v_sub_u32 v11, v9, v11"); e("v_lshlrev_b32 v11, 4, v11")
        e("v_mad_u32_u24 v11, v10, s7, v11"); e("v_add_u32 v11, s6, v11"); e(f"v_mov_b32 v10, {OOB}")
        e("v_cndmask_b32 v11, v10, v11, vcc")
        for i in (par, par+2): e(f"v_add_u32 v{aGUD+i}, {(8*2752-1024)*i}, v11")
    e(f"s_cmp_ge_u32 s{sW}, 2"); e("s_cselect_b32 s76, s78, s76"); e("s_cselect_b32 s77, s79, s77")
    e(f"s_mul_i32 s6, s{sHEAD}, 96"); e(f"s_add_u32 s{SGU}, s76, s6"); e(f"s_addc_u32 s{SGU+1}, s77, 0")
    e(f"s_sub_u32 s{SGU+2}, {512*2752}, s6"); e(f"s_mov_b32 s{SGU+3}, 0x00020000")
    L += with_m0_nops(dma_w(0, 0)[5:])
    L += srd(SWD, 64, 65, 2048*1024)
    if OPT['stpos'] == 0 and not OPT['fast0']: L += st_loads()
    return L
def st_loads():
    b = 64 if OPT['fast0'] else 40
    return [f"buffer_load_dwordx4 {v(b,4)}, v{aL16}, s[{SWD}:{SWD+3}], s{sT2} offen", f"buffer_load_dwordx4 {v(b+4,4)}, v{aL16}, s[{SWD}:{SWD+3}], s{sT2} offen offset:1024 ; @st"]
def stats_stream():
    L = []; e = L.append
    for rw in range(2):
        s_, q_ = 72+2*rw, 73+2*rw
        for k in range(4):
            x = 64+4*rw+k; t = 76 + 2*(k & 1)
            e(f"v_lshlrev_b32 v{t}, 16, v{x}"); e(f"v_and_b32 v{t+1}, 0xffff0000, v{x}")
            if k == 0: e(f"v_add_f32 v{s_}, v{t}, v{t+1}"); e(f"v_mul_f32 v{q_}, v{t}, v{t}")
            else: e(f"v_add_f32 v{s_}, v{s_}, v{t}"); e(f"v_fmac_f32 v{q_}, v{t}, v{t}"); e(f"v_add_f32 v{s_}, v{s_}, v{t+1}")
            e(f"v_fmac_f32 v{q_}, v{t+1}, v{t+1}")
    for rot in (8, 4, 2, 1):
        for i in range(4): e(f"v_add_f32_dpp v{72+i}, v{72+i}, v{72+i} row_ror:{rot} {DPP}")
    L += xlane_reduce("v_add_f32", [72, 73, 74, 75], [76, 77, 78, 79])
    for rw in range(2):
        s_, q_ = 72+2*rw, 73+2*rw
        e(f"v_mul_f32 v{s_}, {f2u(-1/512)}, v{s_}"); e(f"v_mul_f32 v{q_}, {f2u(1/512)}, v{q_}")
        e(f"v_fma_f32 v{q_}, -v{s_}, v{s_}, v{q_}"); e(f"v_max_f32 v{q_}, 0, v{q_}"); e(f"v_add_f32 v{q_}, {f2u(1e-5)}, v{q_}")
    e(f"buffer_store_dwordx4 v[72:75], v{TM+3}, s[{SWS}:{SWS+3}], s{sT1} offen sc1 ; @pub")
    return L

def dma_w(buf, st):
    o = buf * 32768
    L = [f"s_add_u32 m0, s{sMWQ}, {o}"]
    for i in range(4): L.append(f"buffer_load_dwordx4 v{aWQD+i}, s[{SWQ}:{SWQ+3}], s{sWQo} offen offset:{1024*i} lds ; @W{st}")
    L.append(f"s_add_u32 m0, s{sMGU}, {o}")
    for i in range(4): L.append(f"buffer_load_dwordx4 v{aGUD+i}, s[{SGU}:{SGU+3}], s{sGUo} offen offset:{1024*i} lds ; @W{st}")
    L += [f"s_add_u32 s{sWQo}, s{sWQo}, {64*8192}", f"s_and_b32 s{sWQo}, s{sWQo}, {512*8192-1}",
          f"s_lshr_b32 s{sGUo}, s{sWQo}, 19", f"s_mul_i32 s{sGUo}, s{sGUo}, {64*2752}"]
    return L
def dma_x(buf, st):
    o = buf * 32768
    L = [f"s_add_u32 m0, s{sMX}, {o}"]
    for i in range(4): L.append(f"buffer_load_dwordx4 v{aXD+i}, s[{SX}:{SX+3}], s{sX0} offen offset:{1024*i} lds ; @X{st}")
    L.append(f"s_add_u32 m0, s{sMX}, {o+4096}")
    for i in range(4): L.append(f"buffer_load_dwordx4 v{aXD+i}, s[{SX}:{SX+3}], s{sX1} offen offset:{1024*i} lds ; @X{st}")
    L += [f"s_add_u32 s{sX0}, s{sX0}, 128", f"s_and_b32 s{sX0}, s{sX0}, 1023", f"s_add_u32 s{sX1}, s{sX0}, 32768"]
    return L
def with_m0_nops(L):
    out = []
    for x in L:
        out.append(x)
        if 'm0,' in x: out.append("s_nop 0")
    return out
def kv_dma(slot, tag=""):
    sc = " sc1" if OPT['kvsc'] else ""
    L = [f"s_add_u32 m0, s{sMKV}, {slot*16384}"]
    for i in range(4): L.append(f"buffer_load_dwordx4 v{aKD+i}, s[{SK}:{SK+3}], s{sKV} offen offset:{1024*i}{sc} lds{tag}")
    L.append(f"s_add_u32 m0, s{sMKV}, {65536+slot*16384}")
    for i in range(4): L.append(f"buffer_load_dwordx4 v{aVD+(i&1)}, s[{SV}:{SV+3}], s{sKV2} offen offset:{1024*i}{sc} lds{tag}")
    L.append(f"s_add_u32 s{sKV}, s{sKV}, s{sINC}"); L.append(f"s_add_u32 s{sKV2}, s{sKV2}, s{sINC2}")
    return L
def kv_voff(n, gg, t):
    L = []; e = L.append
    e(f"s_lshl_b32 s6, s{sW}, 4"); e(f"v_add_u32 v{t}, s6, v{gg}"); e(f"v_lshlrev_b32 v{t}, 8, v{t}")
    e(f"v_xor_b32 v{t+1}, v{n}, v{gg}")
    for i in range(4):
        e(f"v_xor_b32 v{t+2}, {4*i}, v{t+1}"); e(f"v_lshl_add_u32 v{aKD+i}, v{t+2}, 4, v{t}")
    e(f"v_lshlrev_b32 v{t+1}, 1, v{gg}"); e(f"v_xor_b32 v{t+1}, v{t+1}, v{n}")
    for i in range(2):
        e(f"v_xor_b32 v{t+2}, {8*i}, v{t+1}"); e(f"v_lshl_add_u32 v{aVD+i}, v{t+2}, 4, v{t}")
    return L

def xlane_reduce(op, xs, ts):
    L = []
    for sw in ("v_permlane32_swap_b32", "v_permlane16_swap_b32"):
        for x, t in zip(xs, ts): L.append(f"v_mov_b32 v{t}, v{x}")
        if len(xs) < 3: L.append("s_nop 1")
        for x, t in zip(xs, ts): L.append(f"{sw} v{x}, v{t}")
        for x, t in zip(xs, ts): L.append(f"{op} v{x}, v{x}, v{t}")
    return L
DPP = "row_mask:0xf bank_mask:0xf"

def k1_setup2(pre):
    L = []; e = L.append; l = vLANE
    e("v_lshrrev_b32 v7, 1, v1"); e("v_lshlrev_b32 v8, 7, v1"); e(f"v_add_u32 v8, s{sMX}, v8")
    for ks in range(2):
        e(f"v_add_u32 v9, {4*ks}, v2"); e("v_xor_b32 v9, v9, v7"); e(f"v_lshl_add_u32 v{aXR+ks}, v9, 4, v8")
    e("v_lshl_add_u32 v7, v2, 3, v3")
    e("v_lshlrev_b32 v8, 8, v7"); e("v_lshl_add_u32 v8, v4, 3, v8"); e("v_add_u32 v8, 65536, v8")
    e("v_and_b32 v10, 1, v2"); e("v_lshl_add_u32 v11, v10, 2, v3")
    for t in range(8):
        e(f"v_xor_b32 v9, {t}, v11"); e(f"v_lshl_add_u32 v{aWQR+t}, v9, 5, v8")
    e(f"s_lshl_b32 s6, s{sW}, 1"); e("v_xor_b32 v9, s6, v11"); e(f"v_lshl_add_u32 v{aWQC}, v9, 5, v8")
    e("v_xor_b32 v9, 1, v9"); e(f"v_lshl_add_u32 v{aWQC+1}, v9, 5, v8")
    e("v_mul_u32_u24 v8, 96, v3"); e("v_lshl_add_u32 v8, v4, 3, v8"); e("v_lshl_add_u32 v8, v2, 10, v8"); e("v_lshl_add_u32 v8, v10, 7, v8")
    e(f"s_and_b32 s6, s{sHEAD}, 1"); e("s_lshl_b32 s7, s6, 5"); e("s_add_u32 s7, s7, 81920"); e(f"v_add_u32 v{aGUR}, s7, v8")
    e("s_lshl_b32 s6, s6, 6"); e(f"s_sub_u32 s6, {81920+64}, s6"); e(f"v_add_u32 v{aGUR2}, s6, v8")
    e(f"s_lshl_b32 s{sT0}, s{sW}, 5"); e(f"s_add_u32 s7, s7, s{sT0}"); e(f"s_cmp_ge_u32 s{sW}, 2"); e("s_cselect_b32 s7, s6, s7"); e(f"v_add_u32 v{aGUC}, s7, v8")
    for i in range(4): e(f"v_mov_b32 v{ONES+i}, 0x3f803f80")
    L += srd(SWS, 86, 87, 1 << 28)
    e(f"s_movk_i32 s{SDBG+2}, 256"); e(f"s_mov_b32 s{SDBG+3}, 0x00020000")
    if OPT['stamp']:
        e("s_lshl_b32 s6, s2, 2"); e(f"s_add_u32 s6, s6, s{sW}"); e(f"s_lshl_b32 s{sSTo}, s6, 8"); e(f"s_add_u32 s{sSTo}, s{sSTo}, {STAMP_OFF}")
    e(f"v_mov_b32 v10, {OOB}"); e("v_lshlrev_b32 v9, 4, v1"); e("v_cmp_eq_u32 vcc, 0, v2"); e(f"v_cmp_eq_u32 s[6:7], 0, v{l}"); e("v_mov_b32 v12, 0")
    e(f"v_cndmask_b32 v{TM}, v10, v9, vcc"); e(f"v_cndmask_b32 v{TM+1}, v10, v12, s[6:7]"); e("v_cmp_eq_u32 vcc, 0, v0")
    for i in range(4): e(f"v_mov_b32 v{48+i}, 0")
    e(f"v_cndmask_b32 v{TM+2}, v10, v12, vcc"); e(f"v_mov_b32 v{TM+3}, v{TM+1}")
    e("s_memrealtime s[6:7]"); e(f"s_lshl_b32 s{sT0}, s2, 8"); e("s_waitcnt lgkmcnt(0)"); e("s_or_b32 s6, s6, 1"); e("v_mov_b32 v13, s6")
    e(f"buffer_store_dword v13, v{TM+2}, s[{SDBG}:{SDBG+3}], s{sT0} offen sc1")
    e(f"s_lshl_b32 s{sW2S}, s2, 7"); e(f"s_add_u32 s{sW2S}, s{sW2S}, {FLAG_OFF}")
    e(f"s_lshl_b32 s{sT1}, s{sT1}, 4"); e(f"s_add_u32 s{sT1}, s{sT1}, {STAT_OFF}")
    e(f"v_and_b32 v{vIDX}, 1, v{vLANE}"); e(f"v_mul_u32_u24 v{vIDX}, 0xaaaa, v{vIDX}"); e(f"v_add_u32 v{vIDX}, 0x4444, v{vIDX}"); e(f"v_lshl_or_b32 v{vIDX}, v{vIDX}, 16, v{vIDX}")
    for i in range(16): e(f"v_accvgpr_write_b32 a{CSA+i}, 0")
    return L

def k1_stats(pre):
    L = []; e = L.append
    e(f"s_waitcnt vmcnt({vm_after(pre, ['st'])})")
    for k in range(4):
        for rw in range(2):
            e(f"v_dot2c_f32_bf16 v{48+2*rw}, v{40+4*rw+k}, v{ONES}"); e(f"v_dot2c_f32_bf16 v{49+2*rw}, v{40+4*rw+k}, v{40+4*rw+k}")
    e("s_nop 1")
    for rot in (8, 4, 2, 1):
        for i in range(4): e(f"v_add_f32_dpp v{48+i}, v{48+i}, v{48+i} row_ror:{rot} {DPP}")
    L += xlane_reduce("v_add_f32", [48, 49, 50, 51], [40, 41, 42, 43])
    for rw in range(2):
        s_, q_ = 48+2*rw, 49+2*rw
        e(f"v_mul_f32 v{s_}, {f2u(-1/512)}, v{s_}"); e(f"v_mul_f32 v{q_}, {f2u(1/512)}, v{q_}")
        e(f"v_fma_f32 v{q_}, -v{s_}, v{s_}, v{q_}"); e(f"v_max_f32 v{q_}, 0, v{q_}"); e(f"v_add_f32 v{q_}, {f2u(1e-5)}, v{q_}")
    e(f"buffer_store_dwordx4 v[48:51], v{TM+1}, s[{SWS}:{SWS+3}], s{sT1} offen sc1 ; @pub")
    return L

def k1_setup3():
    L = []; e = L.append; l = vLANE
    e(f"s_lshl_b32 s6, s{sHEAD}, 19")
    e(f"s_add_u32 s{SK}, s66, s6"); e(f"s_addc_u32 s{SK+1}, s67, 0"); e(f"s_add_u32 s{SV}, s68, s6"); e(f"s_addc_u32 s{SV+1}, s69, 0")
    for d in (SK, SV): e(f"s_mov_b32 s{d+2}, 524288"); e(f"s_mov_b32 s{d+3}, 0x00020000")
    e(f"s_mov_b64 s[{sKVB}:{sKVB+1}], s[{SK}:{SK+1}]"); e(f"s_mov_b64 s[{sKVB+2}:{sKVB+3}], s[{SV}:{SV+1}]")
    for i in range(4): e(f"v_accvgpr_write_b32 a{CSA+i}, -1")
    c2, t = sT0, sCNT
    e("s_and_b32 s6, s2, 7"); e("s_lshr_b32 s7, s2, 3")
    e("s_lshr_b32 s79, s6, 2"); e(f"s_lshl_b32 s{sSP}, s79, 1"); e(f"s_add_u32 s{sSP}, s{sSP}, s6"); e(f"s_add_u32 s{sSP}, s{sSP}, 1"); e(f"s_and_b32 s{sSP}, s{sSP}, 3")
    e("s_lshl_b32 s79, s79, 3"); e("s_and_b32 s6, s7, 7"); e("s_add_u32 s79, s79, s6"); e(f"s_lshr_b32 s{c2}, s7, 3")
    e("s_lshl_b32 s7, s7, 2"); e(f"s_add_u32 s7, s7, s{sW}")
    e(f"s_lshl_b32 s{sPFo}, s{sSP}, 7"); e(f"s_add_u32 s{sPFo}, s{sPFo}, s7"); e(f"s_lshl_b32 s{sPFo}, s{sPFo}, 13")
    e(f"s_mul_i32 s{sPFo+1}, s{sSP}, 352"); e("s_mul_i32 s7, s7, 3"); e(f"s_add_u32 s{sPFo+1}, s{sPFo+1}, s7"); e(f"s_lshl_b32 s{sPFo+1}, s{sPFo+1}, 10")
    e(f"s_lshl_b32 s{t}, s79, 2"); e(f"s_add_u32 s{t}, s{t}, s{c2}"); e(f"s_lshl_b32 s{t}, s{t}, 18"); e(f"s_lshl_b32 s6, s{sW}, 12"); e(f"s_add_u32 s{t}, s{t}, s6")
    e(f"s_add_u32 s{sP2}, s{t}, {PART_OFF}")
    part_soff(e, sPS, True)
    e(f"s_lshr_b32 s7, s{sW}, 1"); e("s_lshl_b32 s6, s7, 12"); e(f"s_sub_u32 s{sSZ2}, {ACT_RB}, s6")
    e(f"s_and_b32 s7, s{sW}, 1")
    e(f"s_lshl_b32 s{t}, s79, 1"); e(f"s_add_u32 s{t}, s{t}, s7"); e(f"s_mul_i32 s{t}, s{t}, {ACT_RB}"); e(f"s_add_u32 s{t}, s{t}, s6"); e(f"s_add_u32 s{t}, s{t}, {ACT_OFF}")
    e(f"s_add_u32 s{sA2}, s{SWS}, s{t}"); e(f"s_addc_u32 s{sA2+1}, s{SWS+1}, 0")
    e(f"s_lshl_b32 s{t}, s{c2}, 1"); e(f"s_add_u32 s{t}, s{t}, s7"); e(f"s_lshl_b32 s{t}, s{t}, 7"); e("s_lshl_b32 s6, s6, 3"); e(f"s_add_u32 s6, s6, s{t}")
    e(f"s_add_u32 s{SWO}, s72, s6"); e(f"s_addc_u32 s{SWO+1}, s73, 0"); e(f"s_sub_u32 s{SWO+2}, {4096*1024}, s6"); e(f"s_mov_b32 s{SWO+3}, 0x00020000")
    e(f"s_add_u32 s{SWD}, s80, s6"); e(f"s_addc_u32 s{SWD+1}, s81, 0"); e(f"s_sub_u32 s{SWD+2}, {1376*1024}, s6"); e(f"s_mov_b32 s{SWD+3}, 0x00020000")
    e("s_lshl_b32 s7, s79, 1"); e(f"s_lshr_b32 s6, s{sW}, 1"); e("s_add_u32 s7, s7, s6"); e("s_lshl_b32 s7, s7, 2"); e(f"s_add_u32 s7, s7, s{sSP}"); e("s_lshl_b32 s7, s7, 14")
    e(f"s_add_u32 s{sXO}, s7, s{t}")
    e(f"s_movk_i32 s{sINC}, 16384")
    e(f"s_lshr_b32 s{sFQB}, s79, 1")
    e(f"s_lshl_b32 s6, s{sQB}, 2"); e(f"s_add_u32 s6, s6, s{sW}")
    e(f"s_lshl_b32 s{sSTAo}, s6, 9"); e(f"s_add_u32 s{sSTAo}, s{sSTAo}, {STAT_OFF}")
    e(f"s_mul_i32 s7, s6, {ACT_RB}"); e(f"s_add_u32 s7, s7, {ACT_OFF}"); e(f"s_add_u32 s{SACT}, s{SWS}, s7"); e(f"s_addc_u32 s{SACT+1}, s{SWS+1}, 0")
    e(f"s_mov_b32 s{SACT+2}, {ACT_RB}"); e(f"s_mov_b32 s{SACT+3}, 0x00020000")
    e(f"s_add_u32 s{sMW2}, s{sMX}, 131072")
    e(f"v_and_b32 v{TM+3}, 15, v{l}"); e(f"v_lshrrev_b32 v{TM+4}, 4, v{l}")
    L += kv_voff(TM+3, TM+4, TM+5)
    e(f"s_mov_b32 s{sKV}, 0"); e(f"s_mov_b32 s{sKV2}, 0"); e(f"s_movk_i32 s{sINC2}, 16384"); e(f"s_mov_b32 s{sMASK}, 0xffff0000"); e(f"s_mov_b32 s{sPASS}, 0")
    e(f"s_mul_i32 s6, s{sHEAD}, 3"); e(f"s_and_b32 s7, s{sHEAD}, 1")
    e(f"s_add_u32 s{sH0}, s6, s7"); e(f"s_lshr_b32 s{sH0}, s{sH0}, 1"); e(f"s_add_u32 s{sH0}, s{sH0}, 128"); e(f"s_lshl_b32 s{sH0}, s{sH0}, 12")
    e("s_add_u32 s6, s6, 2"); e("s_lshl_b32 s7, s7, 1"); e("s_sub_u32 s6, s6, s7")
    e(f"s_lshr_b32 s{sH0+1}, s6, 1"); e(f"s_add_u32 s{sH0+1}, s{sH0+1}, 128"); e(f"s_lshl_b32 s{sH0+1}, s{sH0+1}, 12")
    e("s_and_b32 s6, s6, 1"); e("s_lshl_b32 s6, s6, 3"); e(f"s_add_u32 s{sH0+1}, s{sH0+1}, s6")
    return L

def rd_x(buf):
    return [f"ds_read_b128 {v(XF+buf*32+(qt*2+ks)*4,4)}, v{aXR+ks} offset:{buf*32768+2048*qt}" for qt in range(4) for ks in range(2)]
def rd_w(m, lb):
    L = []
    for ks in range(2):
        for hh in range(2):
            d = a(WF+(m*2+ks)*4+2*hh, 2)
            if m < 8: L.append(f"ds_read_b64_tr_b16 {d}, v{aWQR+m} offset:{lb*32768+ks*8192+hh*1024}")
            else:
                z, t = divmod(m-8, 3)
                L.append(f"ds_read_b64_tr_b16 {d}, v{aGUR if t < 2 else aGUR2} offset:{lb*32768+z*8192+ks*4096+hh*384+32*(t&1)}")
    return L
def rd_e(lb):
    L = []
    for tl in range(4):
        for ks in range(2):
            for hh in range(2):
                d = a(EFr(tl, ks)+2*hh, 2)
                if tl < 2: L.append(f"ds_read_b64_tr_b16 {d}, v{aWQC+tl} offset:{lb*32768+ks*8192+hh*1024}")
                else: L.append(f"ds_read_b64_tr_b16 {d}, v{aGUC} offset:{lb*32768+(tl-2)*8192+ks*4096+hh*384}")
    return L
def acc_m(m, qt):
    return v(QACC+(m*4+qt)*4, 4) if m < 8 else a(gua(m-8, qt), 4)

def loop_addr_setup(t):
    L = []; e = L.append; l = vLANE
    e(f"v_and_b32 v{t}, 15, v{l}"); e(f"v_lshrrev_b32 v{t+1}, 4, v{l}"); e(f"v_lshrrev_b32 v{t+2}, 2, v{t}"); e(f"v_and_b32 v{t+3}, 3, v{l}")
    e(f"v_lshlrev_b32 v{t+4}, 8, v{t}")
    e(f"v_and_b32 v{t+6}, 1, v{t+1}"); e(f"v_lshrrev_b32 v{t+7}, 1, v{t+1}"); e(f"v_lshl_add_u32 v{t+6}, v{t+6}, 1, v{t+7}")
    e(f"v_xor_b32 v{t+6}, v{t+6}, v{t}")
    for s_ in range(4):
        e(f"v_xor_b32 v{t+5}, {4*s_}, v{t+6}"); e(f"v_lshl_add_u32 v{aKR+s_}, v{t+5}, 4, v{t+4}")
    e(f"v_lshl_add_u32 v{t+4}, v{t+1}, 2, v{t+2}")
    e(f"v_and_b32 v{t+5}, 7, v{t+4}")
    e(f"v_lshlrev_b32 v{t+4}, 8, v{t+4}"); e(f"v_lshl_add_u32 v{t+4}, v{t+3}, 3, v{t+4}"); e(f"v_add_u32 v{t+4}, 65536, v{t+4}")
    for dt in range(8):
        e(f"v_xor_b32 v{t+6}, {dt}, v{t+5}"); e(f"v_lshl_add_u32 v{aVR+dt}, v{t+6}, 5, v{t+4}")
    return L

def place_dma(G, dm, g, step):
    last = g
    for x in dm:
        if x.startswith('buffer'):
            while g % 2 != 1 or G.used(g) > 0: g += 1
            G.put(g, x); last = g + 1; g += step - 1
        else:
            gg = G.fit(last, x); last = gg
            if 'm0,' in x: g = max(g, gg + 1)
    return max(g, last + 1)

def bid_of(dst, head, qb, t):
    return [f"v_and_b32 v{t}, 3, v{head}", f"v_lshl_add_u32 v{t}, {qb}, 2, v{t}", f"v_lshrrev_b32 v{dst}, 2, v{head}", f"v_lshl_add_u32 v{dst}, v{t}, 3, v{dst}",
            f"v_lshlrev_b32 v{dst}, 7, v{dst}", f"v_add_u32 v{dst}, {FLAG_OFF}, v{dst}"]
def d0_addr(dst, t):
    return [f"v_cmp_gt_u32 vcc, 32, v{vLANE}", f"v_and_b32 v{vD0}, 7, v{vLANE}", f"v_mov_b32 v{t}, s{sHEAD}", f"v_and_b32 v{t+1}, {OPT['rot']-1}, v{vLANE}",
            f"v_lshl_add_u32 v{vD0}, s{sW}, 3, v{vD0}", f"v_mov_b32 v{dst}, s{sQB}",
            f"v_cndmask_b32 v{t}, v{t}, v{vD0}, vcc", f"v_cndmask_b32 v{t+1}, v{t+1}, v{dst}, vcc"] + bid_of(dst, t, f"v{t+1}", vD0)
def d1_addr(dst, t):
    return ([f"v_and_b32 v{t}, 31, v{vLANE}"] + bid_of(dst, t, f"s{sFQB}", t+1)
            + ["s_and_b32 s6, s2, 0xfc", f"v_and_b32 v{t}, 3, v{vLANE}", f"v_add_u32 v{t}, s6, v{t}", f"v_cmp_gt_u32 vcc, 32, v{vLANE}",
               f"v_lshlrev_b32 v{t}, 7, v{t}", f"v_add_u32 v{t}, {FLAG_OFF}, v{t}", f"v_cndmask_b32 v{dst}, v{t}, v{dst}, vcc"])
def f_load(dst, addr, k): return f"buffer_load_dword v{dst}, v{addr}, s[{SWS}:{SWS+3}], 0 offen offset:{4*k} sc1"
def f_cmp(x): return f"v_cmp_ne_u32 vcc, s{sNON}, v{x}"
SPIN = 0x20000
WAITMARK = "s_waitcnt vmcnt(63) ; WAIT "
def resolve_waits(pre, ph):
    out = []
    for x in ph:
        if x.startswith(WAITMARK):
            tags, _, extra = x[len(WAITMARK):].partition('|')
            n = vm_after(pre + out, tags.split())
            x = "s_waitcnt " + " ".join(([f"vmcnt({n})"] if n is not None else []) + ([extra] if extra else []))
        out.append(x)
    return out

vD0 = 114; aSTA = 117; aCL = 115; aD0 = SXA + 14
def cs_mfmas(): return [f"v_smfmac_f32_16x16x64_bf16 {a(CSA+tl*4,4)}, {v(ONES,4)}, {a(EFr(tl,0),8)}, v{vIDX}" for tl in range(4)]
W_, X_ = (lambda s: ('W', s)), (lambda s: ('x', s))
SCHED = {
    0: [[W_(2), X_(2)], [W_(3), X_(3)], [W_(4), X_(4)], [W_(5), X_(5)], [W_(6), X_(6)], [W_(7), X_(7)], []],
    1: [[W_(2), X_(2)], [W_(3), X_(3), X_(4)], [W_(4), W_(5), X_(5)], [W_(6), X_(6)], [W_(7), X_(7)], [], []],
    2: [[W_(2), X_(2)], [W_(3), X_(3), X_(4)], [W_(4), X_(5)], [W_(5), X_(6)], [W_(6), X_(7)], [W_(7)], []],
    4: [[W_(2)], [X_(2), W_(3), X_(3)], [W_(4), X_(4)], [W_(5), X_(5)], [W_(6), X_(6)], [W_(7), X_(7)], []],
    5: [[W_(2)], [X_(2), W_(3), X_(3)], [W_(4), X_(4)], [W_(5), X_(5), W_(6)], [X_(6), W_(7)], [X_(7)], []],
    6: [[W_(2)], [X_(2), W_(3), X_(3)], [W_(4), X_(4), X_(5)], [W_(5), W_(6), X_(6)], [W_(7), X_(7)], [], []],
    3: [[W_(2), X_(2)], [W_(3), X_(3), W_(4)], [X_(4), W_(5)], [X_(5), W_(6)], [X_(6), W_(7)], [X_(7)], []],
}[OPT['sched']]
def gemm_phase(st, carry, bg):
    xb = st & 1; first = (st == 0); nb = (st + 1) & 1
    wb = (st + 1) % 3; wo = wb if wb < 2 else 0
    mf = []
    def C(acc, ks): return "0" if (first and ks == 0) else acc
    if first: mf += cs_mfmas()
    pos = {}; doE = first and OPT['rot'] == 4; SIGP = 3 if OPT['fast0'] else (1 if OPT['rot'] == 8 else 2)
    CSM = 12 if first else 8
    for m in range(14):
        if m == CSM and doE and not OPT['fast0']: csp = len(mf); mf += cs_mfmas()
        if m == 2 and st == 1 and OPT['rot'] == 4 and OPT['fast0']: mf += cs_mfmas()
        pos[m] = len(mf)
        for qt in range(4):
            for ks in range(2):
                d = acc_m(m, qt); mf.append(f"{MF} {d}, {a(WF+(m*2+ks)*4,4)}, {v(XF+xb*32+(qt*2+ks)*4,4)}, {C(d,ks)}")
    N = len(mf)
    G = Gaps(N)
    for i, r in enumerate(carry): G.put(i // 2, r)
    BARG = OPT['barg0'] if first else 7
    xsame = st < 7 and ('x', st+1) in SCHED[st]
    xlate = first or xsame or (st < 7 and ('x', st+1) in SCHED[st-1])
    tags = {1: "non st", 5: "d0", 6: "cs"}.get(st, "") + f" W{st+1}" + ("" if xlate else f" X{st+1}") + (" pub" if st == SIGP else "")
    G.put(BARG, WAITMARK + tags + "|lgkmcnt(0)", force=True); G.put(BARG, "s_barrier", force=True)
    if first:
        G.put(3, "s_waitcnt lgkmcnt(8)"); G.put(11, "s_waitcnt lgkmcnt(0)")
    if st == 5:
        G.put(BARG+1, f_cmp(vD0)); G.put(BARG+2, "s_cbranch_vccnz K1_D0POLL"); G.put(BARG+2, "K1_D0OK:"); G.put(BARG+3, f"s_add_u32 s{sCNT}, s{sCSo}, 4096")
    if st == 1:
        G.put(BARG+1, f"v_cmp_eq_u32 vcc, 0, v{TM+1}"); G.put(BARG+2, "s_cbranch_vccnz K1_NPOLL"); G.put(BARG+2, "K1_NOK:")
        G.put(BARG+3, f"v_readfirstlane_b32 s{sNON}, v{TM+1}")
    if st < 7: G.put(N - 1, "s_waitcnt lgkmcnt(4)")
    adj = []
    if st < 7 and (wb == 2 or (wb == 0 and st > 0)):
        op = "v_add_u32" if wb == 2 else "v_subrev_u32"
        adj = [f"{op} v{r}, 0x10000, v{r}" for r in list(range(aWQR, aWQR+8)) + [aGUR, aGUR2]]
        G.stream((len(carry) + 1) // 2, adj, BARG)
    newcarry = []
    if st < 7:
        g = BARG + 1
        for m in range(14):
            rs = rd_w(m, wo)
            if m == 13: newcarry = rs; break
            for i, r in enumerate(rs):
                g = max(g, pos[m] + 8 + 2*i)
                while (g % 2 != 0 and not (first and OPT['fast0'] and g % 4 == 1)) or G.used(g) > 1: g += 1
                G.put(g, r)
    dm = []
    if first: dm += [f"buffer_load_dword v{TM+1}, off, s[{SDBG}:{SDBG+3}], 0 sc1 ; @non"]
    if st == SIGP: dm += [f"buffer_store_dword v{TM+1}, v{TM+2}, s[{SWS}:{SWS+3}], s{sW2S} offen sc1"]
    if st == 5: dm += [f"buffer_load_dwordx4 {v(TM+4*j,4)}, v{aCL}, s[{SWS}:{SWS+3}], s{sCSo if j == 0 else sCNT} offen sc1 ; @cs" for j in range(OPT['rot']//4)]
    if st == 5: dm += [f"buffer_load_dwordx2 {v(SXA+4*qt,2)}, v{aSTA}, s[{SWS}:{SWS+3}], s{sSTAo} offen offset:{128*qt} sc1 ; @cs" for qt in range(4)]
    if st <= 5: pass
    elif st == 6:
        if OPT['kvs'] == 0: place_dma(G, kv_dma(0, " ; @KV0") + kv_dma(1), BARG + 1, 6)
        else: place_dma(G, kv_dma(0, " ; @KV0"), BARG + 1, 12)
    elif OPT['kvs'] == 0: place_dma(G, kv_dma(2) + kv_dma(3), BARG + 1, 6)
    elif OPT['kvs'] == 1: place_dma(G, kv_dma(1), BARG + 1, 12)
    else: place_dma(G, kv_dma(1) + kv_dma(2), BARG + 1, 6)
    if adj: G.stream(BARG + 1, adj, BARG + 30); assert not adj
    if st <= 5:
        grp = SCHED[st]
        if first and OPT['fast0']: grp = [X_(1), ('s', 0)] + grp
        early = [x for x in grp if x != ('x', st+3)]
        span = (N - 4 if len(early) == len(grp) else OPT['xw'] + 8)
        step = max(2, (span // max(1, 8*len(early) + len(dm))) & ~1); step = min(step, OPT['wgap'])
        if first and OPT['fast0']: step = 4
        if len(early) == 3 and not first: step = 4 if not dm else 2
        g = 2; misc = list(dm)
        for kind, s_ in early:
            if (kind == 'W' and s_ == st + 3) or (g > BARG and misc):
                g = max(g, BARG + 3)
                g = place_dma(G, misc, g, step); misc = []
            g = place_dma(G, dma_w(s_ % 3, s_) if kind == 'W' else st_loads() if kind == 's' else dma_x(s_ & 1, s_), g, step)
        if misc: g = place_dma(G, misc, max(g, BARG + 3), step)
        gdma = g
    if st < 7:
        g = (OPT['xg0'] if OPT['fast0'] else 50) if first else 64 if xsame else OPT['xg'] if xlate else BARG + 2
        if xlate: g = G.fit(g, WAITMARK + f"X{st+1}|") + 1
        for r in rd_x(nb):
            while G.used(g) > 1 or G.post[g]: g += 1
            G.put(g, r); g += 2
        xdone = g
        g = BARG + 2
        if doE and OPT['fast0']:
            for r in rd_e(wo):
                while g < N - 1 and (G.used(g) > 1 or G.post[g]): g += 1
                if g < N - 1: G.put(g, r)
                else: newcarry = [r] + newcarry
            doE = False
        if doE:
            for r in rd_e(wo):
                while G.used(g) > 1 or G.post[g]: g += 1
                G.put(g, r); g += 1
            assert g < csp - 8, (st, g, csp)
        if doE or ('x', st+3) in SCHED[st]:
            w = G.fit(max(OPT['xw'], xdone + 8, g + 6), "s_waitcnt lgkmcnt(2)"); assert not doE or w < csp
        if st <= 5 and ('x', st+3) in SCHED[st]: place_dma(G, dma_x(nb, st+3), max(w + 1, gdma), 4)
    PZ = 3 if OPT['fast0'] else 2
    if st in (PZ, PZ+1, PZ+2) and OPT['pois'] and not OPT['lpz']:
        assert not any(f"s{sPS+st-PZ}," in x for x in bg)
        ps = [f"buffer_store_dwordx4 {a(CSA,4)}, v{aL16}, s[{SWS}:{SWS+3}], s{sPS+st-PZ} offen offset:{1024*j} sc1" for j in range(4)]
        g = OPT['pois']
        for x in ps:
            while g % 2 != 1 or G.used(g) > 0: g += 1
            G.put(g, x); g += OPT['pstep']
    if st == (1 if OPT['fast0'] else SIGP - 1):
        t = SXA
        q = stats_stream() if OPT['fast0'] else []
        q += [f"s_lshl_b32 s6, s{sHEAD}, 3", f"s_add_u32 s6, s6, s{sQB}", "s_lshl_b32 s6, s6, 2", f"s_add_u32 s6, s6, s{sW}", "s_lshl_b32 s6, s6, 8", f"s_add_u32 s{sCSo}, s6, {CS_OFF}"]
        for tl in range(4): q += [f"v_accvgpr_read_b32 v{t+tl}, a{CSA+4*tl}", f"v_accvgpr_read_b32 v{t+4+tl}, a{CSA+4*tl+1}"]
        for tl in range(4): q += [f"v_add_f32 v{t+tl}, v{t+tl}, v{t+4+tl}"]
        q += [f"buffer_store_dwordx4 {v(t,4)}, v{TM}, s[{SWS}:{SWS+3}], s{sCSo} offen sc1 ; @pub"]
        if OPT['fast0']: bg[:0] = q + ['s_nop 0']
        else: g0 = G.stream(12 if first else BARG + 4, q); assert not q
    if st in (1, 2, 3): G.stream((g0 + 1 if SIGP == 2 else BARG + 4) if st == 1 else 0, bg)
    if OPT['kvpf'] and st == OPT['kvpf'] // 1000:
        assert not any(f"s{SV+3}," in x for x in bg)
        q = [f"v_and_b32 v{aXD}, 15, v{vLANE}", f"v_lshlrev_b32 v{aXD}, 7, v{aXD}", f"s_lshl_b32 s{sT1}, s{sQB}, 2", f"s_add_u32 s{sT1}, s{sT1}, s{sW}", f"s_lshl_b32 s{sT1}, s{sT1}, 11",
             f"buffer_load_dword a{CSA+4}, v{aXD}, s[{SK}:{SK+3}], s{sT1} offen", f"buffer_load_dword a{CSA+5}, v{aXD}, s[{SV}:{SV+3}], s{sT1} offen"]
        G.stream(OPT['kvpf'] % 1000, q); assert not q
    if st == SIGP: assert not any('@pub' in x for x in bg)
    if st == 4:
        G.stream(0, bg, OPT['d0g']); assert not bg, len(bg)
        q = d0_addr(aD0, TM+6) + [f_load(vD0, aD0, 0) + " ; @d0", f"v_and_b32 v{aSTA}, 15, v{vLANE}",
             f"v_lshrrev_b32 v{aCL}, 4, v{vLANE}", f"v_lshlrev_b32 v{aCL}, 10, v{aCL}", f"v_lshl_add_u32 v{aCL}, v{aSTA}, 4, v{aCL}", f"v_lshlrev_b32 v{aSTA}, 3, v{aSTA}",
             f"s_lshl_b32 s6, s{sHEAD}, 13", f"s_lshl_b32 s7, s{sW}, 8", "s_add_u32 s6, s6, s7", f"s_add_u32 s{sCSo}, s6, {CS_OFF}"]
        G.stream(OPT['d0g'], q); assert not q
    if st == 6:
        q = []
        for qt in range(4): q += [f"v_rsq_f32 v{SXA+4*qt+2}, v{SXA+4*qt+1}"]
        for qt in range(4):
            q += [f"v_mul_f32 v{SXA+4*qt+3}, v{SXA+4*qt+1}, v{SXA+4*qt+2}", f"v_mul_f32 v{SXA+4*qt+1}, {f2u(SCALE)}, v{SXA+4*qt+2}",
                  f"v_mul_f32 v{SXA+4*qt+2}, {f2u(-LOG2E)}, v{SXA+4*qt+2}"]
        if OPT['rot'] == 8: q += [f"v_add_f32 v{TM+i}, v{TM+i}, v{TM+4+i}" for i in range(4)]
        q += xlane_reduce("v_add_f32", [TM+i for i in range(4)], [TM+4+i for i in range(4)])
        q += [f"v_lshrrev_b32 v{aCL}, 1, v{aSTA}", f"v_add_u32 v{aCL}, s{sMW2}, v{aCL}"]
        for tl in range(4): q += [f"ds_write_b32 v{aCL}, v{TM+tl} offset:{64*tl}"]
        q += loop_addr_setup(TM)
        g = G.stream(BARG + 1, q)
        q += [f"v_lshrrev_b32 v{aCS}, 4, v{vLANE}", f"v_lshlrev_b32 v{aCS}, 4, v{aCS}", f"v_add_u32 v{aCS}, 131072, v{aCS}"]
        G.stream(max(g, xdone), q)
        for x in q: G.post[N-1].append(x)
        if q: print(f"; phase 6: {len(q)} left over", file=sys.stderr)
    if st == 7:
        g = BARG + 1
        for m in range(8):
            g = G.fit(g, f"ds_read_b128 {v(4*m,4)}, v{aCS} offset:{(m>>1)*8192+(m&1)*64}")
        g = G.fit(g + 6, "s_waitcnt lgkmcnt(0)") + 1
        left = []
        for m in range(8):
            q = [f"v_fmac_f32 v{QACC+(m*4+qt)*4+r}, v{4*m+r}, v{SXA+4*qt}" for qt in range(4) for r in range(4)]
            g = G.stream(max(g, 8*m + 12), q); left += q
        for x in left: G.post[N-1].append(x)
        if left: print(f"; phase 7: {len(left)} left over", file=sys.stderr)
    return weave(mf, G.out()), newcarry

LO = "op_sel_hi:[1,0,1]"; HI = "op_sel:[0,1,0] op_sel_hi:[1,1,1]"
LO2 = "op_sel_hi:[1,0]"; HI2 = "op_sel:[0,1] op_sel_hi:[1,1]"
def zero_o(i): return f"v_mfma_f32_32x32x16_bf16 {a(16*i,16)}, {v(LACC,4)}, {v(LACC,4)}, 0"
def max_mfmas():
    return [f"{MF} {v(SB+4*qt,4)}, {v(KF+s_*4,4)}, {v(QF+(qt*4+s_)*4,4)}, {'0' if s_ == 0 else v(SB+4*qt,4)}" for qt in range(4) for s_ in range(4)]
def k1_post_gemm():
    L = []; e = L.append
    CSG = 208
    vr = rd_v(0, 0)
    pz = [] if OPT['pois'] or OPT['lpz'] else [f"buffer_store_dwordx4 {a(CSA,4)}, v{aL16}, s[{SWS}:{SWS+3}], s{sPS+i} offen offset:{1024*j} sc1" for i in range(3) for j in range(4)]
    for sp in (2, 3, 0, 1):
        for qt in range(4):
            if pz and (qt & 1 or OPT['pzq'] == 2) and OPT['pzq']: e(pz.pop(0))
            P0 = v(SXA+4*qt, 2)
            for b in range(2):
                m = 2*sp+b; x = QACC + (m*4+qt)*4
                for h in (0, 2): e(f"v_pk_mul_f32 {v(x+h,2)}, {v(x+h,2)}, {P0} {HI2}")
                for h in range(2): e(f"v_cvt_pk_bf16_f32 v{QF+(qt*4+sp)*4+2*b+h}, v{x+2*h}, v{x+2*h+1}")
        if sp == 3:
            for m in range(6):
                z, t = divmod(m, 3)
                e(f"ds_read_b128 {v(CSG+4*m,4)}, v{aCS} offset:{t*8192+(2+z)*64}")
        elif sp == 0:
            e(WAITMARK + "KV0|lgkmcnt(0)"); e("s_barrier")
            for f in range(8): e(rd_k(f, 0))
            L += vr[:16]
        elif sp == 1:
            for f in range(8, 16): e(rd_k(f, 0))
            L += vr[16:]
        else: e("s_nop 1")
        for qt in range(4):
            f = QF+(qt*4+sp)*4
            e(f"v_permlane16_swap_b32 v{f}, v{f+2}"); e(f"v_permlane16_swap_b32 v{f+1}, v{f+3}")
    for i in range(16): e(f"v_mov_b32 v{LACC+i}, 0")
    e("s_waitcnt lgkmcnt(15)")
    if OPT['stamp'] == 2: L += stamp(TM)
    mx = max_mfmas(); zs = [7]; zdone = []
    kv = with_m0_nops({0: [], 1: kv_dma(2) + kv_dma(3), 2: kv_dma(3)}[OPT['kvs']])
    def kv_next():
        while kv:
            x = kv.pop(0); e(x)
            if x.startswith('buffer'): break
    n = 0
    for qt in range(4):
        for t in (2, 0, 1):
            G_ = TM + (n % 2)*8; U_ = G_ + 4; n += 1
            H_ = 232 + (4 if t == 2 else 2*t)
            P0 = v(SXA+4*qt, 2); P1 = v(SXA+4*qt+2, 2)
            if mx: e(mx.pop(0))
            elif zs: e(zero_o(zs.pop(0)))
            kv_next()
            if pz: e(pz.pop(0))
            if not pz and 6 not in zdone: zs.append(6); zdone.append(6)
            for r in range(4): e(f"v_accvgpr_read_b32 v{G_+r}, a{gua(t, qt)+r}")
            if mx: e(mx.pop(0))
            for r in range(4): e(f"v_accvgpr_read_b32 v{U_+r}, a{gua(3+t, qt)+r}")
            for h in (0, 2): e(f"v_pk_fma_f32 {v(G_+h,2)}, {v(CSG+4*t+h,2)}, {P0}, {v(G_+h,2)} {LO}")
            for h in (0, 2): e(f"v_pk_mul_f32 {v(G_+h,2)}, {v(G_+h,2)}, {P1} {LO2}")
            if mx: e(mx.pop(0))
            elif zs: e(zero_o(zs.pop(0)))
            if t == 0 and OPT['kvs'] == 1: kv_next()
            for r in range(4): e(f"v_exp_f32 v{G_+r}, v{G_+r}")
            for h in (0, 2): e(f"v_pk_fma_f32 {v(U_+h,2)}, {v(CSG+12+4*t+h,2)}, {P0}, {v(U_+h,2)} {LO}")
            for h in (0, 2): e(f"v_pk_fma_f32 {v(G_+h,2)}, {v(G_+h,2)}, {P1}, {P1} op_sel:[0,1,1] op_sel_hi:[1,1,1]")
            if mx: e(mx.pop(0))
            for r in range(4): e(f"v_rcp_f32 v{G_+r}, v{G_+r}")
            e("s_nop 0")
            for h in (0, 2): e(f"v_pk_mul_f32 {v(U_+h,2)}, {v(U_+h,2)}, {v(G_+h,2)}")
            for h in range(2): e(f"v_cvt_pk_bf16_f32 v{H_+h}, v{U_+2*h}, v{U_+2*h+1}")
            if t == 2: e(f"buffer_store_dwordx2 {v(H_,2)}, v{aL16}, s[{SACT}:{SACT+3}], s{sH0+1} offen offset:{1024*qt} sc1")
            if t == 1: e(f"buffer_store_dwordx4 {v(H_-2,4)}, v{aL16}, s[{SACT}:{SACT+3}], s{sH0} offen offset:{1024*qt} sc1")
        zs += {0: [0], 1: [1, 2], 2: [3], 3: [4, 5]}[qt]
    if OPT['stamp'] == 2: L += stamp(TM)
    L += kv
    for z in zs: e(zero_o(z))
    for qt in range(4):
        b = SB+4*qt
        e(f"v_max3_f32 v{b}, v{b}, v{b+1}, v{b+2}"); e(f"v_max_f32 v{b}, v{b}, v{b+3}")
    L += xlane_reduce("v_max_f32", [SB+4*q for q in range(4)], [SB+4*q+1 for q in range(4)])
    for qt in range(4):
        for r in range(4): e(f"v_sub_f32 v{NEGM+4*qt+r}, 0, v{SB+4*qt}")
    return L
def pf_lanes():
    L = [f"v_lshlrev_b32 v90, 7, v{vLANE}", f"v_min_u32 v91, 256, v90", f"v_min_u32 v90, 384, v90"]
    if OPT['lpz']:
        L += [f"v_mov_b32 v{80+i}, -1" for i in range(4)]
        L += [f"s_lshl_b32 s6, s{sSP}, 14", f"s_add_u32 s6, s6, s{sP2}", f"v_add_u32 v84, s6, v{aL16}",
              f"s_add_u32 s{sPZ}, s{sSP}, 1", f"s_and_b32 s{sPZ}, s{sPZ}, 3", f"s_lshl_b32 s{sPZ}, s{sPZ}, 16", f"s_movk_i32 s{sPZD}, 2048"]
    return L

def ks_of(p):
    kt, s_ = divmod(p, 4)
    return kt, (3 - s_ if (kt & 1 and OPT['sq']) else s_)
def rd_k(f, slot):
    kt, s_ = ks_of(f)
    return f"ds_read_b128 {v(KF+4*f,4)}, v{aKR+s_} offset:{slot*16384+kt*4096}"
def rd_v(buf, slot):
    return [f"ds_read_b64_tr_b16 {a(VF+buf*64+(dt*2+kk)*4+2*hh,2)}, v{aVR+dt} offset:{slot*16384+kk*8192+hh*4096}"
            for dt in range(8) for kk in range(2) for hh in range(2)]
def qk_mfmas(qt, zero=False):
    L = []
    for p in range(16):
        kt, s_ = ks_of(p)
        d = v(SB+4*kt, 4)
        c = ("0" if zero else v(NEGM+4*qt, 4)) if p % 4 == 0 else d
        L.append(f"{MF} {d}, {v(KF+p*4,4)}, {v(QF+(qt*4+s_)*4,4)}, {c}")
    return L
def pv_mfmas(qt, vb, pb):
    L = []
    for dt in range(8):
        d = a(OACC+(dt*4+qt)*4, 4)
        for kk in range(2): L.append(f"{MF} {d}, {a(VF+vb*64+(dt*2+kk)*4,4)}, {v(PB+pb*8+kk*4,4)}, {d}")
    L.append(f"v_smfmac_f32_16x16x64_bf16 {v(LACC+4*qt,4)}, {v(ONES,4)}, {v(PB+pb*8,8)}, v{vIDX}")
    return L
EXP = lambda e_: f"v_exp_f32 v{SB+e_}, v{SB+e_}"
CVT = lambda c, pb: f"v_cvt_pk_bf16_f32 v{PB+pb*8+c}, v{SB+2*c}, v{SB+2*c+1}"

def attn_step(jm, u):
    pb = u & 1
    mf = qk_mfmas((u+1) % 4) + pv_mfmas(u, jm & 1, pb)
    G = Gaps(33)
    for k, e_ in enumerate((13, 14, 15)): G.put(2*k+1, EXP(e_))
    G.put(2, CVT(6, pb)); G.put(6, CVT(7, pb))
    for e_ in range(13): G.put(8+2*e_, EXP(e_))
    for c in range(6): G.put(11+4*c, CVT(c, pb ^ 1))
    ns = (jm+1) % 4
    vr = rd_v((jm+1) & 1, ns)
    dm = kv_dma(jm)
    if u == 0:
        G.put(4, f"s_waitcnt vmcnt({18 if OPT['wpf'] else 16}) lgkmcnt(0)", force=True); G.put(4, "s_barrier", force=True)
        G.put(7, dm[0])
        for g, x in zip((9, 17, 21, 29), dm[1:5]): G.put(g, x)
        for g, x in zip((6, 7, 11, 13, 15, 19, 23, 25, 27, 31), vr[0:10]): G.put(g, x)
    elif u == 1:
        G.put(0, dm[5])
        for g, x in zip((4, 13, 21, 29), dm[6:10]): G.put(g, x)
        for g, x in zip((0, 2, 6, 7, 9, 11, 15, 17, 19, 23, 25, 27, 31), vr[10:23]): G.put(g, x)
    elif u == 2:
        G.put(0, dm[10]); G.put(0, dm[11])
        for f, g in enumerate((2, 4, 4, 6, 7, 9, 11, 13, 15, 17, 19, 21, 23, 25, 27, 29)): G.put(g, rd_k(f, ns))
        G.put(31, "s_waitcnt lgkmcnt(3)")
    else:
        G.put(7, "s_waitcnt lgkmcnt(4)")
        for g, x in zip((0, 2, 4, 6, 9, 11, 13, 15, 17), vr[23:32]): G.put(g, x)
        if jm == 3:
            G.put(25, f"s_add_u32 s{sCNT}, s{sCNT}, 1"); G.put(29, f"s_cmp_lt_u32 s{sCNT}, s{sT0}")
        if jm == 2: G.put(29, f"s_cmp_eq_u32 s{sCNT}, 7")
        if OPT['lpz'] and jm in (0, 2):
            G.put(25, f"buffer_store_dwordx4 v[80:83], v84, s[{SWS}:{SWS+3}], s{sPZ} offen offset:{512*jm} sc1")
        if OPT['lpz'] and jm == 3:
            G.put(19, f"s_add_u32 s{sPZ}, s{sPZ}, s{sPZD}"); G.put(25, f"s_and_b32 s{sPZ}, s{sPZ}, 0x3ffff"); G.put(27, f"s_sub_u32 s{sPZD}, 0x10000, s{sPZD}")
        if OPT['wpf']:
            sr, so, st_ = (P2X, sPFo, 384) if jm < 3 else (P2OUT, sPFo+1, 512)
            G.put(21, f"buffer_load_dword v{72+jm}, v{91 if jm < 3 else 90}, s[{sr}:{sr+3}], s{so} offen"); G.put(23, f"s_add_u32 s{so}, s{so}, {st_}")
    if jm == 3 and u == 0: G.put(0, "s_cbranch_scc1 K1_LAST")
    return weave(mf, G.out())

def l_fin(qt): return [f"v_add_f32 v{LACC+4*qt}, v{LACC+4*qt}, v{LACC+4*qt+1}", f"v_rcp_f32 v{LACC+4*qt+2}, v{LACC+4*qt}"]
def o_stream(qt):
    L = []; e = L.append
    l = LACC + 4*qt
    for i in range(4):
        t = 88; p = 100 + 4*((qt*4+i) % 3)
        for b in range(2):
            for r in range(4): e(f"v_accvgpr_read_b32 v{t+4*b+r}, a{OACC+((2*i+b)*4+qt)*4+r}")
        if i == 0 and qt < 3: L += l_fin(qt)
        e(f"s_add_u32 s{sT1}, s{sT0}, {4096*i}")
        if OPT['opk']:
            for k in range(4): e(f"v_pk_mul_f32 {v(t+2*k,2)}, {v(t+2*k,2)}, {v(l+2,2)} {LO2}")
        else:
            for k in range(8): e(f"v_mul_f32 v{t+k}, v{t+k}, v{l+2}")
        for k in range(4): e(f"v_cvt_pk_bf16_f32 v{p+k}, v{t+2*k}, v{t+2*k+1}")
        e(f"buffer_store_dwordx4 {v(p,4)}, v{aL16}, s[{SACT}:{SACT+3}], s{sT1} offen offset:{1024*qt} sc1 ; @o")
    return L

def fill(gaps, q, g0, cap):
    for gi in range(g0, len(gaps)):
        u = units(gaps[gi])
        if q and Ins(q[0]).kind == 'vst': gaps[gi].insert(0, q.pop(0)); u += 2
        while q:
            k = Ins(q[0]).kind
            if u + UNITS[k] > cap or k == 'vst': break
            gaps[gi].append(q.pop(0)); u += UNITS[k]

def attn_last():
    L = []
    for u in range(4):
        pb = u & 1
        q = o_stream(u - 1) if u else []
        if u < 3:
            mf = qk_mfmas(u + 1) + pv_mfmas(u, 1, pb)
            G = Gaps(33)
            for k, e_ in enumerate((13, 14, 15)): G.put(2*k+1, EXP(e_))
            G.put(2, CVT(6, pb)); G.put(6, CVT(7, pb))
            for e_ in range(13): G.put(8+2*e_, EXP(e_))
            for c in range(6): G.put(11+4*c, CVT(c, pb ^ 1))
            if u == 0:
                dm = kv_dma(3, " ; @a3")
                G.put(4, "s_waitcnt lgkmcnt(0)", force=True); G.put(4, "s_barrier", force=True)
                G.put(6, dm[0])
                for g, x in zip((7, 9, 13, 17), dm[1:5]): G.put(g, x)
                G.put(19, dm[5])
                for g, x in zip((21, 25, 29), dm[6:9]): G.put(g, x)
                G.put(31, dm[9], force=True); G.put(11, f"s_lshl_b32 s{sT0}, s{sHEAD}, 14")
                tail = dm[10:] + [f"s_add_u32 m0, s{sMKV}, {8*16384}"]
                x4 = [f"buffer_load_dwordx4 v{aKD+i}, s[{P2WT}:{P2WT+3}], s{sKV} offen offset:{1024*i} lds" for i in range(4)] + [f"s_add_u32 m0, s{sMKV}, {9*16384}"]
                x4 += [f"buffer_load_dwordx4 v{aL16}, s[{P2ACT}:{P2ACT+3}], s{sKV2} offen offset:{1024*i} sc1 lds ; @a3" for i in range(4)]
            gaps = G.out()
            if u == 0: gaps[32] += tail
            if u == 1:
                for g_, x in zip((0, 1, 2, 3, 4, 5, 6, 7, 8), x4): gaps[g_].insert(0, x)
            fill(gaps, q, 0, OPT['lcap'])
            w = weave(mf, gaps)
            L += (w[1:] if u == 0 else w) + q
        else:
            mf = pv_mfmas(3, 1, pb)
            L += [EXP(13), EXP(14), EXP(15), CVT(6, pb), CVT(7, pb)]
            k = 2
            L += q[:k]; q = q[k:]
            gaps = [[] for _ in mf]
            fill(gaps, q, 0, OPT['lcap'])
            L += weave(mf, gaps) + q
    return L

def attn_entry():
    A = []; e = A.append
    e("s_waitcnt vmcnt(0)"); e("s_barrier")
    for f in range(16): e(rd_k(f, 0))
    A += rd_v(0, 0)
    for i in range(16): e(f"v_mov_b32 v{LACC+i}, 0")
    for i in range(8): e(zero_o(i))
    C_ = []; e = C_.append
    e("s_waitcnt lgkmcnt(0)")
    mf = qk_mfmas(0)
    G = Gaps(16)
    G.put(0, f"s_mov_b32 s{sCNT}, 0"); G.put(1, f"s_cmp_lg_u32 s{sPASS}, 0"); G.put(1, f"s_cselect_b32 s{sT0}, 7, 1")
    q = srd(P2X, 72, 73, 4096*1024) + srd(P2OUT, 80, 81, 1376*1024) + pf_lanes()
    G.stream(2, q, 8); C_[:0] = q[:0]; rest = list(q)
    for e_ in range(8): G.put(8 + e_, EXP(e_))
    C_ += weave(mf, G.out())
    for c in range(4): e(CVT(c, 0))
    for e_ in range(8, 13): e(EXP(e_))
    for c in range(4, 6): e(CVT(c, 0))
    C_ += rest
    return A, C_

def part_soff(e, dst, store):
    for i in range(1, 4):
        e(f"s_add_u32 s6, s{sSP}, {i}"); e("s_and_b32 s6, s6, 3")
        if store: e("s_lshl_b32 s6, s6, 2"); e(f"s_add_u32 s6, s6, s{sSP}")
        else: e(f"s_lshl_b32 s7, s{sSP}, 2"); e("s_add_u32 s6, s6, s7")
        e("s_lshl_b32 s6, s6, 14"); e(f"s_add_u32 s{dst+i-1}, s6, s{sP2}")

def block_b():
    L = []; e = L.append
    e(f"s_mov_b32 s{sT0}, {TC}")
    e(f"s_cmp_lg_u32 s{sW}, 0"); e("s_cbranch_scc1 K1_LOOP")
    e(f"v_mov_b32 v{vSP}, s{sNON}")
    e("s_mov_b64 exec, 1")
    e(f"buffer_store_dword v{vSP}, off, s[{SWS}:{SWS+3}], s{sW2S} offset:4 sc1")
    e("s_mov_b64 exec, -1")
    return L

def block_c():
    L = []
    return L + d1_addr(vD1+1, T2+4) + [f_load(vD1, vD1+1, 1), f"s_mov_b32 s{sT0}, 7"]
def block_l():
    A = [f_cmp(vD1), f"s_mov_b32 s{sT1}, 0", "s_cbranch_vccz K1_D1OK"]
    D1 = [f_load(vD1, vD1+1, 1), f"s_add_u32 s{sT1}, s{sT1}, 1", "s_sleep 8", "s_waitcnt vmcnt(0)", f_cmp(vD1),
          f"s_cmp_gt_u32 s{sT1}, {SPIN}", "s_cbranch_scc1 K1_D1OK", "s_cbranch_vccnz K1_D1POLL"]
    B = []; e = B.append
    B += srd(P2ACT, sA2, sA2+1, 0); e(f"s_mov_b32 s{P2ACT+2}, s{sSZ2}")
    for i in range(3): e(f"s_mov_b32 s{P2WT+i}, s{SWD+i}")
    t = 85
    e(f"v_lshrrev_b32 v{t}, 3, v{vLANE}"); e(f"v_and_b32 v{t+1}, 7, v{vLANE}"); e(f"v_and_b32 v{t+2}, 6, v{t}"); e(f"v_xor_b32 v{t+1}, v{t+1}, v{t+2}")
    e(f"v_lshlrev_b32 v{t}, 10, v{t}"); e(f"v_lshl_add_u32 v{aKD}, v{t+1}, 4, v{t}")
    for i in range(1, 4): e(f"v_add_u32 v{aKD+i}, {7168*i}, v{aKD}")
    for r in (aVD, aVD+1): e(f"v_mov_b32 v{r}, v{aL16}")
    e(f"s_mul_i32 s{sKV}, s{sSP}, {11*32768}"); e(f"s_mov_b32 s{sINC}, 65536")
    e(f"s_mul_i32 s{sKV2}, s{sSP}, {11*4096}"); e(f"s_add_u32 s{sKV2}, s{sKV2}, {128*4096}"); e(f"s_movk_i32 s{sINC2}, 8192")
    e(f"s_lshr_b32 s6, s{sW}, 1"); e("s_lshl_b32 s6, s6, 12"); e("s_add_u32 s6, s6, 65536"); e(f"s_lshl_b32 s7, s{sSP}, 10"); e(f"v_add_u32 v{t}, s6, v{aL16}")
    for i in range(4):
        e(f"v_add_u32 v{aA+4+i}, s7, v{t}")
        if i < 3: e("s_add_u32 s7, s7, 1024"); e("s_and_b32 s7, s7, 0xc00")
    e(f"s_and_b32 s6, s{sW}, 1"); e("s_lshl_b32 s6, s6, 12")
    e(f"v_lshrrev_b32 v{t}, 2, v{vLANE}"); e(f"v_and_b32 v{t+1}, 3, v{vLANE}"); e(f"v_bfe_u32 v{t+2}, v{vLANE}, 3, 2")
    e(f"v_lshlrev_b32 v{t}, 7, v{t}"); e(f"v_lshl_add_u32 v{t}, v{t+1}, 3, v{t}"); e(f"v_add_u32 v{t}, s6, v{t}")
    for ct in range(4):
        e(f"v_xor_b32 v{t+1}, {ct}, v{t+2}"); e(f"v_lshl_add_u32 v{aW+ct}, v{t+1}, 5, v{t}")
    e(f"s_mov_b32 s{sT0}, 8")
    return A, D1, B

def attn_check():
    L = []; e = L.append
    e("s_nop 11")
    t = 88
    L += l_fin(3)
    e(f"v_mov_b32 v{t}, {f2u(2.0**OPT['thr'])}")
    e(f"v_cmp_nle_f32 vcc, v{LACC}, v{t}"); e(f"v_cmp_nle_f32 s[6:7], v{LACC+4}, v{t}")
    e(f"v_cmp_nle_f32 s[44:45], v{LACC+8}, v{t}"); e(f"v_cmp_nle_f32 s[46:47], v{LACC+12}, v{t}")
    e("s_nop 1")
    e("s_or_b64 s[6:7], s[6:7], vcc"); e("s_or_b64 s[44:45], s[44:45], s[46:47]"); e("s_or_b64 s[6:7], s[6:7], s[44:45]")
    e("s_cselect_b32 s6, 1, 0")
    e(f"v_mov_b32 v{t}, s6"); e(f"s_lshl_b32 s7, s{sW}, 2"); e(f"s_add_u32 s7, s7, {CHK_LDS}"); e(f"v_mov_b32 v{t+1}, s7"); e(f"v_mov_b32 v{t+2}, {CHK_LDS}")
    e(f"ds_write_b32 v{t+1}, v{t}"); e(WAITMARK + "a3|lgkmcnt(0)"); e("s_barrier")
    e(f"ds_read_b128 {v(t+4,4)}, v{t+2}"); e("s_waitcnt lgkmcnt(0)")
    e(f"v_or_b32 v{t+4}, v{t+4}, v{t+5}"); e(f"v_or3_b32 v{t+4}, v{t+4}, v{t+6}, v{t+7}"); e("s_nop 0")
    e(f"v_readfirstlane_b32 s6, v{t+4}"); e("s_nop 1")
    if OPT['twice']: e("s_mov_b32 s6, 1")
    e(f"s_cmp_gt_u32 s6, s{sPASS}"); e("s_cbranch_scc1 K1_SLOW")
    return L

def attn_slow():
    P = []; e = P.append
    MX = T2
    for qt in range(4): e(f"v_mov_b32 v{MX+qt}, 0xff800000")
    e(f"s_mov_b32 s{sKV}, 0"); e("s_waitcnt vmcnt(0)")
    P += srd(SK, sKVB, sKVB+1, 524288) + srd(SV, sKVB+2, sKVB+3, 524288)
    e(f"s_movk_i32 s{sINC}, 16384"); e(f"s_movk_i32 s{sINC2}, 16384"); e(f"s_mov_b32 s{sKV2}, 0")
    e(f"v_and_b32 v{T2+8}, 15, v{vLANE}"); e(f"v_lshrrev_b32 v{T2+9}, 4, v{vLANE}")
    P += kv_voff(T2+8, T2+9, T2+10) + loop_addr_setup(T2+8)
    B = []; e = B.append
    e("s_barrier")
    e(f"s_mov_b32 m0, s{sMKV}"); e("s_nop 0")
    for i in range(4): e(f"buffer_load_dwordx4 v{aKD+i}, s[{SK}:{SK+3}], s{sKV} offen offset:{1024*i} lds")
    e("s_waitcnt vmcnt(0)"); e("s_barrier")
    for f in range(16): e(rd_k(f, 0))
    e("s_waitcnt lgkmcnt(0)")
    for qt in range(4):
        B += qk_mfmas(qt, zero=True)
        e("s_nop 7")
        for i in range(8): e(f"v_max3_f32 v{MX+qt}, v{MX+qt}, v{SB+2*i}, v{SB+2*i+1}")
        e("s_nop 3")
    e(f"s_add_u32 s{sKV}, s{sKV}, 16384"); e(f"s_cmp_lt_u32 s{sKV}, 524288")
    Q = []; e = Q.append
    Q += xlane_reduce("v_max_f32", [MX+q for q in range(4)], [MX+4+q for q in range(4)])
    for qt in range(4):
        for r in range(4): e(f"v_sub_f32 v{NEGM+4*qt+r}, 0, v{MX+qt}")
    e(f"s_mov_b32 s{sPASS}, 1"); e(f"s_mov_b32 s{sKV}, 0"); e("s_barrier")
    for s_ in range(4): Q += with_m0_nops(kv_dma(s_))
    if OPT['twice']:
        B = ["s_cmp_lg_u32 s2, s2"]; Q = Q[Q.index(f"s_mov_b32 s{sPASS}, 1"):]
    return P, B, Q

def k1():
    pre = k1_setup()
    pre += k1_setup2(pre)
    if OPT['stamp']:
        pre += ["v_mov_b32 v8, s98", "v_mov_b32 v9, s100", "s_nop 1", f"buffer_store_dwordx2 v[8:9], off, s[{SST}:{SST+3}], s{sSTo}", "s_nop 1"]
        stamp_n[0] = 1
    if not OPT['fast0']:
        pre += with_m0_nops(dma_w(1, 1))
        if OPT['stpos'] == 1: pre += st_loads()
    pre += stamp(8)
    pre += [f"s_waitcnt vmcnt({vm_after(pre, ['W0', 'X0'])})", "s_barrier"]
    pre += stamp(8)
    rw = rd_e(0) + rd_x(0) + sum((rd_w(m, 0) for m in range(14)), [])
    dx = dma_x(1, 1) if not OPT['fast0'] else dma_w(1, 1)
    n_ = 3 if not OPT['fast0'] else 5
    for i, x in enumerate(dx): pre += rw[n_*i:n_*i+n_] + [x]
    pre += rw[n_*len(dx):]
    if not OPT['fast0']: pre += k1_stats(pre)
    pre += ["s_waitcnt lgkmcnt(15)"]
    carry = []; bg = k1_setup3()
    for st in range(8):
        ph, carry = gemm_phase(st, carry, bg)
        ph = resolve_waits(pre, ph)
        n, over, bad = gap_report(ph)
        if over > 1 or bad: print(f"; gemm phase {st}: gaps {n} over {over} bad {bad}", file=sys.stderr)
        pre += ph
        if OPT['stamp'] == 2 and st < 7: pre += stamp(TM+6 if st == 0 or st == 1 else SXA+6 if st < 6 else TM)
    pre += stamp(TM)
    pre += resolve_waits(pre, k1_post_gemm())
    pre += stamp(T2+24)
    eA, eC = attn_entry()
    eC += stamp(T2+24)
    d0 = [f"s_mov_b32 s{sCNT}, 0", "K1_D0LOOP:", f_load(vD0, aD0, 0), f"s_add_u32 s{sCNT}, s{sCNT}, 1", "s_sleep 4", "s_waitcnt vmcnt(0)", f_cmp(vD0),
          f"s_cmp_gt_u32 s{sCNT}, {SPIN}", "s_cbranch_scc1 K1_D0OK", "s_cbranch_vccnz K1_D0LOOP", "s_branch K1_D0OK",
          "K1_NPOLL:", f"s_mov_b32 s{sCNT}, 0", "K1_NLOOP:", f"buffer_load_dword v{TM+1}, off, s[{SDBG}:{SDBG+3}], 0 sc1", f"s_add_u32 s{sCNT}, s{sCNT}, 1",
          "s_sleep 4", "s_waitcnt vmcnt(0)", f"v_cmp_eq_u32 vcc, 0, v{TM+1}", f"s_cmp_gt_u32 s{sCNT}, {SPIN}", "s_cbranch_scc1 K1_NOK", "s_cbranch_vccnz K1_NLOOP", "s_branch K1_NOK"]
    body = []
    for jm in range(4):
        for u in range(4): body += attn_step(jm, u)
    n, over, bad = gap_report(body)
    print(f"; attn loop: gaps {n} over {over} bad {bad}", file=sys.stderr)
    bB, bC = block_b(), block_c()
    last = attn_last()
    chk = stamp(T2+24+6, True) + attn_check()
    chk = resolve_waits(last, chk)
    sP, sB_, sQ = attn_slow()
    post = stamp(98)
    p2t, p2t2, p2c = phase2(o_stream(3), last + chk + post)
    lA, lD, lB = block_l()
    if OPT['stamp'] == 4:
        body += ["s_cselect_b32 s93, 1, 0", "s_memtime s[94:95]", "s_memrealtime s[96:97]", "s_waitcnt lgkmcnt(0)", "v_mov_b32 v88, s94", "v_mov_b32 v89, s96",
                 f"s_lshl_b32 s6, s{sCNT}, 3", f"s_add_u32 s6, s6, s{sSTo}", f"buffer_store_dwordx2 v[88:89], off, s[{SST}:{SST+3}], s6 offset:160", "s_cmp_lg_u32 s93, 0"]
    m0_ = body[0]; body = body[1:] + [m0_]; eC = eC + [m0_]
    cut = body.index("s_cbranch_scc1 K1_LAST") + 1
    br = ["s_cbranch_scc1 K1_LOOP"]
    mid = [f"s_cmp_eq_u32 s{sCNT}, 7", "s_cbranch_scc1 K1_BLKL", f"s_cmp_eq_u32 s{sCNT}, {TC}", "s_cbranch_scc1 K1_BLKC"]
    J = ["s_branch K1_LOOP"]
    errs = check(pre + eC + body + br + mid + bB + J + body + br + mid + bC + J + body + br + mid[:2] + lA + lD + lB + J + body[:cut] + last + chk + post + p2t, 'k1')
    errs += check(body[:cut] + last + chk + sP + sB_ + ["s_cbranch_scc1 X"] + sB_ + ["s_cbranch_scc1 X"] + sQ + ["s_branch X"] + eA + eC + body + br + mid[:2] + lA + lB + J + body[:cut] + last + chk + post + p2t2, 'k1slow')
    assert not errs
    return (pre + ["K1_HAVEMAX:"] + eC + [".p2align 6", "K1_LOOP:"] + body + br + mid + bB + J
            + ["K1_BLKC:"] + bC + J + ["K1_BLKL:"] + lA + ["K1_D1POLL:"] + lD + ["K1_D1OK:"] + lB + J
            + ["K1_SLOW:"] + sP + ["K1_SLOWLOOP:"] + sB_ + ["s_cbranch_scc1 K1_SLOWLOOP"] + sQ + eA + ["s_branch K1_HAVEMAX"] + ["K1_D0POLL:"] + d0
            + ["K1_LAST:"] + last + chk + post + p2c + ["K1_END:", "s_endpgm"])

def phase2(epi, before):
    NH = 6; NST = 22
    FR = 128
    SA = 0; DA = 128
    T = 88; STV = 98
    PKD = 192; RXD = 216; PKS = 192; RXS = 216
    sAo, sWo = sX0, sX1
    SIGI, POLLI = OPT['sigi'], OPT['polli']
    nk = lambda st: 1 if st == 4 else 2
    slot = {}
    for st in range(4): slot[('w', st)] = st; slot[('a', st)] = 4 + st
    slot[('w', 4)] = 8; slot[('a', 4)] = 9
    free = []
    nxt = {'w': 5, 'a': 5}
    def dma(kind):
        st = nxt[kind]; nxt[kind] += 1
        sl = free.pop(0); slot[(kind, st)] = sl
        X = [f"s_add_u32 m0, s{sMKV}, {sl*16384}"]
        if kind == 'a':
            for i in range(4): X.append(f"buffer_load_dwordx4 v{aL16}, s[{P2ACT}:{P2ACT+3}], s{sAo} offen offset:{1024*i} sc1 lds ; @{kind}{st}")
            X.append(f"s_add_u32 s{sAo}, s{sAo}, 8192" if st != NH - 1 else f"s_lshl_b32 s{sAo}, s{sSP}, 17")
        else:
            sr = SWD if st < NH else SWO
            for i in range(4): X.append(f"buffer_load_dwordx4 v{aKD+i}, s[{sr}:{sr+3}], s{sWo} offen offset:{1024*i} lds ; @{kind}{st}")
            X.append(f"s_add_u32 s{sWo}, s{sWo}, 65536" if st != NH - 1 else f"s_lshl_b32 s{sWo}, s{sSP}, 20")
        return X
    done = list(before)
    S = ["s_mov_b64 exec, 1", f"buffer_store_dword v{T}, off, s[{SWS}:{SWS+3}], s{sW2S} offset:8 sc1", "s_mov_b64 exec, -1"]
    FLD = f_load(vFL, aFL, 2)
    P = [FLD, f"s_add_u32 s{sCNT}, s{sCNT}, 1", "s_waitcnt vmcnt(0)",
         f_cmp(vFL), f"s_cmp_gt_u32 s{sCNT}, {SPIN}", "s_cbranch_scc1 P2_GO", "s_cbranch_vccnz P2_POLL"]
    q = list(epi); e = q.append
    q2 = []; e = q2.append
    for i in range(4):
        e(f"v_add_u32 v{aA+8+i}, 65536, v{aA+4+i}"); e(f"v_add_u32 v{aW+8+i}, 131072, v{aW+i}")
    for i in range(4):
        e(f"v_subrev_u32 v{aA+i}, 65536, v{aA+4+i}"); e(f"v_add_u32 v{aW+4+i}, 65536, v{aW+i}")
    e(f"v_and_b32 v{T+1}, 7, v{vLANE}"); e(f"v_lshl_add_u32 v{T+1}, s{sSP}, 3, v{T+1}")
    q2 += bid_of(aFL, T+1, f"s{sFQB}", T+2)
    if OPT['lpz']:
        q2 += ["s_and_b32 s6, s2, 0xfc", f"v_and_b32 v{T+1}, 3, v{vLANE}", f"v_add_u32 v{T+1}, s6, v{T+1}", f"v_lshlrev_b32 v{T+1}, 7, v{T+1}", f"v_add_u32 v{aPF}, {FLAG_OFF}, v{T+1}"]
    q2 += srd(P2X, sXP, sXP+1, 2048*1024) + srd(P2OUT, sOUT, sOUT+1, 2048*1024)
    e(f"v_and_b32 v{T+1}, 15, v{vLANE}"); e(f"v_lshrrev_b32 v{T+2}, 4, v{vLANE}"); e(f"v_lshlrev_b32 v{T+1}, 10, v{T+1}"); e(f"v_lshl_add_u32 v{aXO}, v{T+2}, 3, v{T+1}")
    part_soff(e, 49, False)
    e(f"v_mov_b32 v{T}, s{sNON}")
    L = []; e = L.append
    e(f"s_add_u32 s{sAo}, s{sKV2}, 4096"); e(f"s_add_u32 s{sWo}, s{sKV}, 32768")
    def reads(st):
        X = []
        for kk in range(nk(st)):
            b = FR + (st & 1)*64 + kk*32
            hw, lw = divmod(slot[('w', st)]*16384 + kk*8192, 65536)
            ha, la = divmod(slot[('a', st)]*16384 + kk*8192, 65536)
            for i in range(4):
                if not (NH <= st < NH + OPT['nrs']):
                    for hh in range(2): X.append(f"ds_read_b64_tr_b16 {a(b+4*i+2*hh,2)}, v{aW+4*hw+i} offset:{lw+2048*hh}")
                X.append(f"ds_read_b128 {a(b+16+4*i,4)}, v{aA+4*ha+i} offset:{la}")
        return X
    def mfmas(st):
        X = []
        b = FR + (st & 1)*64; acc = DA if st < NH else SA
        for qt in (1, 2, 3, 0):
            for ct in range(4):
                d = v(acc+(ct*4+qt)*4, 4)
                for kk in range(nk(st)):
                    wf = (st-NH)*32 + kk*16 + 4*ct if NH <= st < NH + OPT['nrs'] else b+kk*32+4*ct
                    X.append(f"{MF} {d}, {a(wf,4)}, {a(b+kk*32+16+4*qt,4)}, {'0' if (st in (0, NH) and kk == 0) else d}")
        return X
    def pack(acc, pk, i):
        X = []
        for ct in range(4):
            x = acc + (ct*4+i)*4; d = pk + (i-1)*8 + 2*ct
            X += [f"v_cvt_pk_bf16_f32 v{d}, v{x}, v{x+1}", f"v_cvt_pk_bf16_f32 v{d+1}, v{x+2}, v{x+3}"]
        return X
    def pst(pk, i, half): return [f"buffer_store_dwordx4 {v(pk+(i-1)*8+4*j,4)}, v{aL16}, s[{P2PART}:{P2PART+3}], s{sPS+i-1} offen offset:{2048*half+1024*j} sc1" for j in range(2)]
    rD = lambda i, k: RXD + i*8 + k
    rS = lambda i, k: SA + ((k >> 2)*4 + i + 1)*4 + (k & 3)
    def pld(rx, half): return [f"buffer_load_dwordx4 {v(rx(i, 4*j),4)}, v{aL16}, s[{P2PART}:{P2PART+3}], s{49+i} offen offset:{2048*half+1024*j} sc1" for i in range(3) for j in range(2)]
    def pchk(rx):
        R = [rx(i, k) for i in range(3) for k in range(8)]
        X = [f"v_max3_u32 v{T}, v{R[0]}, v{R[1]}, v{R[2]}", f"v_max3_u32 v{T+1}, v{R[3]}, v{R[4]}, v{R[5]}"]
        for k in range(6, 24, 2): X.append(f"v_max3_u32 v{T+(k//2)%2}, v{T+(k//2)%2}, v{R[k]}, v{R[k+1]}")
        return X + [f"v_max_u32 v{T}, v{T}, v{T+1}", f"v_cmp_eq_u32 vcc, -1, v{T}"]
    segs = []
    NRS = OPT['nrs']
    staged = list(range(NH, NH + NRS)); half = (NRS + 1) // 2
    def stage_reads(st):
        X = []
        for kk in range(2):
            hw, lw = divmod(slot[('w', st)]*16384 + kk*8192, 65536)
            for i in range(4):
                for hh in range(2): X.append(f"ds_read_b64_tr_b16 {a((st-NH)*32+kk*16+4*i+2*hh,2)}, v{aW+4*hw+i} offset:{lw+2048*hh}")
        return X
    def body(mf, rd, dm, last=False):
        nonlocal q
        n = len(mf); gaps = [[] for _ in mf]
        ev = list(range(0, n - 6, 2)); od = list(range(1, n, 2))
        per = -(-len(rd) // len(ev)) if rd else 0
        per = max(per, 2)
        for k, x in enumerate(rd): gaps[ev[k // per]].append(x)
        nv = sum(x.startswith('buffer') for x in dm)
        if OPT['spread'] and 0 < nv <= len(od) - 1:
            ps = [1 + (k * (len(od) - 1)) // nv for k in range(nv)]
            k = 0; pend = []
            for x in dm:
                if x.startswith('buffer'):
                    p = ps[k]; k += 1
                    if pend:
                        if p - 1 not in ps: gaps[od[p-1]] += pend
                        else: gaps[od[p] - 1] += pend
                        pend = []
                    gaps[od[p]].append(x)
                else: pend.append(x)
            gaps[min(od[ps[-1]] + 1, n - 1)] += pend
        else:
            ng = sum('m0,' in x for x in dm)
            roomy = nv + ng <= len(od)
            pv = 1 if roomy else -(-nv // len(od))
            gi = 0; cnt = 0
            for x in dm:
                if x.startswith('buffer'):
                    gaps[od[gi]].append(x); cnt += 1
                    if cnt == pv: gi = min(gi + 1, len(od) - 1); cnt = 0
                else:
                    gaps[od[gi]].append(x)
                    if 'm0,' in x:
                        if roomy: gi += 1
                        else: gaps[od[gi]].append("s_nop 0")
        if last:
            for i in (1, 2):
                for k, x in enumerate(pack(last[0], last[1], i)): gaps[8*i + 4 + k//2].append(x)
                if last[2] is not None:
                    for k, x in enumerate(pst(last[1], i, last[2])): gaps[8*i + 8 + k].insert(0, x)
        if q: fill(gaps, q, 0, OPT['ecap'])
        elif q2: fill(gaps, q2, 0, 2)
        return weave(mf, gaps)
    def sync(tags):
        n = vm_after(done + L, tags)
        return ["s_waitcnt " + (f"vmcnt({n}) " if n is not None else "") + "lgkmcnt(0)", "s_barrier"]
    L += reads(0)
    while Ins(q[0]).kind != 'vst': L.append(q.pop(0))
    for st in range(1, NH + 1):
        if st == min(SIGI, 4): L += q + q2; q = []; del q2[:]
        sr = staged[:half] if st == NH - 1 else staged[half:] if st == NH else []
        L += sync(([f"a{st}", f"w{st}"] if st < NH else []) + (['o'] if st == SIGI else []) + [f"w{s_}" for s_ in sr] + (['f'] if st == NH and OPT['ea'] else []))
        free += [slot[('w', st-1)], slot[('a', st-1)]]
        if st == NH: free += [slot[('w', s_)] for s_ in staged[:half]]
        if st == SIGI:
            L += [f"s_cmp_lg_u32 s{sW}, 0", "s_cbranch_scc1 P2_NOSIG"]
            segs.append(L); done += L; L = stamp(STV); e = L.append
        rd = (reads(st) if st < NH else []) + sum((stage_reads(s_) for s_ in sr), [])
        dm = []
        if st == 1: L += with_m0_nops(dma('w') + dma('a'))
        elif st >= OPT['dstart']:
            while len(free) > 0 and nxt['w'] < NH + OPT['wpre'] and len(dm) < OPT['dmax']*6: dm += dma('w')
        EA = OPT['ea']
        if st == NH - (1 if EA else 0): dm = [FLD + " ; @f"] + dm
        if st == NH and EA:
            L += [f_cmp(vFL), f"s_mov_b32 s{sT0}, s{sAo}", "s_cmp_eq_u64 vcc, 0", f"s_cselect_b32 s{P2ACT+2}, s{sSZ2}, 0"]
            ea = []
            for _ in range(OPT['a0']): ea += dma('a')
            dm = [x.split(' ; @')[0] for x in ea] + dm
        if st == NH and OPT['xearly']: dm += [f"buffer_load_dwordx2 {v(XR+2*ct,2)}, v{aXO}, s[{P2X}:{P2X+3}], s{sXO} offen offset:{32*ct}" for ct in range(4)]
        assert not (q and sr)
        L += body(mfmas(st - 1), rd, dm, last=(DA, PKD, None) if st == NH else False)
    L += pack(DA, PKD, 3)
    dst = pst(PKD, 1, 1) + pst(PKD, 2, 1) + pst(PKD, 3, 1)
    if not EA:
        L += sync(['f'])
        free += [slot[('w', s_)] for s_ in staged[half:]]
        L += [f_cmp(vFL), f"s_mov_b32 s{sCNT}, 0", f"v_mov_b32 v{T+1}, v{aL16}", "s_cbranch_vccz P2_GO"]
        segs.append(L); done += L
        segs.append(dst + [f"v_mov_b32 v{T+1}, {OOB}"])
        R = []
        L = stamp(STV); e = L.append
        for _ in range(OPT['a0']): L += with_m0_nops(dma('a'))
    else:
        if OPT['dst0'] == 0: L += dst; dst = []
        L += [f"s_mov_b32 s{sCNT}, 0", f"v_mov_b32 v{T+1}, v{aL16}", f"s_cmp_lg_u32 s{P2ACT+2}, 0", "s_cbranch_scc1 P2_RUN"]
        segs.append(L); done += L
        segs.append(dst + [f"v_mov_b32 v{T+1}, {OOB}", f"s_mov_b32 s{P2ACT+2}, s{sSZ2}", f"s_mov_b32 s{sAo}, s{sT0}"])
        R = with_m0_nops(ea)
        done += [x for x in R if x.startswith('buffer')]
        L = stamp(STV); e = L.append
    dst = [x.replace(f"v{aL16},", f"v{T+1},") for x in dst]
    eatail = 0
    for st in range(NH, NST + 1):
        dm = []; rd = []
        if st < NST:
            if OPT['ea'] and st == NH: L += ["s_waitcnt vmcnt(%d) lgkmcnt(0)" % min(4*(OPT['a0']-1), eatail + 4*(OPT['a0']-1)), "s_barrier"]; free += [slot[('w', s_)] for s_ in staged[half:]]
            else: L += sync([f"a{st}", f"w{st}"] + (['pf'] if st == NST - 2 else []))
            if st > NH:
                free += [slot[('a', st-1)]] + ([slot[('w', st-1)]] if st-1 not in staged else [])
            rd = reads(st)
            def more():
                if st == NH: return len(dm) < 6*OPT['a1']
                if min(nxt['a'], nxt['w']) <= st + OPT['la']: return True
                return len(dm) < 6*OPT['gmax'] and (nxt['a'] + nxt['w'] - base) * 100 < OPT['pace'] * (st - NH)
            if st == NH + 1: base = nxt['a'] + nxt['w']
            while free and (nxt['a'] < NST or nxt['w'] < NST) and more():
                k = 'a' if (nxt['a'] <= nxt['w'] + OPT['alead'] or nxt['w'] >= NST) and nxt['a'] < NST else 'w'
                dm += dma(k)
            if st >= OPT['dst0'] and dst: dm += dst[:2]; dst = dst[2:]
            if st == NST - 3 and not OPT['xearly']: dm += [f"buffer_load_dwordx2 {v(XR+2*ct,2)}, v{aXO}, s[{P2X}:{P2X+3}], s{sXO} offen offset:{32*ct}" for ct in range(4)]
            if OPT['lpz'] and st == NST - 5: dm += [f_load(vPF, aPF, 2) + " ; @pf"]
            if OPT['lpz'] and st == NST - 2:
                L += [f_cmp(vPF), f"s_mov_b32 s{sCNT}, 0", "s_cbranch_vccnz P2_PFPOLL", "P2_PFOK:"]
            if st == NST - 2: dm += pld(rD, 1)
        else:
            L += ["s_waitcnt lgkmcnt(0)"]
        if (OPT['stamp'] == 5 and st % 2 == 0) or (OPT['stamp'] == 6 and st in (10, 14, 17, 19, 21)): L += stamp(STV)
        if st == NH: L += rd + with_m0_nops(dm)
        else: L += body(mfmas(st - 1), rd, dm, last=(SA, PKS, 0) if st == NST else False)
    L += stamp(STV)
    L += pack(SA, PKS, 3) + pst(PKS, 3, 0)
    if OPT['searly'] == 1: L += pld(rS, 0)
    e(f"s_mov_b32 s{sCNT}, 0"); e(f"s_waitcnt vmcnt({12 if OPT['searly'] == 1 else 6})")
    L += pchk(rD); e("s_cbranch_vccz P2_DOK")
    XD = pld(rD, 1) + [f"s_add_u32 s{sCNT}, s{sCNT}, 1", "s_waitcnt vmcnt(0)"] + pchk(rD) + [f"s_cmp_gt_u32 s{sCNT}, {SPIN}", "s_cbranch_scc1 P2_DOK", "s_cbranch_vccnz P2_DPOLL"]
    M = []; e = M.append
    def accum(acc, rx, ct):
        for i in range(3):
            for h in range(2):
                p = rx(i, 2*ct + h)
                e(f"v_lshlrev_b32 v{T+2*h}, 16, v{p}"); e(f"v_and_b32 v{T+2*h+1}, s{sMASK}, v{p}")
            for h in range(2): e(f"v_pk_add_f32 {v(acc+ct*16+2*h,2)}, {v(acc+ct*16+2*h,2)}, {v(T+2*h,2)}")
    for ct in range(4): accum(DA, rD, ct)
    light = OPT['searly'] == 2
    LP = [f"buffer_load_dword v{T+4+i}, off, s[{P2PART}:{P2PART+3}], s{49+i} offset:2044 sc1" for i in range(3)]
    LC = [f"v_max3_u32 v{T+4}, v{T+4}, v{T+5}, v{T+6}", f"v_cmp_eq_u32 vcc, -1, v{T+4}"]
    if not OPT['searly']: M += pld(rS, 0)
    for ct in range(4):
        D_ = DA + ct*16; T_ = D_ + 4; X_ = D_ + 8
        for r in range(4): e(f"v_mul_f32 v{T_+r}, {f2u(-LOG2E)}, v{D_+r}")
        for r in range(4): e(f"v_exp_f32 v{T_+r}, v{T_+r}")
        e(f"v_lshlrev_b32 v{X_}, 16, v{XR+2*ct}"); e(f"v_and_b32 v{X_+1}, s{sMASK}, v{XR+2*ct}")
        for r in range(4): e(f"v_add_f32 v{T_+r}, 1.0, v{T_+r}")
        for r in range(4): e(f"v_rcp_f32 v{T_+r}, v{T_+r}")
        e(f"v_lshlrev_b32 v{X_+2}, 16, v{XR+1+2*ct}"); e(f"v_and_b32 v{X_+3}, s{sMASK}, v{XR+1+2*ct}")
        for h in (0, 2): e(f"v_pk_mul_f32 {v(T_+h,2)}, {v(T_+h,2)}, {v(D_+h,2)}")
    e(f"s_mov_b32 s{sCNT}, 0")
    if light:
        M += ["P2_LPOLL:"] + LP + [f"s_add_u32 s{sCNT}, s{sCNT}, 1"] + ([f"s_sleep {OPT['slp']}"] if OPT['slp'] else []) + ["s_waitcnt vmcnt(0)"] + LC
        M += [f"s_cmp_gt_u32 s{sCNT}, {SPIN}", "s_cbranch_scc1 P2_SPOLL", "s_cbranch_vccnz P2_LPOLL"]
    else:
        e("s_waitcnt vmcnt(0)")
        M += pchk(rS); e("s_cbranch_vccz P2_FIN")
    XS = pld(rS, 0) + [f"s_add_u32 s{sCNT}, s{sCNT}, 1", "s_waitcnt vmcnt(0)"] + pchk(rS) + [f"s_cmp_gt_u32 s{sCNT}, {SPIN}", "s_cbranch_scc1 P2_FIN", "s_cbranch_vccnz P2_SPOLL"]
    F = []; e = F.append
    F += stamp(STV)
    for ct in range(4):
        accum(SA, rS, ct)
        S_ = SA + ct*16; T_ = DA + ct*16 + 4; X_ = T_ + 4
        for h in (0, 2): e(f"v_pk_fma_f32 {v(X_+h,2)}, {v(S_+h,2)}, {v(T_+h,2)}, {v(X_+h,2)}")
        e(f"v_cvt_pk_bf16_f32 v{S_}, v{X_}, v{X_+1}"); e(f"v_cvt_pk_bf16_f32 v{S_+1}, v{X_+2}, v{X_+3}")
        e(f"buffer_store_dwordx2 {v(S_,2)}, v{aXO}, s[{P2OUT}:{P2OUT+3}], s{sXO} offen offset:{32*ct}")
    if OPT['stamp']: F += ["s_waitcnt vmcnt(0)"] + stamp(STV, True)
    if OPT['echo']:
        F += ["s_waitcnt vmcnt(0)"] + stamp(STV) + ["s_memrealtime s[94:95]", "s_waitcnt lgkmcnt(0)", "s_sub_u32 s97, s97, s96", "s_mov_b32 s96, s94",
              "ECHO_LOOP:", "s_memrealtime s[94:95]", "s_waitcnt lgkmcnt(0)", "s_sub_u32 s94, s94, s96", "s_cmp_lt_u32 s94, s97", "s_cbranch_scc1 ECHO_LOOP"]
        print("; echo markers:", echo_n[0], file=sys.stderr)
    assert len(segs) == 3
    trace = segs[0] + segs[1] + L + M + (XS if light else []) + F
    trace2 = segs[0] + S + segs[1] + segs[2] + P + P + R + L + XD + M + XS + F
    code = (segs[0] + S + ["P2_NOSIG:"] + segs[1] + segs[2] + ["P2_POLL:"] + P + ["P2_GO:"] + R + ["P2_RUN:"] + L
            + ["P2_DPOLL:"] + XD + ["P2_DOK:"] + M + ["P2_SPOLL:"] + XS + ["P2_FIN:"] + F + ["s_endpgm", "P2_PFPOLL:", f_load(vPF, aPF, 2), f"s_add_u32 s{sCNT}, s{sCNT}, 1", "s_waitcnt vmcnt(0)",
               f_cmp(vPF), f"s_cmp_gt_u32 s{sCNT}, {SPIN}", "s_cbranch_scc1 P2_PFOK", "s_cbranch_vccnz P2_PFPOLL", "s_branch P2_PFOK"])
    return trace, trace2, code

def kd(name, nv, acc, ns=102):
    return f""".amdhsa_kernel {name}
  .amdhsa_next_free_vgpr {nv}
  .amdhsa_next_free_sgpr {ns}
  .amdhsa_accum_offset {acc}
  .amdhsa_group_segment_fixed_size 0
  .amdhsa_kernarg_size 96
  .amdhsa_user_sgpr_count 2
  .amdhsa_user_sgpr_kernarg_segment_ptr 1
  .amdhsa_system_sgpr_workgroup_id_x 1
.end_amdhsa_kernel
"""
def fmt(L): return "\n".join(x if (x.endswith(':') or x.startswith('.')) else "    " + x for x in L)

NAME = "recurrent_scan__gqa_block_cached__glu_gated_glu__prompt_kernel"
HEAD = f"""; One persistent launch (256 workgroups, one per CU): LayerNorm + Q-projection + GLU-up, attention, out/down projection + gating.
; Kernarg layout (96 bytes): 0 A_x, 8 A_k_cache, 16 A_v_cache, 24 A_wq, 32 A_wo, 40 B_x, 48 B_w_gate, 56 B_w_up,
; @launch grid=(256,1,1) block=(256,1,1) lds=163840
.amdgcn_target "amdgcn-amd-amdhsa--gfx950"
.text
"""
def kern(name, L):
    return f".globl {name}\n.p2align 8\n.type {name},@function\n{name}:\n" + fmt(L) + "\n"
src = HEAD + kern(NAME, k1())
src += '.section .rodata,"a"\n.p2align 6\n' + kd(NAME, 512, 256)
open(sys.argv[1], "w").write(src)
```

```python
import sys, os, struct
sys.path.insert(0, os.path.dirname(os.path.abspath(__file__)))
from asmlib import *

OPT = dict(stamp=0, wgap=4, thr=40, cpf=1, rot=8, stpos=0, barg0=47, pois=45, sched=4, sq=1, opk=1, lcap=4, xw=60, xg=30, kvs=0, d0g=70, pstep=12, ecap=40, sigi=4, polli=6, dstart=2, searly=3, a0=4, a1=1, gmax=2, dst0=9, pace=175, aoff=0, poff=24, base=120, twice=0, wpf=1, spread=1, ea=1, xearly=0, fast0=1, xg0=56, pzq=1, lpz=1, outm=0, pre0=1, gub=15, w1late=0, gulate=1, st0=4, ownlast=4, guz=1, gsn=1, kvpf=0, echo=0, la=3, slp=0, dmax=2, fearly=1, dlate=5, kvsc=1, wpre=8, nrs=4, alead=0)
for arg in sys.argv[2:]:
    k_, v_ = arg.split('='); OPT[k_] = int(v_)

MF = "v_mfma_f32_16x16x32_bf16"
TB, TC = 1, 5
NKS = 171
ACT_RB = NKS * 4096
WT_OFF = 24 << 20
FLAG_OFF = 31 << 20
PART_OFF = 32 << 20
STAMP_OFF = 64 << 20
STAT_OFF = 30 << 20
CS_OFF = STAT_OFF + 65536
OOB = '0x40000000'
BASE = OPT['base'] << 20
ACT_OFF = BASE + (OPT['aoff'] << 10)
PART_OFF = BASE + (OPT['poff'] << 20)
STAT_OFF = BASE + (22 << 20); CS_OFF = STAT_OFF + 65536; FLAG_OFF = BASE + (23 << 20)
LOG2E = 1.4426950408889634
SCALE = LOG2E / (128 ** 0.5)
def f2u(x): return "0x%08x" % struct.unpack('<I', struct.pack('<f', x))[0]

sW, sHEAD, sQB = 3, 4, 5
SK, SV, SX, SWQ, SGU, SACT, SWO, SWD, SWT = 8, 12, 16, 20, 24, 28, 32, 36, 40
sX0, sX1, sWQo, sGUo, sKV = 44, 45, 46, 47, 48
sMX, sMWQ, sMGU, sMKV, sMW2 = 49, 50, 51, 52, 53
sCNT, sMASK, sT0, sT1, sT2, sPASS = 54, 55, 56, 57, 58, 59
sH0 = 60
sW2S = 63
SWS = 88
SDBG = 84
SST = SWS; sSTo = 92
sXP, sA2, sOUT = 64, 66, 82
sPS = 40
sPZ, sPZD = 46, 47
sNON = 62
sKV2 = 43; sINC2 = 58; sPFo = 68
sP2, sCSo, sSTAo = 70, 71, 93
sSP, sSZ2, sXO, sINC, sFQB = 74, 75, 76, 77, 78
P2ACT, P2WT, P2X, P2OUT = 12, 8, 16, 20
P2PART = SFLAG = SWS
sKVB = 98
CHK_LDS = 8*16384 + 8192
def srd(d, lo, hi, size):
    return [f"s_mov_b32 s{d}, s{lo}", f"s_mov_b32 s{d+1}, s{hi}", f"s_mov_b32 s{d+2}, {size}", f"s_mov_b32 s{d+3}, 0x00020000"]

stamp_n = [0]
echo_n = [0]
def stamp(tmpv, force=False):
    if OPT['echo']:
        echo_n[0] += 1
        return ["s_memrealtime s[94:95]", "s_waitcnt lgkmcnt(0)", "s_mov_b32 s97, s94"] if echo_n[0] == OPT['echo'] else []
    if not OPT['stamp'] or (OPT['stamp'] == 9 and not force): return []
    n = stamp_n[0]; stamp_n[0] += 1
    return ["s_memtime s[94:95]", "s_memrealtime s[96:97]", "s_waitcnt lgkmcnt(0)",
            f"v_mov_b32 v{tmpv}, s94", f"v_mov_b32 v{tmpv+1}, s96", "s_nop 1",
            f"buffer_store_dwordx2 v[{tmpv}:{tmpv+1}], off, s[{SST}:{SST+3}], s{sSTo} offset:{n*8}", "s_nop 1"]

def units(xs): return sum(UNITS[Ins(x).kind] for x in xs)
class Gaps:
    def __init__(self, n, cap=2):
        self.pre = [[] for _ in range(n)]
        self.post = [[] for _ in range(n)]
        self.cap = cap; self.n = n
    def used(self, g): return units(self.pre[g] + self.post[g])
    def put(self, g, text, force=False):
        k = Ins(text).kind
        assert force or self.used(g) + UNITS[k] <= self.cap, (g, text, self.pre[g], self.post[g])
        (self.post if k in ('valu', 'trans') else self.pre)[g].append(text)
    def fit(self, g0, text, g1=None):
        k = UNITS[Ins(text).kind]
        for g in range(g0, self.n if g1 is None else g1):
            if self.used(g) + k <= self.cap:
                self.put(g, text); return g
        return None
    def stream(self, g, q, g1=None):
        g1 = self.n if g1 is None else g1
        while q:
            k = 1
            while k < len(q) and q[k].split()[0] in ('s_addc_u32', 's_cselect_b32', 's_cselect_b64'): k += 1
            grp = q[:k]; u = units(grp)
            mem = Ins(grp[0]).kind in ('dsr', 'dsw', 'vld', 'vst', 'dma')
            while g < g1 and not ((self.used(g) + u <= self.cap or (u > self.cap and self.used(g) == 0))
                                  and not (mem and any(Ins(x).kind in ('valu', 'trans') for x in self.post[g]))): g += 1
            if g >= g1: return g
            self.post[g] += grp; del q[:k]
        return g
    def out(self): return [p + q for p, q in zip(self.pre, self.post)]

def vm_after(trace, tags):
    ops = [x for x in trace if Ins(x).kind in ('dma', 'vld', 'vst')]
    idx = [i for i, x in enumerate(ops) if any(x.endswith('@' + t) for t in tags)]
    return None if not idx else len(ops) - 1 - max(idx)

XF = 0
SXA = 64
TM = 80; aWQR = 88; ONES = 96
aXD = 100; aWQD = 104; aGUD = 108; aXR = 112; aWQC = 114; aGUR = 116; aGUC = 117
aL16 = 118; aCS = 112; aKD = 120; aVD = 124; vLANE = 126; aGUR2 = 127; vSP = 127
vD1 = 114; vIDX = 119
QACC = 128
GUA = 0; CSA = 96; WF = 128
def EFr(tl, ks): return (112 if tl < 2 else 224) + (tl*2+ks)*4
def gua(zt, qt): return GUA + (qt*6+zt)*4
QF = 0; KF = 128; SB = 192; PB = 208; NEGM = 224; LACC = 240
aKR = 100; aVR = 104; aW2R = 112; T2 = 64
OACC = 0; VF = 128
aPF = 114; vPF = 115
aA = 64; aW = 76; aXO = 112; XR = 100; aFL = 116; vFL = 117

def k1_setup():
    L = []; e = L.append
    e("s_cmp_ge_u32 s2, 256"); e("s_cbranch_scc1 K1_END")
    if OPT['stamp']: e("s_memtime s[98:99]"); e("s_memrealtime s[100:101]")
    if OPT['echo']: e("s_memrealtime s[96:97]")
    e("s_load_dwordx16 s[64:79], s[0:1], 0"); e("s_load_dwordx8 s[80:87], s[0:1], 64")
    l = vLANE
    e("v_lshrrev_b32 v1, 6, v0"); e(f"v_and_b32 v{l}, 63, v0"); e(f"v_readfirstlane_b32 s{sW}, v1")
    e("s_and_b32 s6, s2, 7"); e("s_lshr_b32 s7, s2, 3")
    e(f"s_lshl_b32 s{sHEAD}, s6, 2"); e(f"s_and_b32 s{sT0}, s7, 3"); e(f"s_add_u32 s{sHEAD}, s{sHEAD}, s{sT0}")
    e(f"s_lshr_b32 s{sQB}, s7, 2")
    if OPT['cpf']:
        e(f"s_getpc_b64 s[{SWO}:{SWO+1}]"); e("KPC:"); e(f"s_mov_b32 s{SWO+2}, K1_END-KPC"); e(f"s_mov_b32 s{SWO+3}, 0x00020000")
        e(f"s_lshl_b32 s{sT0}, s7, 2"); e(f"s_add_u32 s{sT0}, s{sT0}, s{sW}"); e(f"s_lshl_b32 s{sT0}, s{sT0}, 7")
        e(f"v_lshlrev_b32 v12, 14, v{l}")
        e(f"buffer_load_dword v16, v12, s[{SWO}:{SWO+3}], s{sT0} offen")
    e(f"v_and_b32 v1, 15, v{l}"); e(f"v_lshrrev_b32 v2, 4, v{l}"); e("v_lshrrev_b32 v3, 2, v1"); e(f"v_and_b32 v4, 3, v{l}")
    e(f"v_lshrrev_b32 v5, 3, v{l}"); e(f"v_and_b32 v6, 7, v{l}"); e(f"v_lshlrev_b32 v{aL16}, 4, v{l}")
    e("v_lshlrev_b32 v7, 1, v2"); e("v_xor_b32 v7, v7, v1")
    e(f"s_lshl_b32 s6, s{sW}, 4"); e("v_add_u32 v8, s6, v2"); e("v_lshlrev_b32 v9, 13, v8")
    for i in range(4):
        e(f"v_xor_b32 v10, {8*(i>>1)}, v7"); e("v_lshl_add_u32 v10, v10, 4, v9"); e(f"v_add_u32 v{aWQD+i}, {31744*i}, v10")
    e("v_lshrrev_b32 v7, 1, v5"); e("v_xor_b32 v7, v7, v6"); e("v_lshlrev_b32 v8, 10, v5")
    for i in range(4):
        e(f"v_xor_b32 v9, {4*(i&1)}, v7"); e("v_lshl_add_u32 v9, v9, 4, v8"); e(f"v_add_u32 v{aXD+i}, {7168*i}, v9")
    e(f"s_lshl_b32 s{sMX}, s{sW}, 13"); e(f"s_lshl_b32 s{sMKV}, s{sW}, 12"); e(f"s_add_u32 s{sMWQ}, s{sMKV}, 65536")
    e(f"s_add_u32 s{sMGU}, s{sMKV}, 81920")
    R = OPT['rot']
    e(f"s_and_b32 s6, s{sQB}, {R-1}"); e(f"s_mul_i32 s6, s6, {8//R}")
    e(f"s_lshl_b32 s{sX0}, s6, 7"); e(f"s_add_u32 s{sX1}, s{sX0}, 32768"); e(f"s_lshl_b32 s{sWQo}, s6, 19"); e(f"s_mul_i32 s{sGUo}, s6, {64*2752}")
    e(f"s_lshl_b32 s{sT1}, s{sQB}, 5"); e(f"s_add_u32 s{sT1}, s{sT1}, s{sHEAD}"); e(f"s_lshl_b32 s{sT1}, s{sT1}, 2"); e(f"s_add_u32 s{sT1}, s{sT1}, s{sW}")
    e(f"s_lshl_b32 s{sT2}, s{sT1}, 11")
    e("s_waitcnt lgkmcnt(0)")
    e(f"s_lshl_b32 s6, s{sHEAD}, 8"); e(f"s_add_u32 s{SWQ}, s70, s6"); e(f"s_addc_u32 s{SWQ+1}, s71, 0")
    e(f"s_sub_u32 s{SWQ+2}, {512*8192}, s6"); e(f"s_mov_b32 s{SWQ+3}, 0x00020000")
    L += with_m0_nops(dma_w(0, 0)[:5])
    e(f"s_lshl_b32 s6, s{sQB}, 2"); e(f"s_add_u32 s6, s6, s{sW}"); e("s_lshl_b32 s7, s6, 16")
    e(f"s_add_u32 s{SX}, s64, s7"); e(f"s_addc_u32 s{SX+1}, s65, 0"); e(f"s_mov_b32 s{SX+2}, 65536"); e(f"s_mov_b32 s{SX+3}, 0x00020000")
    L += with_m0_nops(dma_x(0, 0))
    e(f"s_and_b32 s6, s{sW}, 1"); e(f"s_mul_i32 s6, s6, {32*2752}"); e("s_movk_i32 s7, 2752")
    for par in range(2):
        e(f"v_subrev_u32 v9, {8*par}, v{l}"); e("v_cmp_gt_u32 vcc, 48, v9")
        e("v_mul_u32_u24 v10, 171, v9"); e("v_lshrrev_b32 v10, 10, v10")
        e("v_mul_u32_u24 v11, 6, v10"); e("v_sub_u32 v11, v9, v11"); e("v_lshlrev_b32 v11, 4, v11")
        e("v_mad_u32_u24 v11, v10, s7, v11"); e("v_add_u32 v11, s6, v11"); e(f"v_mov_b32 v10, {OOB}")
        e("v_cndmask_b32 v11, v10, v11, vcc")
        for i in (par, par+2): e(f"v_add_u32 v{aGUD+i}, {(8*2752-1024)*i}, v11")
    e(f"s_cmp_ge_u32 s{sW}, 2"); e("s_cselect_b32 s76, s78, s76"); e("s_cselect_b32 s77, s79, s77")
    e(f"s_mul_i32 s6, s{sHEAD}, 96"); e(f"s_add_u32 s{SGU}, s76, s6"); e(f"s_addc_u32 s{SGU+1}, s77, 0")
    e(f"s_sub_u32 s{SGU+2}, {512*2752}, s6"); e(f"s_mov_b32 s{SGU+3}, 0x00020000")
    if OPT['guz']: e(f"s_cmp_ge_u32 s{sHEAD}, 29"); e(f"s_cselect_b32 s{SGU+2}, 0, s{SGU+2}")
    if not OPT['gulate']: L += with_m0_nops(dma_w(0, 0)[5:])
    L += srd(SWD, 64, 65, 2048*1024)
    if OPT['stpos'] == 0 and not OPT['fast0']: L += st_loads()
    return L
def st_loads():
    b = 64 if OPT['fast0'] else 40
    return [f"buffer_load_dwordx4 {v(b,4)}, v{aL16}, s[{SWD}:{SWD+3}], s{sT2} offen", f"buffer_load_dwordx4 {v(b+4,4)}, v{aL16}, s[{SWD}:{SWD+3}], s{sT2} offen offset:1024 ; @st"]
def stats_stream():
    L = []; e = L.append
    for rw in range(2):
        s_, q_ = 72+2*rw, 73+2*rw
        for k in range(4):
            x = 64+4*rw+k; t = 76 + 2*(k & 1)
            e(f"v_lshlrev_b32 v{t}, 16, v{x}"); e(f"v_and_b32 v{t+1}, 0xffff0000, v{x}")
            if k == 0: e(f"v_add_f32 v{s_}, v{t}, v{t+1}"); e(f"v_mul_f32 v{q_}, v{t}, v{t}")
            else: e(f"v_add_f32 v{s_}, v{s_}, v{t}"); e(f"v_fmac_f32 v{q_}, v{t}, v{t}"); e(f"v_add_f32 v{s_}, v{s_}, v{t+1}")
            e(f"v_fmac_f32 v{q_}, v{t+1}, v{t+1}")
    for rot in (8, 4, 2, 1):
        for i in range(4): e(f"v_add_f32_dpp v{72+i}, v{72+i}, v{72+i} row_ror:{rot} {DPP}")
    L += xlane_reduce("v_add_f32", [72, 73, 74, 75], [76, 77, 78, 79])
    for rw in range(2):
        s_, q_ = 72+2*rw, 73+2*rw
        e(f"v_mul_f32 v{s_}, {f2u(-1/512)}, v{s_}"); e(f"v_mul_f32 v{q_}, {f2u(1/512)}, v{q_}")
        e(f"v_fma_f32 v{q_}, -v{s_}, v{s_}, v{q_}"); e(f"v_max_f32 v{q_}, 0, v{q_}"); e(f"v_add_f32 v{q_}, {f2u(1e-5)}, v{q_}")
    e(f"buffer_store_dwordx4 v[72:75], v{TM+3}, s[{SWS}:{SWS+3}], s{sT1} offen sc1 ; @pub")
    return L

def dma_w(buf, st):
    o = buf * 32768
    L = [f"s_add_u32 m0, s{sMWQ}, {o}"]
    for i in range(4): L.append(f"buffer_load_dwordx4 v{aWQD+i}, s[{SWQ}:{SWQ+3}], s{sWQo} offen offset:{1024*i} lds ; @W{st}")
    L.append(f"s_add_u32 m0, s{sMGU}, {o}")
    for i in range(4): L.append(f"buffer_load_dwordx4 v{aGUD+i}, s[{SGU}:{SGU+3}], s{sGUo} offen offset:{1024*i} lds ; @W{st}")
    L += [f"s_add_u32 s{sWQo}, s{sWQo}, {64*8192}", f"s_and_b32 s{sWQo}, s{sWQo}, {512*8192-1}",
          f"s_lshr_b32 s{sGUo}, s{sWQo}, 19", f"s_mul_i32 s{sGUo}, s{sGUo}, {64*2752}"]
    return L
def dma_x(buf, st):
    o = buf * 32768
    L = [f"s_add_u32 m0, s{sMX}, {o}"]
    for i in range(4): L.append(f"buffer_load_dwordx4 v{aXD+i}, s[{SX}:{SX+3}], s{sX0} offen offset:{1024*i} lds ; @X{st}")
    L.append(f"s_add_u32 m0, s{sMX}, {o+4096}")
    for i in range(4): L.append(f"buffer_load_dwordx4 v{aXD+i}, s[{SX}:{SX+3}], s{sX1} offen offset:{1024*i} lds ; @X{st}")
    L += [f"s_add_u32 s{sX0}, s{sX0}, 128", f"s_and_b32 s{sX0}, s{sX0}, 1023", f"s_add_u32 s{sX1}, s{sX0}, 32768"]
    return L
def with_m0_nops(L):
    out = []
    for x in L:
        out.append(x)
        if 'm0,' in x: out.append("s_nop 0")
    return out
def kv_dma(slot, tag=""):
    sc = " sc1" if OPT['kvsc'] else ""
    L = [f"s_add_u32 m0, s{sMKV}, {slot*16384}"]
    for i in range(4): L.append(f"buffer_load_dwordx4 v{aKD+i}, s[{SK}:{SK+3}], s{sKV} offen offset:{1024*i}{sc} lds{tag}")
    L.append(f"s_add_u32 m0, s{sMKV}, {65536+slot*16384}")
    for i in range(4): L.append(f"buffer_load_dwordx4 v{aVD+(i&1)}, s[{SV}:{SV+3}], s{sKV2} offen offset:{1024*i}{sc} lds{tag}")
    L.append(f"s_add_u32 s{sKV}, s{sKV}, s{sINC}"); L.append(f"s_add_u32 s{sKV2}, s{sKV2}, s{sINC2}")
    return L
def kv_voff(n, gg, t):
    L = []; e = L.append
    e(f"s_lshl_b32 s6, s{sW}, 4"); e(f"v_add_u32 v{t}, s6, v{gg}"); e(f"v_lshlrev_b32 v{t}, 8, v{t}")
    e(f"v_xor_b32 v{t+1}, v{n}, v{gg}")
    for i in range(4):
        e(f"v_xor_b32 v{t+2}, {4*i}, v{t+1}"); e(f"v_lshl_add_u32 v{aKD+i}, v{t+2}, 4, v{t}")
    e(f"v_lshlrev_b32 v{t+1}, 1, v{gg}"); e(f"v_xor_b32 v{t+1}, v{t+1}, v{n}")
    for i in range(2):
        e(f"v_xor_b32 v{t+2}, {8*i}, v{t+1}"); e(f"v_lshl_add_u32 v{aVD+i}, v{t+2}, 4, v{t}")
    return L

def xlane_reduce(op, xs, ts):
    L = []
    for sw in ("v_permlane32_swap_b32", "v_permlane16_swap_b32"):
        for x, t in zip(xs, ts): L.append(f"v_mov_b32 v{t}, v{x}")
        if len(xs) < 3: L.append("s_nop 1")
        for x, t in zip(xs, ts): L.append(f"{sw} v{x}, v{t}")
        for x, t in zip(xs, ts): L.append(f"{op} v{x}, v{x}, v{t}")
    return L
DPP = "row_mask:0xf bank_mask:0xf"

def k1_setup2(pre):
    L = []; e = L.append; l = vLANE
    e("v_lshrrev_b32 v7, 1, v1"); e("v_lshlrev_b32 v8, 7, v1"); e(f"v_add_u32 v8, s{sMX}, v8")
    for ks in range(2):
        e(f"v_add_u32 v9, {4*ks}, v2"); e("v_xor_b32 v9, v9, v7"); e(f"v_lshl_add_u32 v{aXR+ks}, v9, 4, v8")
    e("v_lshl_add_u32 v7, v2, 3, v3")
    e("v_lshlrev_b32 v8, 8, v7"); e("v_lshl_add_u32 v8, v4, 3, v8"); e("v_add_u32 v8, 65536, v8")
    e("v_and_b32 v10, 1, v2"); e("v_lshl_add_u32 v11, v10, 2, v3")
    for t in range(8):
        e(f"v_xor_b32 v9, {t}, v11"); e(f"v_lshl_add_u32 v{aWQR+t}, v9, 5, v8")
    e(f"s_lshl_b32 s6, s{sW}, 1"); e("v_xor_b32 v9, s6, v11"); e(f"v_lshl_add_u32 v{aWQC}, v9, 5, v8")
    e("v_xor_b32 v9, 1, v9"); e(f"v_lshl_add_u32 v{aWQC+1}, v9, 5, v8")
    e("v_mul_u32_u24 v8, 96, v3"); e("v_lshl_add_u32 v8, v4, 3, v8"); e("v_lshl_add_u32 v8, v2, 10, v8"); e("v_lshl_add_u32 v8, v10, 7, v8")
    e(f"s_and_b32 s6, s{sHEAD}, 1"); e("s_lshl_b32 s7, s6, 5"); e("s_add_u32 s7, s7, 81920"); e(f"v_add_u32 v{aGUR}, s7, v8")
    e("s_lshl_b32 s6, s6, 6"); e(f"s_sub_u32 s6, {81920+64}, s6"); e(f"v_add_u32 v{aGUR2}, s6, v8")
    e(f"s_lshl_b32 s{sT0}, s{sW}, 5"); e(f"s_add_u32 s7, s7, s{sT0}"); e(f"s_cmp_ge_u32 s{sW}, 2"); e("s_cselect_b32 s7, s6, s7"); e(f"v_add_u32 v{aGUC}, s7, v8")
    for i in range(4): e(f"v_mov_b32 v{ONES+i}, 0x3f803f80")
    L += srd(SWS, 86, 87, 1 << 28)
    e(f"s_movk_i32 s{SDBG+2}, 256"); e(f"s_mov_b32 s{SDBG+3}, 0x00020000")
    if OPT['stamp']:
        e("s_lshl_b32 s6, s2, 2"); e(f"s_add_u32 s6, s6, s{sW}"); e(f"s_lshl_b32 s{sSTo}, s6, 8"); e(f"s_add_u32 s{sSTo}, s{sSTo}, {STAMP_OFF}")
    e(f"v_mov_b32 v10, {OOB}"); e("v_lshlrev_b32 v9, 4, v1"); e("v_cmp_eq_u32 vcc, 0, v2"); e(f"v_cmp_eq_u32 s[6:7], 0, v{l}"); e("v_mov_b32 v12, 0")
    e(f"v_cndmask_b32 v{TM}, v10, v9, vcc"); e(f"v_cndmask_b32 v{TM+1}, v10, v12, s[6:7]"); e("v_cmp_eq_u32 vcc, 0, v0")
    for i in range(4): e(f"v_mov_b32 v{48+i}, 0")
    e(f"v_cndmask_b32 v{TM+2}, v10, v12, vcc"); e(f"v_mov_b32 v{TM+3}, v{TM+1}")
    e("s_memrealtime s[6:7]"); e(f"s_lshl_b32 s{sT0}, s2, 8"); e("s_waitcnt lgkmcnt(0)"); e("s_or_b32 s6, s6, 1"); e("v_mov_b32 v13, s6")
    e(f"buffer_store_dword v13, v{TM+2}, s[{SDBG}:{SDBG+3}], s{sT0} offen sc1")
    e(f"s_lshl_b32 s{sW2S}, s2, 7"); e(f"s_add_u32 s{sW2S}, s{sW2S}, {FLAG_OFF}")
    e(f"s_lshl_b32 s{sT1}, s{sT1}, 4"); e(f"s_add_u32 s{sT1}, s{sT1}, {STAT_OFF}")
    e(f"v_and_b32 v{vIDX}, 1, v{vLANE}"); e(f"v_mul_u32_u24 v{vIDX}, 0xaaaa, v{vIDX}"); e(f"v_add_u32 v{vIDX}, 0x4444, v{vIDX}"); e(f"v_lshl_or_b32 v{vIDX}, v{vIDX}, 16, v{vIDX}")
    for i in range(16): e(f"v_accvgpr_write_b32 a{CSA+i}, 0")
    return L

def k1_stats(pre):
    L = []; e = L.append
    e(f"s_waitcnt vmcnt({vm_after(pre, ['st'])})")
    for k in range(4):
        for rw in range(2):
            e(f"v_dot2c_f32_bf16 v{48+2*rw}, v{40+4*rw+k}, v{ONES}"); e(f"v_dot2c_f32_bf16 v{49+2*rw}, v{40+4*rw+k}, v{40+4*rw+k}")
    e("s_nop 1")
    for rot in (8, 4, 2, 1):
        for i in range(4): e(f"v_add_f32_dpp v{48+i}, v{48+i}, v{48+i} row_ror:{rot} {DPP}")
    L += xlane_reduce("v_add_f32", [48, 49, 50, 51], [40, 41, 42, 43])
    for rw in range(2):
        s_, q_ = 48+2*rw, 49+2*rw
        e(f"v_mul_f32 v{s_}, {f2u(-1/512)}, v{s_}"); e(f"v_mul_f32 v{q_}, {f2u(1/512)}, v{q_}")
        e(f"v_fma_f32 v{q_}, -v{s_}, v{s_}, v{q_}"); e(f"v_max_f32 v{q_}, 0, v{q_}"); e(f"v_add_f32 v{q_}, {f2u(1e-5)}, v{q_}")
    e(f"buffer_store_dwordx4 v[48:51], v{TM+1}, s[{SWS}:{SWS+3}], s{sT1} offen sc1 ; @pub")
    return L

def k1_setup3():
    L = []; e = L.append; l = vLANE
    e(f"s_lshl_b32 s6, s{sHEAD}, 19")
    e(f"s_add_u32 s{SK}, s66, s6"); e(f"s_addc_u32 s{SK+1}, s67, 0"); e(f"s_add_u32 s{SV}, s68, s6"); e(f"s_addc_u32 s{SV+1}, s69, 0")
    for d in (SK, SV): e(f"s_mov_b32 s{d+2}, 524288"); e(f"s_mov_b32 s{d+3}, 0x00020000")
    e(f"s_mov_b64 s[{sKVB}:{sKVB+1}], s[{SK}:{SK+1}]"); e(f"s_mov_b64 s[{sKVB+2}:{sKVB+3}], s[{SV}:{SV+1}]")
    for i in range(4): e(f"v_accvgpr_write_b32 a{CSA+i}, -1")
    c2, t = sT0, sCNT
    e("s_and_b32 s6, s2, 7"); e("s_lshr_b32 s7, s2, 3")
    e("s_lshr_b32 s79, s6, 2"); e(f"s_lshl_b32 s{sSP}, s79, 1"); e(f"s_add_u32 s{sSP}, s{sSP}, s6"); e(f"s_add_u32 s{sSP}, s{sSP}, 1"); e(f"s_and_b32 s{sSP}, s{sSP}, 3")
    e("s_lshl_b32 s79, s79, 3"); e("s_and_b32 s6, s7, 7"); e("s_add_u32 s79, s79, s6"); e(f"s_lshr_b32 s{c2}, s7, 3")
    e("s_lshl_b32 s7, s7, 2"); e(f"s_add_u32 s7, s7, s{sW}")
    e(f"s_lshl_b32 s{sPFo}, s{sSP}, 7"); e(f"s_add_u32 s{sPFo}, s{sPFo}, s7"); e(f"s_lshl_b32 s{sPFo}, s{sPFo}, 13")
    e(f"s_mul_i32 s{sPFo+1}, s{sSP}, 352"); e("s_mul_i32 s7, s7, 3"); e(f"s_add_u32 s{sPFo+1}, s{sPFo+1}, s7"); e(f"s_lshl_b32 s{sPFo+1}, s{sPFo+1}, 10")
    e(f"s_lshl_b32 s{t}, s79, 2"); e(f"s_add_u32 s{t}, s{t}, s{c2}"); e(f"s_lshl_b32 s{t}, s{t}, 18"); e(f"s_lshl_b32 s6, s{sW}, 12"); e(f"s_add_u32 s{t}, s{t}, s6")
    e(f"s_add_u32 s{sP2}, s{t}, {PART_OFF}")
    part_soff(e, sPS, True)
    e(f"s_lshr_b32 s7, s{sW}, 1"); e("s_lshl_b32 s6, s7, 12"); e(f"s_sub_u32 s{sSZ2}, {ACT_RB}, s6")
    e(f"s_and_b32 s7, s{sW}, 1")
    e(f"s_lshl_b32 s{t}, s79, 1"); e(f"s_add_u32 s{t}, s{t}, s7"); e(f"s_mul_i32 s{t}, s{t}, {ACT_RB}"); e(f"s_add_u32 s{t}, s{t}, s6"); e(f"s_add_u32 s{t}, s{t}, {ACT_OFF}")
    e(f"s_add_u32 s{sA2}, s{SWS}, s{t}"); e(f"s_addc_u32 s{sA2+1}, s{SWS+1}, 0")
    e(f"s_lshl_b32 s{t}, s{c2}, 1"); e(f"s_add_u32 s{t}, s{t}, s7"); e(f"s_lshl_b32 s{t}, s{t}, 7"); e("s_lshl_b32 s6, s6, 3"); e(f"s_add_u32 s6, s6, s{t}")
    e(f"s_add_u32 s{SWO}, s72, s6"); e(f"s_addc_u32 s{SWO+1}, s73, 0"); e(f"s_sub_u32 s{SWO+2}, {4096*1024}, s6"); e(f"s_mov_b32 s{SWO+3}, 0x00020000")
    e(f"s_add_u32 s{SWD}, s80, s6"); e(f"s_addc_u32 s{SWD+1}, s81, 0"); e(f"s_sub_u32 s{SWD+2}, {1376*1024}, s6"); e(f"s_mov_b32 s{SWD+3}, 0x00020000")
    e("s_lshl_b32 s7, s79, 1"); e(f"s_lshr_b32 s6, s{sW}, 1"); e("s_add_u32 s7, s7, s6"); e("s_lshl_b32 s7, s7, 2"); e(f"s_add_u32 s7, s7, s{sSP}"); e("s_lshl_b32 s7, s7, 14")
    e(f"s_add_u32 s{sXO}, s7, s{t}")
    e(f"s_movk_i32 s{sINC}, 16384")
    e(f"s_lshr_b32 s{sFQB}, s79, 1")
    e(f"s_lshl_b32 s6, s{sQB}, 2"); e(f"s_add_u32 s6, s6, s{sW}")
    e(f"s_lshl_b32 s{sSTAo}, s6, 9"); e(f"s_add_u32 s{sSTAo}, s{sSTAo}, {STAT_OFF}")
    e(f"s_mul_i32 s7, s6, {ACT_RB}"); e(f"s_add_u32 s7, s7, {ACT_OFF}"); e(f"s_add_u32 s{SACT}, s{SWS}, s7"); e(f"s_addc_u32 s{SACT+1}, s{SWS+1}, 0")
    e(f"s_mov_b32 s{SACT+2}, {ACT_RB}"); e(f"s_mov_b32 s{SACT+3}, 0x00020000")
    e(f"s_add_u32 s{sMW2}, s{sMX}, 131072")
    e(f"v_and_b32 v{TM+3}, 15, v{l}"); e(f"v_lshrrev_b32 v{TM+4}, 4, v{l}")
    L += kv_voff(TM+3, TM+4, TM+5)
    e(f"s_mov_b32 s{sKV}, 0"); e(f"s_mov_b32 s{sKV2}, 0"); e(f"s_movk_i32 s{sINC2}, 16384"); e(f"s_mov_b32 s{sMASK}, 0xffff0000"); e(f"s_mov_b32 s{sPASS}, 0")
    e(f"s_mul_i32 s6, s{sHEAD}, 3"); e(f"s_and_b32 s7, s{sHEAD}, 1")
    e(f"s_add_u32 s{sH0}, s6, s7"); e(f"s_lshr_b32 s{sH0}, s{sH0}, 1"); e(f"s_add_u32 s{sH0}, s{sH0}, 128"); e(f"s_lshl_b32 s{sH0}, s{sH0}, 12")
    e("s_add_u32 s6, s6, 2"); e("s_lshl_b32 s7, s7, 1"); e("s_sub_u32 s6, s6, s7")
    e(f"s_lshr_b32 s{sH0+1}, s6, 1"); e(f"s_add_u32 s{sH0+1}, s{sH0+1}, 128"); e(f"s_lshl_b32 s{sH0+1}, s{sH0+1}, 12")
    e("s_and_b32 s6, s6, 1"); e("s_lshl_b32 s6, s6, 3"); e(f"s_add_u32 s{sH0+1}, s{sH0+1}, s6")
    return L

def rd_x(buf):
    return [f"ds_read_b128 {v(XF+buf*32+(qt*2+ks)*4,4)}, v{aXR+ks} offset:{buf*32768+2048*qt}" for qt in range(4) for ks in range(2)]
def rd_w(m, lb):
    L = []
    for ks in range(2):
        for hh in range(2):
            d = a(WF+(m*2+ks)*4+2*hh, 2)
            if m < 8: L.append(f"ds_read_b64_tr_b16 {d}, v{aWQR+m} offset:{lb*32768+ks*8192+hh*1024}")
            else:
                z, t = divmod(m-8, 3)
                L.append(f"ds_read_b64_tr_b16 {d}, v{aGUR if t < 2 else aGUR2} offset:{lb*32768+z*8192+ks*4096+hh*384+32*(t&1)}")
    return L
def rd_e(lb):
    L = []
    for tl in range(4):
        for ks in range(2):
            for hh in range(2):
                d = a(EFr(tl, ks)+2*hh, 2)
                if tl < 2: L.append(f"ds_read_b64_tr_b16 {d}, v{aWQC+tl} offset:{lb*32768+ks*8192+hh*1024}")
                else: L.append(f"ds_read_b64_tr_b16 {d}, v{aGUC} offset:{lb*32768+(tl-2)*8192+ks*4096+hh*384}")
    return L
def acc_m(m, qt):
    return v(QACC+(m*4+qt)*4, 4) if m < 8 else a(gua(m-8, qt), 4)

def loop_addr_setup(t):
    L = []; e = L.append; l = vLANE
    e(f"v_and_b32 v{t}, 15, v{l}"); e(f"v_lshrrev_b32 v{t+1}, 4, v{l}"); e(f"v_lshrrev_b32 v{t+2}, 2, v{t}"); e(f"v_and_b32 v{t+3}, 3, v{l}")
    e(f"v_lshlrev_b32 v{t+4}, 8, v{t}")
    e(f"v_and_b32 v{t+6}, 1, v{t+1}"); e(f"v_lshrrev_b32 v{t+7}, 1, v{t+1}"); e(f"v_lshl_add_u32 v{t+6}, v{t+6}, 1, v{t+7}")
    e(f"v_xor_b32 v{t+6}, v{t+6}, v{t}")
    for s_ in range(4):
        e(f"v_xor_b32 v{t+5}, {4*s_}, v{t+6}"); e(f"v_lshl_add_u32 v{aKR+s_}, v{t+5}, 4, v{t+4}")
    e(f"v_lshl_add_u32 v{t+4}, v{t+1}, 2, v{t+2}")
    e(f"v_and_b32 v{t+5}, 7, v{t+4}")
    e(f"v_lshlrev_b32 v{t+4}, 8, v{t+4}"); e(f"v_lshl_add_u32 v{t+4}, v{t+3}, 3, v{t+4}"); e(f"v_add_u32 v{t+4}, 65536, v{t+4}")
    for dt in range(8):
        e(f"v_xor_b32 v{t+6}, {dt}, v{t+5}"); e(f"v_lshl_add_u32 v{aVR+dt}, v{t+6}, 5, v{t+4}")
    return L

def place_dma(G, dm, g, step):
    last = g
    for x in dm:
        if x.startswith('buffer'):
            while g % 2 != 1 or G.used(g) > 0: g += 1
            G.put(g, x); last = g + 1; g += step - 1
        else:
            gg = G.fit(last, x); last = gg
            if 'm0,' in x: g = max(g, gg + 1)
    return max(g, last + 1)

def bid_of(dst, head, qb, t):
    return [f"v_and_b32 v{t}, 3, v{head}", f"v_lshl_add_u32 v{t}, {qb}, 2, v{t}", f"v_lshrrev_b32 v{dst}, 2, v{head}", f"v_lshl_add_u32 v{dst}, v{t}, 3, v{dst}",
            f"v_lshlrev_b32 v{dst}, 7, v{dst}", f"v_add_u32 v{dst}, {FLAG_OFF}, v{dst}"]
def d0_addr(dst, t):
    return [f"v_cmp_gt_u32 vcc, 32, v{vLANE}", f"v_and_b32 v{vD0}, 7, v{vLANE}", f"v_mov_b32 v{t}, s{sHEAD}", f"v_and_b32 v{t+1}, {OPT['rot']-1}, v{vLANE}",
            f"v_lshl_add_u32 v{vD0}, s{sW}, 3, v{vD0}", f"v_mov_b32 v{dst}, s{sQB}",
            f"v_cndmask_b32 v{t}, v{t}, v{vD0}, vcc", f"v_cndmask_b32 v{t+1}, v{t+1}, v{dst}, vcc"] + bid_of(dst, t, f"v{t+1}", vD0)
def d1_addr(dst, t):
    return ([f"v_and_b32 v{t}, 31, v{vLANE}"] + bid_of(dst, t, f"s{sFQB}", t+1)
            + ["s_and_b32 s6, s2, 0xfc", f"v_and_b32 v{t}, 3, v{vLANE}", f"v_add_u32 v{t}, s6, v{t}", f"v_cmp_gt_u32 vcc, 32, v{vLANE}",
               f"v_lshlrev_b32 v{t}, 7, v{t}", f"v_add_u32 v{t}, {FLAG_OFF}, v{t}", f"v_cndmask_b32 v{dst}, v{t}, v{dst}, vcc"])
def f_load(dst, addr, k): return f"buffer_load_dword v{dst}, v{addr}, s[{SWS}:{SWS+3}], 0 offen offset:{4*k} sc1"
def f_cmp(x): return f"v_cmp_ne_u32 vcc, s{sNON}, v{x}"
SPIN = 0x20000
WAITMARK = "s_waitcnt vmcnt(63) ; WAIT "
def resolve_waits(pre, ph):
    out = []
    for x in ph:
        if x.startswith(WAITMARK):
            tags, _, extra = x[len(WAITMARK):].partition('|')
            n = vm_after(pre + out, tags.split())
            x = "s_waitcnt " + " ".join(([f"vmcnt({n})"] if n is not None else []) + ([extra] if extra else []))
        out.append(x)
    return out

vD0 = 114; aSTA = 117; aCL = 115; aD0 = SXA + 14
def cs_mfmas(): return [f"v_smfmac_f32_16x16x64_bf16 {a(CSA+tl*4,4)}, {v(ONES,4)}, {a(EFr(tl,0),8)}, v{vIDX}" for tl in range(4)]
W_, X_ = (lambda s: ('W', s)), (lambda s: ('x', s))
SCHED = {
    0: [[W_(2), X_(2)], [W_(3), X_(3)], [W_(4), X_(4)], [W_(5), X_(5)], [W_(6), X_(6)], [W_(7), X_(7)], []],
    1: [[W_(2), X_(2)], [W_(3), X_(3), X_(4)], [W_(4), W_(5), X_(5)], [W_(6), X_(6)], [W_(7), X_(7)], [], []],
    2: [[W_(2), X_(2)], [W_(3), X_(3), X_(4)], [W_(4), X_(5)], [W_(5), X_(6)], [W_(6), X_(7)], [W_(7)], []],
    4: [[W_(2)], [X_(2), W_(3), X_(3)], [W_(4), X_(4)], [W_(5), X_(5)], [W_(6), X_(6)], [W_(7), X_(7)], []],
    5: [[W_(2)], [X_(2), W_(3), X_(3)], [W_(4), X_(4)], [W_(5), X_(5), W_(6)], [X_(6), W_(7)], [X_(7)], []],
    6: [[W_(2)], [X_(2), W_(3), X_(3)], [W_(4), X_(4), X_(5)], [W_(5), W_(6), X_(6)], [W_(7), X_(7)], [], []],
    3: [[W_(2), X_(2)], [W_(3), X_(3), W_(4)], [X_(4), W_(5)], [X_(5), W_(6)], [X_(6), W_(7)], [X_(7)], []],
}[OPT['sched']]
def gemm_phase(st, carry, bg):
    xb = st & 1; first = (st == 0); nb = (st + 1) & 1
    wb = (st + 1) % 3; wo = wb if wb < 2 else 0
    mf = []
    def C(acc, ks): return "0" if (first and ks == 0) else acc
    GB = OPT['gub'] if first else 0
    if first and not GB: mf += cs_mfmas()
    pos = {}; doE = first and OPT['rot'] == 4; SIGP = 3 if OPT['fast0'] else (1 if OPT['rot'] == 8 else 2)
    CSM = 12 if first else 8
    for m in range(14):
        if m == CSM and doE and not OPT['fast0']: csp = len(mf); mf += cs_mfmas()
        if m == 2 and st == 1 and OPT['rot'] == 4 and OPT['fast0']: mf += cs_mfmas()
        if m == 8 and GB: mf += cs_mfmas()
        pos[m] = len(mf)
        for i_, qt in enumerate(range(3, -1, -1) if (OPT['gsn'] and m & 1) else range(4)):
            for j_, ks in enumerate((1, 0) if (OPT['gsn'] and i_ & 1) else (0, 1)):
                d = acc_m(m, qt); mf.append(f"{MF} {d}, {a(WF+(m*2+ks)*4,4)}, {v(XF+xb*32+(qt*2+ks)*4,4)}, {C(d,j_)}")
    N = len(mf)
    G = Gaps(N)
    for i, r in enumerate(carry): G.put(i // 2, r)
    BARG = OPT['barg0'] if first else 7
    xsame = st < 7 and ('x', st+1) in SCHED[st]
    xlate = first or xsame or (st < 7 and ('x', st+1) in SCHED[st-1])
    tags = {1: "non st", 5: "d0", 6: "cs"}.get(st, "") + f" W{st+1}" + ("" if xlate else f" X{st+1}") + (" pub" if st == SIGP else "")
    G.put(BARG, WAITMARK + tags + "|lgkmcnt(0)", force=True); G.put(BARG, "s_barrier", force=True)
    if first and not GB:
        G.put(3, "s_waitcnt lgkmcnt(8)"); G.put(11, "s_waitcnt lgkmcnt(0)")
    if GB:
        G.put(7, "s_waitcnt lgkmcnt(0)")
        G.put(GB, WAITMARK + "W0|", force=True); G.put(GB, "s_barrier", force=True)
        g = GB + 1
        for r in rd_e(0) + sum((rd_w(m, 0) for m in range(8, 14)), []):
            while g % 4 == 3 or G.used(g) > 1: g += 1
            G.put(g, r)
        assert g < BARG, g
    if st == 5:
        G.put(BARG+1, f_cmp(vD0)); G.put(BARG+2, "s_cbranch_vccnz K1_D0POLL"); G.put(BARG+2, "K1_D0OK:"); G.put(BARG+3, f"s_add_u32 s{sCNT}, s{sCSo}, 4096")
    if st == 1:
        G.put(BARG+1, f"v_cmp_eq_u32 vcc, 0, v{TM+1}"); G.put(BARG+2, "s_cbranch_vccnz K1_NPOLL"); G.put(BARG+2, "K1_NOK:")
        G.put(BARG+3, f"v_readfirstlane_b32 s{sNON}, v{TM+1}")
    if st < 7: G.put(N - 1, "s_waitcnt lgkmcnt(4)")
    adj = []
    if st < 7 and (wb == 2 or (wb == 0 and st > 0)):
        op = "v_add_u32" if wb == 2 else "v_subrev_u32"
        adj = [f"{op} v{r}, 0x10000, v{r}" for r in list(range(aWQR, aWQR+8)) + [aGUR, aGUR2]]
        G.stream((len(carry) + 1) // 2, adj, BARG)
    newcarry = []
    if st < 7:
        g = BARG + 1
        for m in range(14):
            rs = rd_w(m, wo)
            if m == 13: newcarry = rs; break
            for i, r in enumerate(rs):
                g = max(g, pos[m] + 8 + 2*i)
                while (g % 2 != 0 and not (first and OPT['fast0'] and g % 4 == 1)) or G.used(g) > 1: g += 1
                G.put(g, r)
    dm = []
    if first: dm += [f"buffer_load_dword v{TM+1}, off, s[{SDBG}:{SDBG+3}], 0 sc1 ; @non"]
    if st == SIGP: dm += [f"buffer_store_dword v{TM+1}, v{TM+2}, s[{SWS}:{SWS+3}], s{sW2S} offen sc1"]
    if st == 5: dm += [f"buffer_load_dwordx4 {v(TM+4*j,4)}, v{aCL}, s[{SWS}:{SWS+3}], s{sCSo if j == 0 else sCNT} offen sc1 ; @cs" for j in range(OPT['rot']//4)]
    if st == 5: dm += [f"buffer_load_dwordx2 {v(SXA+4*qt,2)}, v{aSTA}, s[{SWS}:{SWS+3}], s{sSTAo} offen offset:{128*qt} sc1 ; @cs" for qt in range(4)]
    if st <= 5: pass
    elif st == 6:
        if OPT['kvs'] == 0: place_dma(G, kv_dma(0, " ; @KV0") + kv_dma(1), BARG + 1, 6)
        else: place_dma(G, kv_dma(0, " ; @KV0"), BARG + 1, 12)
    elif OPT['kvs'] == 0: place_dma(G, kv_dma(2) + kv_dma(3), BARG + 1, 6)
    elif OPT['kvs'] == 1: place_dma(G, kv_dma(1), BARG + 1, 12)
    else: place_dma(G, kv_dma(1) + kv_dma(2), BARG + 1, 6)
    if adj: G.stream(BARG + 1, adj, BARG + 30); assert not adj
    if st <= 5:
        grp = SCHED[st]
        if first and OPT['fast0']: grp = ([W_(1)] if GB and OPT['w1late'] else []) + [X_(1), ('s', 0)] + grp
        early = [x for x in grp if x != ('x', st+3)]
        span = (N - 4 if len(early) == len(grp) else OPT['xw'] + 8)
        step = max(2, (span // max(1, 8*len(early) + len(dm))) & ~1); step = min(step, OPT['wgap'])
        if first and OPT['fast0']: step = OPT['st0']
        if len(early) == 3 and not first: step = 4 if not dm else 2
        g = 2; misc = list(dm)
        for kind, s_ in early:
            if (kind == 'W' and s_ == st + 3) or (g > BARG and misc):
                g = max(g, BARG + 3)
                g = place_dma(G, misc, g, step); misc = []
            g = place_dma(G, dma_w(s_ % 3, s_) if kind == 'W' else st_loads() if kind == 's' else dma_x(s_ & 1, s_), g, step)
        if misc: g = place_dma(G, misc, max(g, BARG + 3), step)
        gdma = g
    if st < 7:
        g = (OPT['xg0'] if OPT['fast0'] else 50) if first else 64 if xsame else OPT['xg'] if xlate else BARG + 2
        if xlate: g = G.fit(g, WAITMARK + f"X{st+1}|") + 1
        for r in rd_x(nb):
            while G.used(g) > 1 or G.post[g]: g += 1
            G.put(g, r); g += 2
        xdone = g
        g = BARG + 2
        if doE and OPT['fast0']:
            for r in rd_e(wo):
                while g < N - 1 and (G.used(g) > 1 or G.post[g]): g += 1
                if g < N - 1: G.put(g, r)
                else: newcarry = [r] + newcarry
            doE = False
        if doE:
            for r in rd_e(wo):
                while G.used(g) > 1 or G.post[g]: g += 1
                G.put(g, r); g += 1
            assert g < csp - 8, (st, g, csp)
        if doE or ('x', st+3) in SCHED[st]:
            w = G.fit(max(OPT['xw'], xdone + 8, g + 6), "s_waitcnt lgkmcnt(2)"); assert not doE or w < csp
        if st <= 5 and ('x', st+3) in SCHED[st]: place_dma(G, dma_x(nb, st+3), max(w + 1, gdma), 4)
    PZ = 3 if OPT['fast0'] else 2
    if st in (PZ, PZ+1, PZ+2) and OPT['pois'] and not OPT['lpz']:
        assert not any(f"s{sPS+st-PZ}," in x for x in bg)
        ps = [f"buffer_store_dwordx4 {a(CSA,4)}, v{aL16}, s[{SWS}:{SWS+3}], s{sPS+st-PZ} offen offset:{1024*j} sc1" for j in range(4)]
        g = OPT['pois']
        for x in ps:
            while g % 2 != 1 or G.used(g) > 0: g += 1
            G.put(g, x); g += OPT['pstep']
    if st == (1 if OPT['fast0'] else SIGP - 1):
        t = SXA
        q = stats_stream() if OPT['fast0'] else []
        q += [f"s_lshl_b32 s6, s{sHEAD}, 3", f"s_add_u32 s6, s6, s{sQB}", "s_lshl_b32 s6, s6, 2", f"s_add_u32 s6, s6, s{sW}", "s_lshl_b32 s6, s6, 8", f"s_add_u32 s{sCSo}, s6, {CS_OFF}"]
        for tl in range(4): q += [f"v_accvgpr_read_b32 v{t+tl}, a{CSA+4*tl}", f"v_accvgpr_read_b32 v{t+4+tl}, a{CSA+4*tl+1}"]
        for tl in range(4): q += [f"v_add_f32 v{t+tl}, v{t+tl}, v{t+4+tl}"]
        q += [f"buffer_store_dwordx4 {v(t,4)}, v{TM}, s[{SWS}:{SWS+3}], s{sCSo} offen sc1 ; @pub"]
        if OPT['fast0']: bg[:0] = q + ['s_nop 0']
        else: g0 = G.stream(12 if first else BARG + 4, q); assert not q
    if st in (1, 2, 3): G.stream((g0 + 1 if SIGP == 2 else BARG + 4) if st == 1 else 0, bg)
    if OPT['kvpf'] and st == OPT['kvpf'] // 1000:
        assert not any(f"s{SV+3}," in x for x in bg)
        q = [f"v_and_b32 v{aXD}, 15, v{vLANE}", f"v_lshlrev_b32 v{aXD}, 7, v{aXD}", f"s_lshl_b32 s{sT1}, s{sQB}, 2", f"s_add_u32 s{sT1}, s{sT1}, s{sW}", f"s_lshl_b32 s{sT1}, s{sT1}, 11",
             f"buffer_load_dword a{CSA+4}, v{aXD}, s[{SK}:{SK+3}], s{sT1} offen", f"buffer_load_dword a{CSA+5}, v{aXD}, s[{SV}:{SV+3}], s{sT1} offen"]
        G.stream(OPT['kvpf'] % 1000, q); assert not q
    if st == SIGP: assert not any('@pub' in x for x in bg)
    if st == 4:
        G.stream(0, bg, OPT['d0g']); assert not bg, len(bg)
        q = d0_addr(aD0, TM+6) + [f_load(vD0, aD0, 0) + " ; @d0", f"v_and_b32 v{aSTA}, 15, v{vLANE}",
             f"v_lshrrev_b32 v{aCL}, 4, v{vLANE}", f"v_lshlrev_b32 v{aCL}, 10, v{aCL}", f"v_lshl_add_u32 v{aCL}, v{aSTA}, 4, v{aCL}", f"v_lshlrev_b32 v{aSTA}, 3, v{aSTA}",
             f"s_lshl_b32 s6, s{sHEAD}, 13", f"s_lshl_b32 s7, s{sW}, 8", "s_add_u32 s6, s6, s7", f"s_add_u32 s{sCSo}, s6, {CS_OFF}"]
        G.stream(OPT['d0g'], q); assert not q
    if st == 6:
        q = []
        for qt in range(4): q += [f"v_rsq_f32 v{SXA+4*qt+2}, v{SXA+4*qt+1}"]
        for qt in range(4):
            q += [f"v_mul_f32 v{SXA+4*qt+3}, v{SXA+4*qt+1}, v{SXA+4*qt+2}", f"v_mul_f32 v{SXA+4*qt+1}, {f2u(SCALE)}, v{SXA+4*qt+2}",
                  f"v_mul_f32 v{SXA+4*qt+2}, {f2u(-LOG2E)}, v{SXA+4*qt+2}"]
        if OPT['rot'] == 8: q += [f"v_add_f32 v{TM+i}, v{TM+i}, v{TM+4+i}" for i in range(4)]
        q += xlane_reduce("v_add_f32", [TM+i for i in range(4)], [TM+4+i for i in range(4)])
        q += [f"v_lshrrev_b32 v{aCL}, 1, v{aSTA}", f"v_add_u32 v{aCL}, s{sMW2}, v{aCL}"]
        for tl in range(4): q += [f"ds_write_b32 v{aCL}, v{TM+tl} offset:{64*tl}"]
        q += loop_addr_setup(TM)
        g = G.stream(BARG + 1, q)
        q += [f"v_lshrrev_b32 v{aCS}, 4, v{vLANE}", f"v_lshlrev_b32 v{aCS}, 4, v{aCS}", f"v_add_u32 v{aCS}, 131072, v{aCS}"]
        G.stream(max(g, xdone), q)
        for x in q: G.post[N-1].append(x)
        if q: print(f"; phase 6: {len(q)} left over", file=sys.stderr)
    if st == 7:
        g = BARG + 1
        for m in range(8):
            g = G.fit(g, f"ds_read_b128 {v(4*m,4)}, v{aCS} offset:{(m>>1)*8192+(m&1)*64}")
        g = G.fit(g + 6, "s_waitcnt lgkmcnt(0)") + 1
        left = []
        for m in range(8):
            q = [f"v_fmac_f32 v{QACC+(m*4+qt)*4+r}, v{4*m+r}, v{SXA+4*qt}" for qt in (range(3, -1, -1) if (OPT['gsn'] and m & 1) else range(4)) for r in range(4)]
            g = G.stream(max(g, 8*m + 12), q); left += q
        for x in left: G.post[N-1].append(x)
        if left: print(f"; phase 7: {len(left)} left over", file=sys.stderr)
    return weave(mf, G.out()), newcarry

LO = "op_sel_hi:[1,0,1]"; HI = "op_sel:[0,1,0] op_sel_hi:[1,1,1]"
LO2 = "op_sel_hi:[1,0]"; HI2 = "op_sel:[0,1] op_sel_hi:[1,1]"
def zero_o(i): return f"v_mfma_f32_32x32x16_bf16 {a(16*i,16)}, {v(LACC,4)}, {v(LACC,4)}, 0"
def max_mfmas():
    return [f"{MF} {v(SB+4*qt,4)}, {v(KF+s_*4,4)}, {v(QF+(qt*4+s_)*4,4)}, {'0' if s_ == 0 else v(SB+4*qt,4)}" for qt in range(4) for s_ in range(4)]
def k1_post_gemm():
    L = []; e = L.append
    CSG = 208
    vr = rd_v(0, 0)
    pz = [] if OPT['pois'] or OPT['lpz'] else [f"buffer_store_dwordx4 {a(CSA,4)}, v{aL16}, s[{SWS}:{SWS+3}], s{sPS+i} offen offset:{1024*j} sc1" for i in range(3) for j in range(4)]
    for sp in (2, 3, 0, 1):
        for qt in range(4):
            if pz and (qt & 1 or OPT['pzq'] == 2) and OPT['pzq']: e(pz.pop(0))
            P0 = v(SXA+4*qt, 2)
            for b in range(2):
                m = 2*sp+b; x = QACC + (m*4+qt)*4
                for h in (0, 2): e(f"v_pk_mul_f32 {v(x+h,2)}, {v(x+h,2)}, {P0} {HI2}")
                for h in range(2): e(f"v_cvt_pk_bf16_f32 v{QF+(qt*4+sp)*4+2*b+h}, v{x+2*h}, v{x+2*h+1}")
        if sp == 3:
            for m in range(6):
                z, t = divmod(m, 3)
                e(f"ds_read_b128 {v(CSG+4*m,4)}, v{aCS} offset:{t*8192+(2+z)*64}")
        elif sp == 0:
            e(WAITMARK + "KV0|lgkmcnt(0)"); e("s_barrier")
            for f in range(8): e(rd_k(f, 0))
            L += vr[:16]
        elif sp == 1:
            for f in range(8, 16): e(rd_k(f, 0))
            L += vr[16:]
        else: e("s_nop 1")
        for qt in range(4):
            f = QF+(qt*4+sp)*4
            e(f"v_permlane16_swap_b32 v{f}, v{f+2}"); e(f"v_permlane16_swap_b32 v{f+1}, v{f+3}")
    for i in range(16): e(f"v_mov_b32 v{LACC+i}, 0")
    e("s_waitcnt lgkmcnt(15)")
    if OPT['stamp'] == 2: L += stamp(TM)
    mx = max_mfmas(); zs = [7]; zdone = []
    kv = with_m0_nops({0: [], 1: kv_dma(2) + kv_dma(3), 2: kv_dma(3)}[OPT['kvs']])
    def kv_next():
        while kv:
            x = kv.pop(0); e(x)
            if x.startswith('buffer'): break
    n = 0
    for qt in range(4):
        for t in (2, 0, 1):
            G_ = TM + (n % 2)*8; U_ = G_ + 4; n += 1
            H_ = 232 + (4 if t == 2 else 2*t)
            P0 = v(SXA+4*qt, 2); P1 = v(SXA+4*qt+2, 2)
            if mx: e(mx.pop(0))
            elif zs: e(zero_o(zs.pop(0)))
            kv_next()
            if pz: e(pz.pop(0))
            if not pz and 6 not in zdone: zs.append(6); zdone.append(6)
            for r in range(4): e(f"v_accvgpr_read_b32 v{G_+r}, a{gua(t, qt)+r}")
            if mx: e(mx.pop(0))
            for r in range(4): e(f"v_accvgpr_read_b32 v{U_+r}, a{gua(3+t, qt)+r}")
            for h in (0, 2): e(f"v_pk_fma_f32 {v(G_+h,2)}, {v(CSG+4*t+h,2)}, {P0}, {v(G_+h,2)} {LO}")
            for h in (0, 2): e(f"v_pk_mul_f32 {v(G_+h,2)}, {v(G_+h,2)}, {P1} {LO2}")
            if mx: e(mx.pop(0))
            elif zs: e(zero_o(zs.pop(0)))
            if t == 0 and OPT['kvs'] == 1: kv_next()
            for r in range(4): e(f"v_exp_f32 v{G_+r}, v{G_+r}")
            for h in (0, 2): e(f"v_pk_fma_f32 {v(G_+h,2)}, {v(G_+h,2)}, {P1}, {P1} op_sel:[0,1,1] op_sel_hi:[1,1,1]")
            if mx: e(mx.pop(0))
            for r in range(4): e(f"v_rcp_f32 v{G_+r}, v{G_+r}")
            for h in (0, 2): e(f"v_pk_fma_f32 {v(U_+h,2)}, {v(CSG+12+4*t+h,2)}, {P0}, {v(U_+h,2)} {LO}")
            for h in (0, 2): e(f"v_pk_mul_f32 {v(U_+h,2)}, {v(U_+h,2)}, {v(G_+h,2)}")
            for h in range(2): e(f"v_cvt_pk_bf16_f32 v{H_+h}, v{U_+2*h}, v{U_+2*h+1}")
            if t == 2: e(f"buffer_store_dwordx2 {v(H_,2)}, v{aL16}, s[{SACT}:{SACT+3}], s{sH0+1} offen offset:{1024*qt} sc1")
            if t == 1: e(f"buffer_store_dwordx4 {v(H_-2,4)}, v{aL16}, s[{SACT}:{SACT+3}], s{sH0} offen offset:{1024*qt} sc1")
        zs += {0: [0], 1: [1, 2], 2: [3], 3: [4, 5]}[qt]
    if OPT['stamp'] == 2: L += stamp(TM)
    L += kv
    for z in zs: e(zero_o(z))
    for qt in range(4):
        b = SB+4*qt
        e(f"v_max3_f32 v{b}, v{b}, v{b+1}, v{b+2}"); e(f"v_max_f32 v{b}, v{b}, v{b+3}")
    L += xlane_reduce("v_max_f32", [SB+4*q for q in range(4)], [SB+4*q+1 for q in range(4)])
    for qt in range(4):
        for r in range(4): e(f"v_sub_f32 v{NEGM+4*qt+r}, 0, v{SB+4*qt}")
    return L
def pf_lanes():
    L = [f"v_lshlrev_b32 v90, 7, v{vLANE}", f"v_min_u32 v91, 256, v90", f"v_min_u32 v90, 384, v90"]
    if OPT['lpz']:
        L += [f"v_mov_b32 v{80+i}, -1" for i in range(4)]
        L += [f"s_lshl_b32 s6, s{sSP}, 14", f"s_add_u32 s6, s6, s{sP2}", f"v_add_u32 v84, s6, v{aL16}",
              f"s_add_u32 s{sPZ}, s{sSP}, 1", f"s_and_b32 s{sPZ}, s{sPZ}, 3", f"s_lshl_b32 s{sPZ}, s{sPZ}, 16", f"s_movk_i32 s{sPZD}, 2048"]
    return L

def ks_of(p):
    kt, s_ = divmod(p, 4)
    return kt, (3 - s_ if (kt & 1 and OPT['sq']) else s_)
def rd_k(f, slot):
    kt, s_ = ks_of(f)
    return f"ds_read_b128 {v(KF+4*f,4)}, v{aKR+s_} offset:{slot*16384+kt*4096}"
def rd_v(buf, slot):
    return [f"ds_read_b64_tr_b16 {a(VF+buf*64+(dt*2+kk)*4+2*hh,2)}, v{aVR+dt} offset:{slot*16384+kk*8192+hh*4096}"
            for dt in range(8) for kk in range(2) for hh in range(2)]
def qk_mfmas(qt, zero=False):
    L = []
    for p in range(16):
        kt, s_ = ks_of(p)
        d = v(SB+4*kt, 4)
        c = ("0" if zero else v(NEGM+4*qt, 4)) if p % 4 == 0 else d
        L.append(f"{MF} {d}, {v(KF+p*4,4)}, {v(QF+(qt*4+s_)*4,4)}, {c}")
    return L
def pv_mfmas(qt, vb, pb):
    L = []
    for dt in range(8):
        d = a(OACC+(dt*4+qt)*4, 4)
        for kk in range(2): L.append(f"{MF} {d}, {a(VF+vb*64+(dt*2+kk)*4,4)}, {v(PB+pb*8+kk*4,4)}, {d}")
    L.append(f"v_smfmac_f32_16x16x64_bf16 {v(LACC+4*qt,4)}, {v(ONES,4)}, {v(PB+pb*8,8)}, v{vIDX}")
    return L
EXP = lambda e_: f"v_exp_f32 v{SB+e_}, v{SB+e_}"
CVT = lambda c, pb: f"v_cvt_pk_bf16_f32 v{PB+pb*8+c}, v{SB+2*c}, v{SB+2*c+1}"

def attn_step(jm, u):
    pb = u & 1
    mf = qk_mfmas((u+1) % 4) + pv_mfmas(u, jm & 1, pb)
    G = Gaps(33)
    for k, e_ in enumerate((13, 14, 15)): G.put(2*k+1, EXP(e_))
    G.put(2, CVT(6, pb)); G.put(6, CVT(7, pb))
    for e_ in range(13): G.put(8+2*e_, EXP(e_))
    for c in range(6): G.put(11+4*c, CVT(c, pb ^ 1))
    ns = (jm+1) % 4
    vr = rd_v((jm+1) & 1, ns)
    dm = kv_dma(jm)
    if u == 0:
        G.put(4, f"s_waitcnt vmcnt({18 if OPT['wpf'] else 16}) lgkmcnt(0)", force=True); G.put(4, "s_barrier", force=True)
        G.put(7, dm[0])
        for g, x in zip((9, 17, 21, 29), dm[1:5]): G.put(g, x)
        for g, x in zip((6, 7, 11, 13, 15, 19, 23, 25, 27, 31), vr[0:10]): G.put(g, x)
    elif u == 1:
        G.put(0, dm[5])
        for g, x in zip((4, 13, 21, 29), dm[6:10]): G.put(g, x)
        for g, x in zip((0, 2, 6, 7, 9, 11, 15, 17, 19, 23, 25, 27, 31), vr[10:23]): G.put(g, x)
    elif u == 2:
        G.put(0, dm[10]); G.put(0, dm[11])
        for f, g in enumerate((2, 4, 4, 6, 7, 9, 11, 13, 15, 17, 19, 21, 23, 25, 27, 29)): G.put(g, rd_k(f, ns))
        G.put(31, "s_waitcnt lgkmcnt(3)")
    else:
        G.put(7, "s_waitcnt lgkmcnt(4)")
        for g, x in zip((0, 2, 4, 6, 9, 11, 13, 15, 17), vr[23:32]): G.put(g, x)
        if jm == 3:
            G.put(25, f"s_add_u32 s{sCNT}, s{sCNT}, 1"); G.put(29, f"s_cmp_lt_u32 s{sCNT}, s{sT0}")
        if jm == 2: G.put(29, f"s_cmp_eq_u32 s{sCNT}, 7")
        if OPT['lpz'] and jm in (0, 2):
            G.put(25, f"buffer_store_dwordx4 v[80:83], v84, s[{SWS}:{SWS+3}], s{sPZ} offen offset:{512*jm} sc1")
        if OPT['lpz'] and jm == 3:
            G.put(19, f"s_add_u32 s{sPZ}, s{sPZ}, s{sPZD}"); G.put(25, f"s_and_b32 s{sPZ}, s{sPZ}, 0x3ffff"); G.put(27, f"s_sub_u32 s{sPZD}, 0x10000, s{sPZD}")
        if OPT['wpf']:
            sr, so, st_ = (P2X, sPFo, 384) if jm < 3 else (P2OUT, sPFo+1, 512)
            G.put(21, f"buffer_load_dword v{72+jm}, v{91 if jm < 3 else 90}, s[{sr}:{sr+3}], s{so} offen"); G.put(23, f"s_add_u32 s{so}, s{so}, {st_}")
    if jm == 3 and u == 0: G.put(0, "s_cbranch_scc1 K1_LAST")
    return weave(mf, G.out())

def l_fin(qt): return [f"v_add_f32 v{LACC+4*qt}, v{LACC+4*qt}, v{LACC+4*qt+1}", f"v_rcp_f32 v{LACC+4*qt+2}, v{LACC+4*qt}"]
def o_stream(qt):
    L = []; e = L.append
    l = LACC + 4*qt
    for i in range(4):
        t = 88; p = 100 + 4*((qt*4+i) % 3)
        for b in range(2):
            for r in range(4): e(f"v_accvgpr_read_b32 v{t+4*b+r}, a{OACC+((2*i+b)*4+qt)*4+r}")
        if i == 0 and qt < 3: L += l_fin(qt)
        e(f"s_add_u32 s{sT1}, s{sT0}, {4096*i}")
        if OPT['opk']:
            for k in range(4): e(f"v_pk_mul_f32 {v(t+2*k,2)}, {v(t+2*k,2)}, {v(l+2,2)} {LO2}")
        else:
            for k in range(8): e(f"v_mul_f32 v{t+k}, v{t+k}, v{l+2}")
        for k in range(4): e(f"v_cvt_pk_bf16_f32 v{p+k}, v{t+2*k}, v{t+2*k+1}")
        e(f"buffer_store_dwordx4 {v(p,4)}, v{aL16}, s[{SACT}:{SACT+3}], s{sT1} offen offset:{1024*qt} sc1 ; @o")
    return L

def fill(gaps, q, g0, cap):
    for gi in range(g0, len(gaps)):
        u = units(gaps[gi])
        if q and Ins(q[0]).kind == 'vst': gaps[gi].insert(0, q.pop(0)); u += 2
        while q:
            k = Ins(q[0]).kind
            if u + UNITS[k] > cap or k == 'vst': break
            gaps[gi].append(q.pop(0)); u += UNITS[k]

def p2_reads0():
    X = []
    for kk in range(2):
        for i in range(4):
            for hh in range(2): X.append(f"ds_read_b64_tr_b16 {a(128+kk*32+4*i+2*hh,2)}, v{aW+i} offset:{kk*8192+2048*hh}")
            X.append(f"ds_read_b128 {a(128+kk*32+16+4*i,4)}, v{aA+4+i} offset:{kk*8192}")
    return X
def p2_mfmas0():
    return [f"{MF} {v(128+(ct*4+qt)*4,4)}, {a(128+kk*32+4*ct,4)}, {a(128+kk*32+16+4*qt,4)}, {'0' if kk == 0 else v(128+(ct*4+qt)*4,4)}"
            for qt in (1, 2, 3, 0) for ct in range(4) for kk in range(2)]
def attn_last():
    L = []
    r0 = p2_reads0() if OPT['pre0'] else []
    for u in range(4):
        pb = u & 1
        q = o_stream(u - 1) if u else []
        if u < 3:
            mf = qk_mfmas(u + 1) + pv_mfmas(u, 1, pb)
            G = Gaps(33)
            for k, e_ in enumerate((13, 14, 15)): G.put(2*k+1, EXP(e_))
            G.put(2, CVT(6, pb)); G.put(6, CVT(7, pb))
            for e_ in range(13): G.put(8+2*e_, EXP(e_))
            for c in range(6): G.put(11+4*c, CVT(c, pb ^ 1))
            if u == 0:
                dm = kv_dma(3, " ; @a3")
                G.put(4, "s_waitcnt vmcnt(16) lgkmcnt(0)", force=True); G.put(4, "s_barrier", force=True)
                G.put(6, dm[0])
                for g, x in zip((7, 9, 13, 17), dm[1:5]): G.put(g, x)
                G.put(19, dm[5])
                for g, x in zip((21, 25, 29), dm[6:9]): G.put(g, x)
                G.put(31, dm[9], force=True); G.put(11, f"s_lshl_b32 s{sT0}, s{sHEAD}, 14")
                tail = dm[10:] + [f"s_cmp_ge_u32 s{sW}, 2", f"s_cselect_b32 s6, 0x3000, s{sMKV}", f"s_cselect_b32 s{sPZ}, {OOB}, s{sKV}", f"s_cselect_b32 s{sPZD}, {OOB}, s{sKV2}",
                                  f"s_add_u32 m0, s6, {8*16384}"]
                x4 = [f"buffer_load_dwordx4 v{aKD+i}, s[{P2WT}:{P2WT+3}], s{sPZ} offen offset:{1024*i} lds" for i in range(4)] + [f"s_add_u32 m0, s{sMKV}, {9*16384}"]
                x4 += [f"buffer_load_dwordx4 v{aL16}, s[{P2ACT}:{P2ACT+3}], s{sPZD} offen offset:{1024*i} sc1 lds ; @a3" for i in range(4)]
            gaps = G.out()
            if u == 0: gaps[32] += tail
            if u == 1:
                for g_, x in zip((0, 1, 2, 3, 4, 5, 6, 7, 8), x4): gaps[g_].insert(0, x)
            if u in (1, 2):
                for g_ in range(9 if u == 1 else 1, 33, 2):
                    if r0 and (u == 2 or len(r0) > 12): gaps[g_].insert(0, r0.pop(0))
            fill(gaps, q, 0, OPT['lcap'])
            w = weave(mf, gaps)
            L += (w[1:] if u == 0 else w) + q
        else:
            mf = pv_mfmas(3, 1, pb)
            L += [EXP(13), EXP(14), EXP(15), CVT(6, pb), CVT(7, pb)]
            if OPT['pre0'] == 2:
                head = L[-5:]; del L[-5:]
                h0 = p2_mfmas0()
                mf = h0[:8] + mf + h0[8:]
                L += ["s_waitcnt lgkmcnt(0)"]
                gaps = [[] for _ in mf]
                for g_, x in zip((0, 1, 2, 3, 4), head): gaps[g_].append(x)
                fill(gaps, q, 3, 2)
            else:
                k = 2
                L += q[:k]; q = q[k:]
                gaps = [[] for _ in mf]
                fill(gaps, q, 0, OPT['lcap'])
            L += weave(mf, gaps) + q
    return L

def attn_entry():
    A = []; e = A.append
    e("s_waitcnt vmcnt(0)"); e("s_barrier")
    for f in range(16): e(rd_k(f, 0))
    A += rd_v(0, 0)
    for i in range(16): e(f"v_mov_b32 v{LACC+i}, 0")
    for i in range(8): e(zero_o(i))
    C_ = []; e = C_.append
    e("s_waitcnt lgkmcnt(0)")
    mf = qk_mfmas(0)
    G = Gaps(16)
    G.put(0, f"s_mov_b32 s{sCNT}, 0"); G.put(1, f"s_cmp_lg_u32 s{sPASS}, 0"); G.put(1, f"s_cselect_b32 s{sT0}, 7, 1")
    q = srd(P2X, 72, 73, 4096*1024) + srd(P2OUT, 80, 81, 1376*1024) + pf_lanes()
    G.stream(2, q, 8); C_[:0] = q[:0]; rest = list(q)
    for e_ in range(8): G.put(8 + e_, EXP(e_))
    C_ += weave(mf, G.out())
    for c in range(4): e(CVT(c, 0))
    for e_ in range(8, 13): e(EXP(e_))
    for c in range(4, 6): e(CVT(c, 0))
    C_ += rest
    return A, C_

def part_soff(e, dst, store):
    for i in range(1, 4):
        e(f"s_add_u32 s6, s{sSP}, {i}"); e("s_and_b32 s6, s6, 3")
        if store: e("s_lshl_b32 s6, s6, 2"); e(f"s_add_u32 s6, s6, s{sSP}")
        else: e(f"s_lshl_b32 s7, s{sSP}, 2"); e("s_add_u32 s6, s6, s7")
        e("s_lshl_b32 s6, s6, 14"); e(f"s_add_u32 s{dst+i-1}, s6, s{sP2}")

def block_b():
    L = []; e = L.append
    e(f"s_mov_b32 s{sT0}, {TC}")
    e(f"s_cmp_lg_u32 s{sW}, 0"); e("s_cbranch_scc1 K1_LOOP")
    e(f"v_mov_b32 v{vSP}, s{sNON}")
    e("s_mov_b64 exec, 1")
    e(f"buffer_store_dword v{vSP}, off, s[{SWS}:{SWS+3}], s{sW2S} offset:4 sc1")
    e("s_mov_b64 exec, -1")
    return L

def block_c():
    L = []
    return L + d1_addr(vD1+1, T2+4) + [f_load(vD1, vD1+1, 1), f"s_mov_b32 s{sT0}, 7"]
def block_l():
    A = [f_cmp(vD1), f"s_mov_b32 s{sT1}, 0", "s_cbranch_vccz K1_D1OK"]
    D1 = [f_load(vD1, vD1+1, 1), f"s_add_u32 s{sT1}, s{sT1}, 1", "s_sleep 8", "s_waitcnt vmcnt(0)", f_cmp(vD1),
          f"s_cmp_gt_u32 s{sT1}, {SPIN}", "s_cbranch_scc1 K1_D1OK", "s_cbranch_vccnz K1_D1POLL"]
    B = []; e = B.append
    B += srd(P2ACT, sA2, sA2+1, 0); e(f"s_mov_b32 s{P2ACT+2}, s{sSZ2}")
    for i in range(3): e(f"s_mov_b32 s{P2WT+i}, s{SWD+i}")
    t = 85
    e(f"v_lshrrev_b32 v{t}, 3, v{vLANE}"); e(f"v_and_b32 v{t+1}, 7, v{vLANE}"); e(f"v_and_b32 v{t+2}, 6, v{t}"); e(f"v_xor_b32 v{t+1}, v{t+1}, v{t+2}")
    e(f"v_lshlrev_b32 v{t}, 10, v{t}"); e(f"v_lshl_add_u32 v{aKD}, v{t+1}, 4, v{t}")
    for i in range(1, 4): e(f"v_add_u32 v{aKD+i}, {7168*i}, v{aKD}")
    for r in (aVD, aVD+1): e(f"v_mov_b32 v{r}, v{aL16}")
    e(f"s_mul_i32 s{sKV}, s{sSP}, {11*32768}"); e(f"s_mov_b32 s{sINC}, 65536")
    e(f"s_mul_i32 s{sKV2}, s{sSP}, {11*4096}"); e(f"s_add_u32 s{sKV2}, s{sKV2}, {128*4096}"); e(f"s_movk_i32 s{sINC2}, 8192")
    e(f"s_lshr_b32 s6, s{sW}, 1"); e("s_lshl_b32 s6, s6, 12"); e("s_add_u32 s6, s6, 65536"); e(f"s_lshl_b32 s7, s{sSP}, 10"); e(f"v_add_u32 v{t}, s6, v{aL16}")
    for i in range(4):
        e(f"v_add_u32 v{aA+4+i}, s7, v{t}")
        if i < 3: e("s_add_u32 s7, s7, 1024"); e("s_and_b32 s7, s7, 0xc00")
    e(f"s_and_b32 s6, s{sW}, 1"); e("s_lshl_b32 s6, s6, 12")
    e(f"v_lshrrev_b32 v{t}, 2, v{vLANE}"); e(f"v_and_b32 v{t+1}, 3, v{vLANE}"); e(f"v_bfe_u32 v{t+2}, v{vLANE}, 3, 2")
    e(f"v_lshlrev_b32 v{t}, 7, v{t}"); e(f"v_lshl_add_u32 v{t}, v{t+1}, 3, v{t}"); e(f"v_add_u32 v{t}, s6, v{t}")
    for ct in range(4):
        e(f"v_xor_b32 v{t+1}, {ct}, v{t+2}"); e(f"v_lshl_add_u32 v{aW+ct}, v{t+1}, 5, v{t}")
    e(f"s_mov_b32 s{sT0}, 8")
    return A, D1, B

def attn_check():
    L = []; e = L.append
    if OPT['pre0'] != 2: e("s_nop 11")
    t = 88
    L += l_fin(3)
    e(f"v_mov_b32 v{t}, {f2u(2.0**OPT['thr'])}")
    e(f"v_cmp_nle_f32 vcc, v{LACC}, v{t}"); e(f"v_cmp_nle_f32 s[6:7], v{LACC+4}, v{t}")
    e(f"v_cmp_nle_f32 s[44:45], v{LACC+8}, v{t}"); e(f"v_cmp_nle_f32 s[46:47], v{LACC+12}, v{t}")
    e("s_nop 1")
    e("s_or_b64 s[6:7], s[6:7], vcc"); e("s_or_b64 s[44:45], s[44:45], s[46:47]"); e("s_or_b64 s[6:7], s[6:7], s[44:45]")
    e("s_cselect_b32 s6, 1, 0")
    e(f"v_mov_b32 v{t}, s6"); e(f"s_lshl_b32 s7, s{sW}, 2"); e(f"s_add_u32 s7, s7, {CHK_LDS}"); e(f"v_mov_b32 v{t+1}, s7"); e(f"v_mov_b32 v{t+2}, {CHK_LDS}")
    e(f"ds_write_b32 v{t+1}, v{t}"); e(WAITMARK + "a3|lgkmcnt(0)"); e("s_barrier")
    e(f"ds_read_b128 {v(t+4,4)}, v{t+2}"); e("s_waitcnt lgkmcnt(0)")
    e(f"v_or_b32 v{t+4}, v{t+4}, v{t+5}"); e(f"v_or3_b32 v{t+4}, v{t+4}, v{t+6}, v{t+7}"); e("s_nop 0")
    e(f"v_readfirstlane_b32 s6, v{t+4}"); e("s_nop 1")
    if OPT['twice']: e("s_mov_b32 s6, 1")
    e(f"s_cmp_gt_u32 s6, s{sPASS}"); e("s_cbranch_scc1 K1_SLOW")
    return L

def attn_slow():
    P = []; e = P.append
    MX = T2
    for qt in range(4): e(f"v_mov_b32 v{MX+qt}, 0xff800000")
    e(f"s_mov_b32 s{sKV}, 0"); e("s_waitcnt vmcnt(0)")
    P += srd(SK, sKVB, sKVB+1, 524288) + srd(SV, sKVB+2, sKVB+3, 524288)
    e(f"s_movk_i32 s{sINC}, 16384"); e(f"s_movk_i32 s{sINC2}, 16384"); e(f"s_mov_b32 s{sKV2}, 0")
    e(f"v_and_b32 v{T2+8}, 15, v{vLANE}"); e(f"v_lshrrev_b32 v{T2+9}, 4, v{vLANE}")
    P += kv_voff(T2+8, T2+9, T2+10) + loop_addr_setup(T2+8)
    B = []; e = B.append
    e("s_barrier")
    e(f"s_mov_b32 m0, s{sMKV}"); e("s_nop 0")
    for i in range(4): e(f"buffer_load_dwordx4 v{aKD+i}, s[{SK}:{SK+3}], s{sKV} offen offset:{1024*i} lds")
    e("s_waitcnt vmcnt(0)"); e("s_barrier")
    for f in range(16): e(rd_k(f, 0))
    e("s_waitcnt lgkmcnt(0)")
    for qt in range(4):
        B += qk_mfmas(qt, zero=True)
        e("s_nop 7")
        for i in range(8): e(f"v_max3_f32 v{MX+qt}, v{MX+qt}, v{SB+2*i}, v{SB+2*i+1}")
        e("s_nop 3")
    e(f"s_add_u32 s{sKV}, s{sKV}, 16384"); e(f"s_cmp_lt_u32 s{sKV}, 524288")
    Q = []; e = Q.append
    Q += xlane_reduce("v_max_f32", [MX+q for q in range(4)], [MX+4+q for q in range(4)])
    for qt in range(4):
        for r in range(4): e(f"v_sub_f32 v{NEGM+4*qt+r}, 0, v{MX+qt}")
    e(f"s_mov_b32 s{sPASS}, 1"); e(f"s_mov_b32 s{sKV}, 0"); e("s_barrier")
    for s_ in range(4): Q += with_m0_nops(kv_dma(s_))
    if OPT['twice']:
        B = ["s_cmp_lg_u32 s2, s2"]; Q = Q[Q.index(f"s_mov_b32 s{sPASS}, 1"):]
    return P, B, Q

def k1():
    pre = k1_setup()
    pre += k1_setup2(pre)
    if OPT['gulate']: pre += with_m0_nops(dma_w(0, 0)[5:])
    if OPT['stamp']:
        pre += ["v_mov_b32 v8, s98", "v_mov_b32 v9, s100", "s_nop 1", f"buffer_store_dwordx2 v[8:9], off, s[{SST}:{SST+3}], s{sSTo}", "s_nop 1"]
        stamp_n[0] = 1
    if not OPT['fast0']:
        pre += with_m0_nops(dma_w(1, 1))
        if OPT['stpos'] == 1: pre += st_loads()
    pre += stamp(8)
    pre += [f"s_waitcnt vmcnt({vm_after(pre, ['X0'] if OPT['gub'] else ['W0', 'X0'])})", "s_barrier"]
    pre += stamp(8)
    rw = rd_e(0) + rd_x(0) + sum((rd_w(m, 0) for m in range(14)), [])
    dx = dma_x(1, 1) if not OPT['fast0'] else dma_w(1, 1)
    n_ = 3 if not OPT['fast0'] else 5
    if OPT['gub']:
        rw = rd_x(0) + sum((rd_w(m, 0) for m in range(8)), []); n_ = 3
        if OPT['w1late']: dx = []
    for i, x in enumerate(dx): pre += rw[n_*i:n_*i+n_] + [x]
    pre += rw[n_*len(dx):]
    if not OPT['fast0']: pre += k1_stats(pre)
    pre += ["s_waitcnt lgkmcnt(15)"]
    carry = []; bg = k1_setup3()
    for st in range(8):
        ph, carry = gemm_phase(st, carry, bg)
        ph = resolve_waits(pre, ph)
        n, over, bad = gap_report(ph)
        if over > 1 or bad: print(f"; gemm phase {st}: gaps {n} over {over} bad {bad}", file=sys.stderr)
        pre += ph
        if OPT['stamp'] == 2 and st < 7: pre += stamp(TM+6 if st == 0 or st == 1 else SXA+6 if st < 6 else TM)
    pre += stamp(TM)
    pre += resolve_waits(pre, k1_post_gemm())
    pre += stamp(T2+24)
    eA, eC = attn_entry()
    eC += stamp(T2+24)
    d0 = [f"s_mov_b32 s{sCNT}, 0", "K1_D0LOOP:", f_load(vD0, aD0, 0), f"s_add_u32 s{sCNT}, s{sCNT}, 1", "s_sleep 4", "s_waitcnt vmcnt(0)", f_cmp(vD0),
          f"s_cmp_gt_u32 s{sCNT}, {SPIN}", "s_cbranch_scc1 K1_D0OK", "s_cbranch_vccnz K1_D0LOOP", "s_branch K1_D0OK",
          "K1_NPOLL:", f"s_mov_b32 s{sCNT}, 0", "K1_NLOOP:", f"buffer_load_dword v{TM+1}, off, s[{SDBG}:{SDBG+3}], 0 sc1", f"s_add_u32 s{sCNT}, s{sCNT}, 1",
          "s_sleep 4", "s_waitcnt vmcnt(0)", f"v_cmp_eq_u32 vcc, 0, v{TM+1}", f"s_cmp_gt_u32 s{sCNT}, {SPIN}", "s_cbranch_scc1 K1_NOK", "s_cbranch_vccnz K1_NLOOP", "s_branch K1_NOK"]
    body = []
    for jm in range(4):
        for u in range(4): body += attn_step(jm, u)
    n, over, bad = gap_report(body)
    print(f"; attn loop: gaps {n} over {over} bad {bad}", file=sys.stderr)
    bB, bC = block_b(), block_c()
    last = attn_last()
    chk = stamp(T2+24+6, True) + attn_check()
    chk = resolve_waits(last, chk)
    sP, sB_, sQ = attn_slow()
    post = stamp(98)
    p2t, p2t2, p2c = phase2(o_stream(3), last + chk + post)
    lA, lD, lB = block_l()
    if OPT['stamp'] == 4:
        body += ["s_cselect_b32 s93, 1, 0", "s_memtime s[94:95]", "s_memrealtime s[96:97]", "s_waitcnt lgkmcnt(0)", "v_mov_b32 v88, s94", "v_mov_b32 v89, s96",
                 f"s_lshl_b32 s6, s{sCNT}, 3", f"s_add_u32 s6, s6, s{sSTo}", f"buffer_store_dwordx2 v[88:89], off, s[{SST}:{SST+3}], s6 offset:160", "s_cmp_lg_u32 s93, 0"]
    m0_ = body[0]; body = body[1:] + [m0_]; eC = eC + [m0_]
    cut = body.index("s_cbranch_scc1 K1_LAST") + 1
    br = ["s_cbranch_scc1 K1_LOOP"]
    mid = [f"s_cmp_eq_u32 s{sCNT}, 7", "s_cbranch_scc1 K1_BLKL", f"s_cmp_eq_u32 s{sCNT}, {TC}", "s_cbranch_scc1 K1_BLKC"]
    J = ["s_branch K1_LOOP"]
    errs = check(pre + eC + body + br + mid + bB + J + body + br + mid + bC + J + body + br + mid[:2] + lA + lD + lB + J + body[:cut] + last + chk + post + p2t, 'k1')
    errs += check(body[:cut] + last + chk + sP + sB_ + ["s_cbranch_scc1 X"] + sB_ + ["s_cbranch_scc1 X"] + sQ + ["s_branch X"] + eA + eC + body + br + mid[:2] + lA + lB + J + body[:cut] + last + chk + post + p2t2, 'k1slow')
    assert not errs
    return (pre + ["K1_HAVEMAX:"] + eC + [".p2align 6", "K1_LOOP:"] + body + br + mid + bB + J
            + ["K1_BLKC:"] + bC + J + ["K1_BLKL:"] + lA + ["K1_D1POLL:"] + lD + ["K1_D1OK:"] + lB + J
            + ["K1_SLOW:"] + sP + ["K1_SLOWLOOP:"] + sB_ + ["s_cbranch_scc1 K1_SLOWLOOP"] + sQ + eA + ["s_branch K1_HAVEMAX"] + ["K1_D0POLL:"] + d0
            + ["K1_LAST:"] + last + chk + post + p2c + ["K1_END:", "s_endpgm"])

def phase2(epi, before):
    NH = 6; NST = 22
    FR = 128
    SA = 0; DA = 128
    T = 88; STV = 98
    PKD = 192; RXD = 216; PKS = 192; RXS = 216
    sAo, sWo = sX0, sX1
    SIGI, POLLI = OPT['sigi'], OPT['polli']
    nk = lambda st: 1 if st == 4 else 2
    slot = {}
    for st in range(4): slot[('w', st)] = st; slot[('a', st)] = 4 + st
    slot[('w', 4)] = 8; slot[('a', 4)] = 9
    free = []
    nxt = {'w': 5, 'a': 5}
    def dma(kind):
        st = nxt[kind]; nxt[kind] += 1
        sl = free.pop(0); slot[(kind, st)] = sl
        X = [f"s_add_u32 m0, s{sMKV}, {sl*16384}"]
        if kind == 'a':
            for i in range(4): X.append(f"buffer_load_dwordx4 v{aL16}, s[{P2ACT}:{P2ACT+3}], s{sAo} offen offset:{1024*i} sc1 lds ; @{kind}{st}")
            X.append(f"s_add_u32 s{sAo}, s{sAo}, 8192" if st != NH - 1 else f"s_lshl_b32 s{sAo}, s{sSP}, 17")
        else:
            sr = SWD if st < NH else SWO
            for i in range(4): X.append(f"buffer_load_dwordx4 v{aKD+i}, s[{sr}:{sr+3}], s{sWo} offen offset:{1024*i} lds ; @{kind}{st}")
            X.append(f"s_add_u32 s{sWo}, s{sWo}, 65536" if st != NH - 1 else f"s_lshl_b32 s{sWo}, s{sSP}, 20")
        return X
    done = list(before)
    S = ["s_mov_b64 exec, 1", f"buffer_store_dword v{T}, off, s[{SWS}:{SWS+3}], s{sW2S} offset:8 sc1", "s_mov_b64 exec, -1"]
    FLD = f_load(vFL, aFL, 2)
    P = [FLD, f"s_add_u32 s{sCNT}, s{sCNT}, 1", "s_waitcnt vmcnt(0)",
         f_cmp(vFL), f"s_cmp_gt_u32 s{sCNT}, {SPIN}", "s_cbranch_scc1 P2_GO", "s_cbranch_vccnz P2_POLL"]
    q = list(epi); e = q.append
    q2 = []; e = q2.append
    for i in range(4):
        e(f"v_add_u32 v{aA+8+i}, 65536, v{aA+4+i}"); e(f"v_add_u32 v{aW+8+i}, 131072, v{aW+i}")
    for i in range(4):
        e(f"v_subrev_u32 v{aA+i}, 65536, v{aA+4+i}"); e(f"v_add_u32 v{aW+4+i}, 65536, v{aW+i}")
    e(f"v_and_b32 v{T+1}, 7, v{vLANE}"); e(f"v_lshl_add_u32 v{T+1}, s{sSP}, 3, v{T+1}")
    q2 += bid_of(aFL, T+1, f"s{sFQB}", T+2)
    if OPT['lpz']:
        q2 += ["s_and_b32 s6, s2, 0xfc", f"v_and_b32 v{T+1}, 3, v{vLANE}", f"v_add_u32 v{T+1}, s6, v{T+1}", f"v_lshlrev_b32 v{T+1}, 7, v{T+1}", f"v_add_u32 v{aPF}, {FLAG_OFF}, v{T+1}"]
    q2 += srd(P2X, sXP, sXP+1, 2048*1024) + srd(P2OUT, sOUT, sOUT+1, 2048*1024)
    e(f"v_and_b32 v{T+1}, 15, v{vLANE}"); e(f"v_lshrrev_b32 v{T+2}, 4, v{vLANE}"); e(f"v_lshlrev_b32 v{T+1}, 10, v{T+1}"); e(f"v_lshl_add_u32 v{aXO}, v{T+2}, 3, v{T+1}")
    part_soff(e, 49, False)
    aLP = 113
    e(f"v_mov_b32 v{aLP}, s49"); e(f"v_writelane_b32 v{aLP}, s50, 1"); e(f"v_writelane_b32 v{aLP}, s51, 2")
    e(f"v_mov_b32 v{T}, s{sNON}")
    L = []; e = L.append
    e(f"s_add_u32 s{sAo}, s{sKV2}, 4096"); e(f"s_add_u32 s{sWo}, s{sKV}, 32768")
    OL = OPT['ownlast']
    fbase = lambda st: (st & 1)*64 + (0 if OL > 2 and st in (NST-4, NST-3) else FR)
    def reads(st):
        X = []
        for kk in range(nk(st)):
            b = fbase(st) + kk*32
            hw, lw = divmod(slot[('w', st)]*16384 + kk*8192, 65536)
            ha, la = divmod(slot[('a', st)]*16384 + kk*8192, 65536)
            for i in range(4):
                if not (NH <= st < NH + OPT['nrs']):
                    for hh in range(2): X.append(f"ds_read_b64_tr_b16 {a(b+4*i+2*hh,2)}, v{aW+4*hw+i} offset:{lw+2048*hh}")
                X.append(f"ds_read_b128 {a(b+16+4*i,4)}, v{aA+4*ha+i} offset:{la}")
        return X
    def mfmas(st, qts=(1, 2, 3, 0)):
        X = []
        b = fbase(st); acc = DA if st < NH else SA
        for qt in qts:
            for ct in range(4):
                d = v(acc+(ct*4+qt)*4, 4)
                for j_, kk in enumerate(range(nk(st)) if not (OPT['gsn'] and ct & 1) else range(nk(st)-1, -1, -1)):
                    wf = (st-NH)*32 + kk*16 + 4*ct if NH <= st < NH + OPT['nrs'] else b+kk*32+4*ct
                    X.append(f"{MF} {d}, {a(wf,4)}, {a(b+kk*32+16+4*qt,4)}, {'0' if (st in (0, NH) and j_ == 0) else d}")
        return X
    def pack(acc, pk, i):
        X = []
        for ct in range(4):
            x = acc + (ct*4+i)*4; d = pk + (i-1)*8 + 2*ct
            X += [f"v_cvt_pk_bf16_f32 v{d}, v{x}, v{x+1}", f"v_cvt_pk_bf16_f32 v{d+1}, v{x+2}, v{x+3}"]
        return X
    def pst(pk, i, half): return [f"buffer_store_dwordx4 {v(pk+(i-1)*8+4*j,4)}, v{aL16}, s[{P2PART}:{P2PART+3}], s{sPS+i-1} offen offset:{2048*half+1024*j} sc1" for j in range(2)]
    rD = lambda i, k: RXD + i*8 + k
    rS = lambda i, k: SA + ((k >> 2)*4 + i + 1)*4 + (k & 3)
    def pld(rx, half): return [f"buffer_load_dwordx4 {v(rx(i, 4*j),4)}, v{aL16}, s[{P2PART}:{P2PART+3}], s{49+i} offen offset:{2048*half+1024*j} sc1" for i in range(3) for j in range(2)]
    def pchk(rx):
        R = [rx(i, k) for i in range(3) for k in range(8)]
        X = [f"v_max3_u32 v{T}, v{R[0]}, v{R[1]}, v{R[2]}", f"v_max3_u32 v{T+1}, v{R[3]}, v{R[4]}, v{R[5]}"]
        for k in range(6, 24, 2): X.append(f"v_max3_u32 v{T+(k//2)%2}, v{T+(k//2)%2}, v{R[k]}, v{R[k+1]}")
        return X + [f"v_max_u32 v{T}, v{T}, v{T+1}", f"v_cmp_eq_u32 vcc, -1, v{T}"]
    segs = []
    NRS = OPT['nrs']
    staged = list(range(NH, NH + NRS)); half = (NRS + 1) // 2
    def stage_reads(st):
        X = []
        for kk in range(2):
            hw, lw = divmod(slot[('w', st)]*16384 + kk*8192, 65536)
            for i in range(4):
                for hh in range(2): X.append(f"ds_read_b64_tr_b16 {a((st-NH)*32+kk*16+4*i+2*hh,2)}, v{aW+4*hw+i} offset:{lw+2048*hh}")
        return X
    def body(mf, rd, dm, last=False, ships=(1, 2)):
        nonlocal q
        n = len(mf); gaps = [[] for _ in mf]
        ev = list(range(0, n - 6, 2)); od = list(range(1, n, 2))
        per = -(-len(rd) // len(ev)) if rd else 0
        per = max(per, 2)
        for k, x in enumerate(rd): gaps[ev[k // per]].append(x)
        nv = sum(x.startswith('buffer') for x in dm)
        if OPT['spread'] and 0 < nv <= len(od) - 1:
            ps = [1 + (k * (len(od) - 1)) // nv for k in range(nv)]
            k = 0; pend = []
            for x in dm:
                if x.startswith('buffer'):
                    p = ps[k]; k += 1
                    if pend:
                        if p - 1 not in ps: gaps[od[p-1]] += pend
                        else: gaps[od[p] - 1] += pend
                        pend = []
                    gaps[od[p]].append(x)
                else: pend.append(x)
            gaps[min(od[ps[-1]] + 1, n - 1)] += pend
        else:
            ng = sum('m0,' in x for x in dm)
            roomy = nv + ng <= len(od)
            pv = 1 if roomy else -(-nv // len(od))
            gi = 0; cnt = 0
            for x in dm:
                if x.startswith('buffer'):
                    gaps[od[gi]].append(x); cnt += 1
                    if cnt == pv: gi = min(gi + 1, len(od) - 1); cnt = 0
                else:
                    gaps[od[gi]].append(x)
                    if 'm0,' in x:
                        if roomy: gi += 1
                        else: gaps[od[gi]].append("s_nop 0")
        if last:
            for i in ships:
                for k, x in enumerate(pack(last[0], last[1], i)): gaps[8*i + 4 + k//2].append(x)
                if last[2] is not None:
                    for k, x in enumerate(pst(last[1], i, last[2])): gaps[8*i + 8 + k].insert(0, x)
        if q: fill(gaps, q, 0, OPT['ecap'])
        elif q2: fill(gaps, q2, 0, 2)
        return weave(mf, gaps)
    def sync(tags):
        n = vm_after(done + L, tags)
        return ["s_waitcnt " + (f"vmcnt({n}) " if n is not None else "") + "lgkmcnt(0)", "s_barrier"]
    if not OPT['pre0']:
        L += reads(0)
        while Ins(q[0]).kind != 'vst': L.append(q.pop(0))
    for st in range(1, NH + 1):
        if st == min(SIGI, 4): L += q + q2; q = []; del q2[:]
        sr = staged[:half] if st == NH - 1 else staged[half:] if st == NH else []
        if not (st == 1 and OPT['pre0']): L += sync(([f"a{st}", f"w{st}"] if st < NH else []) + (['o'] if st == SIGI else []) + [f"w{s_}" for s_ in sr] + (['f'] if st == NH and OPT['ea'] else []))
        free += [slot[('w', st-1)], slot[('a', st-1)]]
        if st == NH: free += [slot[('w', s_)] for s_ in staged[:half]]
        if st == SIGI:
            L += [f"s_cmp_lg_u32 s{sW}, 0", "s_cbranch_scc1 P2_NOSIG"]
            segs.append(L); done += L; L = stamp(STV); e = L.append
        rd = (reads(st) if st < NH else []) + sum((stage_reads(s_) for s_ in sr), [])
        dm = []
        if st == 1 and OPT['pre0'] == 2:
            d5 = dma('w') + dma('a')
            L += rd
            while q:
                x = q.pop(0); L.append(x)
                if Ins(x).kind == 'vst': L += with_m0_nops(d5[:3]); d5 = d5[3:]
            L += with_m0_nops(d5)
            continue
        if st == 1:
            if OPT['pre0']: dm = dma('w') + dma('a')
            else: L += with_m0_nops(dma('w') + dma('a'))
        elif st >= OPT['dstart']:
            while len(free) > 0 and nxt['w'] < NH + OPT['wpre'] and len(dm) < OPT['dmax']*6: dm += dma('w')
        EA = OPT['ea']
        if st == NH - (1 if EA else 0): dm = [FLD + " ; @f"] + dm
        if st == NH and EA:
            L += [f_cmp(vFL), f"s_mov_b32 s{sT0}, s{sAo}", "s_cmp_eq_u64 vcc, 0", f"s_cselect_b32 s{P2ACT+2}, s{sSZ2}, 0"]
            ea = []
            for _ in range(OPT['a0']): ea += dma('a')
            dm = [x.split(' ; @')[0] for x in ea] + dm
        if st == NH and OPT['xearly']: dm += [f"buffer_load_dwordx2 {v(XR+2*ct,2)}, v{aXO}, s[{P2X}:{P2X+3}], s{sXO} offen offset:{32*ct}" for ct in range(4)]
        assert not (q and sr)
        L += body(mfmas(st - 1), rd, dm, last=(DA, PKD, None) if st == NH else False)
    L += pack(DA, PKD, 3)
    dst = pst(PKD, 1, 1) + pst(PKD, 2, 1) + pst(PKD, 3, 1)
    if not EA:
        L += sync(['f'])
        free += [slot[('w', s_)] for s_ in staged[half:]]
        L += [f_cmp(vFL), f"s_mov_b32 s{sCNT}, 0", f"v_mov_b32 v{T+1}, v{aL16}", "s_cbranch_vccz P2_GO"]
        segs.append(L); done += L
        segs.append(dst + [f"v_mov_b32 v{T+1}, {OOB}"])
        R = []
        L = stamp(STV); e = L.append
        for _ in range(OPT['a0']): L += with_m0_nops(dma('a'))
    else:
        if OPT['dst0'] == 0: L += dst; dst = []
        L += [f"s_mov_b32 s{sCNT}, 0", f"v_mov_b32 v{T+1}, v{aL16}", f"s_cmp_lg_u32 s{P2ACT+2}, 0", "s_cbranch_scc1 P2_RUN"]
        segs.append(L); done += L
        segs.append(dst + [f"v_mov_b32 v{T+1}, {OOB}", f"s_mov_b32 s{P2ACT+2}, s{sSZ2}", f"s_mov_b32 s{sAo}, s{sT0}"])
        R = with_m0_nops(ea)
        done += [x for x in R if x.startswith('buffer')]
        L = stamp(STV); e = L.append
    dst = [x.replace(f"v{aL16},", f"v{T+1},") for x in dst]
    eatail = 0
    for st in range(NH, NST + 1):
        dm = []; rd = []
        if st < NST:
            if OPT['ea'] and st == NH: L += ["s_waitcnt vmcnt(%d) lgkmcnt(0)" % min(4*(OPT['a0']-1), eatail + 4*(OPT['a0']-1)), "s_barrier"]; free += [slot[('w', s_)] for s_ in staged[half:]]
            else: L += sync([f"a{st}", f"w{st}"] + (['pf'] if st == NST - 2 else []))
            if st > NH:
                free += [slot[('a', st-1)]] + ([slot[('w', st-1)]] if st-1 not in staged else [])
            rd = reads(st)
            def more():
                if st == NH: return len(dm) < 6*OPT['a1']
                if min(nxt['a'], nxt['w']) <= st + OPT['la']: return True
                return len(dm) < 6*OPT['gmax'] and (nxt['a'] + nxt['w'] - base) * 100 < OPT['pace'] * (st - NH)
            if st == NH + 1: base = nxt['a'] + nxt['w']
            while free and (nxt['a'] < NST or nxt['w'] < NST) and more():
                k = 'a' if (nxt['a'] <= nxt['w'] + OPT['alead'] or nxt['w'] >= NST) and nxt['a'] < NST else 'w'
                dm += dma(k)
            if st >= OPT['dst0'] and dst: dm += dst[:2]; dst = dst[2:]
            if st == NST - 3 and not OPT['xearly']: dm += [f"buffer_load_dwordx2 {v(XR+2*ct,2)}, v{aXO}, s[{P2X}:{P2X+3}], s{sXO} offen offset:{32*ct}" for ct in range(4)]
            if OPT['lpz'] and st == NST - 5: dm += [f_load(vPF, aPF, 2) + " ; @pf"]
            if OPT['lpz'] and st == NST - 2:
                L += [f_cmp(vPF), f"s_mov_b32 s{sCNT}, 0", "s_cbranch_vccnz P2_PFPOLL", "P2_PFOK:"]
            if st == NST - 2: dm += pld(rD, 1)
        else:
            L += ["s_waitcnt lgkmcnt(0)"]
        if (OPT['stamp'] == 5 and st % 2 == 0) or (OPT['stamp'] == 6 and st in (10, 14, 17, 19, 21)): L += stamp(STV)
        if st == NH: L += rd + with_m0_nops(dm)
        elif OL and st == NST:
            mf = mfmas(st - 1, (1, 2, 3)) + sum((mfmas(s_, (0,)) for s_ in range(NST - OL, NST)), [])
            L += body(mf, rd, dm, last=(SA, PKS, 0), ships=(1, 2, 3))
        elif OL and st > NST - OL: L += body(mfmas(st - 1, (1, 2, 3)), rd, dm)
        else: L += body(mfmas(st - 1), rd, dm, last=(SA, PKS, 0) if st == NST else False)
    L += stamp(STV)
    if not OL: L += pack(SA, PKS, 3) + pst(PKS, 3, 0)
    if OPT['searly'] == 1: L += pld(rS, 0)
    e(f"s_mov_b32 s{sCNT}, 0"); e(f"s_waitcnt vmcnt({12 if OPT['searly'] == 1 else 6})")
    L += pchk(rD); e("s_cbranch_vccz P2_DOK")
    XD = pld(rD, 1) + [f"s_add_u32 s{sCNT}, s{sCNT}, 1", "s_waitcnt vmcnt(0)"] + pchk(rD) + [f"s_cmp_gt_u32 s{sCNT}, {SPIN}", "s_cbranch_scc1 P2_DOK", "s_cbranch_vccnz P2_DPOLL"]
    M = []; e = M.append
    def accum(acc, rx, ct):
        for i in range(3):
            for h in range(2):
                p = rx(i, 2*ct + h)
                e(f"v_lshlrev_b32 v{T+2*h}, 16, v{p}"); e(f"v_and_b32 v{T+2*h+1}, s{sMASK}, v{p}")
            for h in range(2): e(f"v_pk_add_f32 {v(acc+ct*16+2*h,2)}, {v(acc+ct*16+2*h,2)}, {v(T+2*h,2)}")
    for ct in range(4): accum(DA, rD, ct)
    light = OPT['searly'] == 2
    LP = [f"buffer_load_dword v{T+4+i}, off, s[{P2PART}:{P2PART+3}], s{49+i} offset:2044 sc1" for i in range(3)]
    LC = [f"v_max3_u32 v{T+4}, v{T+4}, v{T+5}, v{T+6}", f"v_cmp_eq_u32 vcc, -1, v{T+4}"]
    if not OPT['searly']: M += pld(rS, 0)
    multi = OPT['searly'] == 3
    LP1 = lambda k: f"buffer_load_dword v{240+k}, v{aLP}, s[{P2PART}:{P2PART+3}], 0 offen offset:2044 sc1"
    for ct in range(4):
        if multi: e(LP1(ct))
        D_ = DA + ct*16; T_ = D_ + 4; X_ = D_ + 8
        for r in range(4): e(f"v_mul_f32 v{T_+r}, {f2u(-LOG2E)}, v{D_+r}")
        for r in range(4): e(f"v_exp_f32 v{T_+r}, v{T_+r}")
        e(f"v_lshlrev_b32 v{X_}, 16, v{XR+2*ct}"); e(f"v_and_b32 v{X_+1}, s{sMASK}, v{XR+2*ct}")
        for r in range(4): e(f"v_add_f32 v{T_+r}, 1.0, v{T_+r}")
        for r in range(4): e(f"v_rcp_f32 v{T_+r}, v{T_+r}")
        e(f"v_lshlrev_b32 v{X_+2}, 16, v{XR+1+2*ct}"); e(f"v_and_b32 v{X_+3}, s{sMASK}, v{XR+1+2*ct}")
        for h in (0, 2): e(f"v_pk_mul_f32 {v(T_+h,2)}, {v(T_+h,2)}, {v(D_+h,2)}")
    e(f"s_mov_b32 s{sCNT}, 0")
    if light:
        M += ["P2_LPOLL:"] + LP + [f"s_add_u32 s{sCNT}, s{sCNT}, 1"] + ([f"s_sleep {OPT['slp']}"] if OPT['slp'] else []) + ["s_waitcnt vmcnt(0)"] + LC
        M += [f"s_cmp_gt_u32 s{sCNT}, {SPIN}", "s_cbranch_scc1 P2_SPOLL", "s_cbranch_vccnz P2_LPOLL"]
    elif multi:
        M += ["P2_LPOLL:"]
        for k in range(4):
            M += ["s_waitcnt vmcnt(3)", f"v_cmp_eq_u32 vcc, -1, v{240+k}", "s_cbranch_vccz P2_SPOLL", LP1(k)]
        M += [f"s_add_u32 s{sCNT}, s{sCNT}, 1", f"s_cmp_gt_u32 s{sCNT}, {SPIN}", "s_cbranch_scc0 P2_LPOLL"]
    else:
        e("s_waitcnt vmcnt(0)")
        M += pchk(rS); e("s_cbranch_vccz P2_FIN")
    XS = pld(rS, 0) + [f"s_add_u32 s{sCNT}, s{sCNT}, 1", "s_waitcnt vmcnt(0)"] + pchk(rS) + [f"s_cmp_gt_u32 s{sCNT}, {SPIN}", "s_cbranch_scc1 P2_FIN", "s_cbranch_vccnz P2_SPOLL"]
    F = []; e = F.append
    F += stamp(STV)
    for ct in range(4):
        accum(SA, rS, ct)
        S_ = SA + ct*16; T_ = DA + ct*16 + 4; X_ = T_ + 4
        for h in (0, 2): e(f"v_pk_fma_f32 {v(X_+h,2)}, {v(S_+h,2)}, {v(T_+h,2)}, {v(X_+h,2)}")
        e(f"v_cvt_pk_bf16_f32 v{S_}, v{X_}, v{X_+1}"); e(f"v_cvt_pk_bf16_f32 v{S_+1}, v{X_+2}, v{X_+3}")
        e(f"buffer_store_dwordx2 {v(S_,2)}, v{aXO}, s[{P2OUT}:{P2OUT+3}], s{sXO} offen offset:{32*ct}" + ["", " sc1", " nt", " sc0 sc1"][OPT['outm']])
    if OPT['stamp']: F += ["s_waitcnt vmcnt(0)"] + stamp(STV, True)
    if OPT['echo']:
        F += ["s_waitcnt vmcnt(0)"] + stamp(STV) + ["s_memrealtime s[94:95]", "s_waitcnt lgkmcnt(0)", "s_sub_u32 s97, s97, s96", "s_mov_b32 s96, s94",
              "ECHO_LOOP:", "s_memrealtime s[94:95]", "s_waitcnt lgkmcnt(0)", "s_sub_u32 s94, s94, s96", "s_cmp_lt_u32 s94, s97", "s_cbranch_scc1 ECHO_LOOP"]
        print("; echo markers:", echo_n[0], file=sys.stderr)
    assert len(segs) == 3
    trace = segs[0] + segs[1] + L + M + (XS if light or multi else []) + F
    trace2 = segs[0] + S + segs[1] + segs[2] + P + P + R + L + XD + M + XS + F
    code = (segs[0] + S + ["P2_NOSIG:"] + segs[1] + segs[2] + ["P2_POLL:"] + P + ["P2_GO:"] + R + ["P2_RUN:"] + L
            + ["P2_DPOLL:"] + XD + ["P2_DOK:"] + M + ["P2_SPOLL:"] + XS + ["P2_FIN:"] + F + ["s_endpgm", "P2_PFPOLL:", f_load(vPF, aPF, 2), f"s_add_u32 s{sCNT}, s{sCNT}, 1", "s_waitcnt vmcnt(0)",
               f_cmp(vPF), f"s_cmp_gt_u32 s{sCNT}, {SPIN}", "s_cbranch_scc1 P2_PFOK", "s_cbranch_vccnz P2_PFPOLL", "s_branch P2_PFOK"])
    return trace, trace2, code

def kd(name, nv, acc, ns=102):
    return f""".amdhsa_kernel {name}
  .amdhsa_next_free_vgpr {nv}
  .amdhsa_next_free_sgpr {ns}
  .amdhsa_accum_offset {acc}
  .amdhsa_group_segment_fixed_size 0
  .amdhsa_kernarg_size 96
  .amdhsa_user_sgpr_count 2
  .amdhsa_user_sgpr_kernarg_segment_ptr 1
  .amdhsa_system_sgpr_workgroup_id_x 1
.end_amdhsa_kernel
"""
def fmt(L): return "\n".join(x if (x.endswith(':') or x.startswith('.')) else "    " + x for x in L)

NAME = "recurrent_scan__gqa_block_cached__glu_gated_glu__prompt_kernel"
HEAD = f"""; One persistent launch (256 workgroups, one per CU): LayerNorm + Q-projection + GLU-up, attention, out/down projection + gating.
; Kernarg layout (96 bytes): 0 A_x, 8 A_k_cache, 16 A_v_cache, 24 A_wq, 32 A_wo, 40 B_x, 48 B_w_gate, 56 B_w_up,
; @launch grid=(256,1,1) block=(256,1,1) lds=163840
.amdgcn_target "amdgcn-amd-amdhsa--gfx950"
.text
"""
def kern(name, L):
    return f".globl {name}\n.p2align 8\n.type {name},@function\n{name}:\n" + fmt(L) + "\n"
src = HEAD + kern(NAME, k1())
src += '.section .rodata,"a"\n.p2align 6\n' + kd(NAME, 512, 256)
open(sys.argv[1], "w").write(src)
```

```python
import sys, os, struct
sys.path.insert(0, os.path.dirname(os.path.abspath(__file__)))
from asmlib import *

OPT = dict(stamp=0, wgap=4, thr=40, cpf=1, rot=8, stpos=0, barg0=47, pois=45, sched=4, sq=1, opk=1, lcap=4, xw=60, xg=30, kvs=0, d0g=70, pstep=12, ecap=40, sigi=4, polli=6, dstart=2, searly=3, a0=4, a1=1, gmax=2, dst0=9, pace=175, aoff=0, poff=24, base=120, twice=0, wpf=1, spread=1, ea=1, xearly=0, fast0=1, xg0=56, pzq=1, lpz=1, outm=0, pre0=1, gub=15, w1late=0, gulate=1, st0=4, ownlast=4, guz=1, gsn=1, wnt=0, kvnt=0, xnt=0, kvpf=0, echo=0, la=3, slp=0, dmax=2, fearly=1, dlate=5, kvsc=1, wpre=8, nrs=4, alead=0)
for arg in sys.argv[2:]:
    k_, v_ = arg.split('='); OPT[k_] = int(v_)

MF = "v_mfma_f32_16x16x32_bf16"
TB, TC = 1, 5
NKS = 171
ACT_RB = NKS * 4096
WT_OFF = 24 << 20
FLAG_OFF = 31 << 20
PART_OFF = 32 << 20
STAMP_OFF = 64 << 20
STAT_OFF = 30 << 20
CS_OFF = STAT_OFF + 65536
OOB = '0x40000000'
BASE = OPT['base'] << 20
ACT_OFF = BASE + (OPT['aoff'] << 10)
PART_OFF = BASE + (OPT['poff'] << 20)
STAT_OFF = BASE + (22 << 20); CS_OFF = STAT_OFF + 65536; FLAG_OFF = BASE + (23 << 20)
LOG2E = 1.4426950408889634
SCALE = LOG2E / (128 ** 0.5)
def f2u(x): return "0x%08x" % struct.unpack('<I', struct.pack('<f', x))[0]

sW, sHEAD, sQB = 3, 4, 5
SK, SV, SX, SWQ, SGU, SACT, SWO, SWD, SWT = 8, 12, 16, 20, 24, 28, 32, 36, 40
sX0, sX1, sWQo, sGUo, sKV = 44, 45, 46, 47, 48
sMX, sMWQ, sMGU, sMKV, sMW2 = 49, 50, 51, 52, 53
sCNT, sMASK, sT0, sT1, sT2, sPASS = 54, 55, 56, 57, 58, 59
sH0 = 60
sW2S = 63
SWS = 88
SDBG = 84
SST = SWS; sSTo = 92
sXP, sA2, sOUT = 64, 66, 82
sPS = 40
sPZ, sPZD = 46, 47
sNON = 62
sKV2 = 43; sINC2 = 58; sPFo = 68
sP2, sCSo, sSTAo = 70, 71, 93
sSP, sSZ2, sXO, sINC, sFQB = 74, 75, 76, 77, 78
P2ACT, P2WT, P2X, P2OUT = 12, 8, 16, 20
P2PART = SFLAG = SWS
sKVB = 98
CHK_LDS = 8*16384 + 8192
def srd(d, lo, hi, size):
    return [f"s_mov_b32 s{d}, s{lo}", f"s_mov_b32 s{d+1}, s{hi}", f"s_mov_b32 s{d+2}, {size}", f"s_mov_b32 s{d+3}, 0x00020000"]

stamp_n = [0]
echo_n = [0]
def stamp(tmpv, force=False):
    if OPT['echo']:
        echo_n[0] += 1
        return ["s_memrealtime s[94:95]", "s_waitcnt lgkmcnt(0)", "s_mov_b32 s97, s94"] if echo_n[0] == OPT['echo'] else []
    if not OPT['stamp'] or (OPT['stamp'] == 9 and not force): return []
    n = stamp_n[0]; stamp_n[0] += 1
    return ["s_memtime s[94:95]", "s_memrealtime s[96:97]", "s_waitcnt lgkmcnt(0)",
            f"v_mov_b32 v{tmpv}, s94", f"v_mov_b32 v{tmpv+1}, s96", "s_nop 1",
            f"buffer_store_dwordx2 v[{tmpv}:{tmpv+1}], off, s[{SST}:{SST+3}], s{sSTo} offset:{n*8}", "s_nop 1"]

def units(xs): return sum(UNITS[Ins(x).kind] for x in xs)
class Gaps:
    def __init__(self, n, cap=2):
        self.pre = [[] for _ in range(n)]
        self.post = [[] for _ in range(n)]
        self.cap = cap; self.n = n
    def used(self, g): return units(self.pre[g] + self.post[g])
    def put(self, g, text, force=False):
        k = Ins(text).kind
        assert force or self.used(g) + UNITS[k] <= self.cap, (g, text, self.pre[g], self.post[g])
        (self.post if k in ('valu', 'trans') else self.pre)[g].append(text)
    def fit(self, g0, text, g1=None):
        k = UNITS[Ins(text).kind]
        for g in range(g0, self.n if g1 is None else g1):
            if self.used(g) + k <= self.cap:
                self.put(g, text); return g
        return None
    def stream(self, g, q, g1=None):
        g1 = self.n if g1 is None else g1
        while q:
            k = 1
            while k < len(q) and q[k].split()[0] in ('s_addc_u32', 's_cselect_b32', 's_cselect_b64'): k += 1
            grp = q[:k]; u = units(grp)
            mem = Ins(grp[0]).kind in ('dsr', 'dsw', 'vld', 'vst', 'dma')
            while g < g1 and not ((self.used(g) + u <= self.cap or (u > self.cap and self.used(g) == 0))
                                  and not (mem and any(Ins(x).kind in ('valu', 'trans') for x in self.post[g]))): g += 1
            if g >= g1: return g
            self.post[g] += grp; del q[:k]
        return g
    def out(self): return [p + q for p, q in zip(self.pre, self.post)]

def vm_after(trace, tags):
    ops = [x for x in trace if Ins(x).kind in ('dma', 'vld', 'vst')]
    idx = [i for i, x in enumerate(ops) if any(x.endswith('@' + t) for t in tags)]
    return None if not idx else len(ops) - 1 - max(idx)

XF = 0
SXA = 64
TM = 80; aWQR = 88; ONES = 96
aXD = 100; aWQD = 104; aGUD = 108; aXR = 112; aWQC = 114; aGUR = 116; aGUC = 117
aL16 = 118; aCS = 112; aKD = 120; aVD = 124; vLANE = 126; aGUR2 = 127; vSP = 127
vD1 = 114; vIDX = 119
QACC = 128
GUA = 0; CSA = 96; WF = 128
def EFr(tl, ks): return (112 if tl < 2 else 224) + (tl*2+ks)*4
def gua(zt, qt): return GUA + (qt*6+zt)*4
QF = 0; KF = 128; SB = 192; PB = 208; NEGM = 224; LACC = 240
aKR = 100; aVR = 104; aW2R = 112; T2 = 64
OACC = 0; VF = 128
aPF = 114; vPF = 115
aA = 64; aW = 76; aXO = 112; XR = 100; aFL = 116; vFL = 117

def k1_setup():
    L = []; e = L.append
    e("s_cmp_ge_u32 s2, 256"); e("s_cbranch_scc1 K1_END")
    if OPT['stamp']: e("s_memtime s[98:99]"); e("s_memrealtime s[100:101]")
    if OPT['echo']: e("s_memrealtime s[96:97]")
    e("s_load_dwordx16 s[64:79], s[0:1], 0"); e("s_load_dwordx8 s[80:87], s[0:1], 64")
    l = vLANE
    e("v_lshrrev_b32 v1, 6, v0"); e(f"v_and_b32 v{l}, 63, v0"); e(f"v_readfirstlane_b32 s{sW}, v1")
    e("s_and_b32 s6, s2, 7"); e("s_lshr_b32 s7, s2, 3")
    e(f"s_lshl_b32 s{sHEAD}, s6, 2"); e(f"s_and_b32 s{sT0}, s7, 3"); e(f"s_add_u32 s{sHEAD}, s{sHEAD}, s{sT0}")
    e(f"s_lshr_b32 s{sQB}, s7, 2")
    if OPT['cpf']:
        e(f"s_getpc_b64 s[{SWO}:{SWO+1}]"); e("KPC:"); e(f"s_mov_b32 s{SWO+2}, K1_END-KPC"); e(f"s_mov_b32 s{SWO+3}, 0x00020000")
        e(f"s_lshl_b32 s{sT0}, s7, 2"); e(f"s_add_u32 s{sT0}, s{sT0}, s{sW}"); e(f"s_lshl_b32 s{sT0}, s{sT0}, 7")
        e(f"v_lshlrev_b32 v12, 14, v{l}")
        e(f"buffer_load_dword v16, v12, s[{SWO}:{SWO+3}], s{sT0} offen")
    e(f"v_and_b32 v1, 15, v{l}"); e(f"v_lshrrev_b32 v2, 4, v{l}"); e("v_lshrrev_b32 v3, 2, v1"); e(f"v_and_b32 v4, 3, v{l}")
    e(f"v_lshrrev_b32 v5, 3, v{l}"); e(f"v_and_b32 v6, 7, v{l}"); e(f"v_lshlrev_b32 v{aL16}, 4, v{l}")
    e("v_lshlrev_b32 v7, 1, v2"); e("v_xor_b32 v7, v7, v1")
    e(f"s_lshl_b32 s6, s{sW}, 4"); e("v_add_u32 v8, s6, v2"); e("v_lshlrev_b32 v9, 13, v8")
    for i in range(4):
        e(f"v_xor_b32 v10, {8*(i>>1)}, v7"); e("v_lshl_add_u32 v10, v10, 4, v9"); e(f"v_add_u32 v{aWQD+i}, {31744*i}, v10")
    e("v_lshrrev_b32 v7, 1, v5"); e("v_xor_b32 v7, v7, v6"); e("v_lshlrev_b32 v8, 10, v5")
    for i in range(4):
        e(f"v_xor_b32 v9, {4*(i&1)}, v7"); e("v_lshl_add_u32 v9, v9, 4, v8"); e(f"v_add_u32 v{aXD+i}, {7168*i}, v9")
    e(f"s_lshl_b32 s{sMX}, s{sW}, 13"); e(f"s_lshl_b32 s{sMKV}, s{sW}, 12"); e(f"s_add_u32 s{sMWQ}, s{sMKV}, 65536")
    e(f"s_add_u32 s{sMGU}, s{sMKV}, 81920")
    R = OPT['rot']
    e(f"s_and_b32 s6, s{sQB}, {R-1}"); e(f"s_mul_i32 s6, s6, {8//R}")
    e(f"s_lshl_b32 s{sX0}, s6, 7"); e(f"s_add_u32 s{sX1}, s{sX0}, 32768"); e(f"s_lshl_b32 s{sWQo}, s6, 19"); e(f"s_mul_i32 s{sGUo}, s6, {64*2752}")
    e(f"s_lshl_b32 s{sT1}, s{sQB}, 5"); e(f"s_add_u32 s{sT1}, s{sT1}, s{sHEAD}"); e(f"s_lshl_b32 s{sT1}, s{sT1}, 2"); e(f"s_add_u32 s{sT1}, s{sT1}, s{sW}")
    e(f"s_lshl_b32 s{sT2}, s{sT1}, 11")
    e("s_waitcnt lgkmcnt(0)")
    e(f"s_lshl_b32 s6, s{sHEAD}, 8"); e(f"s_add_u32 s{SWQ}, s70, s6"); e(f"s_addc_u32 s{SWQ+1}, s71, 0")
    e(f"s_sub_u32 s{SWQ+2}, {512*8192}, s6"); e(f"s_mov_b32 s{SWQ+3}, 0x00020000")
    L += with_m0_nops(dma_w(0, 0)[:5])
    e(f"s_lshl_b32 s6, s{sQB}, 2"); e(f"s_add_u32 s6, s6, s{sW}"); e("s_lshl_b32 s7, s6, 16")
    e(f"s_add_u32 s{SX}, s64, s7"); e(f"s_addc_u32 s{SX+1}, s65, 0"); e(f"s_mov_b32 s{SX+2}, 65536"); e(f"s_mov_b32 s{SX+3}, 0x00020000")
    L += with_m0_nops(dma_x(0, 0))
    e(f"s_and_b32 s6, s{sW}, 1"); e(f"s_mul_i32 s6, s6, {32*2752}"); e("s_movk_i32 s7, 2752")
    for par in range(2):
        e(f"v_subrev_u32 v9, {8*par}, v{l}"); e("v_cmp_gt_u32 vcc, 48, v9")
        e("v_mul_u32_u24 v10, 171, v9"); e("v_lshrrev_b32 v10, 10, v10")
        e("v_mul_u32_u24 v11, 6, v10"); e("v_sub_u32 v11, v9, v11"); e("v_lshlrev_b32 v11, 4, v11")
        e("v_mad_u32_u24 v11, v10, s7, v11"); e("v_add_u32 v11, s6, v11"); e(f"v_mov_b32 v10, {OOB}")
        e("v_cndmask_b32 v11, v10, v11, vcc")
        for i in (par, par+2): e(f"v_add_u32 v{aGUD+i}, {(8*2752-1024)*i}, v11")
    e(f"s_cmp_ge_u32 s{sW}, 2"); e("s_cselect_b32 s76, s78, s76"); e("s_cselect_b32 s77, s79, s77")
    e(f"s_mul_i32 s6, s{sHEAD}, 96"); e(f"s_add_u32 s{SGU}, s76, s6"); e(f"s_addc_u32 s{SGU+1}, s77, 0")
    e(f"s_sub_u32 s{SGU+2}, {512*2752}, s6"); e(f"s_mov_b32 s{SGU+3}, 0x00020000")
    if OPT['guz']: e(f"s_cmp_ge_u32 s{sHEAD}, 29"); e(f"s_cselect_b32 s{SGU+2}, 0, s{SGU+2}")
    if not OPT['gulate']: L += with_m0_nops(dma_w(0, 0)[5:])
    L += srd(SWD, 64, 65, 2048*1024)
    if OPT['stpos'] == 0 and not OPT['fast0']: L += st_loads()
    return L
def st_loads():
    b = 64 if OPT['fast0'] else 40
    return [f"buffer_load_dwordx4 {v(b,4)}, v{aL16}, s[{SWD}:{SWD+3}], s{sT2} offen", f"buffer_load_dwordx4 {v(b+4,4)}, v{aL16}, s[{SWD}:{SWD+3}], s{sT2} offen offset:1024 ; @st"]
def stats_stream():
    L = []; e = L.append
    for rw in range(2):
        s_, q_ = 72+2*rw, 73+2*rw
        for k in range(4):
            x = 64+4*rw+k; t = 76 + 2*(k & 1)
            e(f"v_lshlrev_b32 v{t}, 16, v{x}"); e(f"v_and_b32 v{t+1}, 0xffff0000, v{x}")
            if k == 0: e(f"v_add_f32 v{s_}, v{t}, v{t+1}"); e(f"v_mul_f32 v{q_}, v{t}, v{t}")
            else: e(f"v_add_f32 v{s_}, v{s_}, v{t}"); e(f"v_fmac_f32 v{q_}, v{t}, v{t}"); e(f"v_add_f32 v{s_}, v{s_}, v{t+1}")
            e(f"v_fmac_f32 v{q_}, v{t+1}, v{t+1}")
    for rot in (8, 4, 2, 1):
        for i in range(4): e(f"v_add_f32_dpp v{72+i}, v{72+i}, v{72+i} row_ror:{rot} {DPP}")
    L += xlane_reduce("v_add_f32", [72, 73, 74, 75], [76, 77, 78, 79])
    for rw in range(2):
        s_, q_ = 72+2*rw, 73+2*rw
        e(f"v_mul_f32 v{s_}, {f2u(-1/512)}, v{s_}"); e(f"v_mul_f32 v{q_}, {f2u(1/512)}, v{q_}")
        e(f"v_fma_f32 v{q_}, -v{s_}, v{s_}, v{q_}"); e(f"v_max_f32 v{q_}, 0, v{q_}"); e(f"v_add_f32 v{q_}, {f2u(1e-5)}, v{q_}")
    e(f"buffer_store_dwordx4 v[72:75], v{TM+3}, s[{SWS}:{SWS+3}], s{sT1} offen sc1 ; @pub")
    return L

def dma_w(buf, st):
    o = buf * 32768
    nt = " nt" if st < OPT['wnt'] else ""
    L = [f"s_add_u32 m0, s{sMWQ}, {o}"]
    for i in range(4): L.append(f"buffer_load_dwordx4 v{aWQD+i}, s[{SWQ}:{SWQ+3}], s{sWQo} offen offset:{1024*i}{nt} lds ; @W{st}")
    L.append(f"s_add_u32 m0, s{sMGU}, {o}")
    for i in range(4): L.append(f"buffer_load_dwordx4 v{aGUD+i}, s[{SGU}:{SGU+3}], s{sGUo} offen offset:{1024*i}{nt} lds ; @W{st}")
    L += [f"s_add_u32 s{sWQo}, s{sWQo}, {64*8192}", f"s_and_b32 s{sWQo}, s{sWQo}, {512*8192-1}",
          f"s_lshr_b32 s{sGUo}, s{sWQo}, 19", f"s_mul_i32 s{sGUo}, s{sGUo}, {64*2752}"]
    return L
def dma_x(buf, st):
    o = buf * 32768
    nt = " nt" if st < OPT['xnt'] else ""
    L = [f"s_add_u32 m0, s{sMX}, {o}"]
    for i in range(4): L.append(f"buffer_load_dwordx4 v{aXD+i}, s[{SX}:{SX+3}], s{sX0} offen offset:{1024*i}{nt} lds ; @X{st}")
    L.append(f"s_add_u32 m0, s{sMX}, {o+4096}")
    for i in range(4): L.append(f"buffer_load_dwordx4 v{aXD+i}, s[{SX}:{SX+3}], s{sX1} offen offset:{1024*i}{nt} lds ; @X{st}")
    L += [f"s_add_u32 s{sX0}, s{sX0}, 128", f"s_and_b32 s{sX0}, s{sX0}, 1023", f"s_add_u32 s{sX1}, s{sX0}, 32768"]
    return L
def with_m0_nops(L):
    out = []
    for x in L:
        out.append(x)
        if 'm0,' in x: out.append("s_nop 0")
    return out
def kv_dma(slot, tag="", loop=False):
    sc = (" sc1" if OPT['kvsc'] else "") + (" nt" if OPT['kvnt'] > (1 if loop else 0) else "")
    L = [f"s_add_u32 m0, s{sMKV}, {slot*16384}"]
    for i in range(4): L.append(f"buffer_load_dwordx4 v{aKD+i}, s[{SK}:{SK+3}], s{sKV} offen offset:{1024*i}{sc} lds{tag}")
    L.append(f"s_add_u32 m0, s{sMKV}, {65536+slot*16384}")
    for i in range(4): L.append(f"buffer_load_dwordx4 v{aVD+(i&1)}, s[{SV}:{SV+3}], s{sKV2} offen offset:{1024*i}{sc} lds{tag}")
    L.append(f"s_add_u32 s{sKV}, s{sKV}, s{sINC}"); L.append(f"s_add_u32 s{sKV2}, s{sKV2}, s{sINC2}")
    return L
def kv_voff(n, gg, t):
    L = []; e = L.append
    e(f"s_lshl_b32 s6, s{sW}, 4"); e(f"v_add_u32 v{t}, s6, v{gg}"); e(f"v_lshlrev_b32 v{t}, 8, v{t}")
    e(f"v_xor_b32 v{t+1}, v{n}, v{gg}")
    for i in range(4):
        e(f"v_xor_b32 v{t+2}, {4*i}, v{t+1}"); e(f"v_lshl_add_u32 v{aKD+i}, v{t+2}, 4, v{t}")
    e(f"v_lshlrev_b32 v{t+1}, 1, v{gg}"); e(f"v_xor_b32 v{t+1}, v{t+1}, v{n}")
    for i in range(2):
        e(f"v_xor_b32 v{t+2}, {8*i}, v{t+1}"); e(f"v_lshl_add_u32 v{aVD+i}, v{t+2}, 4, v{t}")
    return L

def xlane_reduce(op, xs, ts):
    L = []
    for sw in ("v_permlane32_swap_b32", "v_permlane16_swap_b32"):
        for x, t in zip(xs, ts): L.append(f"v_mov_b32 v{t}, v{x}")
        if len(xs) < 3: L.append("s_nop 1")
        for x, t in zip(xs, ts): L.append(f"{sw} v{x}, v{t}")
        for x, t in zip(xs, ts): L.append(f"{op} v{x}, v{x}, v{t}")
    return L
DPP = "row_mask:0xf bank_mask:0xf"

def k1_setup2(pre):
    L = []; e = L.append; l = vLANE
    e("v_lshrrev_b32 v7, 1, v1"); e("v_lshlrev_b32 v8, 7, v1"); e(f"v_add_u32 v8, s{sMX}, v8")
    for ks in range(2):
        e(f"v_add_u32 v9, {4*ks}, v2"); e("v_xor_b32 v9, v9, v7"); e(f"v_lshl_add_u32 v{aXR+ks}, v9, 4, v8")
    e("v_lshl_add_u32 v7, v2, 3, v3")
    e("v_lshlrev_b32 v8, 8, v7"); e("v_lshl_add_u32 v8, v4, 3, v8"); e("v_add_u32 v8, 65536, v8")
    e("v_and_b32 v10, 1, v2"); e("v_lshl_add_u32 v11, v10, 2, v3")
    for t in range(8):
        e(f"v_xor_b32 v9, {t}, v11"); e(f"v_lshl_add_u32 v{aWQR+t}, v9, 5, v8")
    e(f"s_lshl_b32 s6, s{sW}, 1"); e("v_xor_b32 v9, s6, v11"); e(f"v_lshl_add_u32 v{aWQC}, v9, 5, v8")
    e("v_xor_b32 v9, 1, v9"); e(f"v_lshl_add_u32 v{aWQC+1}, v9, 5, v8")
    e("v_mul_u32_u24 v8, 96, v3"); e("v_lshl_add_u32 v8, v4, 3, v8"); e("v_lshl_add_u32 v8, v2, 10, v8"); e("v_lshl_add_u32 v8, v10, 7, v8")
    e(f"s_and_b32 s6, s{sHEAD}, 1"); e("s_lshl_b32 s7, s6, 5"); e("s_add_u32 s7, s7, 81920"); e(f"v_add_u32 v{aGUR}, s7, v8")
    e("s_lshl_b32 s6, s6, 6"); e(f"s_sub_u32 s6, {81920+64}, s6"); e(f"v_add_u32 v{aGUR2}, s6, v8")
    e(f"s_lshl_b32 s{sT0}, s{sW}, 5"); e(f"s_add_u32 s7, s7, s{sT0}"); e(f"s_cmp_ge_u32 s{sW}, 2"); e("s_cselect_b32 s7, s6, s7"); e(f"v_add_u32 v{aGUC}, s7, v8")
    for i in range(4): e(f"v_mov_b32 v{ONES+i}, 0x3f803f80")
    L += srd(SWS, 86, 87, 1 << 28)
    e(f"s_movk_i32 s{SDBG+2}, 256"); e(f"s_mov_b32 s{SDBG+3}, 0x00020000")
    if OPT['stamp']:
        e("s_lshl_b32 s6, s2, 2"); e(f"s_add_u32 s6, s6, s{sW}"); e(f"s_lshl_b32 s{sSTo}, s6, 8"); e(f"s_add_u32 s{sSTo}, s{sSTo}, {STAMP_OFF}")
    e(f"v_mov_b32 v10, {OOB}"); e("v_lshlrev_b32 v9, 4, v1"); e("v_cmp_eq_u32 vcc, 0, v2"); e(f"v_cmp_eq_u32 s[6:7], 0, v{l}"); e("v_mov_b32 v12, 0")
    e(f"v_cndmask_b32 v{TM}, v10, v9, vcc"); e(f"v_cndmask_b32 v{TM+1}, v10, v12, s[6:7]"); e("v_cmp_eq_u32 vcc, 0, v0")
    for i in range(4): e(f"v_mov_b32 v{48+i}, 0")
    e(f"v_cndmask_b32 v{TM+2}, v10, v12, vcc"); e(f"v_mov_b32 v{TM+3}, v{TM+1}")
    e("s_memrealtime s[6:7]"); e(f"s_lshl_b32 s{sT0}, s2, 8"); e("s_waitcnt lgkmcnt(0)"); e("s_or_b32 s6, s6, 1"); e("v_mov_b32 v13, s6")
    e(f"buffer_store_dword v13, v{TM+2}, s[{SDBG}:{SDBG+3}], s{sT0} offen sc1")
    e(f"s_lshl_b32 s{sW2S}, s2, 7"); e(f"s_add_u32 s{sW2S}, s{sW2S}, {FLAG_OFF}")
    e(f"s_lshl_b32 s{sT1}, s{sT1}, 4"); e(f"s_add_u32 s{sT1}, s{sT1}, {STAT_OFF}")
    e(f"v_and_b32 v{vIDX}, 1, v{vLANE}"); e(f"v_mul_u32_u24 v{vIDX}, 0xaaaa, v{vIDX}"); e(f"v_add_u32 v{vIDX}, 0x4444, v{vIDX}"); e(f"v_lshl_or_b32 v{vIDX}, v{vIDX}, 16, v{vIDX}")
    for i in range(16): e(f"v_accvgpr_write_b32 a{CSA+i}, 0")
    return L

def k1_stats(pre):
    L = []; e = L.append
    e(f"s_waitcnt vmcnt({vm_after(pre, ['st'])})")
    for k in range(4):
        for rw in range(2):
            e(f"v_dot2c_f32_bf16 v{48+2*rw}, v{40+4*rw+k}, v{ONES}"); e(f"v_dot2c_f32_bf16 v{49+2*rw}, v{40+4*rw+k}, v{40+4*rw+k}")
    e("s_nop 1")
    for rot in (8, 4, 2, 1):
        for i in range(4): e(f"v_add_f32_dpp v{48+i}, v{48+i}, v{48+i} row_ror:{rot} {DPP}")
    L += xlane_reduce("v_add_f32", [48, 49, 50, 51], [40, 41, 42, 43])
    for rw in range(2):
        s_, q_ = 48+2*rw, 49+2*rw
        e(f"v_mul_f32 v{s_}, {f2u(-1/512)}, v{s_}"); e(f"v_mul_f32 v{q_}, {f2u(1/512)}, v{q_}")
        e(f"v_fma_f32 v{q_}, -v{s_}, v{s_}, v{q_}"); e(f"v_max_f32 v{q_}, 0, v{q_}"); e(f"v_add_f32 v{q_}, {f2u(1e-5)}, v{q_}")
    e(f"buffer_store_dwordx4 v[48:51], v{TM+1}, s[{SWS}:{SWS+3}], s{sT1} offen sc1 ; @pub")
    return L

def k1_setup3():
    L = []; e = L.append; l = vLANE
    e(f"s_lshl_b32 s6, s{sHEAD}, 19")
    e(f"s_add_u32 s{SK}, s66, s6"); e(f"s_addc_u32 s{SK+1}, s67, 0"); e(f"s_add_u32 s{SV}, s68, s6"); e(f"s_addc_u32 s{SV+1}, s69, 0")
    for d in (SK, SV): e(f"s_mov_b32 s{d+2}, 524288"); e(f"s_mov_b32 s{d+3}, 0x00020000")
    e(f"s_mov_b64 s[{sKVB}:{sKVB+1}], s[{SK}:{SK+1}]"); e(f"s_mov_b64 s[{sKVB+2}:{sKVB+3}], s[{SV}:{SV+1}]")
    for i in range(4): e(f"v_accvgpr_write_b32 a{CSA+i}, -1")
    c2, t = sT0, sCNT
    e("s_and_b32 s6, s2, 7"); e("s_lshr_b32 s7, s2, 3")
    e("s_lshr_b32 s79, s6, 2"); e(f"s_lshl_b32 s{sSP}, s79, 1"); e(f"s_add_u32 s{sSP}, s{sSP}, s6"); e(f"s_add_u32 s{sSP}, s{sSP}, 1"); e(f"s_and_b32 s{sSP}, s{sSP}, 3")
    e("s_lshl_b32 s79, s79, 3"); e("s_and_b32 s6, s7, 7"); e("s_add_u32 s79, s79, s6"); e(f"s_lshr_b32 s{c2}, s7, 3")
    e("s_lshl_b32 s7, s7, 2"); e(f"s_add_u32 s7, s7, s{sW}")
    e(f"s_lshl_b32 s{sPFo}, s{sSP}, 7"); e(f"s_add_u32 s{sPFo}, s{sPFo}, s7"); e(f"s_lshl_b32 s{sPFo}, s{sPFo}, 13")
    e(f"s_mul_i32 s{sPFo+1}, s{sSP}, 352"); e("s_mul_i32 s7, s7, 3"); e(f"s_add_u32 s{sPFo+1}, s{sPFo+1}, s7"); e(f"s_lshl_b32 s{sPFo+1}, s{sPFo+1}, 10")
    e(f"s_lshl_b32 s{t}, s79, 2"); e(f"s_add_u32 s{t}, s{t}, s{c2}"); e(f"s_lshl_b32 s{t}, s{t}, 18"); e(f"s_lshl_b32 s6, s{sW}, 12"); e(f"s_add_u32 s{t}, s{t}, s6")
    e(f"s_add_u32 s{sP2}, s{t}, {PART_OFF}")
    part_soff(e, sPS, True)
    e(f"s_lshr_b32 s7, s{sW}, 1"); e("s_lshl_b32 s6, s7, 12"); e(f"s_sub_u32 s{sSZ2}, {ACT_RB}, s6")
    e(f"s_and_b32 s7, s{sW}, 1")
    e(f"s_lshl_b32 s{t}, s79, 1"); e(f"s_add_u32 s{t}, s{t}, s7"); e(f"s_mul_i32 s{t}, s{t}, {ACT_RB}"); e(f"s_add_u32 s{t}, s{t}, s6"); e(f"s_add_u32 s{t}, s{t}, {ACT_OFF}")
    e(f"s_add_u32 s{sA2}, s{SWS}, s{t}"); e(f"s_addc_u32 s{sA2+1}, s{SWS+1}, 0")
    e(f"s_lshl_b32 s{t}, s{c2}, 1"); e(f"s_add_u32 s{t}, s{t}, s7"); e(f"s_lshl_b32 s{t}, s{t}, 7"); e("s_lshl_b32 s6, s6, 3"); e(f"s_add_u32 s6, s6, s{t}")
    e(f"s_add_u32 s{SWO}, s72, s6"); e(f"s_addc_u32 s{SWO+1}, s73, 0"); e(f"s_sub_u32 s{SWO+2}, {4096*1024}, s6"); e(f"s_mov_b32 s{SWO+3}, 0x00020000")
    e(f"s_add_u32 s{SWD}, s80, s6"); e(f"s_addc_u32 s{SWD+1}, s81, 0"); e(f"s_sub_u32 s{SWD+2}, {1376*1024}, s6"); e(f"s_mov_b32 s{SWD+3}, 0x00020000")
    e("s_lshl_b32 s7, s79, 1"); e(f"s_lshr_b32 s6, s{sW}, 1"); e("s_add_u32 s7, s7, s6"); e("s_lshl_b32 s7, s7, 2"); e(f"s_add_u32 s7, s7, s{sSP}"); e("s_lshl_b32 s7, s7, 14")
    e(f"s_add_u32 s{sXO}, s7, s{t}")
    e(f"s_movk_i32 s{sINC}, 16384")
    e(f"s_lshr_b32 s{sFQB}, s79, 1")
    e(f"s_lshl_b32 s6, s{sQB}, 2"); e(f"s_add_u32 s6, s6, s{sW}")
    e(f"s_lshl_b32 s{sSTAo}, s6, 9"); e(f"s_add_u32 s{sSTAo}, s{sSTAo}, {STAT_OFF}")
    e(f"s_mul_i32 s7, s6, {ACT_RB}"); e(f"s_add_u32 s7, s7, {ACT_OFF}"); e(f"s_add_u32 s{SACT}, s{SWS}, s7"); e(f"s_addc_u32 s{SACT+1}, s{SWS+1}, 0")
    e(f"s_mov_b32 s{SACT+2}, {ACT_RB}"); e(f"s_mov_b32 s{SACT+3}, 0x00020000")
    e(f"s_add_u32 s{sMW2}, s{sMX}, 131072")
    e(f"v_and_b32 v{TM+3}, 15, v{l}"); e(f"v_lshrrev_b32 v{TM+4}, 4, v{l}")
    L += kv_voff(TM+3, TM+4, TM+5)
    e(f"s_mov_b32 s{sKV}, 0"); e(f"s_mov_b32 s{sKV2}, 0"); e(f"s_movk_i32 s{sINC2}, 16384"); e(f"s_mov_b32 s{sMASK}, 0xffff0000"); e(f"s_mov_b32 s{sPASS}, 0")
    e(f"s_mul_i32 s6, s{sHEAD}, 3"); e(f"s_and_b32 s7, s{sHEAD}, 1")
    e(f"s_add_u32 s{sH0}, s6, s7"); e(f"s_lshr_b32 s{sH0}, s{sH0}, 1"); e(f"s_add_u32 s{sH0}, s{sH0}, 128"); e(f"s_lshl_b32 s{sH0}, s{sH0}, 12")
    e("s_add_u32 s6, s6, 2"); e("s_lshl_b32 s7, s7, 1"); e("s_sub_u32 s6, s6, s7")
    e(f"s_lshr_b32 s{sH0+1}, s6, 1"); e(f"s_add_u32 s{sH0+1}, s{sH0+1}, 128"); e(f"s_lshl_b32 s{sH0+1}, s{sH0+1}, 12")
    e("s_and_b32 s6, s6, 1"); e("s_lshl_b32 s6, s6, 3"); e(f"s_add_u32 s{sH0+1}, s{sH0+1}, s6")
    return L

def rd_x(buf):
    return [f"ds_read_b128 {v(XF+buf*32+(qt*2+ks)*4,4)}, v{aXR+ks} offset:{buf*32768+2048*qt}" for qt in range(4) for ks in range(2)]
def rd_w(m, lb):
    L = []
    for ks in range(2):
        for hh in range(2):
            d = a(WF+(m*2+ks)*4+2*hh, 2)
            if m < 8: L.append(f"ds_read_b64_tr_b16 {d}, v{aWQR+m} offset:{lb*32768+ks*8192+hh*1024}")
            else:
                z, t = divmod(m-8, 3)
                L.append(f"ds_read_b64_tr_b16 {d}, v{aGUR if t < 2 else aGUR2} offset:{lb*32768+z*8192+ks*4096+hh*384+32*(t&1)}")
    return L
def rd_e(lb):
    L = []
    for tl in range(4):
        for ks in range(2):
            for hh in range(2):
                d = a(EFr(tl, ks)+2*hh, 2)
                if tl < 2: L.append(f"ds_read_b64_tr_b16 {d}, v{aWQC+tl} offset:{lb*32768+ks*8192+hh*1024}")
                else: L.append(f"ds_read_b64_tr_b16 {d}, v{aGUC} offset:{lb*32768+(tl-2)*8192+ks*4096+hh*384}")
    return L
def acc_m(m, qt):
    return v(QACC+(m*4+qt)*4, 4) if m < 8 else a(gua(m-8, qt), 4)

def loop_addr_setup(t):
    L = []; e = L.append; l = vLANE
    e(f"v_and_b32 v{t}, 15, v{l}"); e(f"v_lshrrev_b32 v{t+1}, 4, v{l}"); e(f"v_lshrrev_b32 v{t+2}, 2, v{t}"); e(f"v_and_b32 v{t+3}, 3, v{l}")
    e(f"v_lshlrev_b32 v{t+4}, 8, v{t}")
    e(f"v_and_b32 v{t+6}, 1, v{t+1}"); e(f"v_lshrrev_b32 v{t+7}, 1, v{t+1}"); e(f"v_lshl_add_u32 v{t+6}, v{t+6}, 1, v{t+7}")
    e(f"v_xor_b32 v{t+6}, v{t+6}, v{t}")
    for s_ in range(4):
        e(f"v_xor_b32 v{t+5}, {4*s_}, v{t+6}"); e(f"v_lshl_add_u32 v{aKR+s_}, v{t+5}, 4, v{t+4}")
    e(f"v_lshl_add_u32 v{t+4}, v{t+1}, 2, v{t+2}")
    e(f"v_and_b32 v{t+5}, 7, v{t+4}")
    e(f"v_lshlrev_b32 v{t+4}, 8, v{t+4}"); e(f"v_lshl_add_u32 v{t+4}, v{t+3}, 3, v{t+4}"); e(f"v_add_u32 v{t+4}, 65536, v{t+4}")
    for dt in range(8):
        e(f"v_xor_b32 v{t+6}, {dt}, v{t+5}"); e(f"v_lshl_add_u32 v{aVR+dt}, v{t+6}, 5, v{t+4}")
    return L

def place_dma(G, dm, g, step):
    last = g
    for x in dm:
        if x.startswith('buffer'):
            while g % 2 != 1 or G.used(g) > 0: g += 1
            G.put(g, x); last = g + 1; g += step - 1
        else:
            gg = G.fit(last, x); last = gg
            if 'm0,' in x: g = max(g, gg + 1)
    return max(g, last + 1)

def bid_of(dst, head, qb, t):
    return [f"v_and_b32 v{t}, 3, v{head}", f"v_lshl_add_u32 v{t}, {qb}, 2, v{t}", f"v_lshrrev_b32 v{dst}, 2, v{head}", f"v_lshl_add_u32 v{dst}, v{t}, 3, v{dst}",
            f"v_lshlrev_b32 v{dst}, 7, v{dst}", f"v_add_u32 v{dst}, {FLAG_OFF}, v{dst}"]
def d0_addr(dst, t):
    return [f"v_cmp_gt_u32 vcc, 32, v{vLANE}", f"v_and_b32 v{vD0}, 7, v{vLANE}", f"v_mov_b32 v{t}, s{sHEAD}", f"v_and_b32 v{t+1}, {OPT['rot']-1}, v{vLANE}",
            f"v_lshl_add_u32 v{vD0}, s{sW}, 3, v{vD0}", f"v_mov_b32 v{dst}, s{sQB}",
            f"v_cndmask_b32 v{t}, v{t}, v{vD0}, vcc", f"v_cndmask_b32 v{t+1}, v{t+1}, v{dst}, vcc"] + bid_of(dst, t, f"v{t+1}", vD0)
def d1_addr(dst, t):
    return ([f"v_and_b32 v{t}, 31, v{vLANE}"] + bid_of(dst, t, f"s{sFQB}", t+1)
            + ["s_and_b32 s6, s2, 0xfc", f"v_and_b32 v{t}, 3, v{vLANE}", f"v_add_u32 v{t}, s6, v{t}", f"v_cmp_gt_u32 vcc, 32, v{vLANE}",
               f"v_lshlrev_b32 v{t}, 7, v{t}", f"v_add_u32 v{t}, {FLAG_OFF}, v{t}", f"v_cndmask_b32 v{dst}, v{t}, v{dst}, vcc"])
def f_load(dst, addr, k): return f"buffer_load_dword v{dst}, v{addr}, s[{SWS}:{SWS+3}], 0 offen offset:{4*k} sc1"
def f_cmp(x): return f"v_cmp_ne_u32 vcc, s{sNON}, v{x}"
SPIN = 0x20000
WAITMARK = "s_waitcnt vmcnt(63) ; WAIT "
def resolve_waits(pre, ph):
    out = []
    for x in ph:
        if x.startswith(WAITMARK):
            tags, _, extra = x[len(WAITMARK):].partition('|')
            n = vm_after(pre + out, tags.split())
            x = "s_waitcnt " + " ".join(([f"vmcnt({n})"] if n is not None else []) + ([extra] if extra else []))
        out.append(x)
    return out

vD0 = 114; aSTA = 117; aCL = 115; aD0 = SXA + 14
def cs_mfmas(): return [f"v_smfmac_f32_16x16x64_bf16 {a(CSA+tl*4,4)}, {v(ONES,4)}, {a(EFr(tl,0),8)}, v{vIDX}" for tl in range(4)]
W_, X_ = (lambda s: ('W', s)), (lambda s: ('x', s))
SCHED = {
    0: [[W_(2), X_(2)], [W_(3), X_(3)], [W_(4), X_(4)], [W_(5), X_(5)], [W_(6), X_(6)], [W_(7), X_(7)], []],
    1: [[W_(2), X_(2)], [W_(3), X_(3), X_(4)], [W_(4), W_(5), X_(5)], [W_(6), X_(6)], [W_(7), X_(7)], [], []],
    2: [[W_(2), X_(2)], [W_(3), X_(3), X_(4)], [W_(4), X_(5)], [W_(5), X_(6)], [W_(6), X_(7)], [W_(7)], []],
    4: [[W_(2)], [X_(2), W_(3), X_(3)], [W_(4), X_(4)], [W_(5), X_(5)], [W_(6), X_(6)], [W_(7), X_(7)], []],
    5: [[W_(2)], [X_(2), W_(3), X_(3)], [W_(4), X_(4)], [W_(5), X_(5), W_(6)], [X_(6), W_(7)], [X_(7)], []],
    6: [[W_(2)], [X_(2), W_(3), X_(3)], [W_(4), X_(4), X_(5)], [W_(5), W_(6), X_(6)], [W_(7), X_(7)], [], []],
    3: [[W_(2), X_(2)], [W_(3), X_(3), W_(4)], [X_(4), W_(5)], [X_(5), W_(6)], [X_(6), W_(7)], [X_(7)], []],
}[OPT['sched']]
def gemm_phase(st, carry, bg):
    xb = st & 1; first = (st == 0); nb = (st + 1) & 1
    wb = (st + 1) % 3; wo = wb if wb < 2 else 0
    mf = []
    def C(acc, ks): return "0" if (first and ks == 0) else acc
    GB = OPT['gub'] if first else 0
    if first and not GB: mf += cs_mfmas()
    pos = {}; doE = first and OPT['rot'] == 4; SIGP = 3 if OPT['fast0'] else (1 if OPT['rot'] == 8 else 2)
    CSM = 12 if first else 8
    for m in range(14):
        if m == CSM and doE and not OPT['fast0']: csp = len(mf); mf += cs_mfmas()
        if m == 2 and st == 1 and OPT['rot'] == 4 and OPT['fast0']: mf += cs_mfmas()
        if m == 8 and GB: mf += cs_mfmas()
        pos[m] = len(mf)
        for i_, qt in enumerate(range(3, -1, -1) if (OPT['gsn'] and m & 1) else range(4)):
            for j_, ks in enumerate((1, 0) if (OPT['gsn'] and i_ & 1) else (0, 1)):
                d = acc_m(m, qt); mf.append(f"{MF} {d}, {a(WF+(m*2+ks)*4,4)}, {v(XF+xb*32+(qt*2+ks)*4,4)}, {C(d,j_)}")
    N = len(mf)
    G = Gaps(N)
    for i, r in enumerate(carry): G.put(i // 2, r)
    BARG = OPT['barg0'] if first else 7
    xsame = st < 7 and ('x', st+1) in SCHED[st]
    xlate = first or xsame or (st < 7 and ('x', st+1) in SCHED[st-1])
    tags = {1: "non st", 5: "d0", 6: "cs"}.get(st, "") + f" W{st+1}" + ("" if xlate else f" X{st+1}") + (" pub" if st == SIGP else "")
    G.put(BARG, WAITMARK + tags + "|lgkmcnt(0)", force=True); G.put(BARG, "s_barrier", force=True)
    if first and not GB:
        G.put(3, "s_waitcnt lgkmcnt(8)"); G.put(11, "s_waitcnt lgkmcnt(0)")
    if GB:
        G.put(7, "s_waitcnt lgkmcnt(0)")
        G.put(GB, WAITMARK + "W0|", force=True); G.put(GB, "s_barrier", force=True)
        g = GB + 1
        for r in rd_e(0) + sum((rd_w(m, 0) for m in range(8, 14)), []):
            while g % 4 == 3 or G.used(g) > 1: g += 1
            G.put(g, r)
        assert g < BARG, g
    if st == 5:
        G.put(BARG+1, f_cmp(vD0)); G.put(BARG+2, "s_cbranch_vccnz K1_D0POLL"); G.put(BARG+2, "K1_D0OK:"); G.put(BARG+3, f"s_add_u32 s{sCNT}, s{sCSo}, 4096")
    if st == 1:
        G.put(BARG+1, f"v_cmp_eq_u32 vcc, 0, v{TM+1}"); G.put(BARG+2, "s_cbranch_vccnz K1_NPOLL"); G.put(BARG+2, "K1_NOK:")
        G.put(BARG+3, f"v_readfirstlane_b32 s{sNON}, v{TM+1}")
    if st < 7: G.put(N - 1, "s_waitcnt lgkmcnt(4)")
    adj = []
    if st < 7 and (wb == 2 or (wb == 0 and st > 0)):
        op = "v_add_u32" if wb == 2 else "v_subrev_u32"
        adj = [f"{op} v{r}, 0x10000, v{r}" for r in list(range(aWQR, aWQR+8)) + [aGUR, aGUR2]]
        G.stream((len(carry) + 1) // 2, adj, BARG)
    newcarry = []
    if st < 7:
        g = BARG + 1
        for m in range(14):
            rs = rd_w(m, wo)
            if m == 13: newcarry = rs; break
            for i, r in enumerate(rs):
                g = max(g, pos[m] + 8 + 2*i)
                while (g % 2 != 0 and not (first and OPT['fast0'] and g % 4 == 1)) or G.used(g) > 1: g += 1
                G.put(g, r)
    dm = []
    if first: dm += [f"buffer_load_dword v{TM+1}, off, s[{SDBG}:{SDBG+3}], 0 sc1 ; @non"]
    if st == SIGP: dm += [f"buffer_store_dword v{TM+1}, v{TM+2}, s[{SWS}:{SWS+3}], s{sW2S} offen sc1"]
    if st == 5: dm += [f"buffer_load_dwordx4 {v(TM+4*j,4)}, v{aCL}, s[{SWS}:{SWS+3}], s{sCSo if j == 0 else sCNT} offen sc1 ; @cs" for j in range(OPT['rot']//4)]
    if st == 5: dm += [f"buffer_load_dwordx2 {v(SXA+4*qt,2)}, v{aSTA}, s[{SWS}:{SWS+3}], s{sSTAo} offen offset:{128*qt} sc1 ; @cs" for qt in range(4)]
    if st <= 5: pass
    elif st == 6:
        if OPT['kvs'] == 0: place_dma(G, kv_dma(0, " ; @KV0") + kv_dma(1), BARG + 1, 6)
        else: place_dma(G, kv_dma(0, " ; @KV0"), BARG + 1, 12)
    elif OPT['kvs'] == 0: place_dma(G, kv_dma(2) + kv_dma(3), BARG + 1, 6)
    elif OPT['kvs'] == 1: place_dma(G, kv_dma(1), BARG + 1, 12)
    else: place_dma(G, kv_dma(1) + kv_dma(2), BARG + 1, 6)
    if adj: G.stream(BARG + 1, adj, BARG + 30); assert not adj
    if st <= 5:
        grp = SCHED[st]
        if first and OPT['fast0']: grp = ([W_(1)] if GB and OPT['w1late'] else []) + [X_(1), ('s', 0)] + grp
        early = [x for x in grp if x != ('x', st+3)]
        span = (N - 4 if len(early) == len(grp) else OPT['xw'] + 8)
        step = max(2, (span // max(1, 8*len(early) + len(dm))) & ~1); step = min(step, OPT['wgap'])
        if first and OPT['fast0']: step = OPT['st0']
        if len(early) == 3 and not first: step = 4 if not dm else 2
        g = 2; misc = list(dm)
        for kind, s_ in early:
            if (kind == 'W' and s_ == st + 3) or (g > BARG and misc):
                g = max(g, BARG + 3)
                g = place_dma(G, misc, g, step); misc = []
            g = place_dma(G, dma_w(s_ % 3, s_) if kind == 'W' else st_loads() if kind == 's' else dma_x(s_ & 1, s_), g, step)
        if misc: g = place_dma(G, misc, max(g, BARG + 3), step)
        gdma = g
    if st < 7:
        g = (OPT['xg0'] if OPT['fast0'] else 50) if first else 64 if xsame else OPT['xg'] if xlate else BARG + 2
        if xlate: g = G.fit(g, WAITMARK + f"X{st+1}|") + 1
        for r in rd_x(nb):
            while G.used(g) > 1 or G.post[g]: g += 1
            G.put(g, r); g += 2
        xdone = g
        g = BARG + 2
        if doE and OPT['fast0']:
            for r in rd_e(wo):
                while g < N - 1 and (G.used(g) > 1 or G.post[g]): g += 1
                if g < N - 1: G.put(g, r)
                else: newcarry = [r] + newcarry
            doE = False
        if doE:
            for r in rd_e(wo):
                while G.used(g) > 1 or G.post[g]: g += 1
                G.put(g, r); g += 1
            assert g < csp - 8, (st, g, csp)
        if doE or ('x', st+3) in SCHED[st]:
            w = G.fit(max(OPT['xw'], xdone + 8, g + 6), "s_waitcnt lgkmcnt(2)"); assert not doE or w < csp
        if st <= 5 and ('x', st+3) in SCHED[st]: place_dma(G, dma_x(nb, st+3), max(w + 1, gdma), 4)
    PZ = 3 if OPT['fast0'] else 2
    if st in (PZ, PZ+1, PZ+2) and OPT['pois'] and not OPT['lpz']:
        assert not any(f"s{sPS+st-PZ}," in x for x in bg)
        ps = [f"buffer_store_dwordx4 {a(CSA,4)}, v{aL16}, s[{SWS}:{SWS+3}], s{sPS+st-PZ} offen offset:{1024*j} sc1" for j in range(4)]
        g = OPT['pois']
        for x in ps:
            while g % 2 != 1 or G.used(g) > 0: g += 1
            G.put(g, x); g += OPT['pstep']
    if st == (1 if OPT['fast0'] else SIGP - 1):
        t = SXA
        q = stats_stream() if OPT['fast0'] else []
        q += [f"s_lshl_b32 s6, s{sHEAD}, 3", f"s_add_u32 s6, s6, s{sQB}", "s_lshl_b32 s6, s6, 2", f"s_add_u32 s6, s6, s{sW}", "s_lshl_b32 s6, s6, 8", f"s_add_u32 s{sCSo}, s6, {CS_OFF}"]
        for tl in range(4): q += [f"v_accvgpr_read_b32 v{t+tl}, a{CSA+4*tl}", f"v_accvgpr_read_b32 v{t+4+tl}, a{CSA+4*tl+1}"]
        for tl in range(4): q += [f"v_add_f32 v{t+tl}, v{t+tl}, v{t+4+tl}"]
        q += [f"buffer_store_dwordx4 {v(t,4)}, v{TM}, s[{SWS}:{SWS+3}], s{sCSo} offen sc1 ; @pub"]
        if OPT['fast0']: bg[:0] = q + ['s_nop 0']
        else: g0 = G.stream(12 if first else BARG + 4, q); assert not q
    if st in (1, 2, 3): G.stream((g0 + 1 if SIGP == 2 else BARG + 4) if st == 1 else 0, bg)
    if OPT['kvpf'] and st == OPT['kvpf'] // 1000:
        assert not any(f"s{SV+3}," in x for x in bg)
        q = [f"v_and_b32 v{aXD}, 15, v{vLANE}", f"v_lshlrev_b32 v{aXD}, 7, v{aXD}", f"s_lshl_b32 s{sT1}, s{sQB}, 2", f"s_add_u32 s{sT1}, s{sT1}, s{sW}", f"s_lshl_b32 s{sT1}, s{sT1}, 11",
             f"buffer_load_dword a{CSA+4}, v{aXD}, s[{SK}:{SK+3}], s{sT1} offen", f"buffer_load_dword a{CSA+5}, v{aXD}, s[{SV}:{SV+3}], s{sT1} offen"]
        G.stream(OPT['kvpf'] % 1000, q); assert not q
    if st == SIGP: assert not any('@pub' in x for x in bg)
    if st == 4:
        G.stream(0, bg, OPT['d0g']); assert not bg, len(bg)
        q = d0_addr(aD0, TM+6) + [f_load(vD0, aD0, 0) + " ; @d0", f"v_and_b32 v{aSTA}, 15, v{vLANE}",
             f"v_lshrrev_b32 v{aCL}, 4, v{vLANE}", f"v_lshlrev_b32 v{aCL}, 10, v{aCL}", f"v_lshl_add_u32 v{aCL}, v{aSTA}, 4, v{aCL}", f"v_lshlrev_b32 v{aSTA}, 3, v{aSTA}",
             f"s_lshl_b32 s6, s{sHEAD}, 13", f"s_lshl_b32 s7, s{sW}, 8", "s_add_u32 s6, s6, s7", f"s_add_u32 s{sCSo}, s6, {CS_OFF}"]
        G.stream(OPT['d0g'], q); assert not q
    if st == 6:
        q = []
        for qt in range(4): q += [f"v_rsq_f32 v{SXA+4*qt+2}, v{SXA+4*qt+1}"]
        for qt in range(4):
            q += [f"v_mul_f32 v{SXA+4*qt+3}, v{SXA+4*qt+1}, v{SXA+4*qt+2}", f"v_mul_f32 v{SXA+4*qt+1}, {f2u(SCALE)}, v{SXA+4*qt+2}",
                  f"v_mul_f32 v{SXA+4*qt+2}, {f2u(-LOG2E)}, v{SXA+4*qt+2}"]
        if OPT['rot'] == 8: q += [f"v_add_f32 v{TM+i}, v{TM+i}, v{TM+4+i}" for i in range(4)]
        q += xlane_reduce("v_add_f32", [TM+i for i in range(4)], [TM+4+i for i in range(4)])
        q += [f"v_lshrrev_b32 v{aCL}, 1, v{aSTA}", f"v_add_u32 v{aCL}, s{sMW2}, v{aCL}"]
        for tl in range(4): q += [f"ds_write_b32 v{aCL}, v{TM+tl} offset:{64*tl}"]
        q += loop_addr_setup(TM)
        g = G.stream(BARG + 1, q)
        q += [f"v_lshrrev_b32 v{aCS}, 4, v{vLANE}", f"v_lshlrev_b32 v{aCS}, 4, v{aCS}", f"v_add_u32 v{aCS}, 131072, v{aCS}"]
        G.stream(max(g, xdone), q)
        for x in q: G.post[N-1].append(x)
        if q: print(f"; phase 6: {len(q)} left over", file=sys.stderr)
    if st == 7:
        g = BARG + 1
        for m in range(8):
            g = G.fit(g, f"ds_read_b128 {v(4*m,4)}, v{aCS} offset:{(m>>1)*8192+(m&1)*64}")
        g = G.fit(g + 6, "s_waitcnt lgkmcnt(0)") + 1
        left = []
        for m in range(8):
            q = [f"v_fmac_f32 v{QACC+(m*4+qt)*4+r}, v{4*m+r}, v{SXA+4*qt}" for qt in (range(3, -1, -1) if (OPT['gsn'] and m & 1) else range(4)) for r in range(4)]
            g = G.stream(max(g, 8*m + 12), q); left += q
        for x in left: G.post[N-1].append(x)
        if left: print(f"; phase 7: {len(left)} left over", file=sys.stderr)
    return weave(mf, G.out()), newcarry

LO = "op_sel_hi:[1,0,1]"; HI = "op_sel:[0,1,0] op_sel_hi:[1,1,1]"
LO2 = "op_sel_hi:[1,0]"; HI2 = "op_sel:[0,1] op_sel_hi:[1,1]"
def zero_o(i): return f"v_mfma_f32_32x32x16_bf16 {a(16*i,16)}, {v(LACC,4)}, {v(LACC,4)}, 0"
def max_mfmas():
    return [f"{MF} {v(SB+4*qt,4)}, {v(KF+s_*4,4)}, {v(QF+(qt*4+s_)*4,4)}, {'0' if s_ == 0 else v(SB+4*qt,4)}" for qt in range(4) for s_ in range(4)]
def k1_post_gemm():
    L = []; e = L.append
    CSG = 208
    vr = rd_v(0, 0)
    pz = [] if OPT['pois'] or OPT['lpz'] else [f"buffer_store_dwordx4 {a(CSA,4)}, v{aL16}, s[{SWS}:{SWS+3}], s{sPS+i} offen offset:{1024*j} sc1" for i in range(3) for j in range(4)]
    for sp in (2, 3, 0, 1):
        for qt in range(4):
            if pz and (qt & 1 or OPT['pzq'] == 2) and OPT['pzq']: e(pz.pop(0))
            P0 = v(SXA+4*qt, 2)
            for b in range(2):
                m = 2*sp+b; x = QACC + (m*4+qt)*4
                for h in (0, 2): e(f"v_pk_mul_f32 {v(x+h,2)}, {v(x+h,2)}, {P0} {HI2}")
                for h in range(2): e(f"v_cvt_pk_bf16_f32 v{QF+(qt*4+sp)*4+2*b+h}, v{x+2*h}, v{x+2*h+1}")
        if sp == 3:
            for m in range(6):
                z, t = divmod(m, 3)
                e(f"ds_read_b128 {v(CSG+4*m,4)}, v{aCS} offset:{t*8192+(2+z)*64}")
        elif sp == 0:
            e(WAITMARK + "KV0|lgkmcnt(0)"); e("s_barrier")
            for f in range(8): e(rd_k(f, 0))
            L += vr[:16]
        elif sp == 1:
            for f in range(8, 16): e(rd_k(f, 0))
            L += vr[16:]
        else: e("s_nop 1")
        for qt in range(4):
            f = QF+(qt*4+sp)*4
            e(f"v_permlane16_swap_b32 v{f}, v{f+2}"); e(f"v_permlane16_swap_b32 v{f+1}, v{f+3}")
    for i in range(16): e(f"v_mov_b32 v{LACC+i}, 0")
    e("s_waitcnt lgkmcnt(15)")
    if OPT['stamp'] == 2: L += stamp(TM)
    mx = max_mfmas(); zs = [7]; zdone = []
    kv = with_m0_nops({0: [], 1: kv_dma(2) + kv_dma(3), 2: kv_dma(3)}[OPT['kvs']])
    def kv_next():
        while kv:
            x = kv.pop(0); e(x)
            if x.startswith('buffer'): break
    n = 0
    for qt in range(4):
        for t in (2, 0, 1):
            G_ = TM + (n % 2)*8; U_ = G_ + 4; n += 1
            H_ = 232 + (4 if t == 2 else 2*t)
            P0 = v(SXA+4*qt, 2); P1 = v(SXA+4*qt+2, 2)
            if mx: e(mx.pop(0))
            elif zs: e(zero_o(zs.pop(0)))
            kv_next()
            if pz: e(pz.pop(0))
            if not pz and 6 not in zdone: zs.append(6); zdone.append(6)
            for r in range(4): e(f"v_accvgpr_read_b32 v{G_+r}, a{gua(t, qt)+r}")
            if mx: e(mx.pop(0))
            for r in range(4): e(f"v_accvgpr_read_b32 v{U_+r}, a{gua(3+t, qt)+r}")
            for h in (0, 2): e(f"v_pk_fma_f32 {v(G_+h,2)}, {v(CSG+4*t+h,2)}, {P0}, {v(G_+h,2)} {LO}")
            for h in (0, 2): e(f"v_pk_mul_f32 {v(G_+h,2)}, {v(G_+h,2)}, {P1} {LO2}")
            if mx: e(mx.pop(0))
            elif zs: e(zero_o(zs.pop(0)))
            if t == 0 and OPT['kvs'] == 1: kv_next()
            for r in range(4): e(f"v_exp_f32 v{G_+r}, v{G_+r}")
            for h in (0, 2): e(f"v_pk_fma_f32 {v(G_+h,2)}, {v(G_+h,2)}, {P1}, {P1} op_sel:[0,1,1] op_sel_hi:[1,1,1]")
            if mx: e(mx.pop(0))
            for r in range(4): e(f"v_rcp_f32 v{G_+r}, v{G_+r}")
            for h in (0, 2): e(f"v_pk_fma_f32 {v(U_+h,2)}, {v(CSG+12+4*t+h,2)}, {P0}, {v(U_+h,2)} {LO}")
            for h in (0, 2): e(f"v_pk_mul_f32 {v(U_+h,2)}, {v(U_+h,2)}, {v(G_+h,2)}")
            for h in range(2): e(f"v_cvt_pk_bf16_f32 v{H_+h}, v{U_+2*h}, v{U_+2*h+1}")
            if t == 2: e(f"buffer_store_dwordx2 {v(H_,2)}, v{aL16}, s[{SACT}:{SACT+3}], s{sH0+1} offen offset:{1024*qt} sc1")
            if t == 1: e(f"buffer_store_dwordx4 {v(H_-2,4)}, v{aL16}, s[{SACT}:{SACT+3}], s{sH0} offen offset:{1024*qt} sc1")
        zs += {0: [0], 1: [1, 2], 2: [3], 3: [4, 5]}[qt]
    if OPT['stamp'] == 2: L += stamp(TM)
    L += kv
    for z in zs: e(zero_o(z))
    for qt in range(4):
        b = SB+4*qt
        e(f"v_max3_f32 v{b}, v{b}, v{b+1}, v{b+2}"); e(f"v_max_f32 v{b}, v{b}, v{b+3}")
    L += xlane_reduce("v_max_f32", [SB+4*q for q in range(4)], [SB+4*q+1 for q in range(4)])
    for qt in range(4):
        for r in range(4): e(f"v_sub_f32 v{NEGM+4*qt+r}, 0, v{SB+4*qt}")
    return L
def pf_lanes():
    L = [f"v_lshlrev_b32 v90, 7, v{vLANE}", f"v_min_u32 v91, 256, v90", f"v_min_u32 v90, 384, v90"]
    if OPT['lpz']:
        L += [f"v_mov_b32 v{80+i}, -1" for i in range(4)]
        L += [f"s_lshl_b32 s6, s{sSP}, 14", f"s_add_u32 s6, s6, s{sP2}", f"v_add_u32 v84, s6, v{aL16}",
              f"s_add_u32 s{sPZ}, s{sSP}, 1", f"s_and_b32 s{sPZ}, s{sPZ}, 3", f"s_lshl_b32 s{sPZ}, s{sPZ}, 16", f"s_movk_i32 s{sPZD}, 2048"]
    return L

def ks_of(p):
    kt, s_ = divmod(p, 4)
    return kt, (3 - s_ if (kt & 1 and OPT['sq']) else s_)
def rd_k(f, slot):
    kt, s_ = ks_of(f)
    return f"ds_read_b128 {v(KF+4*f,4)}, v{aKR+s_} offset:{slot*16384+kt*4096}"
def rd_v(buf, slot):
    return [f"ds_read_b64_tr_b16 {a(VF+buf*64+(dt*2+kk)*4+2*hh,2)}, v{aVR+dt} offset:{slot*16384+kk*8192+hh*4096}"
            for dt in range(8) for kk in range(2) for hh in range(2)]
def qk_mfmas(qt, zero=False):
    L = []
    for p in range(16):
        kt, s_ = ks_of(p)
        d = v(SB+4*kt, 4)
        c = ("0" if zero else v(NEGM+4*qt, 4)) if p % 4 == 0 else d
        L.append(f"{MF} {d}, {v(KF+p*4,4)}, {v(QF+(qt*4+s_)*4,4)}, {c}")
    return L
def pv_mfmas(qt, vb, pb):
    L = []
    for dt in range(8):
        d = a(OACC+(dt*4+qt)*4, 4)
        for kk in range(2): L.append(f"{MF} {d}, {a(VF+vb*64+(dt*2+kk)*4,4)}, {v(PB+pb*8+kk*4,4)}, {d}")
    L.append(f"v_smfmac_f32_16x16x64_bf16 {v(LACC+4*qt,4)}, {v(ONES,4)}, {v(PB+pb*8,8)}, v{vIDX}")
    return L
EXP = lambda e_: f"v_exp_f32 v{SB+e_}, v{SB+e_}"
CVT = lambda c, pb: f"v_cvt_pk_bf16_f32 v{PB+pb*8+c}, v{SB+2*c}, v{SB+2*c+1}"

def attn_step(jm, u):
    pb = u & 1
    mf = qk_mfmas((u+1) % 4) + pv_mfmas(u, jm & 1, pb)
    G = Gaps(33)
    for k, e_ in enumerate((13, 14, 15)): G.put(2*k+1, EXP(e_))
    G.put(2, CVT(6, pb)); G.put(6, CVT(7, pb))
    for e_ in range(13): G.put(8+2*e_, EXP(e_))
    for c in range(6): G.put(11+4*c, CVT(c, pb ^ 1))
    ns = (jm+1) % 4
    vr = rd_v((jm+1) & 1, ns)
    dm = kv_dma(jm, loop=True)
    if u == 0:
        G.put(4, f"s_waitcnt vmcnt({18 if OPT['wpf'] else 16}) lgkmcnt(0)", force=True); G.put(4, "s_barrier", force=True)
        G.put(7, dm[0])
        for g, x in zip((9, 17, 21, 29), dm[1:5]): G.put(g, x)
        for g, x in zip((6, 7, 11, 13, 15, 19, 23, 25, 27, 31), vr[0:10]): G.put(g, x)
    elif u == 1:
        G.put(0, dm[5])
        for g, x in zip((4, 13, 21, 29), dm[6:10]): G.put(g, x)
        for g, x in zip((0, 2, 6, 7, 9, 11, 15, 17, 19, 23, 25, 27, 31), vr[10:23]): G.put(g, x)
    elif u == 2:
        G.put(0, dm[10]); G.put(0, dm[11])
        for f, g in enumerate((2, 4, 4, 6, 7, 9, 11, 13, 15, 17, 19, 21, 23, 25, 27, 29)): G.put(g, rd_k(f, ns))
        G.put(31, "s_waitcnt lgkmcnt(3)")
    else:
        G.put(7, "s_waitcnt lgkmcnt(4)")
        for g, x in zip((0, 2, 4, 6, 9, 11, 13, 15, 17), vr[23:32]): G.put(g, x)
        if jm == 3:
            G.put(25, f"s_add_u32 s{sCNT}, s{sCNT}, 1"); G.put(29, f"s_cmp_lt_u32 s{sCNT}, s{sT0}")
        if jm == 2: G.put(29, f"s_cmp_eq_u32 s{sCNT}, 7")
        if OPT['lpz'] and jm in (0, 2):
            G.put(25, f"buffer_store_dwordx4 v[80:83], v84, s[{SWS}:{SWS+3}], s{sPZ} offen offset:{512*jm} sc1")
        if OPT['lpz'] and jm == 3:
            G.put(19, f"s_add_u32 s{sPZ}, s{sPZ}, s{sPZD}"); G.put(25, f"s_and_b32 s{sPZ}, s{sPZ}, 0x3ffff"); G.put(27, f"s_sub_u32 s{sPZD}, 0x10000, s{sPZD}")
        if OPT['wpf']:
            sr, so, st_ = (P2X, sPFo, 384) if jm < 3 else (P2OUT, sPFo+1, 512)
            G.put(21, f"buffer_load_dword v{72+jm}, v{91 if jm < 3 else 90}, s[{sr}:{sr+3}], s{so} offen"); G.put(23, f"s_add_u32 s{so}, s{so}, {st_}")
    if jm == 3 and u == 0: G.put(0, "s_cbranch_scc1 K1_LAST")
    return weave(mf, G.out())

def l_fin(qt): return [f"v_add_f32 v{LACC+4*qt}, v{LACC+4*qt}, v{LACC+4*qt+1}", f"v_rcp_f32 v{LACC+4*qt+2}, v{LACC+4*qt}"]
def o_stream(qt):
    L = []; e = L.append
    l = LACC + 4*qt
    for i in range(4):
        t = 88; p = 100 + 4*((qt*4+i) % 3)
        for b in range(2):
            for r in range(4): e(f"v_accvgpr_read_b32 v{t+4*b+r}, a{OACC+((2*i+b)*4+qt)*4+r}")
        if i == 0 and qt < 3: L += l_fin(qt)
        e(f"s_add_u32 s{sT1}, s{sT0}, {4096*i}")
        if OPT['opk']:
            for k in range(4): e(f"v_pk_mul_f32 {v(t+2*k,2)}, {v(t+2*k,2)}, {v(l+2,2)} {LO2}")
        else:
            for k in range(8): e(f"v_mul_f32 v{t+k}, v{t+k}, v{l+2}")
        for k in range(4): e(f"v_cvt_pk_bf16_f32 v{p+k}, v{t+2*k}, v{t+2*k+1}")
        e(f"buffer_store_dwordx4 {v(p,4)}, v{aL16}, s[{SACT}:{SACT+3}], s{sT1} offen offset:{1024*qt} sc1 ; @o")
    return L

def fill(gaps, q, g0, cap):
    for gi in range(g0, len(gaps)):
        u = units(gaps[gi])
        if q and Ins(q[0]).kind == 'vst': gaps[gi].insert(0, q.pop(0)); u += 2
        while q:
            k = Ins(q[0]).kind
            if u + UNITS[k] > cap or k == 'vst': break
            gaps[gi].append(q.pop(0)); u += UNITS[k]

def p2_reads0():
    X = []
    for kk in range(2):
        for i in range(4):
            for hh in range(2): X.append(f"ds_read_b64_tr_b16 {a(128+kk*32+4*i+2*hh,2)}, v{aW+i} offset:{kk*8192+2048*hh}")
            X.append(f"ds_read_b128 {a(128+kk*32+16+4*i,4)}, v{aA+4+i} offset:{kk*8192}")
    return X
def p2_mfmas0():
    return [f"{MF} {v(128+(ct*4+qt)*4,4)}, {a(128+kk*32+4*ct,4)}, {a(128+kk*32+16+4*qt,4)}, {'0' if kk == 0 else v(128+(ct*4+qt)*4,4)}"
            for qt in (1, 2, 3, 0) for ct in range(4) for kk in range(2)]
def attn_last():
    L = []
    r0 = p2_reads0() if OPT['pre0'] else []
    for u in range(4):
        pb = u & 1
        q = o_stream(u - 1) if u else []
        if u < 3:
            mf = qk_mfmas(u + 1) + pv_mfmas(u, 1, pb)
            G = Gaps(33)
            for k, e_ in enumerate((13, 14, 15)): G.put(2*k+1, EXP(e_))
            G.put(2, CVT(6, pb)); G.put(6, CVT(7, pb))
            for e_ in range(13): G.put(8+2*e_, EXP(e_))
            for c in range(6): G.put(11+4*c, CVT(c, pb ^ 1))
            if u == 0:
                dm = [x.replace(" nt", "") for x in kv_dma(3, " ; @a3")]
                G.put(4, "s_waitcnt vmcnt(16) lgkmcnt(0)", force=True); G.put(4, "s_barrier", force=True)
                G.put(6, dm[0])
                for g, x in zip((7, 9, 13, 17), dm[1:5]): G.put(g, x)
                G.put(19, dm[5])
                for g, x in zip((21, 25, 29), dm[6:9]): G.put(g, x)
                G.put(31, dm[9], force=True); G.put(11, f"s_lshl_b32 s{sT0}, s{sHEAD}, 14")
                tail = dm[10:] + [f"s_cmp_ge_u32 s{sW}, 2", f"s_cselect_b32 s6, 0x3000, s{sMKV}", f"s_cselect_b32 s{sPZ}, {OOB}, s{sKV}", f"s_cselect_b32 s{sPZD}, {OOB}, s{sKV2}",
                                  f"s_add_u32 m0, s6, {8*16384}"]
                x4 = [f"buffer_load_dwordx4 v{aKD+i}, s[{P2WT}:{P2WT+3}], s{sPZ} offen offset:{1024*i} lds" for i in range(4)] + [f"s_add_u32 m0, s{sMKV}, {9*16384}"]
                x4 += [f"buffer_load_dwordx4 v{aL16}, s[{P2ACT}:{P2ACT+3}], s{sPZD} offen offset:{1024*i} sc1 lds ; @a3" for i in range(4)]
            gaps = G.out()
            if u == 0: gaps[32] += tail
            if u == 1:
                for g_, x in zip((0, 1, 2, 3, 4, 5, 6, 7, 8), x4): gaps[g_].insert(0, x)
            if u in (1, 2):
                for g_ in range(9 if u == 1 else 1, 33, 2):
                    if r0 and (u == 2 or len(r0) > 12): gaps[g_].insert(0, r0.pop(0))
            fill(gaps, q, 0, OPT['lcap'])
            w = weave(mf, gaps)
            L += (w[1:] if u == 0 else w) + q
        else:
            mf = pv_mfmas(3, 1, pb)
            L += [EXP(13), EXP(14), EXP(15), CVT(6, pb), CVT(7, pb)]
            if OPT['pre0'] == 2:
                head = L[-5:]; del L[-5:]
                h0 = p2_mfmas0()
                mf = h0[:8] + mf + h0[8:]
                L += ["s_waitcnt lgkmcnt(0)"]
                gaps = [[] for _ in mf]
                for g_, x in zip((0, 1, 2, 3, 4), head): gaps[g_].append(x)
                fill(gaps, q, 3, 2)
            else:
                k = 2
                L += q[:k]; q = q[k:]
                gaps = [[] for _ in mf]
                fill(gaps, q, 0, OPT['lcap'])
            L += weave(mf, gaps) + q
    return L

def attn_entry():
    A = []; e = A.append
    e("s_waitcnt vmcnt(0)"); e("s_barrier")
    for f in range(16): e(rd_k(f, 0))
    A += rd_v(0, 0)
    for i in range(16): e(f"v_mov_b32 v{LACC+i}, 0")
    for i in range(8): e(zero_o(i))
    C_ = []; e = C_.append
    e("s_waitcnt lgkmcnt(0)")
    mf = qk_mfmas(0)
    G = Gaps(16)
    G.put(0, f"s_mov_b32 s{sCNT}, 0"); G.put(1, f"s_cmp_lg_u32 s{sPASS}, 0"); G.put(1, f"s_cselect_b32 s{sT0}, 7, 1")
    q = srd(P2X, 72, 73, 4096*1024) + srd(P2OUT, 80, 81, 1376*1024) + pf_lanes()
    G.stream(2, q, 8); C_[:0] = q[:0]; rest = list(q)
    for e_ in range(8): G.put(8 + e_, EXP(e_))
    C_ += weave(mf, G.out())
    for c in range(4): e(CVT(c, 0))
    for e_ in range(8, 13): e(EXP(e_))
    for c in range(4, 6): e(CVT(c, 0))
    C_ += rest
    return A, C_

def part_soff(e, dst, store):
    for i in range(1, 4):
        e(f"s_add_u32 s6, s{sSP}, {i}"); e("s_and_b32 s6, s6, 3")
        if store: e("s_lshl_b32 s6, s6, 2"); e(f"s_add_u32 s6, s6, s{sSP}")
        else: e(f"s_lshl_b32 s7, s{sSP}, 2"); e("s_add_u32 s6, s6, s7")
        e("s_lshl_b32 s6, s6, 14"); e(f"s_add_u32 s{dst+i-1}, s6, s{sP2}")

def block_b():
    L = []; e = L.append
    e(f"s_mov_b32 s{sT0}, {TC}")
    e(f"s_cmp_lg_u32 s{sW}, 0"); e("s_cbranch_scc1 K1_LOOP")
    e(f"v_mov_b32 v{vSP}, s{sNON}")
    e("s_mov_b64 exec, 1")
    e(f"buffer_store_dword v{vSP}, off, s[{SWS}:{SWS+3}], s{sW2S} offset:4 sc1")
    e("s_mov_b64 exec, -1")
    return L

def block_c():
    L = []
    return L + d1_addr(vD1+1, T2+4) + [f_load(vD1, vD1+1, 1), f"s_mov_b32 s{sT0}, 7"]
def block_l():
    A = [f_cmp(vD1), f"s_mov_b32 s{sT1}, 0", "s_cbranch_vccz K1_D1OK"]
    D1 = [f_load(vD1, vD1+1, 1), f"s_add_u32 s{sT1}, s{sT1}, 1", "s_sleep 8", "s_waitcnt vmcnt(0)", f_cmp(vD1),
          f"s_cmp_gt_u32 s{sT1}, {SPIN}", "s_cbranch_scc1 K1_D1OK", "s_cbranch_vccnz K1_D1POLL"]
    B = []; e = B.append
    B += srd(P2ACT, sA2, sA2+1, 0); e(f"s_mov_b32 s{P2ACT+2}, s{sSZ2}")
    for i in range(3): e(f"s_mov_b32 s{P2WT+i}, s{SWD+i}")
    t = 85
    e(f"v_lshrrev_b32 v{t}, 3, v{vLANE}"); e(f"v_and_b32 v{t+1}, 7, v{vLANE}"); e(f"v_and_b32 v{t+2}, 6, v{t}"); e(f"v_xor_b32 v{t+1}, v{t+1}, v{t+2}")
    e(f"v_lshlrev_b32 v{t}, 10, v{t}"); e(f"v_lshl_add_u32 v{aKD}, v{t+1}, 4, v{t}")
    for i in range(1, 4): e(f"v_add_u32 v{aKD+i}, {7168*i}, v{aKD}")
    for r in (aVD, aVD+1): e(f"v_mov_b32 v{r}, v{aL16}")
    e(f"s_mul_i32 s{sKV}, s{sSP}, {11*32768}"); e(f"s_mov_b32 s{sINC}, 65536")
    e(f"s_mul_i32 s{sKV2}, s{sSP}, {11*4096}"); e(f"s_add_u32 s{sKV2}, s{sKV2}, {128*4096}"); e(f"s_movk_i32 s{sINC2}, 8192")
    e(f"s_lshr_b32 s6, s{sW}, 1"); e("s_lshl_b32 s6, s6, 12"); e("s_add_u32 s6, s6, 65536"); e(f"s_lshl_b32 s7, s{sSP}, 10"); e(f"v_add_u32 v{t}, s6, v{aL16}")
    for i in range(4):
        e(f"v_add_u32 v{aA+4+i}, s7, v{t}")
        if i < 3: e("s_add_u32 s7, s7, 1024"); e("s_and_b32 s7, s7, 0xc00")
    e(f"s_and_b32 s6, s{sW}, 1"); e("s_lshl_b32 s6, s6, 12")
    e(f"v_lshrrev_b32 v{t}, 2, v{vLANE}"); e(f"v_and_b32 v{t+1}, 3, v{vLANE}"); e(f"v_bfe_u32 v{t+2}, v{vLANE}, 3, 2")
    e(f"v_lshlrev_b32 v{t}, 7, v{t}"); e(f"v_lshl_add_u32 v{t}, v{t+1}, 3, v{t}"); e(f"v_add_u32 v{t}, s6, v{t}")
    for ct in range(4):
        e(f"v_xor_b32 v{t+1}, {ct}, v{t+2}"); e(f"v_lshl_add_u32 v{aW+ct}, v{t+1}, 5, v{t}")
    e(f"s_mov_b32 s{sT0}, 8")
    return A, D1, B

def attn_check():
    L = []; e = L.append
    if OPT['pre0'] != 2: e("s_nop 11")
    t = 88
    L += l_fin(3)
    e(f"v_mov_b32 v{t}, {f2u(2.0**OPT['thr'])}")
    e(f"v_cmp_nle_f32 vcc, v{LACC}, v{t}"); e(f"v_cmp_nle_f32 s[6:7], v{LACC+4}, v{t}")
    e(f"v_cmp_nle_f32 s[44:45], v{LACC+8}, v{t}"); e(f"v_cmp_nle_f32 s[46:47], v{LACC+12}, v{t}")
    e("s_nop 1")
    e("s_or_b64 s[6:7], s[6:7], vcc"); e("s_or_b64 s[44:45], s[44:45], s[46:47]"); e("s_or_b64 s[6:7], s[6:7], s[44:45]")
    e("s_cselect_b32 s6, 1, 0")
    e(f"v_mov_b32 v{t}, s6"); e(f"s_lshl_b32 s7, s{sW}, 2"); e(f"s_add_u32 s7, s7, {CHK_LDS}"); e(f"v_mov_b32 v{t+1}, s7"); e(f"v_mov_b32 v{t+2}, {CHK_LDS}")
    e(f"ds_write_b32 v{t+1}, v{t}"); e(WAITMARK + "a3|lgkmcnt(0)"); e("s_barrier")
    e(f"ds_read_b128 {v(t+4,4)}, v{t+2}"); e("s_waitcnt lgkmcnt(0)")
    e(f"v_or_b32 v{t+4}, v{t+4}, v{t+5}"); e(f"v_or3_b32 v{t+4}, v{t+4}, v{t+6}, v{t+7}"); e("s_nop 0")
    e(f"v_readfirstlane_b32 s6, v{t+4}"); e("s_nop 1")
    if OPT['twice']: e("s_mov_b32 s6, 1")
    e(f"s_cmp_gt_u32 s6, s{sPASS}"); e("s_cbranch_scc1 K1_SLOW")
    return L

def attn_slow():
    P = []; e = P.append
    MX = T2
    for qt in range(4): e(f"v_mov_b32 v{MX+qt}, 0xff800000")
    e(f"s_mov_b32 s{sKV}, 0"); e("s_waitcnt vmcnt(0)")
    P += srd(SK, sKVB, sKVB+1, 524288) + srd(SV, sKVB+2, sKVB+3, 524288)
    e(f"s_movk_i32 s{sINC}, 16384"); e(f"s_movk_i32 s{sINC2}, 16384"); e(f"s_mov_b32 s{sKV2}, 0")
    e(f"v_and_b32 v{T2+8}, 15, v{vLANE}"); e(f"v_lshrrev_b32 v{T2+9}, 4, v{vLANE}")
    P += kv_voff(T2+8, T2+9, T2+10) + loop_addr_setup(T2+8)
    B = []; e = B.append
    e("s_barrier")
    e(f"s_mov_b32 m0, s{sMKV}"); e("s_nop 0")
    for i in range(4): e(f"buffer_load_dwordx4 v{aKD+i}, s[{SK}:{SK+3}], s{sKV} offen offset:{1024*i} lds")
    e("s_waitcnt vmcnt(0)"); e("s_barrier")
    for f in range(16): e(rd_k(f, 0))
    e("s_waitcnt lgkmcnt(0)")
    for qt in range(4):
        B += qk_mfmas(qt, zero=True)
        e("s_nop 7")
        for i in range(8): e(f"v_max3_f32 v{MX+qt}, v{MX+qt}, v{SB+2*i}, v{SB+2*i+1}")
        e("s_nop 3")
    e(f"s_add_u32 s{sKV}, s{sKV}, 16384"); e(f"s_cmp_lt_u32 s{sKV}, 524288")
    Q = []; e = Q.append
    Q += xlane_reduce("v_max_f32", [MX+q for q in range(4)], [MX+4+q for q in range(4)])
    for qt in range(4):
        for r in range(4): e(f"v_sub_f32 v{NEGM+4*qt+r}, 0, v{MX+qt}")
    e(f"s_mov_b32 s{sPASS}, 1"); e(f"s_mov_b32 s{sKV}, 0"); e("s_barrier")
    for s_ in range(4): Q += with_m0_nops(kv_dma(s_))
    if OPT['twice']:
        B = ["s_cmp_lg_u32 s2, s2"]; Q = Q[Q.index(f"s_mov_b32 s{sPASS}, 1"):]
    return P, B, Q

def k1():
    pre = k1_setup()
    pre += k1_setup2(pre)
    if OPT['gulate']: pre += with_m0_nops(dma_w(0, 0)[5:])
    if OPT['stamp']:
        pre += ["v_mov_b32 v8, s98", "v_mov_b32 v9, s100", "s_nop 1", f"buffer_store_dwordx2 v[8:9], off, s[{SST}:{SST+3}], s{sSTo}", "s_nop 1"]
        stamp_n[0] = 1
    if not OPT['fast0']:
        pre += with_m0_nops(dma_w(1, 1))
        if OPT['stpos'] == 1: pre += st_loads()
    pre += stamp(8)
    pre += [f"s_waitcnt vmcnt({vm_after(pre, ['X0'] if OPT['gub'] else ['W0', 'X0'])})", "s_barrier"]
    pre += stamp(8)
    rw = rd_e(0) + rd_x(0) + sum((rd_w(m, 0) for m in range(14)), [])
    dx = dma_x(1, 1) if not OPT['fast0'] else dma_w(1, 1)
    n_ = 3 if not OPT['fast0'] else 5
    if OPT['gub']:
        rw = rd_x(0) + sum((rd_w(m, 0) for m in range(8)), []); n_ = 3
        if OPT['w1late']: dx = []
    for i, x in enumerate(dx): pre += rw[n_*i:n_*i+n_] + [x]
    pre += rw[n_*len(dx):]
    if not OPT['fast0']: pre += k1_stats(pre)
    pre += ["s_waitcnt lgkmcnt(15)"]
    carry = []; bg = k1_setup3()
    for st in range(8):
        ph, carry = gemm_phase(st, carry, bg)
        ph = resolve_waits(pre, ph)
        n, over, bad = gap_report(ph)
        if over > 1 or bad: print(f"; gemm phase {st}: gaps {n} over {over} bad {bad}", file=sys.stderr)
        pre += ph
        if OPT['stamp'] == 2 and st < 7: pre += stamp(TM+6 if st == 0 or st == 1 else SXA+6 if st < 6 else TM)
    pre += stamp(TM)
    pre += resolve_waits(pre, k1_post_gemm())
    pre += stamp(T2+24)
    eA, eC = attn_entry()
    eC += stamp(T2+24)
    d0 = [f"s_mov_b32 s{sCNT}, 0", "K1_D0LOOP:", f_load(vD0, aD0, 0), f"s_add_u32 s{sCNT}, s{sCNT}, 1", "s_sleep 4", "s_waitcnt vmcnt(0)", f_cmp(vD0),
          f"s_cmp_gt_u32 s{sCNT}, {SPIN}", "s_cbranch_scc1 K1_D0OK", "s_cbranch_vccnz K1_D0LOOP", "s_branch K1_D0OK",
          "K1_NPOLL:", f"s_mov_b32 s{sCNT}, 0", "K1_NLOOP:", f"buffer_load_dword v{TM+1}, off, s[{SDBG}:{SDBG+3}], 0 sc1", f"s_add_u32 s{sCNT}, s{sCNT}, 1",
          "s_sleep 4", "s_waitcnt vmcnt(0)", f"v_cmp_eq_u32 vcc, 0, v{TM+1}", f"s_cmp_gt_u32 s{sCNT}, {SPIN}", "s_cbranch_scc1 K1_NOK", "s_cbranch_vccnz K1_NLOOP", "s_branch K1_NOK"]
    body = []
    for jm in range(4):
        for u in range(4): body += attn_step(jm, u)
    n, over, bad = gap_report(body)
    print(f"; attn loop: gaps {n} over {over} bad {bad}", file=sys.stderr)
    bB, bC = block_b(), block_c()
    last = attn_last()
    chk = stamp(T2+24+6, True) + attn_check()
    chk = resolve_waits(last, chk)
    sP, sB_, sQ = attn_slow()
    post = stamp(98)
    p2t, p2t2, p2c = phase2(o_stream(3), last + chk + post)
    lA, lD, lB = block_l()
    if OPT['stamp'] == 4:
        body += ["s_cselect_b32 s93, 1, 0", "s_memtime s[94:95]", "s_memrealtime s[96:97]", "s_waitcnt lgkmcnt(0)", "v_mov_b32 v88, s94", "v_mov_b32 v89, s96",
                 f"s_lshl_b32 s6, s{sCNT}, 3", f"s_add_u32 s6, s6, s{sSTo}", f"buffer_store_dwordx2 v[88:89], off, s[{SST}:{SST+3}], s6 offset:160", "s_cmp_lg_u32 s93, 0"]
    m0_ = body[0]; body = body[1:] + [m0_]; eC = eC + [m0_]
    cut = body.index("s_cbranch_scc1 K1_LAST") + 1
    br = ["s_cbranch_scc1 K1_LOOP"]
    mid = [f"s_cmp_eq_u32 s{sCNT}, 7", "s_cbranch_scc1 K1_BLKL", f"s_cmp_eq_u32 s{sCNT}, {TC}", "s_cbranch_scc1 K1_BLKC"]
    J = ["s_branch K1_LOOP"]
    errs = check(pre + eC + body + br + mid + bB + J + body + br + mid + bC + J + body + br + mid[:2] + lA + lD + lB + J + body[:cut] + last + chk + post + p2t, 'k1')
    errs += check(body[:cut] + last + chk + sP + sB_ + ["s_cbranch_scc1 X"] + sB_ + ["s_cbranch_scc1 X"] + sQ + ["s_branch X"] + eA + eC + body + br + mid[:2] + lA + lB + J + body[:cut] + last + chk + post + p2t2, 'k1slow')
    assert not errs
    return (pre + ["K1_HAVEMAX:"] + eC + [".p2align 6", "K1_LOOP:"] + body + br + mid + bB + J
            + ["K1_BLKC:"] + bC + J + ["K1_BLKL:"] + lA + ["K1_D1POLL:"] + lD + ["K1_D1OK:"] + lB + J
            + ["K1_SLOW:"] + sP + ["K1_SLOWLOOP:"] + sB_ + ["s_cbranch_scc1 K1_SLOWLOOP"] + sQ + eA + ["s_branch K1_HAVEMAX"] + ["K1_D0POLL:"] + d0
            + ["K1_LAST:"] + last + chk + post + p2c + ["K1_END:", "s_endpgm"])

def phase2(epi, before):
    NH = 6; NST = 22
    FR = 128
    SA = 0; DA = 128
    T = 88; STV = 98
    PKD = 192; RXD = 216; PKS = 192; RXS = 216
    sAo, sWo = sX0, sX1
    SIGI, POLLI = OPT['sigi'], OPT['polli']
    nk = lambda st: 1 if st == 4 else 2
    slot = {}
    for st in range(4): slot[('w', st)] = st; slot[('a', st)] = 4 + st
    slot[('w', 4)] = 8; slot[('a', 4)] = 9
    free = []
    nxt = {'w': 5, 'a': 5}
    def dma(kind):
        st = nxt[kind]; nxt[kind] += 1
        sl = free.pop(0); slot[(kind, st)] = sl
        X = [f"s_add_u32 m0, s{sMKV}, {sl*16384}"]
        if kind == 'a':
            for i in range(4): X.append(f"buffer_load_dwordx4 v{aL16}, s[{P2ACT}:{P2ACT+3}], s{sAo} offen offset:{1024*i} sc1 lds ; @{kind}{st}")
            X.append(f"s_add_u32 s{sAo}, s{sAo}, 8192" if st != NH - 1 else f"s_lshl_b32 s{sAo}, s{sSP}, 17")
        else:
            sr = SWD if st < NH else SWO
            for i in range(4): X.append(f"buffer_load_dwordx4 v{aKD+i}, s[{sr}:{sr+3}], s{sWo} offen offset:{1024*i} lds ; @{kind}{st}")
            X.append(f"s_add_u32 s{sWo}, s{sWo}, 65536" if st != NH - 1 else f"s_lshl_b32 s{sWo}, s{sSP}, 20")
        return X
    done = list(before)
    S = ["s_mov_b64 exec, 1", f"buffer_store_dword v{T}, off, s[{SWS}:{SWS+3}], s{sW2S} offset:8 sc1", "s_mov_b64 exec, -1"]
    FLD = f_load(vFL, aFL, 2)
    P = [FLD, f"s_add_u32 s{sCNT}, s{sCNT}, 1", "s_waitcnt vmcnt(0)",
         f_cmp(vFL), f"s_cmp_gt_u32 s{sCNT}, {SPIN}", "s_cbranch_scc1 P2_GO", "s_cbranch_vccnz P2_POLL"]
    q = list(epi); e = q.append
    q2 = []; e = q2.append
    for i in range(4):
        e(f"v_add_u32 v{aA+8+i}, 65536, v{aA+4+i}"); e(f"v_add_u32 v{aW+8+i}, 131072, v{aW+i}")
    for i in range(4):
        e(f"v_subrev_u32 v{aA+i}, 65536, v{aA+4+i}"); e(f"v_add_u32 v{aW+4+i}, 65536, v{aW+i}")
    e(f"v_and_b32 v{T+1}, 7, v{vLANE}"); e(f"v_lshl_add_u32 v{T+1}, s{sSP}, 3, v{T+1}")
    q2 += bid_of(aFL, T+1, f"s{sFQB}", T+2)
    if OPT['lpz']:
        q2 += ["s_and_b32 s6, s2, 0xfc", f"v_and_b32 v{T+1}, 3, v{vLANE}", f"v_add_u32 v{T+1}, s6, v{T+1}", f"v_lshlrev_b32 v{T+1}, 7, v{T+1}", f"v_add_u32 v{aPF}, {FLAG_OFF}, v{T+1}"]
    q2 += srd(P2X, sXP, sXP+1, 2048*1024) + srd(P2OUT, sOUT, sOUT+1, 2048*1024)
    e(f"v_and_b32 v{T+1}, 15, v{vLANE}"); e(f"v_lshrrev_b32 v{T+2}, 4, v{vLANE}"); e(f"v_lshlrev_b32 v{T+1}, 10, v{T+1}"); e(f"v_lshl_add_u32 v{aXO}, v{T+2}, 3, v{T+1}")
    part_soff(e, 49, False)
    aLP = 113
    e(f"v_mov_b32 v{aLP}, s49"); e(f"v_writelane_b32 v{aLP}, s50, 1"); e(f"v_writelane_b32 v{aLP}, s51, 2")
    e(f"v_mov_b32 v{T}, s{sNON}")
    L = []; e = L.append
    e(f"s_add_u32 s{sAo}, s{sKV2}, 4096"); e(f"s_add_u32 s{sWo}, s{sKV}, 32768")
    OL = OPT['ownlast']
    fbase = lambda st: (st & 1)*64 + (0 if OL > 2 and st in (NST-4, NST-3) else FR)
    def reads(st):
        X = []
        for kk in range(nk(st)):
            b = fbase(st) + kk*32
            hw, lw = divmod(slot[('w', st)]*16384 + kk*8192, 65536)
            ha, la = divmod(slot[('a', st)]*16384 + kk*8192, 65536)
            for i in range(4):
                if not (NH <= st < NH + OPT['nrs']):
                    for hh in range(2): X.append(f"ds_read_b64_tr_b16 {a(b+4*i+2*hh,2)}, v{aW+4*hw+i} offset:{lw+2048*hh}")
                X.append(f"ds_read_b128 {a(b+16+4*i,4)}, v{aA+4*ha+i} offset:{la}")
        return X
    def mfmas(st, qts=(1, 2, 3, 0)):
        X = []
        b = fbase(st); acc = DA if st < NH else SA
        for qt in qts:
            for ct in range(4):
                d = v(acc+(ct*4+qt)*4, 4)
                for j_, kk in enumerate(range(nk(st)) if not (OPT['gsn'] and ct & 1) else range(nk(st)-1, -1, -1)):
                    wf = (st-NH)*32 + kk*16 + 4*ct if NH <= st < NH + OPT['nrs'] else b+kk*32+4*ct
                    X.append(f"{MF} {d}, {a(wf,4)}, {a(b+kk*32+16+4*qt,4)}, {'0' if (st in (0, NH) and j_ == 0) else d}")
        return X
    def pack(acc, pk, i):
        X = []
        for ct in range(4):
            x = acc + (ct*4+i)*4; d = pk + (i-1)*8 + 2*ct
            X += [f"v_cvt_pk_bf16_f32 v{d}, v{x}, v{x+1}", f"v_cvt_pk_bf16_f32 v{d+1}, v{x+2}, v{x+3}"]
        return X
    def pst(pk, i, half): return [f"buffer_store_dwordx4 {v(pk+(i-1)*8+4*j,4)}, v{aL16}, s[{P2PART}:{P2PART+3}], s{sPS+i-1} offen offset:{2048*half+1024*j} sc1" for j in range(2)]
    rD = lambda i, k: RXD + i*8 + k
    rS = lambda i, k: SA + ((k >> 2)*4 + i + 1)*4 + (k & 3)
    def pld(rx, half): return [f"buffer_load_dwordx4 {v(rx(i, 4*j),4)}, v{aL16}, s[{P2PART}:{P2PART+3}], s{49+i} offen offset:{2048*half+1024*j} sc1" for i in range(3) for j in range(2)]
    def pchk(rx):
        R = [rx(i, k) for i in range(3) for k in range(8)]
        X = [f"v_max3_u32 v{T}, v{R[0]}, v{R[1]}, v{R[2]}", f"v_max3_u32 v{T+1}, v{R[3]}, v{R[4]}, v{R[5]}"]
        for k in range(6, 24, 2): X.append(f"v_max3_u32 v{T+(k//2)%2}, v{T+(k//2)%2}, v{R[k]}, v{R[k+1]}")
        return X + [f"v_max_u32 v{T}, v{T}, v{T+1}", f"v_cmp_eq_u32 vcc, -1, v{T}"]
    segs = []
    NRS = OPT['nrs']
    staged = list(range(NH, NH + NRS)); half = (NRS + 1) // 2
    def stage_reads(st):
        X = []
        for kk in range(2):
            hw, lw = divmod(slot[('w', st)]*16384 + kk*8192, 65536)
            for i in range(4):
                for hh in range(2): X.append(f"ds_read_b64_tr_b16 {a((st-NH)*32+kk*16+4*i+2*hh,2)}, v{aW+4*hw+i} offset:{lw+2048*hh}")
        return X
    def body(mf, rd, dm, last=False, ships=(1, 2)):
        nonlocal q
        n = len(mf); gaps = [[] for _ in mf]
        ev = list(range(0, n - 6, 2)); od = list(range(1, n, 2))
        per = -(-len(rd) // len(ev)) if rd else 0
        per = max(per, 2)
        for k, x in enumerate(rd): gaps[ev[k // per]].append(x)
        nv = sum(x.startswith('buffer') for x in dm)
        if OPT['spread'] and 0 < nv <= len(od) - 1:
            ps = [1 + (k * (len(od) - 1)) // nv for k in range(nv)]
            k = 0; pend = []
            for x in dm:
                if x.startswith('buffer'):
                    p = ps[k]; k += 1
                    if pend:
                        if p - 1 not in ps: gaps[od[p-1]] += pend
                        else: gaps[od[p] - 1] += pend
                        pend = []
                    gaps[od[p]].append(x)
                else: pend.append(x)
            gaps[min(od[ps[-1]] + 1, n - 1)] += pend
        else:
            ng = sum('m0,' in x for x in dm)
            roomy = nv + ng <= len(od)
            pv = 1 if roomy else -(-nv // len(od))
            gi = 0; cnt = 0
            for x in dm:
                if x.startswith('buffer'):
                    gaps[od[gi]].append(x); cnt += 1
                    if cnt == pv: gi = min(gi + 1, len(od) - 1); cnt = 0
                else:
                    gaps[od[gi]].append(x)
                    if 'm0,' in x:
                        if roomy: gi += 1
                        else: gaps[od[gi]].append("s_nop 0")
        if last:
            for i in ships:
                for k, x in enumerate(pack(last[0], last[1], i)): gaps[8*i + 4 + k//2].append(x)
                if last[2] is not None:
                    for k, x in enumerate(pst(last[1], i, last[2])): gaps[8*i + 8 + k].insert(0, x)
        if q: fill(gaps, q, 0, OPT['ecap'])
        elif q2: fill(gaps, q2, 0, 2)
        return weave(mf, gaps)
    def sync(tags):
        n = vm_after(done + L, tags)
        return ["s_waitcnt " + (f"vmcnt({n}) " if n is not None else "") + "lgkmcnt(0)", "s_barrier"]
    if not OPT['pre0']:
        L += reads(0)
        while Ins(q[0]).kind != 'vst': L.append(q.pop(0))
    for st in range(1, NH + 1):
        if st == min(SIGI, 4): L += q + q2; q = []; del q2[:]
        sr = staged[:half] if st == NH - 1 else staged[half:] if st == NH else []
        if not (st == 1 and OPT['pre0']): L += sync(([f"a{st}", f"w{st}"] if st < NH else []) + (['o'] if st == SIGI else []) + [f"w{s_}" for s_ in sr] + (['f'] if st == NH and OPT['ea'] else []))
        free += [slot[('w', st-1)], slot[('a', st-1)]]
        if st == NH: free += [slot[('w', s_)] for s_ in staged[:half]]
        if st == SIGI:
            L += [f"s_cmp_lg_u32 s{sW}, 0", "s_cbranch_scc1 P2_NOSIG"]
            segs.append(L); done += L; L = stamp(STV); e = L.append
        rd = (reads(st) if st < NH else []) + sum((stage_reads(s_) for s_ in sr), [])
        dm = []
        if st == 1 and OPT['pre0'] == 2:
            d5 = dma('w') + dma('a')
            L += rd
            while q:
                x = q.pop(0); L.append(x)
                if Ins(x).kind == 'vst': L += with_m0_nops(d5[:3]); d5 = d5[3:]
            L += with_m0_nops(d5)
            continue
        if st == 1:
            if OPT['pre0']: dm = dma('w') + dma('a')
            else: L += with_m0_nops(dma('w') + dma('a'))
        elif st >= OPT['dstart']:
            while len(free) > 0 and nxt['w'] < NH + OPT['wpre'] and len(dm) < OPT['dmax']*6: dm += dma('w')
        EA = OPT['ea']
        if st == NH - (1 if EA else 0): dm = [FLD + " ; @f"] + dm
        if st == NH and EA:
            L += [f_cmp(vFL), f"s_mov_b32 s{sT0}, s{sAo}", "s_cmp_eq_u64 vcc, 0", f"s_cselect_b32 s{P2ACT+2}, s{sSZ2}, 0"]
            ea = []
            for _ in range(OPT['a0']): ea += dma('a')
            dm = [x.split(' ; @')[0] for x in ea] + dm
        if st == NH and OPT['xearly']: dm += [f"buffer_load_dwordx2 {v(XR+2*ct,2)}, v{aXO}, s[{P2X}:{P2X+3}], s{sXO} offen offset:{32*ct}" for ct in range(4)]
        assert not (q and sr)
        L += body(mfmas(st - 1), rd, dm, last=(DA, PKD, None) if st == NH else False)
    L += pack(DA, PKD, 3)
    dst = pst(PKD, 1, 1) + pst(PKD, 2, 1) + pst(PKD, 3, 1)
    if not EA:
        L += sync(['f'])
        free += [slot[('w', s_)] for s_ in staged[half:]]
        L += [f_cmp(vFL), f"s_mov_b32 s{sCNT}, 0", f"v_mov_b32 v{T+1}, v{aL16}", "s_cbranch_vccz P2_GO"]
        segs.append(L); done += L
        segs.append(dst + [f"v_mov_b32 v{T+1}, {OOB}"])
        R = []
        L = stamp(STV); e = L.append
        for _ in range(OPT['a0']): L += with_m0_nops(dma('a'))
    else:
        if OPT['dst0'] == 0: L += dst; dst = []
        L += [f"s_mov_b32 s{sCNT}, 0", f"v_mov_b32 v{T+1}, v{aL16}", f"s_cmp_lg_u32 s{P2ACT+2}, 0", "s_cbranch_scc1 P2_RUN"]
        segs.append(L); done += L
        segs.append(dst + [f"v_mov_b32 v{T+1}, {OOB}", f"s_mov_b32 s{P2ACT+2}, s{sSZ2}", f"s_mov_b32 s{sAo}, s{sT0}"])
        R = with_m0_nops(ea)
        done += [x for x in R if x.startswith('buffer')]
        L = stamp(STV); e = L.append
    dst = [x.replace(f"v{aL16},", f"v{T+1},") for x in dst]
    eatail = 0
    for st in range(NH, NST + 1):
        dm = []; rd = []
        if st < NST:
            if OPT['ea'] and st == NH: L += ["s_waitcnt vmcnt(%d) lgkmcnt(0)" % min(4*(OPT['a0']-1), eatail + 4*(OPT['a0']-1)), "s_barrier"]; free += [slot[('w', s_)] for s_ in staged[half:]]
            else: L += sync([f"a{st}", f"w{st}"] + (['pf'] if st == NST - 2 else []))
            if st > NH:
                free += [slot[('a', st-1)]] + ([slot[('w', st-1)]] if st-1 not in staged else [])
            rd = reads(st)
            def more():
                if st == NH: return len(dm) < 6*OPT['a1']
                if min(nxt['a'], nxt['w']) <= st + OPT['la']: return True
                return len(dm) < 6*OPT['gmax'] and (nxt['a'] + nxt['w'] - base) * 100 < OPT['pace'] * (st - NH)
            if st == NH + 1: base = nxt['a'] + nxt['w']
            while free and (nxt['a'] < NST or nxt['w'] < NST) and more():
                k = 'a' if (nxt['a'] <= nxt['w'] + OPT['alead'] or nxt['w'] >= NST) and nxt['a'] < NST else 'w'
                dm += dma(k)
            if st >= OPT['dst0'] and dst: dm += dst[:2]; dst = dst[2:]
            if st == NST - 3 and not OPT['xearly']: dm += [f"buffer_load_dwordx2 {v(XR+2*ct,2)}, v{aXO}, s[{P2X}:{P2X+3}], s{sXO} offen offset:{32*ct}" for ct in range(4)]
            if OPT['lpz'] and st == NST - 5: dm += [f_load(vPF, aPF, 2) + " ; @pf"]
            if OPT['lpz'] and st == NST - 2:
                L += [f_cmp(vPF), f"s_mov_b32 s{sCNT}, 0", "s_cbranch_vccnz P2_PFPOLL", "P2_PFOK:"]
            if st == NST - 2: dm += pld(rD, 1)
        else:
            L += ["s_waitcnt lgkmcnt(0)"]
        if (OPT['stamp'] == 5 and st % 2 == 0) or (OPT['stamp'] == 6 and st in (10, 14, 17, 19, 21)): L += stamp(STV)
        if st == NH: L += rd + with_m0_nops(dm)
        elif OL and st == NST:
            mf = mfmas(st - 1, (1, 2, 3)) + sum((mfmas(s_, (0,)) for s_ in range(NST - OL, NST)), [])
            L += body(mf, rd, dm, last=(SA, PKS, 0), ships=(1, 2, 3))
        elif OL and st > NST - OL: L += body(mfmas(st - 1, (1, 2, 3)), rd, dm)
        else: L += body(mfmas(st - 1), rd, dm, last=(SA, PKS, 0) if st == NST else False)
    L += stamp(STV)
    if not OL: L += pack(SA, PKS, 3) + pst(PKS, 3, 0)
    if OPT['searly'] == 1: L += pld(rS, 0)
    e(f"s_mov_b32 s{sCNT}, 0"); e(f"s_waitcnt vmcnt({12 if OPT['searly'] == 1 else 6})")
    L += pchk(rD); e("s_cbranch_vccz P2_DOK")
    XD = pld(rD, 1) + [f"s_add_u32 s{sCNT}, s{sCNT}, 1", "s_waitcnt vmcnt(0)"] + pchk(rD) + [f"s_cmp_gt_u32 s{sCNT}, {SPIN}", "s_cbranch_scc1 P2_DOK", "s_cbranch_vccnz P2_DPOLL"]
    M = []; e = M.append
    def accum(acc, rx, ct):
        for i in range(3):
            for h in range(2):
                p = rx(i, 2*ct + h)
                e(f"v_lshlrev_b32 v{T+2*h}, 16, v{p}"); e(f"v_and_b32 v{T+2*h+1}, s{sMASK}, v{p}")
            for h in range(2): e(f"v_pk_add_f32 {v(acc+ct*16+2*h,2)}, {v(acc+ct*16+2*h,2)}, {v(T+2*h,2)}")
    for ct in range(4): accum(DA, rD, ct)
    light = OPT['searly'] == 2
    LP = [f"buffer_load_dword v{T+4+i}, off, s[{P2PART}:{P2PART+3}], s{49+i} offset:2044 sc1" for i in range(3)]
    LC = [f"v_max3_u32 v{T+4}, v{T+4}, v{T+5}, v{T+6}", f"v_cmp_eq_u32 vcc, -1, v{T+4}"]
    if not OPT['searly']: M += pld(rS, 0)
    multi = OPT['searly'] == 3
    LP1 = lambda k: f"buffer_load_dword v{240+k}, v{aLP}, s[{P2PART}:{P2PART+3}], 0 offen offset:2044 sc1"
    for ct in range(4):
        if multi: e(LP1(ct))
        D_ = DA + ct*16; T_ = D_ + 4; X_ = D_ + 8
        for r in range(4): e(f"v_mul_f32 v{T_+r}, {f2u(-LOG2E)}, v{D_+r}")
        for r in range(4): e(f"v_exp_f32 v{T_+r}, v{T_+r}")
        e(f"v_lshlrev_b32 v{X_}, 16, v{XR+2*ct}"); e(f"v_and_b32 v{X_+1}, s{sMASK}, v{XR+2*ct}")
        for r in range(4): e(f"v_add_f32 v{T_+r}, 1.0, v{T_+r}")
        for r in range(4): e(f"v_rcp_f32 v{T_+r}, v{T_+r}")
        e(f"v_lshlrev_b32 v{X_+2}, 16, v{XR+1+2*ct}"); e(f"v_and_b32 v{X_+3}, s{sMASK}, v{XR+1+2*ct}")
        for h in (0, 2): e(f"v_pk_mul_f32 {v(T_+h,2)}, {v(T_+h,2)}, {v(D_+h,2)}")
    e(f"s_mov_b32 s{sCNT}, 0")
    if light:
        M += ["P2_LPOLL:"] + LP + [f"s_add_u32 s{sCNT}, s{sCNT}, 1"] + ([f"s_sleep {OPT['slp']}"] if OPT['slp'] else []) + ["s_waitcnt vmcnt(0)"] + LC
        M += [f"s_cmp_gt_u32 s{sCNT}, {SPIN}", "s_cbranch_scc1 P2_SPOLL", "s_cbranch_vccnz P2_LPOLL"]
    elif multi:
        M += ["P2_LPOLL:"]
        for k in range(4):
            M += ["s_waitcnt vmcnt(3)", f"v_cmp_eq_u32 vcc, -1, v{240+k}", "s_cbranch_vccz P2_SPOLL", LP1(k)]
        M += [f"s_add_u32 s{sCNT}, s{sCNT}, 1", f"s_cmp_gt_u32 s{sCNT}, {SPIN}", "s_cbranch_scc0 P2_LPOLL"]
    else:
        e("s_waitcnt vmcnt(0)")
        M += pchk(rS); e("s_cbranch_vccz P2_FIN")
    XS = pld(rS, 0) + [f"s_add_u32 s{sCNT}, s{sCNT}, 1", "s_waitcnt vmcnt(0)"] + pchk(rS) + [f"s_cmp_gt_u32 s{sCNT}, {SPIN}", "s_cbranch_scc1 P2_FIN", "s_cbranch_vccnz P2_SPOLL"]
    F = []; e = F.append
    F += stamp(STV)
    for ct in range(4):
        accum(SA, rS, ct)
        S_ = SA + ct*16; T_ = DA + ct*16 + 4; X_ = T_ + 4
        for h in (0, 2): e(f"v_pk_fma_f32 {v(X_+h,2)}, {v(S_+h,2)}, {v(T_+h,2)}, {v(X_+h,2)}")
        e(f"v_cvt_pk_bf16_f32 v{S_}, v{X_}, v{X_+1}"); e(f"v_cvt_pk_bf16_f32 v{S_+1}, v{X_+2}, v{X_+3}")
        e(f"buffer_store_dwordx2 {v(S_,2)}, v{aXO}, s[{P2OUT}:{P2OUT+3}], s{sXO} offen offset:{32*ct}" + ["", " sc1", " nt", " sc0 sc1"][OPT['outm']])
    if OPT['stamp']: F += ["s_waitcnt vmcnt(0)"] + stamp(STV, True)
    if OPT['echo']:
        F += ["s_waitcnt vmcnt(0)"] + stamp(STV) + ["s_memrealtime s[94:95]", "s_waitcnt lgkmcnt(0)", "s_sub_u32 s97, s97, s96", "s_mov_b32 s96, s94",
              "ECHO_LOOP:", "s_memrealtime s[94:95]", "s_waitcnt lgkmcnt(0)", "s_sub_u32 s94, s94, s96", "s_cmp_lt_u32 s94, s97", "s_cbranch_scc1 ECHO_LOOP"]
        print("; echo markers:", echo_n[0], file=sys.stderr)
    assert len(segs) == 3
    trace = segs[0] + segs[1] + L + M + (XS if light or multi else []) + F
    trace2 = segs[0] + S + segs[1] + segs[2] + P + P + R + L + XD + M + XS + F
    code = (segs[0] + S + ["P2_NOSIG:"] + segs[1] + segs[2] + ["P2_POLL:"] + P + ["P2_GO:"] + R + ["P2_RUN:"] + L
            + ["P2_DPOLL:"] + XD + ["P2_DOK:"] + M + ["P2_SPOLL:"] + XS + ["P2_FIN:"] + F + ["s_endpgm", "P2_PFPOLL:", f_load(vPF, aPF, 2), f"s_add_u32 s{sCNT}, s{sCNT}, 1", "s_waitcnt vmcnt(0)",
               f_cmp(vPF), f"s_cmp_gt_u32 s{sCNT}, {SPIN}", "s_cbranch_scc1 P2_PFOK", "s_cbranch_vccnz P2_PFPOLL", "s_branch P2_PFOK"])
    return trace, trace2, code

def kd(name, nv, acc, ns=102):
    return f""".amdhsa_kernel {name}
  .amdhsa_next_free_vgpr {nv}
  .amdhsa_next_free_sgpr {ns}
  .amdhsa_accum_offset {acc}
  .amdhsa_group_segment_fixed_size 0
  .amdhsa_kernarg_size 96
  .amdhsa_user_sgpr_count 2
  .amdhsa_user_sgpr_kernarg_segment_ptr 1
  .amdhsa_system_sgpr_workgroup_id_x 1
.end_amdhsa_kernel
"""
def fmt(L): return "\n".join(x if (x.endswith(':') or x.startswith('.')) else "    " + x for x in L)

NAME = "recurrent_scan__gqa_block_cached__glu_gated_glu__prompt_kernel"
HEAD = f"""; One persistent launch (256 workgroups, one per CU): LayerNorm + Q-projection + GLU-up, attention, out/down projection + gating.
; Kernarg layout (96 bytes): 0 A_x, 8 A_k_cache, 16 A_v_cache, 24 A_wq, 32 A_wo, 40 B_x, 48 B_w_gate, 56 B_w_up,
; @launch grid=(256,1,1) block=(256,1,1) lds=163840
.amdgcn_target "amdgcn-amd-amdhsa--gfx950"
.text
"""
def kern(name, L):
    return f".globl {name}\n.p2align 8\n.type {name},@function\n{name}:\n" + fmt(L) + "\n"
src = HEAD + kern(NAME, k1())
src += '.section .rodata,"a"\n.p2align 6\n' + kd(NAME, 512, 256)
open(sys.argv[1], "w").write(src)
```

```python
import sys, os, struct
sys.path.insert(0, os.path.dirname(os.path.abspath(__file__)))
from asmlib import *

OPT = dict(stamp=0, wgap=4, thr=40, cpf=1, rot=8, stpos=0, barg0=47, pois=45, sched=4, sq=1, opk=1, lcap=4, xw=60, xg=30, kvs=0, d0g=70, pstep=12, ecap=40, sigi=3, polli=6, dstart=2, searly=3, a0=4, a1=1, gmax=2, dst0=9, pace=175, aoff=0, poff=24, base=120, twice=0, wpf=1, spread=1, ea=1, xearly=0, fast0=1, xg0=56, pzq=1, lpz=1, outm=0, pre0=1, gub=15, w1late=0, gulate=1, st0=4, ownlast=4, guz=1, gsn=1, wnt=0, cpf2=0, w1e=0, bv=2, xrot=0, orot=0, omask=3, lay=2, xl=0, lal=0, tc=5, kvnt=0, xnt=0, kvpf=0, echo=0, la=3, slp=0, dmax=2, fearly=1, dlate=5, kvsc=1, wpre=8, nrs=4, alead=0)
for arg in sys.argv[2:]:
    k_, v_ = arg.split('='); OPT[k_] = int(v_)

MF = "v_mfma_f32_16x16x32_bf16"
TB, TC = 1, OPT['tc']
NKS = 171
ACT_RB = NKS * 4096
WT_OFF = 24 << 20
FLAG_OFF = 31 << 20
PART_OFF = 32 << 20
STAMP_OFF = 64 << 20
STAT_OFF = 30 << 20
CS_OFF = STAT_OFF + 65536
OOB = '0x40000000'
BASE = OPT['base'] << 20
ACT_OFF = BASE + (OPT['aoff'] << 10)
PART_OFF = BASE + (OPT['poff'] << 20)
STAT_OFF = BASE + (22 << 20); CS_OFF = STAT_OFF + 65536; FLAG_OFF = BASE + (23 << 20)
LOG2E = 1.4426950408889634
SCALE = LOG2E / (128 ** 0.5)
def f2u(x): return "0x%08x" % struct.unpack('<I', struct.pack('<f', x))[0]

sW, sHEAD, sQB = 3, 4, 5
SK, SV, SX, SWQ, SGU, SACT, SWO, SWD, SWT = 8, 12, 16, 20, 24, 28, 32, 36, 40
sX0, sX1, sWQo, sGUo, sKV = 44, 45, 46, 47, 48
sMX, sMWQ, sMGU, sMKV, sMW2 = 49, 50, 51, 52, 53
sCNT, sMASK, sT0, sT1, sT2, sPASS = 54, 55, 56, 57, 58, 59
sH0 = 60
sW2S = 63
SWS = 88
SDBG = 84
SST = SWS; sSTo = 92
sXP, sA2, sOUT = 64, 66, 82
sPS = 40
sAR = 53
sRL = 44
sPZ, sPZD = 46, 47
sNON = 62
sKV2 = 43; sINC2 = 58; sPFo = 68
sP2, sCSo, sSTAo = 70, 71, 93
sSP, sSZ2, sXO, sINC, sFQB = 74, 75, 76, 77, 78
P2ACT, P2WT, P2X, P2OUT = 12, 8, 16, 20
P2PART = SFLAG = SWS
sKVB = 98
CHK_LDS = 8*16384 + 8192
def srd(d, lo, hi, size):
    return [f"s_mov_b32 s{d}, s{lo}", f"s_mov_b32 s{d+1}, s{hi}", f"s_mov_b32 s{d+2}, {size}", f"s_mov_b32 s{d+3}, 0x00020000"]

stamp_n = [0]
echo_n = [0]
def stamp(tmpv, force=False):
    if OPT['echo']:
        echo_n[0] += 1
        return ["s_memrealtime s[94:95]", "s_waitcnt lgkmcnt(0)", "s_mov_b32 s97, s94"] if echo_n[0] == OPT['echo'] else []
    if not OPT['stamp'] or (OPT['stamp'] == 9 and not force): return []
    n = stamp_n[0]; stamp_n[0] += 1
    return ["s_memtime s[94:95]", "s_memrealtime s[96:97]", "s_waitcnt lgkmcnt(0)",
            f"v_mov_b32 v{tmpv}, s94", f"v_mov_b32 v{tmpv+1}, s96", "s_nop 1",
            f"buffer_store_dwordx2 v[{tmpv}:{tmpv+1}], off, s[{SST}:{SST+3}], s{sSTo} offset:{n*8}", "s_nop 1"]

def units(xs): return sum(UNITS[Ins(x).kind] for x in xs)
class Gaps:
    def __init__(self, n, cap=2):
        self.pre = [[] for _ in range(n)]
        self.post = [[] for _ in range(n)]
        self.cap = cap; self.n = n
    def used(self, g): return units(self.pre[g] + self.post[g])
    def put(self, g, text, force=False):
        k = Ins(text).kind
        assert force or self.used(g) + UNITS[k] <= self.cap, (g, text, self.pre[g], self.post[g])
        (self.post if k in ('valu', 'trans') else self.pre)[g].append(text)
    def fit(self, g0, text, g1=None):
        k = UNITS[Ins(text).kind]
        for g in range(g0, self.n if g1 is None else g1):
            if self.used(g) + k <= self.cap:
                self.put(g, text); return g
        return None
    def stream(self, g, q, g1=None):
        g1 = self.n if g1 is None else g1
        while q:
            k = 1
            while k < len(q) and q[k].split()[0] in ('s_addc_u32', 's_cselect_b32', 's_cselect_b64'): k += 1
            grp = q[:k]; u = units(grp)
            mem = Ins(grp[0]).kind in ('dsr', 'dsw', 'vld', 'vst', 'dma')
            while g < g1 and not ((self.used(g) + u <= self.cap or (u > self.cap and self.used(g) == 0))
                                  and not (mem and any(Ins(x).kind in ('valu', 'trans') for x in self.post[g]))): g += 1
            if g >= g1: return g
            self.post[g] += grp; del q[:k]
        return g
    def out(self): return [p + q for p, q in zip(self.pre, self.post)]

def vm_after(trace, tags):
    ops = [x for x in trace if Ins(x).kind in ('dma', 'vld', 'vst')]
    idx = [i for i, x in enumerate(ops) if any(x.endswith('@' + t) for t in tags)]
    return None if not idx else len(ops) - 1 - max(idx)

XF = 0
SXA = 64
TM = 80; aWQR = 88; ONES = 96
aXD = 100; aWQD = 104; aGUD = 108; aXR = 112; aWQC = 114; aGUR = 116; aGUC = 117
aL16 = 118; aCS = 112; aKD = 120; aVD = 124; vLANE = 126; aGUR2 = 127; vSP = 127
vD1 = 114; vIDX = 119
QACC = 128
GUA = 0; CSA = 96; WF = 128
def EFr(tl, ks): return (112 if tl < 2 else 224) + (tl*2+ks)*4
def gua(zt, qt): return GUA + (qt*6+zt)*4
QF = 0; KF = 128; SB = 192; PB = 208; NEGM = 224; LACC = 240
aKR = 100; aVR = 104; aW2R = 112; T2 = 64
OACC = 0; VF = 128
aPF = 114; vPF = 115
aA = 64; aW = 76; aXO = 112; XR = 100; aFL = 116; vFL = 117

def k1_setup():
    L = []; e = L.append
    e("s_cmp_ge_u32 s2, 256"); e("s_cbranch_scc1 K1_END")
    if OPT['stamp']: e("s_memtime s[98:99]"); e("s_memrealtime s[100:101]")
    if OPT['echo']: e("s_memrealtime s[96:97]")
    e("s_load_dwordx16 s[64:79], s[0:1], 0"); e("s_load_dwordx8 s[80:87], s[0:1], 64")
    l = vLANE
    e("v_lshrrev_b32 v1, 6, v0"); e(f"v_and_b32 v{l}, 63, v0"); e(f"v_readfirstlane_b32 s{sW}, v1")
    e("s_and_b32 s6, s2, 7"); e("s_lshr_b32 s7, s2, 3")
    e(f"s_lshl_b32 s{sHEAD}, s6, 2"); e(f"s_and_b32 s{sT0}, s7, 3"); e(f"s_add_u32 s{sHEAD}, s{sHEAD}, s{sT0}")
    e(f"s_lshr_b32 s{sQB}, s7, 2")
    if OPT['cpf']:
        e(f"s_getpc_b64 s[{SWO}:{SWO+1}]"); e("KPC:"); e(f"s_mov_b32 s{SWO+2}, K1_END-KPC"); e(f"s_mov_b32 s{SWO+3}, 0x00020000")
        e(f"s_lshl_b32 s{sT0}, s7, 2"); e(f"s_add_u32 s{sT0}, s{sT0}, s{sW}"); e(f"s_lshl_b32 s{sT0}, s{sT0}, 7")
        e(f"v_lshlrev_b32 v12, 14, v{l}")
        e(f"buffer_load_dword v16, v12, s[{SWO}:{SWO+3}], s{sT0} offen")
    e(f"v_and_b32 v1, 15, v{l}"); e(f"v_lshrrev_b32 v2, 4, v{l}"); e("v_lshrrev_b32 v3, 2, v1"); e(f"v_and_b32 v4, 3, v{l}")
    e(f"v_lshrrev_b32 v5, 3, v{l}"); e(f"v_and_b32 v6, 7, v{l}"); e(f"v_lshlrev_b32 v{aL16}, 4, v{l}")
    e("v_lshlrev_b32 v7, 1, v2"); e("v_xor_b32 v7, v7, v1")
    e(f"s_lshl_b32 s6, s{sW}, 4"); e("v_add_u32 v8, s6, v2"); e("v_lshlrev_b32 v9, 13, v8")
    for i in range(4):
        e(f"v_xor_b32 v10, {8*(i>>1)}, v7"); e("v_lshl_add_u32 v10, v10, 4, v9"); e(f"v_add_u32 v{aWQD+i}, {31744*i}, v10")
    e("v_lshrrev_b32 v7, 1, v5"); e("v_xor_b32 v7, v7, v6"); e("v_lshlrev_b32 v8, 10, v5")
    for i in range(4):
        e(f"v_xor_b32 v9, {4*(i&1)}, v7"); e("v_lshl_add_u32 v9, v9, 4, v8"); e(f"v_add_u32 v{aXD+i}, {7168*i}, v9")
    e(f"s_lshl_b32 s{sMX}, s{sW}, 13"); e(f"s_lshl_b32 s{sMKV}, s{sW}, 12"); e(f"s_add_u32 s{sMWQ}, s{sMKV}, 65536")
    e(f"s_add_u32 s{sMGU}, s{sMKV}, 81920")
    R = OPT['rot']
    e(f"s_and_b32 s6, s{sQB}, {R-1}"); e(f"s_mul_i32 s6, s6, {8//R}")
    if OPT['xrot']: e(f"s_lshl_b32 s7, s{sHEAD}, 1"); e("s_add_u32 s6, s6, s7"); e("s_and_b32 s6, s6, 7")
    e(f"s_lshl_b32 s{sX0}, s6, 7"); e(f"s_add_u32 s{sX1}, s{sX0}, 32768"); e(f"s_lshl_b32 s{sWQo}, s6, 19"); e(f"s_mul_i32 s{sGUo}, s6, {64*2752}")
    e(f"s_lshl_b32 s{sT1}, s{sQB}, 5"); e(f"s_add_u32 s{sT1}, s{sT1}, s{sHEAD}"); e(f"s_lshl_b32 s{sT1}, s{sT1}, 2"); e(f"s_add_u32 s{sT1}, s{sT1}, s{sW}")
    e(f"s_lshl_b32 s{sT2}, s{sT1}, 11")
    e("s_waitcnt lgkmcnt(0)")
    e(f"s_lshl_b32 s6, s{sHEAD}, 8"); e(f"s_add_u32 s{SWQ}, s70, s6"); e(f"s_addc_u32 s{SWQ+1}, s71, 0")
    e(f"s_sub_u32 s{SWQ+2}, {512*8192}, s6"); e(f"s_mov_b32 s{SWQ+3}, 0x00020000")
    L += with_m0_nops(dma_w(0, 0)[:5])
    e(f"s_lshl_b32 s6, s{sQB}, 2"); e(f"s_add_u32 s6, s6, s{sW}"); e("s_lshl_b32 s7, s6, 16")
    e(f"s_add_u32 s{SX}, s64, s7"); e(f"s_addc_u32 s{SX+1}, s65, 0"); e(f"s_mov_b32 s{SX+2}, 65536"); e(f"s_mov_b32 s{SX+3}, 0x00020000")
    L += with_m0_nops(dma_x(0, 0))
    e(f"s_and_b32 s6, s{sW}, 1"); e(f"s_mul_i32 s6, s6, {32*2752}"); e("s_movk_i32 s7, 2752")
    for par in range(2):
        e(f"v_subrev_u32 v9, {8*par}, v{l}"); e("v_cmp_gt_u32 vcc, 48, v9")
        e("v_mul_u32_u24 v10, 171, v9"); e("v_lshrrev_b32 v10, 10, v10")
        e("v_mul_u32_u24 v11, 6, v10"); e("v_sub_u32 v11, v9, v11"); e("v_lshlrev_b32 v11, 4, v11")
        e("v_mad_u32_u24 v11, v10, s7, v11"); e("v_add_u32 v11, s6, v11"); e(f"v_mov_b32 v10, {OOB}")
        e("v_cndmask_b32 v11, v10, v11, vcc")
        for i in (par, par+2): e(f"v_add_u32 v{aGUD+i}, {(8*2752-1024)*i}, v11")
    e(f"s_cmp_ge_u32 s{sW}, 2"); e("s_cselect_b32 s76, s78, s76"); e("s_cselect_b32 s77, s79, s77")
    e(f"s_mul_i32 s6, s{sHEAD}, 96"); e(f"s_add_u32 s{SGU}, s76, s6"); e(f"s_addc_u32 s{SGU+1}, s77, 0")
    e(f"s_sub_u32 s{SGU+2}, {512*2752}, s6"); e(f"s_mov_b32 s{SGU+3}, 0x00020000")
    if OPT['guz']: e(f"s_cmp_ge_u32 s{sHEAD}, 29"); e(f"s_cselect_b32 s{SGU+2}, 0, s{SGU+2}")
    if not OPT['gulate']: L += with_m0_nops(dma_w(0, 0)[5:])
    L += srd(SWD, 64, 65, 2048*1024)
    if OPT['stpos'] == 0 and not OPT['fast0']: L += st_loads()
    return L
def st_loads():
    b = 64 if OPT['fast0'] else 40
    return [f"buffer_load_dwordx4 {v(b,4)}, v{aL16}, s[{SWD}:{SWD+3}], s{sT2} offen", f"buffer_load_dwordx4 {v(b+4,4)}, v{aL16}, s[{SWD}:{SWD+3}], s{sT2} offen offset:1024 ; @st"]
def stats_stream():
    L = []; e = L.append
    for rw in range(2):
        s_, q_ = 72+2*rw, 73+2*rw
        for k in range(4):
            x = 64+4*rw+k; t = 76 + 2*(k & 1)
            e(f"v_lshlrev_b32 v{t}, 16, v{x}"); e(f"v_and_b32 v{t+1}, 0xffff0000, v{x}")
            if k == 0: e(f"v_add_f32 v{s_}, v{t}, v{t+1}"); e(f"v_mul_f32 v{q_}, v{t}, v{t}")
            else: e(f"v_add_f32 v{s_}, v{s_}, v{t}"); e(f"v_fmac_f32 v{q_}, v{t}, v{t}"); e(f"v_add_f32 v{s_}, v{s_}, v{t+1}")
            e(f"v_fmac_f32 v{q_}, v{t+1}, v{t+1}")
    for rot in (8, 4, 2, 1):
        for i in range(4): e(f"v_add_f32_dpp v{72+i}, v{72+i}, v{72+i} row_ror:{rot} {DPP}")
    L += xlane_reduce("v_add_f32", [72, 73, 74, 75], [76, 77, 78, 79])
    for rw in range(2):
        s_, q_ = 72+2*rw, 73+2*rw
        e(f"v_mul_f32 v{s_}, {f2u(-1/512)}, v{s_}"); e(f"v_mul_f32 v{q_}, {f2u(1/512)}, v{q_}")
        e(f"v_fma_f32 v{q_}, -v{s_}, v{s_}, v{q_}"); e(f"v_max_f32 v{q_}, 0, v{q_}"); e(f"v_add_f32 v{q_}, {f2u(1e-5)}, v{q_}")
    e(f"buffer_store_dwordx4 v[72:75], v{TM+3}, s[{SWS}:{SWS+3}], s{sT1} offen sc1 ; @pub")
    return L

def dma_w(buf, st):
    o = buf * 32768
    nt = " nt" if st < OPT['wnt'] else ""
    L = [f"s_add_u32 m0, s{sMWQ}, {o}"]
    for i in range(4): L.append(f"buffer_load_dwordx4 v{aWQD+i}, s[{SWQ}:{SWQ+3}], s{sWQo} offen offset:{1024*i}{nt} lds ; @W{st}")
    L.append(f"s_add_u32 m0, s{sMGU}, {o}")
    for i in range(4): L.append(f"buffer_load_dwordx4 v{aGUD+i}, s[{SGU}:{SGU+3}], s{sGUo} offen offset:{1024*i}{nt} lds ; @W{st}")
    L += [f"s_add_u32 s{sWQo}, s{sWQo}, {64*8192}", f"s_and_b32 s{sWQo}, s{sWQo}, {512*8192-1}",
          f"s_lshr_b32 s{sGUo}, s{sWQo}, 19", f"s_mul_i32 s{sGUo}, s{sGUo}, {64*2752}"]
    return L
def dma_x(buf, st):
    o = buf * 32768
    nt = " nt" if st < OPT['xnt'] else ""
    L = [f"s_add_u32 m0, s{sMX}, {o}"]
    for i in range(4): L.append(f"buffer_load_dwordx4 v{aXD+i}, s[{SX}:{SX+3}], s{sX0} offen offset:{1024*i}{nt} lds ; @X{st}")
    L.append(f"s_add_u32 m0, s{sMX}, {o+4096}")
    for i in range(4): L.append(f"buffer_load_dwordx4 v{aXD+i}, s[{SX}:{SX+3}], s{sX1} offen offset:{1024*i}{nt} lds ; @X{st}")
    L += [f"s_add_u32 s{sX0}, s{sX0}, 128", f"s_and_b32 s{sX0}, s{sX0}, 1023", f"s_add_u32 s{sX1}, s{sX0}, 32768"]
    return L
def with_m0_nops(L):
    out = []
    for x in L:
        out.append(x)
        if 'm0,' in x: out.append("s_nop 0")
    return out
def kv_dma(slot, tag="", loop=False):
    sc = (" sc1" if OPT['kvsc'] else "") + (" nt" if OPT['kvnt'] > (1 if loop else 0) else "")
    L = [f"s_add_u32 m0, s{sMKV}, {slot*16384}"]
    for i in range(4): L.append(f"buffer_load_dwordx4 v{aKD+i}, s[{SK}:{SK+3}], s{sKV} offen offset:{1024*i}{sc} lds{tag}")
    L.append(f"s_add_u32 m0, s{sMKV}, {65536+slot*16384}")
    for i in range(4): L.append(f"buffer_load_dwordx4 v{aVD+(i&1)}, s[{SV}:{SV+3}], s{sKV2} offen offset:{1024*i}{sc} lds{tag}")
    L.append(f"s_add_u32 s{sKV}, s{sKV}, s{sINC}"); L.append(f"s_add_u32 s{sKV2}, s{sKV2}, s{sINC2}")
    return L
def kv_voff(n, gg, t):
    L = []; e = L.append
    e(f"s_lshl_b32 s6, s{sW}, 4"); e(f"v_add_u32 v{t}, s6, v{gg}"); e(f"v_lshlrev_b32 v{t}, 8, v{t}")
    e(f"v_xor_b32 v{t+1}, v{n}, v{gg}")
    for i in range(4):
        e(f"v_xor_b32 v{t+2}, {4*i}, v{t+1}"); e(f"v_lshl_add_u32 v{aKD+i}, v{t+2}, 4, v{t}")
    e(f"v_lshlrev_b32 v{t+1}, 1, v{gg}"); e(f"v_xor_b32 v{t+1}, v{t+1}, v{n}")
    for i in range(2):
        e(f"v_xor_b32 v{t+2}, {8*i}, v{t+1}"); e(f"v_lshl_add_u32 v{aVD+i}, v{t+2}, 4, v{t}")
    return L

def xlane_reduce(op, xs, ts):
    L = []
    for sw in ("v_permlane32_swap_b32", "v_permlane16_swap_b32"):
        for x, t in zip(xs, ts): L.append(f"v_mov_b32 v{t}, v{x}")
        if len(xs) < 3: L.append("s_nop 1")
        for x, t in zip(xs, ts): L.append(f"{sw} v{x}, v{t}")
        for x, t in zip(xs, ts): L.append(f"{op} v{x}, v{x}, v{t}")
    return L
DPP = "row_mask:0xf bank_mask:0xf"

def k1_setup2(pre):
    L = []; e = L.append; l = vLANE
    e("v_lshrrev_b32 v7, 1, v1"); e("v_lshlrev_b32 v8, 7, v1"); e(f"v_add_u32 v8, s{sMX}, v8")
    for ks in range(2):
        e(f"v_add_u32 v9, {4*ks}, v2"); e("v_xor_b32 v9, v9, v7"); e(f"v_lshl_add_u32 v{aXR+ks}, v9, 4, v8")
    e("v_lshl_add_u32 v7, v2, 3, v3")
    e("v_lshlrev_b32 v8, 8, v7"); e("v_lshl_add_u32 v8, v4, 3, v8"); e("v_add_u32 v8, 65536, v8")
    e("v_and_b32 v10, 1, v2"); e("v_lshl_add_u32 v11, v10, 2, v3")
    for t in range(8):
        e(f"v_xor_b32 v9, {t}, v11"); e(f"v_lshl_add_u32 v{aWQR+t}, v9, 5, v8")
    e(f"s_lshl_b32 s6, s{sW}, 1"); e("v_xor_b32 v9, s6, v11"); e(f"v_lshl_add_u32 v{aWQC}, v9, 5, v8")
    e("v_xor_b32 v9, 1, v9"); e(f"v_lshl_add_u32 v{aWQC+1}, v9, 5, v8")
    e("v_mul_u32_u24 v8, 96, v3"); e("v_lshl_add_u32 v8, v4, 3, v8"); e("v_lshl_add_u32 v8, v2, 10, v8"); e("v_lshl_add_u32 v8, v10, 7, v8")
    e(f"s_and_b32 s6, s{sHEAD}, 1"); e("s_lshl_b32 s7, s6, 5"); e("s_add_u32 s7, s7, 81920"); e(f"v_add_u32 v{aGUR}, s7, v8")
    e("s_lshl_b32 s6, s6, 6"); e(f"s_sub_u32 s6, {81920+64}, s6"); e(f"v_add_u32 v{aGUR2}, s6, v8")
    e(f"s_lshl_b32 s{sT0}, s{sW}, 5"); e(f"s_add_u32 s7, s7, s{sT0}"); e(f"s_cmp_ge_u32 s{sW}, 2"); e("s_cselect_b32 s7, s6, s7"); e(f"v_add_u32 v{aGUC}, s7, v8")
    for i in range(4): e(f"v_mov_b32 v{ONES+i}, 0x3f803f80")
    L += srd(SWS, 86, 87, 1 << 28)
    e(f"s_movk_i32 s{SDBG+2}, 256"); e(f"s_mov_b32 s{SDBG+3}, 0x00020000")
    if OPT['stamp']:
        e("s_lshl_b32 s6, s2, 2"); e(f"s_add_u32 s6, s6, s{sW}"); e(f"s_lshl_b32 s{sSTo}, s6, 8"); e(f"s_add_u32 s{sSTo}, s{sSTo}, {STAMP_OFF}")
    e(f"v_mov_b32 v10, {OOB}"); e("v_lshlrev_b32 v9, 4, v1"); e("v_cmp_eq_u32 vcc, 0, v2"); e(f"v_cmp_eq_u32 s[6:7], 0, v{l}"); e("v_mov_b32 v12, 0")
    e(f"v_cndmask_b32 v{TM}, v10, v9, vcc"); e(f"v_cndmask_b32 v{TM+1}, v10, v12, s[6:7]"); e("v_cmp_eq_u32 vcc, 0, v0")
    for i in range(4): e(f"v_mov_b32 v{48+i}, 0")
    e(f"v_cndmask_b32 v{TM+2}, v10, v12, vcc"); e(f"v_mov_b32 v{TM+3}, v{TM+1}")
    e("s_memrealtime s[6:7]"); e(f"s_lshl_b32 s{sT0}, s2, 8"); e("s_waitcnt lgkmcnt(0)"); e("s_or_b32 s6, s6, 1"); e("v_mov_b32 v13, s6")
    e(f"buffer_store_dword v13, v{TM+2}, s[{SDBG}:{SDBG+3}], s{sT0} offen sc1")
    e(f"s_lshl_b32 s{sW2S}, s2, 7"); e(f"s_add_u32 s{sW2S}, s{sW2S}, {FLAG_OFF}")
    e(f"s_lshl_b32 s{sT1}, s{sT1}, 4"); e(f"s_add_u32 s{sT1}, s{sT1}, {STAT_OFF}")
    e(f"v_and_b32 v{vIDX}, 1, v{vLANE}"); e(f"v_mul_u32_u24 v{vIDX}, 0xaaaa, v{vIDX}"); e(f"v_add_u32 v{vIDX}, 0x4444, v{vIDX}"); e(f"v_lshl_or_b32 v{vIDX}, v{vIDX}, 16, v{vIDX}")
    for i in range(16): e(f"v_accvgpr_write_b32 a{CSA+i}, 0")
    return L

def k1_stats(pre):
    L = []; e = L.append
    e(f"s_waitcnt vmcnt({vm_after(pre, ['st'])})")
    for k in range(4):
        for rw in range(2):
            e(f"v_dot2c_f32_bf16 v{48+2*rw}, v{40+4*rw+k}, v{ONES}"); e(f"v_dot2c_f32_bf16 v{49+2*rw}, v{40+4*rw+k}, v{40+4*rw+k}")
    e("s_nop 1")
    for rot in (8, 4, 2, 1):
        for i in range(4): e(f"v_add_f32_dpp v{48+i}, v{48+i}, v{48+i} row_ror:{rot} {DPP}")
    L += xlane_reduce("v_add_f32", [48, 49, 50, 51], [40, 41, 42, 43])
    for rw in range(2):
        s_, q_ = 48+2*rw, 49+2*rw
        e(f"v_mul_f32 v{s_}, {f2u(-1/512)}, v{s_}"); e(f"v_mul_f32 v{q_}, {f2u(1/512)}, v{q_}")
        e(f"v_fma_f32 v{q_}, -v{s_}, v{s_}, v{q_}"); e(f"v_max_f32 v{q_}, 0, v{q_}"); e(f"v_add_f32 v{q_}, {f2u(1e-5)}, v{q_}")
    e(f"buffer_store_dwordx4 v[48:51], v{TM+1}, s[{SWS}:{SWS+3}], s{sT1} offen sc1 ; @pub")
    return L

def k1_setup3():
    L = []; e = L.append; l = vLANE
    e(f"s_lshl_b32 s6, s{sHEAD}, 19")
    e(f"s_add_u32 s{SK}, s66, s6"); e(f"s_addc_u32 s{SK+1}, s67, 0"); e(f"s_add_u32 s{SV}, s68, s6"); e(f"s_addc_u32 s{SV+1}, s69, 0")
    for d in (SK, SV): e(f"s_mov_b32 s{d+2}, 524288"); e(f"s_mov_b32 s{d+3}, 0x00020000")
    e(f"s_mov_b64 s[{sKVB}:{sKVB+1}], s[{SK}:{SK+1}]"); e(f"s_mov_b64 s[{sKVB+2}:{sKVB+3}], s[{SV}:{SV+1}]")
    for i in range(4): e(f"v_accvgpr_write_b32 a{CSA+i}, -1")
    c2, t = sT0, sCNT
    e("s_and_b32 s6, s2, 7"); e("s_lshr_b32 s7, s2, 3")
    if OPT['xl']:
        e(f"s_and_b32 s{sSP}, s7, 3"); e("s_lshr_b32 s79, s6, 1"); e("s_lshl_b32 s79, s79, 2"); e(f"s_bfe_u32 s{t}, s7, 0x20002"); e(f"s_add_u32 s79, s79, s{t}")
        e("s_and_b32 s6, s6, 1"); e(f"s_lshr_b32 s{c2}, s7, 4"); e(f"s_lshl_b32 s{t}, s6, 1"); e(f"s_add_u32 s{c2}, s{c2}, s{t}")
        e("s_lshl_b32 s7, s7, 2"); e(f"s_add_u32 s7, s7, s{sW}"); e("s_lshl_b32 s6, s6, 9")
        e(f"s_lshl_b32 s{sPFo}, s7, 15"); e(f"s_add_u32 s{sPFo}, s{sPFo}, s6")
        e(f"s_mul_i32 s{sPFo+1}, s7, {11*1024}"); e(f"s_add_u32 s{sPFo+1}, s{sPFo+1}, s6")
    else:
        e("s_lshr_b32 s79, s6, 2"); e(f"s_lshl_b32 s{sSP}, s79, 1"); e(f"s_add_u32 s{sSP}, s{sSP}, s6"); e(f"s_add_u32 s{sSP}, s{sSP}, 1"); e(f"s_and_b32 s{sSP}, s{sSP}, 3")
        e("s_lshl_b32 s79, s79, 3"); e("s_and_b32 s6, s7, 7"); e("s_add_u32 s79, s79, s6"); e(f"s_lshr_b32 s{c2}, s7, 3")
        e("s_lshl_b32 s7, s7, 2"); e(f"s_add_u32 s7, s7, s{sW}")
        e(f"s_lshl_b32 s{sPFo}, s{sSP}, 7"); e(f"s_add_u32 s{sPFo}, s{sPFo}, s7"); e(f"s_lshl_b32 s{sPFo}, s{sPFo}, 13")
        e(f"s_mul_i32 s{sPFo+1}, s{sSP}, 352"); e("s_mul_i32 s7, s7, 3"); e(f"s_add_u32 s{sPFo+1}, s{sPFo+1}, s7"); e(f"s_lshl_b32 s{sPFo+1}, s{sPFo+1}, 10")
    e(f"s_lshl_b32 s{t}, s79, 2"); e(f"s_add_u32 s{t}, s{t}, s{c2}"); e(f"s_lshl_b32 s{t}, s{t}, 18"); e(f"s_lshl_b32 s6, s{sW}, 12"); e(f"s_add_u32 s{t}, s{t}, s6")
    e(f"s_add_u32 s{sP2}, s{t}, {PART_OFF}")
    part_soff(e, sPS, True)
    e(f"s_lshr_b32 s7, s{sW}, 1"); e("s_lshl_b32 s6, s7, 12"); e(f"s_sub_u32 s{sSZ2}, {ACT_RB}, s6")
    e(f"s_and_b32 s7, s{sW}, 1")
    e(f"s_lshl_b32 s{t}, s79, 1"); e(f"s_add_u32 s{t}, s{t}, s7"); e(f"s_mul_i32 s{t}, s{t}, {ACT_RB}"); e(f"s_add_u32 s{t}, s{t}, s6"); e(f"s_add_u32 s{t}, s{t}, {ACT_OFF}")
    e(f"s_add_u32 s{sA2}, s{SWS}, s{t}"); e(f"s_addc_u32 s{sA2+1}, s{SWS+1}, 0")
    e(f"s_lshl_b32 s{t}, s{c2}, 1"); e(f"s_add_u32 s{t}, s{t}, s7"); e(f"s_lshl_b32 s{t}, s{t}, 7"); e("s_lshl_b32 s6, s6, 3"); e(f"s_add_u32 s6, s6, s{t}")
    e(f"s_add_u32 s{SWD}, s80, s6"); e(f"s_addc_u32 s{SWD+1}, s81, 0"); e(f"s_sub_u32 s{SWD+2}, {1376*1024}, s6"); e(f"s_mov_b32 s{SWD+3}, 0x00020000")
    e(f"s_lshl_b32 s7, s{sSP}, 20"); e("s_add_u32 s6, s6, s7")
    e(f"s_add_u32 s{SWO}, s72, s6"); e(f"s_addc_u32 s{SWO+1}, s73, 0"); e(f"s_sub_u32 s{SWO+2}, {4096*1024}, s6"); e(f"s_mov_b32 s{SWO+3}, 0x00020000")
    e("s_lshl_b32 s7, s79, 1"); e(f"s_lshr_b32 s6, s{sW}, 1"); e("s_add_u32 s7, s7, s6"); e("s_lshl_b32 s7, s7, 2"); e(f"s_add_u32 s7, s7, s{sSP}"); e("s_lshl_b32 s7, s7, 14")
    e(f"s_add_u32 s{sXO}, s7, s{t}")
    e(f"s_movk_i32 s{sINC}, 16384")
    e(f"s_lshr_b32 s{sFQB}, s79, 1")
    e(f"s_lshl_b32 s6, s{sQB}, 2"); e(f"s_add_u32 s6, s6, s{sW}")
    e(f"s_lshl_b32 s{sSTAo}, s6, 9"); e(f"s_add_u32 s{sSTAo}, s{sSTAo}, {STAT_OFF}")
    e(f"s_mul_i32 s7, s6, {ACT_RB}"); e(f"s_add_u32 s7, s7, {ACT_OFF}"); e(f"s_add_u32 s{SACT}, s{SWS}, s7"); e(f"s_addc_u32 s{SACT+1}, s{SWS+1}, 0")
    e(f"s_mov_b32 s{SACT+2}, {ACT_RB}"); e(f"s_mov_b32 s{SACT+3}, 0x00020000")
    e(f"s_add_u32 s{sMW2}, s{sMX}, 131072")
    e(f"v_and_b32 v{TM+3}, 15, v{l}"); e(f"v_lshrrev_b32 v{TM+4}, 4, v{l}")
    L += kv_voff(TM+3, TM+4, TM+5)
    e(f"s_mov_b32 s{sKV}, 0"); e(f"s_mov_b32 s{sKV2}, 0"); e(f"s_movk_i32 s{sINC2}, 16384"); e(f"s_mov_b32 s{sMASK}, 0xffff0000"); e(f"s_mov_b32 s{sPASS}, 0")
    e(f"s_mul_i32 s6, s{sHEAD}, 3"); e(f"s_and_b32 s7, s{sHEAD}, 1")
    e(f"s_add_u32 s{sH0}, s6, s7"); e(f"s_lshr_b32 s{sH0}, s{sH0}, 1"); e(f"s_add_u32 s{sH0}, s{sH0}, 128"); e(f"s_lshl_b32 s{sH0}, s{sH0}, 12")
    e("s_add_u32 s6, s6, 2"); e("s_lshl_b32 s7, s7, 1"); e("s_sub_u32 s6, s6, s7")
    e(f"s_lshr_b32 s{sH0+1}, s6, 1"); e(f"s_add_u32 s{sH0+1}, s{sH0+1}, 128"); e(f"s_lshl_b32 s{sH0+1}, s{sH0+1}, 12")
    e("s_and_b32 s6, s6, 1"); e("s_lshl_b32 s6, s6, 3"); e(f"s_add_u32 s{sH0+1}, s{sH0+1}, s6")
    return L

def rd_x(buf):
    return [f"ds_read_b128 {v(XF+buf*32+(qt*2+ks)*4,4)}, v{aXR+ks} offset:{buf*32768+2048*qt}" for qt in range(4) for ks in range(2)]
def rd_w(m, lb):
    L = []
    for ks in range(2):
        for hh in range(2):
            d = a(WF+(m*2+ks)*4+2*hh, 2)
            if m < 8: L.append(f"ds_read_b64_tr_b16 {d}, v{aWQR+m} offset:{lb*32768+ks*8192+hh*1024}")
            else:
                z, t = divmod(m-8, 3)
                L.append(f"ds_read_b64_tr_b16 {d}, v{aGUR if t < 2 else aGUR2} offset:{lb*32768+z*8192+ks*4096+hh*384+32*(t&1)}")
    return L
def rd_e(lb):
    L = []
    for tl in range(4):
        for ks in range(2):
            for hh in range(2):
                d = a(EFr(tl, ks)+2*hh, 2)
                if tl < 2: L.append(f"ds_read_b64_tr_b16 {d}, v{aWQC+tl} offset:{lb*32768+ks*8192+hh*1024}")
                else: L.append(f"ds_read_b64_tr_b16 {d}, v{aGUC} offset:{lb*32768+(tl-2)*8192+ks*4096+hh*384}")
    return L
def acc_m(m, qt):
    return v(QACC+(m*4+qt)*4, 4) if m < 8 else a(gua(m-8, qt), 4)

def loop_addr_setup(t):
    L = []; e = L.append; l = vLANE
    e(f"v_and_b32 v{t}, 15, v{l}"); e(f"v_lshrrev_b32 v{t+1}, 4, v{l}"); e(f"v_lshrrev_b32 v{t+2}, 2, v{t}"); e(f"v_and_b32 v{t+3}, 3, v{l}")
    e(f"v_lshlrev_b32 v{t+4}, 8, v{t}")
    e(f"v_and_b32 v{t+6}, 1, v{t+1}"); e(f"v_lshrrev_b32 v{t+7}, 1, v{t+1}"); e(f"v_lshl_add_u32 v{t+6}, v{t+6}, 1, v{t+7}")
    e(f"v_xor_b32 v{t+6}, v{t+6}, v{t}")
    for s_ in range(4):
        e(f"v_xor_b32 v{t+5}, {4*s_}, v{t+6}"); e(f"v_lshl_add_u32 v{aKR+s_}, v{t+5}, 4, v{t+4}")
    e(f"v_lshl_add_u32 v{t+4}, v{t+1}, 2, v{t+2}")
    e(f"v_and_b32 v{t+5}, 7, v{t+4}")
    e(f"v_lshlrev_b32 v{t+4}, 8, v{t+4}"); e(f"v_lshl_add_u32 v{t+4}, v{t+3}, 3, v{t+4}"); e(f"v_add_u32 v{t+4}, 65536, v{t+4}")
    for dt in range(8):
        e(f"v_xor_b32 v{t+6}, {dt}, v{t+5}"); e(f"v_lshl_add_u32 v{aVR+dt}, v{t+6}, 5, v{t+4}")
    return L

def place_dma(G, dm, g, step):
    last = g
    for x in dm:
        if x.startswith('buffer'):
            while g % 2 != 1 or G.used(g) > 0: g += 1
            G.put(g, x); last = g + 1; g += step - 1
        else:
            gg = G.fit(last, x); last = gg
            if 'm0,' in x: g = max(g, gg + 1)
    return max(g, last + 1)

def bid_of(dst, head, qb, t):
    return [f"v_and_b32 v{t}, 3, v{head}", f"v_lshl_add_u32 v{t}, {qb}, 2, v{t}", f"v_lshrrev_b32 v{dst}, 2, v{head}", f"v_lshl_add_u32 v{dst}, v{t}, 3, v{dst}",
            f"v_lshlrev_b32 v{dst}, 7, v{dst}", f"v_add_u32 v{dst}, {FLAG_OFF}, v{dst}"]
def d0_addr(dst, t):
    return [f"v_cmp_gt_u32 vcc, 32, v{vLANE}", f"v_and_b32 v{vD0}, 7, v{vLANE}", f"v_mov_b32 v{t}, s{sHEAD}", f"v_and_b32 v{t+1}, {OPT['rot']-1}, v{vLANE}",
            f"v_lshl_add_u32 v{vD0}, s{sW}, 3, v{vD0}", f"v_mov_b32 v{dst}, s{sQB}",
            f"v_cndmask_b32 v{t}, v{t}, v{vD0}, vcc", f"v_cndmask_b32 v{t+1}, v{t+1}, v{dst}, vcc"] + bid_of(dst, t, f"v{t+1}", vD0)
def d1_addr(dst, t):
    return ([f"v_and_b32 v{t}, 31, v{vLANE}"] + bid_of(dst, t, f"s{sFQB}", t+1)
            + ["s_and_b32 s6, s2, 0xe7" if OPT['xl'] else "s_and_b32 s6, s2, 0xfc", f"v_and_b32 v{t}, {0x18 if OPT['xl'] else 3}, v{vLANE}", f"v_add_u32 v{t}, s6, v{t}", f"v_cmp_gt_u32 vcc, 32, v{vLANE}",
               f"v_lshlrev_b32 v{t}, 7, v{t}", f"v_add_u32 v{t}, {FLAG_OFF}, v{t}", f"v_cndmask_b32 v{dst}, v{t}, v{dst}, vcc"])
def f_load(dst, addr, k): return f"buffer_load_dword v{dst}, v{addr}, s[{SWS}:{SWS+3}], 0 offen offset:{4*k} sc1"
def f_cmp(x): return f"v_cmp_ne_u32 vcc, s{sNON}, v{x}"
SPIN = 0x20000
WAITMARK = "s_waitcnt vmcnt(63) ; WAIT "
def resolve_waits(pre, ph):
    out = []
    for x in ph:
        if x.startswith(WAITMARK):
            tags, _, extra = x[len(WAITMARK):].partition('|')
            n = vm_after(pre + out, tags.split())
            x = "s_waitcnt " + " ".join(([f"vmcnt({n})"] if n is not None else []) + ([extra] if extra else []))
        out.append(x)
    return out

vD0 = 114; aSTA = 117; aCL = 115; aD0 = SXA + 14
def cs_mfmas(): return [f"v_smfmac_f32_16x16x64_bf16 {a(CSA+tl*4,4)}, {v(ONES,4)}, {a(EFr(tl,0),8)}, v{vIDX}" for tl in range(4)]
W_, X_ = (lambda s: ('W', s)), (lambda s: ('x', s))
SCHED = {
    0: [[W_(2), X_(2)], [W_(3), X_(3)], [W_(4), X_(4)], [W_(5), X_(5)], [W_(6), X_(6)], [W_(7), X_(7)], []],
    1: [[W_(2), X_(2)], [W_(3), X_(3), X_(4)], [W_(4), W_(5), X_(5)], [W_(6), X_(6)], [W_(7), X_(7)], [], []],
    2: [[W_(2), X_(2)], [W_(3), X_(3), X_(4)], [W_(4), X_(5)], [W_(5), X_(6)], [W_(6), X_(7)], [W_(7)], []],
    4: [[W_(2)], [X_(2), W_(3), X_(3)], [W_(4), X_(4)], [W_(5), X_(5)], [W_(6), X_(6)], [W_(7), X_(7)], []],
    5: [[W_(2)], [X_(2), W_(3), X_(3)], [W_(4), X_(4)], [W_(5), X_(5), W_(6)], [X_(6), W_(7)], [X_(7)], []],
    6: [[W_(2)], [X_(2), W_(3), X_(3)], [W_(4), X_(4), X_(5)], [W_(5), W_(6), X_(6)], [W_(7), X_(7)], [], []],
    3: [[W_(2), X_(2)], [W_(3), X_(3), W_(4)], [X_(4), W_(5)], [X_(5), W_(6)], [X_(6), W_(7)], [X_(7)], []],
}[OPT['sched']]
def gemm_phase(st, carry, bg):
    xb = st & 1; first = (st == 0); nb = (st + 1) & 1
    wb = (st + 1) % 3; wo = wb if wb < 2 else 0
    mf = []
    def C(acc, ks): return "0" if (first and ks == 0) else acc
    GB = OPT['gub'] if first else 0
    if first and not GB: mf += cs_mfmas()
    pos = {}; doE = first and OPT['rot'] == 4; SIGP = 3 if OPT['fast0'] else (1 if OPT['rot'] == 8 else 2)
    CSM = 12 if first else 8
    for m in range(14):
        if m == CSM and doE and not OPT['fast0']: csp = len(mf); mf += cs_mfmas()
        if m == 2 and st == 1 and OPT['rot'] == 4 and OPT['fast0']: mf += cs_mfmas()
        if m == 8 and GB: mf += cs_mfmas()
        pos[m] = len(mf)
        for i_, qt in enumerate(range(3, -1, -1) if (OPT['gsn'] and m & 1) else range(4)):
            for j_, ks in enumerate((1, 0) if (OPT['gsn'] and i_ & 1) else (0, 1)):
                d = acc_m(m, qt); mf.append(f"{MF} {d}, {a(WF+(m*2+ks)*4,4)}, {v(XF+xb*32+(qt*2+ks)*4,4)}, {C(d,j_)}")
    N = len(mf)
    G = Gaps(N)
    for i, r in enumerate(carry): G.put(i // 2, r)
    BARG = OPT['barg0'] if first else 7
    xsame = st < 7 and ('x', st+1) in SCHED[st]
    xlate = first or xsame or (st < 7 and ('x', st+1) in SCHED[st-1])
    tags = {1: "non st", 5: "d0", 6: "cs"}.get(st, "") + f" W{st+1}" + ("" if xlate else f" X{st+1}") + (" pub" if st == SIGP else "")
    G.put(BARG, WAITMARK + tags + "|lgkmcnt(0)", force=True); G.put(BARG, "s_barrier", force=True)
    if first and not GB:
        G.put(3, "s_waitcnt lgkmcnt(8)"); G.put(11, "s_waitcnt lgkmcnt(0)")
    if GB:
        G.put(7, "s_waitcnt lgkmcnt(0)")
        G.put(GB, WAITMARK + "W0|", force=True); G.put(GB, "s_barrier", force=True)
        g = GB + 1
        for r in rd_e(0) + sum((rd_w(m, 0) for m in range(8, 14)), []):
            while g % 4 == 3 or G.used(g) > 1: g += 1
            G.put(g, r)
        assert g < BARG, g
    if st == 5:
        G.put(BARG+1, f_cmp(vD0)); G.put(BARG+2, "s_cbranch_vccnz K1_D0POLL"); G.put(BARG+2, "K1_D0OK:"); G.put(BARG+3, f"s_add_u32 s{sCNT}, s{sCSo}, 4096")
    if st == 1:
        G.put(BARG+1, f"v_cmp_eq_u32 vcc, 0, v{TM+1}"); G.put(BARG+2, "s_cbranch_vccnz K1_NPOLL"); G.put(BARG+2, "K1_NOK:")
        G.put(BARG+3, f"v_readfirstlane_b32 s{sNON}, v{TM+1}")
    if st < 7: G.put(N - 1, "s_waitcnt lgkmcnt(4)")
    adj = []
    if st < 7 and (wb == 2 or (wb == 0 and st > 0)):
        op = "v_add_u32" if wb == 2 else "v_subrev_u32"
        adj = [f"{op} v{r}, 0x10000, v{r}" for r in list(range(aWQR, aWQR+8)) + [aGUR, aGUR2]]
        G.stream((len(carry) + 1) // 2, adj, BARG)
    newcarry = []
    if st < 7:
        g = BARG + 1
        for m in range(14):
            rs = rd_w(m, wo)
            if m == 13: newcarry = rs; break
            for i, r in enumerate(rs):
                g = max(g, pos[m] + 8 + 2*i)
                while (g % 2 != 0 and not (first and OPT['fast0'] and g % 4 == 1)) or G.used(g) > 1: g += 1
                G.put(g, r)
    dm = []
    if first: dm += [f"buffer_load_dword v{TM+1}, off, s[{SDBG}:{SDBG+3}], 0 sc1 ; @non"]
    if st == SIGP: dm += [f"buffer_store_dword v{TM+1}, v{TM+2}, s[{SWS}:{SWS+3}], s{sW2S} offen sc1"]
    if st == 5: dm += [f"buffer_load_dwordx4 {v(TM+4*j,4)}, v{aCL}, s[{SWS}:{SWS+3}], s{sCSo if j == 0 else sCNT} offen sc1 ; @cs" for j in range(OPT['rot']//4)]
    if st == 5: dm += [f"buffer_load_dwordx2 {v(SXA+4*qt,2)}, v{aSTA}, s[{SWS}:{SWS+3}], s{sSTAo} offen offset:{128*qt} sc1 ; @cs" for qt in range(4)]
    if st <= 5: pass
    elif st == 6:
        if OPT['kvs'] == 0: place_dma(G, kv_dma(0, " ; @KV0") + kv_dma(1), BARG + 1, 6)
        else: place_dma(G, kv_dma(0, " ; @KV0"), BARG + 1, 12)
    elif OPT['kvs'] == 0: place_dma(G, kv_dma(2) + kv_dma(3), BARG + 1, 6)
    elif OPT['kvs'] == 1: place_dma(G, kv_dma(1), BARG + 1, 12)
    else: place_dma(G, kv_dma(1) + kv_dma(2), BARG + 1, 6)
    if adj: G.stream(BARG + 1, adj, BARG + 30); assert not adj
    if st <= 5:
        grp = SCHED[st]
        if first and OPT['fast0']: grp = ([W_(1)] if GB and OPT['w1late'] else []) + ([] if OPT['w1e'] == 1 else [X_(1)]) + [('s', 0)] + grp
        early = [x for x in grp if x != ('x', st+3)]
        span = (N - 4 if len(early) == len(grp) else OPT['xw'] + 8)
        step = max(2, (span // max(1, 8*len(early) + len(dm))) & ~1); step = min(step, OPT['wgap'])
        if first and OPT['fast0']: step = OPT['st0']
        if len(early) == 3 and not first: step = 4 if not dm else 2
        g = 2; misc = list(dm)
        for kind, s_ in early:
            if (kind == 'W' and s_ == st + 3) or (g > BARG and misc):
                g = max(g, BARG + 3)
                g = place_dma(G, misc, g, step); misc = []
            g = place_dma(G, dma_w(s_ % 3, s_) if kind == 'W' else st_loads() if kind == 's' else dma_x(s_ & 1, s_), g, step)
        if misc: g = place_dma(G, misc, max(g, BARG + 3), step)
        gdma = g
    if st < 7:
        g = (OPT['xg0'] if OPT['fast0'] else 50) if first else 64 if xsame else OPT['xg'] if xlate else BARG + 2
        if xlate: g = G.fit(g, WAITMARK + f"X{st+1}|") + 1
        for r in rd_x(nb):
            while G.used(g) > 1 or G.post[g]: g += 1
            G.put(g, r); g += 2
        xdone = g
        g = BARG + 2
        if doE and OPT['fast0']:
            for r in rd_e(wo):
                while g < N - 1 and (G.used(g) > 1 or G.post[g]): g += 1
                if g < N - 1: G.put(g, r)
                else: newcarry = [r] + newcarry
            doE = False
        if doE:
            for r in rd_e(wo):
                while G.used(g) > 1 or G.post[g]: g += 1
                G.put(g, r); g += 1
            assert g < csp - 8, (st, g, csp)
        if doE or ('x', st+3) in SCHED[st]:
            w = G.fit(max(OPT['xw'], xdone + 8, g + 6), "s_waitcnt lgkmcnt(2)"); assert not doE or w < csp
        if st <= 5 and ('x', st+3) in SCHED[st]: place_dma(G, dma_x(nb, st+3), max(w + 1, gdma), 4)
    PZ = 3 if OPT['fast0'] else 2
    if st in (PZ, PZ+1, PZ+2) and OPT['pois'] and not OPT['lpz']:
        assert not any(f"s{sPS+st-PZ}," in x for x in bg)
        ps = [f"buffer_store_dwordx4 {a(CSA,4)}, v{aL16}, s[{SWS}:{SWS+3}], s{sPS+st-PZ} offen offset:{1024*j} sc1" for j in range(4)]
        g = OPT['pois']
        for x in ps:
            while g % 2 != 1 or G.used(g) > 0: g += 1
            G.put(g, x); g += OPT['pstep']
    if st == (1 if OPT['fast0'] else SIGP - 1):
        t = SXA
        q = stats_stream() if OPT['fast0'] else []
        q += [f"s_lshl_b32 s6, s{sHEAD}, 3", f"s_add_u32 s6, s6, s{sQB}", "s_lshl_b32 s6, s6, 2", f"s_add_u32 s6, s6, s{sW}", "s_lshl_b32 s6, s6, 8", f"s_add_u32 s{sCSo}, s6, {CS_OFF}"]
        for tl in range(4): q += [f"v_accvgpr_read_b32 v{t+tl}, a{CSA+4*tl}", f"v_accvgpr_read_b32 v{t+4+tl}, a{CSA+4*tl+1}"]
        for tl in range(4): q += [f"v_add_f32 v{t+tl}, v{t+tl}, v{t+4+tl}"]
        q += [f"buffer_store_dwordx4 {v(t,4)}, v{TM}, s[{SWS}:{SWS+3}], s{sCSo} offen sc1 ; @pub"]
        if OPT['fast0']: bg[:0] = q + ['s_nop 0']
        else: g0 = G.stream(12 if first else BARG + 4, q); assert not q
    if st in (1, 2, 3): G.stream((g0 + 1 if SIGP == 2 else BARG + 4) if st == 1 else 0, bg)
    if OPT['kvpf'] and st == OPT['kvpf'] // 1000:
        assert not any(f"s{SV+3}," in x for x in bg)
        q = [f"v_and_b32 v{aXD}, 15, v{vLANE}", f"v_lshlrev_b32 v{aXD}, 7, v{aXD}", f"s_lshl_b32 s{sT1}, s{sQB}, 2", f"s_add_u32 s{sT1}, s{sT1}, s{sW}", f"s_lshl_b32 s{sT1}, s{sT1}, 11",
             f"buffer_load_dword a{CSA+4}, v{aXD}, s[{SK}:{SK+3}], s{sT1} offen", f"buffer_load_dword a{CSA+5}, v{aXD}, s[{SV}:{SV+3}], s{sT1} offen"]
        G.stream(OPT['kvpf'] % 1000, q); assert not q
    if st == SIGP: assert not any('@pub' in x for x in bg)
    if st == 4:
        G.stream(0, bg, OPT['d0g']); assert not bg, len(bg)
        q = d0_addr(aD0, TM+6) + [f_load(vD0, aD0, 0) + " ; @d0", f"v_and_b32 v{aSTA}, 15, v{vLANE}",
             f"v_lshrrev_b32 v{aCL}, 4, v{vLANE}", f"v_lshlrev_b32 v{aCL}, 10, v{aCL}", f"v_lshl_add_u32 v{aCL}, v{aSTA}, 4, v{aCL}", f"v_lshlrev_b32 v{aSTA}, 3, v{aSTA}",
             f"s_lshl_b32 s6, s{sHEAD}, 13", f"s_lshl_b32 s7, s{sW}, 8", "s_add_u32 s6, s6, s7", f"s_add_u32 s{sCSo}, s6, {CS_OFF}"]
        G.stream(OPT['d0g'], q); assert not q
    if st == 6:
        q = []
        for qt in range(4): q += [f"v_rsq_f32 v{SXA+4*qt+2}, v{SXA+4*qt+1}"]
        for qt in range(4):
            q += [f"v_mul_f32 v{SXA+4*qt+3}, v{SXA+4*qt+1}, v{SXA+4*qt+2}", f"v_mul_f32 v{SXA+4*qt+1}, {f2u(SCALE)}, v{SXA+4*qt+2}",
                  f"v_mul_f32 v{SXA+4*qt+2}, {f2u(-LOG2E)}, v{SXA+4*qt+2}"]
        if OPT['rot'] == 8: q += [f"v_add_f32 v{TM+i}, v{TM+i}, v{TM+4+i}" for i in range(4)]
        q += xlane_reduce("v_add_f32", [TM+i for i in range(4)], [TM+4+i for i in range(4)])
        q += [f"v_lshrrev_b32 v{aCL}, 1, v{aSTA}", f"v_add_u32 v{aCL}, s{sMW2}, v{aCL}"]
        for tl in range(4): q += [f"ds_write_b32 v{aCL}, v{TM+tl} offset:{64*tl}"]
        q += loop_addr_setup(TM)
        g = G.stream(BARG + 1, q)
        q += [f"v_lshrrev_b32 v{aCS}, 4, v{vLANE}", f"v_lshlrev_b32 v{aCS}, 4, v{aCS}", f"v_add_u32 v{aCS}, 131072, v{aCS}"]
        G.stream(max(g, xdone), q)
        for x in q: G.post[N-1].append(x)
        if q: print(f"; phase 6: {len(q)} left over", file=sys.stderr)
    if st == 7:
        g = BARG + 1
        for m in range(8):
            g = G.fit(g, f"ds_read_b128 {v(4*m,4)}, v{aCS} offset:{(m>>1)*8192+(m&1)*64}")
        g = G.fit(g + 6, "s_waitcnt lgkmcnt(0)") + 1
        left = []
        for m in range(8):
            q = [f"v_fmac_f32 v{QACC+(m*4+qt)*4+r}, v{4*m+r}, v{SXA+4*qt}" for qt in (range(3, -1, -1) if (OPT['gsn'] and m & 1) else range(4)) for r in range(4)]
            g = G.stream(max(g, 8*m + 12), q); left += q
        for x in left: G.post[N-1].append(x)
        if left: print(f"; phase 7: {len(left)} left over", file=sys.stderr)
    return weave(mf, G.out()), newcarry

LO = "op_sel_hi:[1,0,1]"; HI = "op_sel:[0,1,0] op_sel_hi:[1,1,1]"
LO2 = "op_sel_hi:[1,0]"; HI2 = "op_sel:[0,1] op_sel_hi:[1,1]"
def zero_o(i): return f"v_mfma_f32_32x32x16_bf16 {a(16*i,16)}, {v(LACC,4)}, {v(LACC,4)}, 0"
def max_mfmas():
    return [f"{MF} {v(SB+4*qt,4)}, {v(KF+s_*4,4)}, {v(QF+(qt*4+s_)*4,4)}, {'0' if s_ == 0 else v(SB+4*qt,4)}" for qt in range(4) for s_ in range(4)]
def k1_post_gemm():
    L = []; e = L.append
    CSG = 208
    vr = rd_v(0, 0)
    pz = [] if OPT['pois'] or OPT['lpz'] else [f"buffer_store_dwordx4 {a(CSA,4)}, v{aL16}, s[{SWS}:{SWS+3}], s{sPS+i} offen offset:{1024*j} sc1" for i in range(3) for j in range(4)]
    for sp in (2, 3, 0, 1):
        for qt in range(4):
            if pz and (qt & 1 or OPT['pzq'] == 2) and OPT['pzq']: e(pz.pop(0))
            P0 = v(SXA+4*qt, 2)
            for b in range(2):
                m = 2*sp+b; x = QACC + (m*4+qt)*4
                for h in (0, 2): e(f"v_pk_mul_f32 {v(x+h,2)}, {v(x+h,2)}, {P0} {HI2}")
                for h in range(2): e(f"v_cvt_pk_bf16_f32 v{QF+(qt*4+sp)*4+2*b+h}, v{x+2*h}, v{x+2*h+1}")
        if sp == 3:
            for m in range(6):
                z, t = divmod(m, 3)
                e(f"ds_read_b128 {v(CSG+4*m,4)}, v{aCS} offset:{t*8192+(2+z)*64}")
        elif sp == 0:
            e(WAITMARK + "KV0|lgkmcnt(0)"); e("s_barrier")
            for f in range(8): e(rd_k(f, 0))
            L += vr[:16]
        elif sp == 1:
            for f in range(8, 16): e(rd_k(f, 0))
            L += vr[16:]
        else: e("s_nop 1")
        for qt in range(4):
            f = QF+(qt*4+sp)*4
            e(f"v_permlane16_swap_b32 v{f}, v{f+2}"); e(f"v_permlane16_swap_b32 v{f+1}, v{f+3}")
    for i in range(16): e(f"v_mov_b32 v{LACC+i}, 0")
    e("s_waitcnt lgkmcnt(15)")
    if OPT['stamp'] == 2: L += stamp(TM)
    mx = max_mfmas(); zs = [7]; zdone = []
    kv = with_m0_nops({0: [], 1: kv_dma(2) + kv_dma(3), 2: kv_dma(3)}[OPT['kvs']])
    def kv_next():
        while kv:
            x = kv.pop(0); e(x)
            if x.startswith('buffer'): break
    n = 0
    for qt in range(4):
        for t in (2, 0, 1):
            G_ = TM + (n % 2)*8; U_ = G_ + 4; n += 1
            H_ = 232 + (4 if t == 2 else 2*t)
            P0 = v(SXA+4*qt, 2); P1 = v(SXA+4*qt+2, 2)
            if mx: e(mx.pop(0))
            elif zs: e(zero_o(zs.pop(0)))
            kv_next()
            if pz: e(pz.pop(0))
            if not pz and 6 not in zdone: zs.append(6); zdone.append(6)
            for r in range(4): e(f"v_accvgpr_read_b32 v{G_+r}, a{gua(t, qt)+r}")
            if mx: e(mx.pop(0))
            for r in range(4): e(f"v_accvgpr_read_b32 v{U_+r}, a{gua(3+t, qt)+r}")
            for h in (0, 2): e(f"v_pk_fma_f32 {v(G_+h,2)}, {v(CSG+4*t+h,2)}, {P0}, {v(G_+h,2)} {LO}")
            for h in (0, 2): e(f"v_pk_mul_f32 {v(G_+h,2)}, {v(G_+h,2)}, {P1} {LO2}")
            if mx: e(mx.pop(0))
            elif zs: e(zero_o(zs.pop(0)))
            if t == 0 and OPT['kvs'] == 1: kv_next()
            for r in range(4): e(f"v_exp_f32 v{G_+r}, v{G_+r}")
            for h in (0, 2): e(f"v_pk_fma_f32 {v(G_+h,2)}, {v(G_+h,2)}, {P1}, {P1} op_sel:[0,1,1] op_sel_hi:[1,1,1]")
            if mx: e(mx.pop(0))
            for r in range(4): e(f"v_rcp_f32 v{G_+r}, v{G_+r}")
            for h in (0, 2): e(f"v_pk_fma_f32 {v(U_+h,2)}, {v(CSG+12+4*t+h,2)}, {P0}, {v(U_+h,2)} {LO}")
            for h in (0, 2): e(f"v_pk_mul_f32 {v(U_+h,2)}, {v(U_+h,2)}, {v(G_+h,2)}")
            for h in range(2): e(f"v_cvt_pk_bf16_f32 v{H_+h}, v{U_+2*h}, v{U_+2*h+1}")
            if t == 2: e(f"buffer_store_dwordx2 {v(H_,2)}, v{aL16}, s[{SACT}:{SACT+3}], s{sH0+1} offen offset:{1024*qt} sc1")
            if t == 1: e(f"buffer_store_dwordx4 {v(H_-2,4)}, v{aL16}, s[{SACT}:{SACT+3}], s{sH0} offen offset:{1024*qt} sc1")
        zs += {0: [0], 1: [1, 2], 2: [3], 3: [4, 5]}[qt]
    if OPT['stamp'] == 2: L += stamp(TM)
    L += kv
    for z in zs: e(zero_o(z))
    for qt in range(4):
        b = SB+4*qt
        e(f"v_max3_f32 v{b}, v{b}, v{b+1}, v{b+2}"); e(f"v_max_f32 v{b}, v{b}, v{b+3}")
    L += xlane_reduce("v_max_f32", [SB+4*q for q in range(4)], [SB+4*q+1 for q in range(4)])
    for qt in range(4):
        for r in range(4): e(f"v_sub_f32 v{NEGM+4*qt+r}, 0, v{SB+4*qt}")
    return L
def pf_lanes():
    L = [f"v_lshlrev_b32 v90, 7, v{vLANE}", f"v_min_u32 v91, 256, v90", f"v_min_u32 v90, 384, v90"]
    if OPT['xl']:
        L = [f"v_and_b32 v90, 3, v{vLANE}", f"v_bfe_u32 v91, v{vLANE}, 2, 1", "v_lshlrev_b32 v90, 7, v90", "v_lshl_add_u32 v90, v91, 10, v90", "v_mov_b32 v91, v90"]
    if OPT['wpf'] == 2:
        L = [f"v_lshlrev_b32 v90, 7, v{vLANE}", "v_min_u32 v90, 896, v90", f"v_add_u32 v91, s{sPFo}, v90", f"v_add_u32 v90, s{sPFo+1}, v90", f"s_mov_b32 s{sRL}, 0", f"s_mov_b32 s{sRL+1}, 0"]
    if OPT['lpz']:
        L += [f"v_mov_b32 v{80+i}, -1" for i in range(4)]
        L += [f"s_lshl_b32 s6, s{sSP}, 14", f"s_add_u32 s6, s6, s{sP2}", f"v_add_u32 v84, s6, v{aL16}",
              f"s_add_u32 s{sPZ}, s{sSP}, 1", f"s_and_b32 s{sPZ}, s{sPZ}, 3", f"s_lshl_b32 s{sPZ}, s{sPZ}, 16", f"s_movk_i32 s{sPZD}, 2048"]
    return L

def ks_of(p):
    kt, s_ = divmod(p, 4)
    return kt, (3 - s_ if (kt & 1 and OPT['sq']) else s_)
def rd_k(f, slot):
    kt, s_ = ks_of(f)
    return f"ds_read_b128 {v(KF+4*f,4)}, v{aKR+s_} offset:{slot*16384+kt*4096}"
def rd_v(buf, slot):
    return [f"ds_read_b64_tr_b16 {a(VF+buf*64+(dt*2+kk)*4+2*hh,2)}, v{aVR+dt} offset:{slot*16384+kk*8192+hh*4096}"
            for dt in range(8) for kk in range(2) for hh in range(2)]
def qk_mfmas(qt, zero=False):
    L = []
    for p in range(16):
        kt, s_ = ks_of(p)
        d = v(SB+4*kt, 4)
        c = ("0" if zero else v(NEGM+4*qt, 4)) if p % 4 == 0 else d
        L.append(f"{MF} {d}, {v(KF+p*4,4)}, {v(QF+(qt*4+s_)*4,4)}, {c}")
    return L
def pv_mfmas(qt, vb, pb):
    L = []
    for dt in range(8):
        d = a(OACC+(dt*4+qt)*4, 4)
        for kk in range(2): L.append(f"{MF} {d}, {a(VF+vb*64+(dt*2+kk)*4,4)}, {v(PB+pb*8+kk*4,4)}, {d}")
    L.append(f"v_smfmac_f32_16x16x64_bf16 {v(LACC+4*qt,4)}, {v(ONES,4)}, {v(PB+pb*8,8)}, v{vIDX}")
    return L
EXP = lambda e_: f"v_exp_f32 v{SB+e_}, v{SB+e_}"
CVT = lambda c, pb: f"v_cvt_pk_bf16_f32 v{PB+pb*8+c}, v{SB+2*c}, v{SB+2*c+1}"

def attn_step(jm, u):
    pb = u & 1
    mf = qk_mfmas((u+1) % 4) + pv_mfmas(u, jm & 1, pb)
    G = Gaps(33)
    for k, e_ in enumerate((13, 14, 15)): G.put(2*k+1, EXP(e_))
    G.put(2, CVT(6, pb)); G.put(6, CVT(7, pb))
    for e_ in range(13): G.put(8+2*e_, EXP(e_))
    for c in range(6): G.put(11+4*c, CVT(c, pb ^ 1))
    ns = (jm+1) % 4
    vr = rd_v((jm+1) & 1, ns)
    dm = kv_dma(jm, loop=True)
    if u == 0:
        if OPT['bv'] == 0:
            G.put(4, f"s_waitcnt vmcnt({18 if OPT['wpf'] else 16}) lgkmcnt(0)", force=True); G.put(4, "s_barrier", force=True)
            G.put(7, dm[0])
            for g, x in zip((9, 17, 21, 29), dm[1:5]): G.put(g, x)
            for g, x in zip((6, 7, 11, 13, 15, 19, 23, 25, 27, 31), vr[0:10]): G.put(g, x)
        elif OPT['bv'] == 1:
            G.put(2, f"s_waitcnt vmcnt({18 if OPT['wpf'] else 16}) lgkmcnt(0)"); G.put(4, "s_barrier")
            G.put(7, dm[0])
            for g, x in zip((9, 17, 21, 29), dm[1:5]): G.put(g, x)
            for g, x in zip((6, 7, 11, 13, 15, 19, 23, 25, 27, 31), vr[0:10]): G.put(g, x)
        else:
            G.put(4, f"s_waitcnt vmcnt({18 if OPT['wpf'] else 16}) lgkmcnt(0)"); G.put(4, dm[0]); G.put(7, "s_barrier")
            for g, x in zip((9, 17, 21, 29), dm[1:5]): G.put(g, x)
            for g, x in zip((11, 13, 13, 15, 19, 23, 25, 25, 27, 31), vr[0:10]): G.put(g, x)
    elif u == 1:
        G.put(0, dm[5])
        for g, x in zip((4, 13, 21, 29), dm[6:10]): G.put(g, x)
        for g, x in zip((0, 2, 6, 7, 9, 11, 15, 17, 19, 23, 25, 27, 31), vr[10:23]): G.put(g, x)
    elif u == 2:
        G.put(0, dm[10]); G.put(0, dm[11])
        for f, g in enumerate((2, 4, 4, 6, 7, 9, 11, 13, 15, 17, 19, 21, 23, 25, 27, 29)): G.put(g, rd_k(f, ns))
        G.put(31, "s_waitcnt lgkmcnt(3)")
    else:
        G.put(7, "s_waitcnt lgkmcnt(4)")
        for g, x in zip((0, 2, 4, 6, 9, 11, 13, 15, 17), vr[23:32]): G.put(g, x)
        if jm == 3:
            G.put(25, f"s_add_u32 s{sCNT}, s{sCNT}, 1"); G.put(29, f"s_cmp_lt_u32 s{sCNT}, s{sT0}")
        if jm == 2: G.put(29, f"s_cmp_eq_u32 s{sCNT}, 7")
        if OPT['lpz'] and jm in (0, 2):
            G.put(25, f"buffer_store_dwordx4 v[80:83], v84, s[{SWS}:{SWS+3}], s{sPZ} offen offset:{512*jm} sc1")
        if OPT['lpz'] and jm == 3:
            G.put(19, f"s_add_u32 s{sPZ}, s{sPZ}, s{sPZD}"); G.put(25, f"s_and_b32 s{sPZ}, s{sPZ}, 0x3ffff"); G.put(27, f"s_sub_u32 s{sPZD}, 0x10000, s{sPZD}")
        if OPT['wpf']:
            sr, so, st_ = (P2X, sPFo, 384) if jm < 3 else (P2OUT, sPFo+1, 512)
            if OPT['xl']: st_ = 2048 if jm != 1 else 0
            if OPT['wpf'] == 2:
                so = sRL + (jm == 3)
                G.put(21, f"buffer_load_dword v{72+jm}, v{91 if jm < 3 else 90}, s[{sr}:{sr+3}], s{so} offen"); G.put(23, f"s_add_u32 s{so}, s{so}, 1024")
                G.put(17, f"s_and_b32 s{so}, s{so}, {8191 if jm < 3 else 4095}")
            else:
                G.put(21, f"buffer_load_dword v{72+jm}, v{91 if jm < 3 else 90}, s[{sr}:{sr+3}], s{so} offen"); G.put(23, f"s_add_u32 s{so}, s{so}, {st_}")
    if jm == 3 and u == 0: G.put(0, "s_cbranch_scc1 K1_LAST")
    return weave(mf, G.out())

def l_fin(qt): return [f"v_add_f32 v{LACC+4*qt}, v{LACC+4*qt}, v{LACC+4*qt+1}", f"v_rcp_f32 v{LACC+4*qt+2}, v{LACC+4*qt}"]
def o_stream(qt):
    L = []; e = L.append
    l = LACC + 4*qt
    for i in range(4):
        t = 88; p = 100 + 4*((qt*4+i) % 3)
        for b in range(2):
            for r in range(4): e(f"v_accvgpr_read_b32 v{t+4*b+r}, a{OACC+((2*i+b)*4+qt)*4+r}")
        if i == 0 and qt < 3: L += l_fin(qt)
        e(f"s_add_u32 s{sT1}, s{sT0}, {4096*i}")
        if OPT['opk']:
            for k in range(4): e(f"v_pk_mul_f32 {v(t+2*k,2)}, {v(t+2*k,2)}, {v(l+2,2)} {LO2}")
        else:
            for k in range(8): e(f"v_mul_f32 v{t+k}, v{t+k}, v{l+2}")
        for k in range(4): e(f"v_cvt_pk_bf16_f32 v{p+k}, v{t+2*k}, v{t+2*k+1}")
        e(f"buffer_store_dwordx4 {v(p,4)}, v{aL16}, s[{SACT}:{SACT+3}], s{sT1} offen offset:{1024*qt} sc1 ; @o")
    return L

def fill(gaps, q, g0, cap):
    for gi in range(g0, len(gaps)):
        u = units(gaps[gi])
        if q and Ins(q[0]).kind == 'vst': gaps[gi].insert(0, q.pop(0)); u += 2
        while q:
            k = Ins(q[0]).kind
            if u + UNITS[k] > cap or k == 'vst': break
            gaps[gi].append(q.pop(0)); u += UNITS[k]

def p2_reads0():
    X = []
    for kk in range(2):
        for i in range(4):
            for hh in range(2): X.append(f"ds_read_b64_tr_b16 {a(128+kk*32+4*i+2*hh,2)}, v{aW+i} offset:{kk*8192+2048*hh}")
            X.append(f"ds_read_b128 {a(128+kk*32+16+4*i,4)}, v{aA+4+i} offset:{kk*8192}")
    return X
def p2_mfmas0():
    return [f"{MF} {v(128+(ct*4+qt)*4,4)}, {a(128+kk*32+4*ct,4)}, {a(128+kk*32+16+4*qt,4)}, {'0' if kk == 0 else v(128+(ct*4+qt)*4,4)}"
            for qt in (1, 2, 3, 0) for ct in range(4) for kk in range(2)]
def attn_last():
    L = []
    r0 = p2_reads0() if OPT['pre0'] else []
    for u in range(4):
        pb = u & 1
        q = o_stream(u - 1) if u else []
        if u < 3:
            mf = qk_mfmas(u + 1) + pv_mfmas(u, 1, pb)
            G = Gaps(33)
            for k, e_ in enumerate((13, 14, 15)): G.put(2*k+1, EXP(e_))
            G.put(2, CVT(6, pb)); G.put(6, CVT(7, pb))
            for e_ in range(13): G.put(8+2*e_, EXP(e_))
            for c in range(6): G.put(11+4*c, CVT(c, pb ^ 1))
            if u == 0:
                dm = [x.replace(" nt", "") for x in kv_dma(3, " ; @a3")]
                G.put(4, "s_waitcnt vmcnt(16) lgkmcnt(0)", force=True); G.put(4, "s_barrier", force=True)
                G.put(6, dm[0])
                for g, x in zip((7, 9, 13, 17), dm[1:5]): G.put(g, x)
                G.put(19, dm[5])
                for g, x in zip((21, 25, 29), dm[6:9]): G.put(g, x)
                G.put(31, dm[9], force=True); G.put(11, f"s_lshl_b32 s{sT0}, s{sHEAD}, 14")
                tail = dm[10:] + [f"s_cmp_ge_u32 s{sW}, 2", f"s_cselect_b32 s6, 0x3000, s{sMKV}", f"s_cselect_b32 s{sPZ}, {OOB}, s{sKV}", f"s_cselect_b32 s{sPZD}, {OOB}, s{sKV2}",
                                  f"s_add_u32 m0, s6, {8*16384}"]
                x4 = [f"buffer_load_dwordx4 v{aKD+i}, s[{P2WT}:{P2WT+3}], s{sPZ} offen offset:{1024*i} lds" for i in range(4)] + [f"s_add_u32 m0, s{sMKV}, {9*16384}"]
                x4 += [f"buffer_load_dwordx4 v{aL16}, s[{P2ACT}:{P2ACT+3}], s{sPZD} offen offset:{1024*i} sc1 lds ; @a3" for i in range(4)]
            gaps = G.out()
            if u == 0: gaps[32] += tail
            if u == 1:
                for g_, x in zip((0, 1, 2, 3, 4, 5, 6, 7, 8), x4): gaps[g_].insert(0, x)
            if u in (1, 2):
                for g_ in range(9 if u == 1 else 1, 33, 2):
                    if r0 and (u == 2 or len(r0) > 12): gaps[g_].insert(0, r0.pop(0))
            fill(gaps, q, 0, OPT['lcap'])
            w = weave(mf, gaps)
            L += (w[1:] if u == 0 else w) + q
        else:
            mf = pv_mfmas(3, 1, pb)
            L += [EXP(13), EXP(14), EXP(15), CVT(6, pb), CVT(7, pb)]
            if OPT['pre0'] == 2:
                head = L[-5:]; del L[-5:]
                h0 = p2_mfmas0()
                mf = h0[:8] + mf + h0[8:]
                L += ["s_waitcnt lgkmcnt(0)"]
                gaps = [[] for _ in mf]
                for g_, x in zip((0, 1, 2, 3, 4), head): gaps[g_].append(x)
                fill(gaps, q, 3, 2)
            else:
                k = 2
                L += q[:k]; q = q[k:]
                gaps = [[] for _ in mf]
                fill(gaps, q, 0, OPT['lcap'])
            L += weave(mf, gaps) + q
    return L

def attn_entry():
    A = []; e = A.append
    e("s_waitcnt vmcnt(0)"); e("s_barrier")
    for f in range(16): e(rd_k(f, 0))
    A += rd_v(0, 0)
    for i in range(16): e(f"v_mov_b32 v{LACC+i}, 0")
    for i in range(8): e(zero_o(i))
    C_ = []; e = C_.append
    e("s_waitcnt lgkmcnt(0)")
    mf = qk_mfmas(0)
    G = Gaps(16)
    G.put(0, f"s_mov_b32 s{sCNT}, 0"); G.put(1, f"s_cmp_lg_u32 s{sPASS}, 0"); G.put(1, f"s_cselect_b32 s{sT0}, 7, 1")
    q = srd(P2X, 72, 73, 4096*1024) + srd(P2OUT, 80, 81, 1376*1024) + pf_lanes()
    G.stream(2, q, 8); C_[:0] = q[:0]; rest = list(q)
    for e_ in range(8): G.put(8 + e_, EXP(e_))
    C_ += weave(mf, G.out())
    for c in range(4): e(CVT(c, 0))
    for e_ in range(8, 13): e(EXP(e_))
    for c in range(4, 6): e(CVT(c, 0))
    C_ += rest
    return A, C_

def part_soff(e, dst, store):
    for i in range(1, 4):
        e(f"s_add_u32 s6, s{sSP}, {i}"); e("s_and_b32 s6, s6, 3")
        if store: e("s_lshl_b32 s6, s6, 2"); e(f"s_add_u32 s6, s6, s{sSP}")
        else: e(f"s_lshl_b32 s7, s{sSP}, 2"); e("s_add_u32 s6, s6, s7")
        e("s_lshl_b32 s6, s6, 14"); e(f"s_add_u32 s{dst+i-1}, s6, s{sP2}")

def block_b():
    L = []; e = L.append
    e(f"s_mov_b32 s{sT0}, {TC}")
    e(f"s_cmp_lg_u32 s{sW}, 0"); e("s_cbranch_scc1 K1_LOOP")
    e(f"v_mov_b32 v{vSP}, s{sNON}")
    e("s_mov_b64 exec, 1")
    e(f"buffer_store_dword v{vSP}, off, s[{SWS}:{SWS+3}], s{sW2S} offset:4 sc1")
    e("s_mov_b64 exec, -1")
    return L

def block_c():
    L = []
    if OPT['cpf2']:
        L += [f"s_getpc_b64 s[{SGU}:{SGU+1}]", "KPC2:", f"s_mov_b32 s{SGU+2}, K1_END-KPC2", f"s_mov_b32 s{SGU+3}, 0x00020000",
              "s_lshr_b32 s6, s2, 3", "s_lshl_b32 s6, s6, 2", f"s_add_u32 s6, s6, s{sW}", "s_lshl_b32 s6, s6, 7",
              f"v_lshlrev_b32 v{T2}, 14, v{vLANE}", f"buffer_load_dword v{T2+1}, v{T2}, s[{SGU}:{SGU+3}], s6 offen"]
    return L + d1_addr(vD1+1, T2+4) + [f_load(vD1, vD1+1, 1), f"s_mov_b32 s{sT0}, 7"]
def block_l():
    A = [f_cmp(vD1), f"s_mov_b32 s{sT1}, 0", "s_cbranch_vccz K1_D1OK"]
    D1 = [f_load(vD1, vD1+1, 1), f"s_add_u32 s{sT1}, s{sT1}, 1", "s_sleep 8", "s_waitcnt vmcnt(0)", f_cmp(vD1),
          f"s_cmp_gt_u32 s{sT1}, {SPIN}", "s_cbranch_scc1 K1_D1OK", "s_cbranch_vccnz K1_D1POLL"]
    B = []; e = B.append
    B += srd(P2ACT, sA2, sA2+1, 0); e(f"s_mov_b32 s{P2ACT+2}, s{sSZ2}")
    if OPT['orot']: e(f"s_lshr_b32 s{sAR}, s2, 6"); e(f"s_and_b32 s{sAR}, s{sAR}, {OPT['omask']}"); e(f"s_lshl_b32 s{sAR}, s{sAR}, {12 + OPT['orot']}")
    else: e(f"s_mov_b32 s{sAR}, 0")
    for i in range(3): e(f"s_mov_b32 s{P2WT+i}, s{SWD+i}")
    t = 85
    e(f"v_lshrrev_b32 v{t}, 3, v{vLANE}"); e(f"v_and_b32 v{t+1}, 7, v{vLANE}"); e(f"v_and_b32 v{t+2}, 6, v{t}"); e(f"v_xor_b32 v{t+1}, v{t+1}, v{t+2}")
    e(f"v_lshlrev_b32 v{t}, 10, v{t}"); e(f"v_lshl_add_u32 v{aKD}, v{t+1}, 4, v{t}")
    for i in range(1, 4): e(f"v_add_u32 v{aKD+i}, {7168*i}, v{aKD}")
    for r in (aVD, aVD+1): e(f"v_mov_b32 v{r}, v{aL16}")
    e(f"s_mul_i32 s{sKV}, s{sSP}, {11*32768}"); e(f"s_mov_b32 s{sINC}, 65536")
    e(f"s_mul_i32 s{sKV2}, s{sSP}, {11*4096}"); e(f"s_add_u32 s{sKV2}, s{sKV2}, {128*4096}"); e(f"s_movk_i32 s{sINC2}, 8192")
    e(f"s_lshr_b32 s6, s{sW}, 1"); e("s_lshl_b32 s6, s6, 12"); e("s_add_u32 s6, s6, 65536"); e(f"s_lshl_b32 s7, s{sSP}, 10"); e(f"v_add_u32 v{t}, s6, v{aL16}")
    for i in range(4):
        e(f"v_add_u32 v{aA+4+i}, s7, v{t}")
        if i < 3: e("s_add_u32 s7, s7, 1024"); e("s_and_b32 s7, s7, 0xc00")
    e(f"s_and_b32 s6, s{sW}, 1"); e("s_lshl_b32 s6, s6, 12")
    e(f"v_lshrrev_b32 v{t}, 2, v{vLANE}"); e(f"v_and_b32 v{t+1}, 3, v{vLANE}"); e(f"v_bfe_u32 v{t+2}, v{vLANE}, 3, 2")
    e(f"v_lshlrev_b32 v{t}, 7, v{t}"); e(f"v_lshl_add_u32 v{t}, v{t+1}, 3, v{t}"); e(f"v_add_u32 v{t}, s6, v{t}")
    for ct in range(4):
        e(f"v_xor_b32 v{t+1}, {ct}, v{t+2}"); e(f"v_lshl_add_u32 v{aW+ct}, v{t+1}, 5, v{t}")
    e(f"s_mov_b32 s{sT0}, 8")
    return A, D1, B

def attn_check():
    L = []; e = L.append
    if OPT['pre0'] != 2: e("s_nop 11")
    t = 88
    L += l_fin(3)
    e(f"v_mov_b32 v{t}, {f2u(2.0**OPT['thr'])}")
    e(f"v_cmp_nle_f32 vcc, v{LACC}, v{t}"); e(f"v_cmp_nle_f32 s[6:7], v{LACC+4}, v{t}")
    e(f"v_cmp_nle_f32 s[44:45], v{LACC+8}, v{t}"); e(f"v_cmp_nle_f32 s[46:47], v{LACC+12}, v{t}")
    e("s_nop 1")
    e("s_or_b64 s[6:7], s[6:7], vcc"); e("s_or_b64 s[44:45], s[44:45], s[46:47]"); e("s_or_b64 s[6:7], s[6:7], s[44:45]")
    e("s_cselect_b32 s6, 1, 0")
    e(f"v_mov_b32 v{t}, s6"); e(f"s_lshl_b32 s7, s{sW}, 2"); e(f"s_add_u32 s7, s7, {CHK_LDS}"); e(f"v_mov_b32 v{t+1}, s7"); e(f"v_mov_b32 v{t+2}, {CHK_LDS}")
    e(f"ds_write_b32 v{t+1}, v{t}"); e(WAITMARK + "a3|lgkmcnt(0)"); e("s_barrier")
    e(f"ds_read_b128 {v(t+4,4)}, v{t+2}"); e("s_waitcnt lgkmcnt(0)")
    e(f"v_or_b32 v{t+4}, v{t+4}, v{t+5}"); e(f"v_or3_b32 v{t+4}, v{t+4}, v{t+6}, v{t+7}"); e("s_nop 0")
    e(f"v_readfirstlane_b32 s6, v{t+4}"); e("s_nop 1")
    if OPT['twice']: e("s_mov_b32 s6, 1")
    e(f"s_cmp_gt_u32 s6, s{sPASS}"); e("s_cbranch_scc1 K1_SLOW")
    return L

def attn_slow():
    P = []; e = P.append
    MX = T2
    for qt in range(4): e(f"v_mov_b32 v{MX+qt}, 0xff800000")
    e(f"s_mov_b32 s{sKV}, 0"); e("s_waitcnt vmcnt(0)")
    P += srd(SK, sKVB, sKVB+1, 524288) + srd(SV, sKVB+2, sKVB+3, 524288)
    e(f"s_movk_i32 s{sINC}, 16384"); e(f"s_movk_i32 s{sINC2}, 16384"); e(f"s_mov_b32 s{sKV2}, 0")
    e(f"v_and_b32 v{T2+8}, 15, v{vLANE}"); e(f"v_lshrrev_b32 v{T2+9}, 4, v{vLANE}")
    P += kv_voff(T2+8, T2+9, T2+10) + loop_addr_setup(T2+8)
    B = []; e = B.append
    e("s_barrier")
    e(f"s_mov_b32 m0, s{sMKV}"); e("s_nop 0")
    for i in range(4): e(f"buffer_load_dwordx4 v{aKD+i}, s[{SK}:{SK+3}], s{sKV} offen offset:{1024*i} lds")
    e("s_waitcnt vmcnt(0)"); e("s_barrier")
    for f in range(16): e(rd_k(f, 0))
    e("s_waitcnt lgkmcnt(0)")
    for qt in range(4):
        B += qk_mfmas(qt, zero=True)
        e("s_nop 7")
        for i in range(8): e(f"v_max3_f32 v{MX+qt}, v{MX+qt}, v{SB+2*i}, v{SB+2*i+1}")
        e("s_nop 3")
    e(f"s_add_u32 s{sKV}, s{sKV}, 16384"); e(f"s_cmp_lt_u32 s{sKV}, 524288")
    Q = []; e = Q.append
    Q += xlane_reduce("v_max_f32", [MX+q for q in range(4)], [MX+4+q for q in range(4)])
    for qt in range(4):
        for r in range(4): e(f"v_sub_f32 v{NEGM+4*qt+r}, 0, v{MX+qt}")
    e(f"s_mov_b32 s{sPASS}, 1"); e(f"s_mov_b32 s{sKV}, 0"); e("s_barrier")
    for s_ in range(4): Q += with_m0_nops(kv_dma(s_))
    if OPT['twice']:
        B = ["s_cmp_lg_u32 s2, s2"]; Q = Q[Q.index(f"s_mov_b32 s{sPASS}, 1"):]
    return P, B, Q

def k1():
    pre = k1_setup()
    pre += k1_setup2(pre)
    if OPT['gulate']: pre += with_m0_nops(dma_w(0, 0)[5:])
    if OPT['stamp']:
        pre += ["v_mov_b32 v8, s98", "v_mov_b32 v9, s100", "s_nop 1", f"buffer_store_dwordx2 v[8:9], off, s[{SST}:{SST+3}], s{sSTo}", "s_nop 1"]
        stamp_n[0] = 1
    if not OPT['fast0']:
        pre += with_m0_nops(dma_w(1, 1))
        if OPT['stpos'] == 1: pre += st_loads()
    if OPT['w1e']: pre += with_m0_nops(dma_w(1, 1)[:5 if OPT['w1e'] == 2 else 99])
    pre += stamp(8)
    pre += [f"s_waitcnt vmcnt({vm_after(pre, ['X0'] if OPT['gub'] else ['W0', 'X0'])})", "s_barrier"]
    pre += stamp(8)
    rw = rd_e(0) + rd_x(0) + sum((rd_w(m, 0) for m in range(14)), [])
    dx = dma_x(1, 1) if not OPT['fast0'] else dma_w(1, 1)
    n_ = 3 if not OPT['fast0'] else 5
    if OPT['gub']:
        rw = rd_x(0) + sum((rd_w(m, 0) for m in range(8)), []); n_ = 3
        if OPT['w1late']: dx = []
        if OPT['w1e'] == 1: dx = dma_x(1, 1)
        if OPT['w1e'] == 2: dx = dma_w(1, 1)[5:]; n_ = 4
    for i, x in enumerate(dx): pre += rw[n_*i:n_*i+n_] + [x]
    pre += rw[n_*len(dx):]
    if not OPT['fast0']: pre += k1_stats(pre)
    pre += ["s_waitcnt lgkmcnt(15)"]
    carry = []; bg = k1_setup3()
    for st in range(8):
        ph, carry = gemm_phase(st, carry, bg)
        ph = resolve_waits(pre, ph)
        n, over, bad = gap_report(ph)
        if over > 1 or bad: print(f"; gemm phase {st}: gaps {n} over {over} bad {bad}", file=sys.stderr)
        pre += ph
        if OPT['stamp'] == 2 and st < 7: pre += stamp(TM+6 if st == 0 or st == 1 else SXA+6 if st < 6 else TM)
    pre += stamp(TM)
    pre += resolve_waits(pre, k1_post_gemm())
    pre += stamp(T2+24)
    eA, eC = attn_entry()
    eC += stamp(T2+24)
    d0 = [f"s_mov_b32 s{sCNT}, 0", "K1_D0LOOP:", f_load(vD0, aD0, 0), f"s_add_u32 s{sCNT}, s{sCNT}, 1", "s_sleep 4", "s_waitcnt vmcnt(0)", f_cmp(vD0),
          f"s_cmp_gt_u32 s{sCNT}, {SPIN}", "s_cbranch_scc1 K1_D0OK", "s_cbranch_vccnz K1_D0LOOP", "s_branch K1_D0OK",
          "K1_NPOLL:", f"s_mov_b32 s{sCNT}, 0", "K1_NLOOP:", f"buffer_load_dword v{TM+1}, off, s[{SDBG}:{SDBG+3}], 0 sc1", f"s_add_u32 s{sCNT}, s{sCNT}, 1",
          "s_sleep 4", "s_waitcnt vmcnt(0)", f"v_cmp_eq_u32 vcc, 0, v{TM+1}", f"s_cmp_gt_u32 s{sCNT}, {SPIN}", "s_cbranch_scc1 K1_NOK", "s_cbranch_vccnz K1_NLOOP", "s_branch K1_NOK"]
    body = []
    for jm in range(4):
        for u in range(4): body += attn_step(jm, u)
    n, over, bad = gap_report(body)
    print(f"; attn loop: gaps {n} over {over} bad {bad}", file=sys.stderr)
    bB, bC = block_b(), block_c()
    last = attn_last()
    chk = stamp(T2+24+6, True) + attn_check()
    chk = resolve_waits(last, chk)
    sP, sB_, sQ = attn_slow()
    post = stamp(98)
    p2t, p2t2, p2c = phase2(o_stream(3), last + chk + post)
    lA, lD, lB = block_l()
    if OPT['stamp'] == 4:
        body += ["s_cselect_b32 s93, 1, 0", "s_memtime s[94:95]", "s_memrealtime s[96:97]", "s_waitcnt lgkmcnt(0)", "v_mov_b32 v88, s94", "v_mov_b32 v89, s96",
                 f"s_lshl_b32 s6, s{sCNT}, 3", f"s_add_u32 s6, s6, s{sSTo}", f"buffer_store_dwordx2 v[88:89], off, s[{SST}:{SST+3}], s6 offset:160", "s_cmp_lg_u32 s93, 0"]
    m0_ = body[0]; body = body[1:] + [m0_]; eC = eC + [m0_]
    cut = body.index("s_cbranch_scc1 K1_LAST") + 1
    br = ["s_cbranch_scc1 K1_LOOP"]
    mid = [f"s_cmp_eq_u32 s{sCNT}, 7", "s_cbranch_scc1 K1_BLKL", f"s_cmp_eq_u32 s{sCNT}, {TC}", "s_cbranch_scc1 K1_BLKC"]
    J = ["s_branch K1_LOOP"]
    errs = check(pre + eC + body + br + mid + bB + J + body + br + mid + bC + J + body + br + mid[:2] + lA + lD + lB + J + body[:cut] + last + chk + post + p2t, 'k1')
    errs += check(body[:cut] + last + chk + sP + sB_ + ["s_cbranch_scc1 X"] + sB_ + ["s_cbranch_scc1 X"] + sQ + ["s_branch X"] + eA + eC + body + br + mid[:2] + lA + lB + J + body[:cut] + last + chk + post + p2t2, 'k1slow')
    assert not errs
    return (pre + ["K1_HAVEMAX:"] + eC + [".p2align 6"] + ["s_nop 0"]*OPT["lal"] + ["K1_LOOP:"] + body + br + mid + bB + J
            + ["K1_BLKC:"] + bC + J + ["K1_BLKL:"] + lA + ["K1_D1POLL:"] + lD + ["K1_D1OK:"] + lB + J
            + ["K1_SLOW:"] + sP + ["K1_SLOWLOOP:"] + sB_ + ["s_cbranch_scc1 K1_SLOWLOOP"] + sQ + eA + ["s_branch K1_HAVEMAX"] + ["K1_D0POLL:"] + d0
            + ["K1_LAST:"] + last + chk + post + p2c + ["K1_END:", "s_endpgm"])

def phase2(epi, before):
    NH = 6; NST = 22
    FR = 128
    SA = 0; DA = 128
    T = 88; STV = 98
    PKD = 192; RXD = 216; PKS = 192; RXS = 216
    sAo, sWo = sX0, sX1
    SIGI, POLLI = OPT['sigi'], OPT['polli']
    nk = lambda st: 1 if st == 4 else 2
    slot = {}
    for st in range(4): slot[('w', st)] = st; slot[('a', st)] = 4 + st
    slot[('w', 4)] = 8; slot[('a', 4)] = 9
    free = []
    nxt = {'w': 5, 'a': 5}
    def dma(kind):
        st = nxt[kind]; nxt[kind] += 1
        sl = free.pop(0); slot[(kind, st)] = sl
        X = [f"s_add_u32 m0, s{sMKV}, {sl*16384}"]
        if kind == 'a':
            for i in range(4): X.append(f"buffer_load_dwordx4 v{aL16}, s[{P2ACT}:{P2ACT+3}], s{sAo} offen offset:{1024*i} sc1 lds ; @{kind}{st}")
            if st == NH - 1: X += [f"s_mov_b32 s{sAo}, s{sAR}", f"s_lshl_b32 s{sKV2}, s{sSP}, 17", f"s_add_u32 s{P2ACT}, s{P2ACT}, s{sKV2}", f"s_addc_u32 s{P2ACT+1}, s{P2ACT+1}, 0"]
            else: X += [f"s_xor_b32 s{sAo}, s{sAR}, {(st + 1 - NH)*8192}"]
        else:
            sr = SWD if st < NH else SWO
            for i in range(4): X.append(f"buffer_load_dwordx4 v{aKD+i}, s[{sr}:{sr+3}], s{sWo} offen offset:{1024*i} lds ; @{kind}{st}")
            if st == NH - 1: X += [f"s_lshl_b32 s{sWo}, s{sAR}, 3", f"s_lshl_b32 s{sKV}, s{sAR}, 3"]
            else: X += [f"s_xor_b32 s{sWo}, s{sKV}, {(st + 1 - NH)*65536}"]
        return X
    done = list(before)
    S = ["s_mov_b64 exec, 1", f"buffer_store_dword v{T}, off, s[{SWS}:{SWS+3}], s{sW2S} offset:8 sc1", "s_mov_b64 exec, -1"]
    FLD = f_load(vFL, aFL, 2)
    P = [FLD, f"s_add_u32 s{sCNT}, s{sCNT}, 1", "s_waitcnt vmcnt(0)",
         f_cmp(vFL), f"s_cmp_gt_u32 s{sCNT}, {SPIN}", "s_cbranch_scc1 P2_GO", "s_cbranch_vccnz P2_POLL"]
    q = list(epi); e = q.append
    q2 = []; e = q2.append
    for i in range(4):
        e(f"v_add_u32 v{aA+8+i}, 65536, v{aA+4+i}"); e(f"v_add_u32 v{aW+8+i}, 131072, v{aW+i}")
    for i in range(4):
        e(f"v_subrev_u32 v{aA+i}, 65536, v{aA+4+i}"); e(f"v_add_u32 v{aW+4+i}, 65536, v{aW+i}")
    e(f"v_and_b32 v{T+1}, 7, v{vLANE}"); e(f"v_lshl_add_u32 v{T+1}, s{sSP}, 3, v{T+1}")
    q2 += bid_of(aFL, T+1, f"s{sFQB}", T+2)
    if OPT['lpz']:
        q2 += ["s_and_b32 s6, s2, 0xe7" if OPT['xl'] else "s_and_b32 s6, s2, 0xfc", f"v_and_b32 v{T+1}, {0x18 if OPT['xl'] else 3}, v{vLANE}", f"v_add_u32 v{T+1}, s6, v{T+1}", f"v_lshlrev_b32 v{T+1}, 7, v{T+1}", f"v_add_u32 v{aPF}, {FLAG_OFF}, v{T+1}"]
    q2 += srd(P2X, sXP, sXP+1, 2048*1024) + srd(P2OUT, sOUT, sOUT+1, 2048*1024)
    e(f"v_and_b32 v{T+1}, 15, v{vLANE}"); e(f"v_lshrrev_b32 v{T+2}, 4, v{vLANE}"); e(f"v_lshlrev_b32 v{T+1}, 10, v{T+1}"); e(f"v_lshl_add_u32 v{aXO}, v{T+2}, 3, v{T+1}")
    part_soff(e, 49, False)
    aLP = 113
    e(f"v_mov_b32 v{aLP}, s49"); e(f"v_writelane_b32 v{aLP}, s50, 1"); e(f"v_writelane_b32 v{aLP}, s51, 2")
    e(f"v_mov_b32 v{T}, s{sNON}")
    L = []; e = L.append
    e(f"s_add_u32 s{sAo}, s{sKV2}, 4096"); e(f"s_add_u32 s{sWo}, s{sKV}, 32768")
    OL = OPT['ownlast']
    fbase = lambda st: (st & 1)*64 + (0 if OL > 2 and st in (NST-4, NST-3) else FR)
    def reads(st):
        X = []
        for kk in range(nk(st)):
            b = fbase(st) + kk*32
            hw, lw = divmod(slot[('w', st)]*16384 + kk*8192, 65536)
            ha, la = divmod(slot[('a', st)]*16384 + kk*8192, 65536)
            for i in range(4):
                if not (NH <= st < NH + OPT['nrs']):
                    for hh in range(2): X.append(f"ds_read_b64_tr_b16 {a(b+4*i+2*hh,2)}, v{aW+4*hw+i} offset:{lw+2048*hh}")
                X.append(f"ds_read_b128 {a(b+16+4*i,4)}, v{aA+4*ha+i} offset:{la}")
        return X
    def mfmas(st, qts=(1, 2, 3, 0)):
        X = []
        b = fbase(st); acc = DA if st < NH else SA
        for qt in qts:
            for ct in range(4):
                d = v(acc+(ct*4+qt)*4, 4)
                for j_, kk in enumerate(range(nk(st)) if not (OPT['gsn'] and ct & 1) else range(nk(st)-1, -1, -1)):
                    wf = (st-NH)*32 + kk*16 + 4*ct if NH <= st < NH + OPT['nrs'] else b+kk*32+4*ct
                    X.append(f"{MF} {d}, {a(wf,4)}, {a(b+kk*32+16+4*qt,4)}, {'0' if (st in (0, NH) and j_ == 0) else d}")
        return X
    def pack(acc, pk, i):
        X = []
        for ct in range(4):
            x = acc + (ct*4+i)*4; d = pk + (i-1)*8 + 2*ct
            X += [f"v_cvt_pk_bf16_f32 v{d}, v{x}, v{x+1}", f"v_cvt_pk_bf16_f32 v{d+1}, v{x+2}, v{x+3}"]
        return X
    def pst(pk, i, half): return [f"buffer_store_dwordx4 {v(pk+(i-1)*8+4*j,4)}, v{aL16}, s[{P2PART}:{P2PART+3}], s{sPS+i-1} offen offset:{2048*half+1024*j}" + ("" if OPT['xl'] == 2 else " sc1") for j in range(2)]
    rD = lambda i, k: RXD + i*8 + k
    rS = lambda i, k: SA + ((k >> 2)*4 + i + 1)*4 + (k & 3)
    def pld(rx, half): return [f"buffer_load_dwordx4 {v(rx(i, 4*j),4)}, v{aL16}, s[{P2PART}:{P2PART+3}], s{49+i} offen offset:{2048*half+1024*j} sc1" for i in range(3) for j in range(2)]
    def pchk(rx):
        R = [rx(i, k) for i in range(3) for k in range(8)]
        X = [f"v_max3_u32 v{T}, v{R[0]}, v{R[1]}, v{R[2]}", f"v_max3_u32 v{T+1}, v{R[3]}, v{R[4]}, v{R[5]}"]
        for k in range(6, 24, 2): X.append(f"v_max3_u32 v{T+(k//2)%2}, v{T+(k//2)%2}, v{R[k]}, v{R[k+1]}")
        return X + [f"v_max_u32 v{T}, v{T}, v{T+1}", f"v_cmp_eq_u32 vcc, -1, v{T}"]
    segs = []
    NRS = OPT['nrs']
    staged = list(range(NH, NH + NRS)); half = (NRS + 1) // 2
    def stage_reads(st):
        X = []
        for kk in range(2):
            hw, lw = divmod(slot[('w', st)]*16384 + kk*8192, 65536)
            for i in range(4):
                for hh in range(2): X.append(f"ds_read_b64_tr_b16 {a((st-NH)*32+kk*16+4*i+2*hh,2)}, v{aW+4*hw+i} offset:{lw+2048*hh}")
        return X
    def body(mf, rd, dm, last=False, ships=(1, 2)):
        nonlocal q
        n = len(mf); gaps = [[] for _ in mf]
        ev = list(range(0, n - 6, 2)); od = list(range(1, n, 2))
        if OPT['lay'] == 1 and n == 32 and len(rd) <= 24: ev = list(range(0, 12)); od = list(range(12, 32, 2))
        if OPT['lay'] == 2 and n == 32 and len(rd) <= 24: ev = [g_ for g_ in range(0, 26) if g_ % 4 != 3]; od = list(range(1, n, 2))
        per = -(-len(rd) // len(ev)) if rd else 0
        per = max(per, 2)
        if OPT['lay'] == 2 and n == 32 and len(rd) <= 24:
            for k, x in enumerate(rd): gaps[ev[(k * len(ev)) // len(rd)]].append(x)
        else:
            for k, x in enumerate(rd): gaps[ev[k // per]].append(x)
        nv = sum(x.startswith('buffer') for x in dm)
        if OPT['spread'] and 0 < nv <= len(od) - 1:
            ps = [1 + (k * (len(od) - 1)) // nv for k in range(nv)]
            k = 0; pend = []
            for x in dm:
                if x.startswith('buffer'):
                    p = ps[k]; k += 1
                    if pend:
                        if p - 1 not in ps: gaps[od[p-1]] += pend
                        else: gaps[od[p] - 1] += pend
                        pend = []
                    gaps[od[p]].append(x)
                else: pend.append(x)
            gaps[min(od[ps[-1]] + 1, n - 1)] += pend
        else:
            ng = sum('m0,' in x for x in dm)
            roomy = nv + ng <= len(od)
            pv = 1 if roomy else -(-nv // len(od))
            gi = 0; cnt = 0
            for x in dm:
                if x.startswith('buffer'):
                    gaps[od[gi]].append(x); cnt += 1
                    if cnt == pv: gi = min(gi + 1, len(od) - 1); cnt = 0
                else:
                    gaps[od[gi]].append(x)
                    if 'm0,' in x:
                        if roomy: gi += 1
                        else: gaps[od[gi]].append("s_nop 0")
        if last:
            for i in ships:
                for k, x in enumerate(pack(last[0], last[1], i)): gaps[8*i + 4 + k//2].append(x)
                if last[2] is not None:
                    for k, x in enumerate(pst(last[1], i, last[2])): gaps[8*i + 8 + k].insert(0, x)
        if q: fill(gaps, q, 0, OPT['ecap'])
        elif q2: fill(gaps, q2, 0, 2)
        return weave(mf, gaps)
    def sync(tags):
        n = vm_after(done + L, tags)
        return ["s_waitcnt " + (f"vmcnt({n}) " if n is not None else "") + "lgkmcnt(0)", "s_barrier"]
    if not OPT['pre0']:
        L += reads(0)
        while Ins(q[0]).kind != 'vst': L.append(q.pop(0))
    for st in range(1, NH + 1):
        if st == min(SIGI, 4): L += q + q2; q = []; del q2[:]
        sr = staged[:half] if st == NH - 1 else staged[half:] if st == NH else []
        if not (st == 1 and OPT['pre0']): L += sync(([f"a{st}", f"w{st}"] if st < NH else []) + (['o'] if st == SIGI else []) + [f"w{s_}" for s_ in sr] + (['f'] if st == NH and OPT['ea'] else []))
        free += [slot[('w', st-1)], slot[('a', st-1)]]
        if st == NH: free += [slot[('w', s_)] for s_ in staged[:half]]
        if st == SIGI:
            L += [f"s_cmp_lg_u32 s{sW}, 0", "s_cbranch_scc1 P2_NOSIG"]
            segs.append(L); done += L; L = stamp(STV); e = L.append
        rd = (reads(st) if st < NH else []) + sum((stage_reads(s_) for s_ in sr), [])
        dm = []
        if st == 1 and OPT['pre0'] == 2:
            d5 = dma('w') + dma('a')
            L += rd
            while q:
                x = q.pop(0); L.append(x)
                if Ins(x).kind == 'vst': L += with_m0_nops(d5[:3]); d5 = d5[3:]
            L += with_m0_nops(d5)
            continue
        if st == 1:
            if OPT['pre0']: dm = dma('w') + dma('a')
            else: L += with_m0_nops(dma('w') + dma('a'))
        elif st >= OPT['dstart']:
            while len(free) > 0 and nxt['w'] < NH + OPT['wpre'] and sum('m0,' in x for x in dm) < OPT['dmax']: dm += dma('w')
        EA = OPT['ea']
        if st == NH - (1 if EA else 0): dm = [FLD + " ; @f"] + dm
        if st == NH and EA:
            L += [f_cmp(vFL), f"s_mov_b32 s{sT0}, s{sAo}", "s_cmp_eq_u64 vcc, 0", f"s_cselect_b32 s{P2ACT+2}, s{sSZ2}, 0"]
            ea = []
            for _ in range(OPT['a0']): ea += dma('a')
            dm = [x.split(' ; @')[0] for x in ea] + dm
        if st == NH and OPT['xearly']: dm += [f"buffer_load_dwordx2 {v(XR+2*ct,2)}, v{aXO}, s[{P2X}:{P2X+3}], s{sXO} offen offset:{32*ct}" for ct in range(4)]
        assert not (q and sr)
        L += body(mfmas(st - 1), rd, dm, last=(DA, PKD, None) if st == NH else False)
    L += pack(DA, PKD, 3)
    dst = pst(PKD, 1, 1) + pst(PKD, 2, 1) + pst(PKD, 3, 1)
    if not EA:
        L += sync(['f'])
        free += [slot[('w', s_)] for s_ in staged[half:]]
        L += [f_cmp(vFL), f"s_mov_b32 s{sCNT}, 0", f"v_mov_b32 v{T+1}, v{aL16}", "s_cbranch_vccz P2_GO"]
        segs.append(L); done += L
        segs.append(dst + [f"v_mov_b32 v{T+1}, {OOB}"])
        R = []
        L = stamp(STV); e = L.append
        for _ in range(OPT['a0']): L += with_m0_nops(dma('a'))
    else:
        if OPT['dst0'] == 0: L += dst; dst = []
        L += [f"s_mov_b32 s{sCNT}, 0", f"v_mov_b32 v{T+1}, v{aL16}", f"s_cmp_lg_u32 s{P2ACT+2}, 0", "s_cbranch_scc1 P2_RUN"]
        segs.append(L); done += L
        segs.append(dst + [f"v_mov_b32 v{T+1}, {OOB}", f"s_mov_b32 s{P2ACT+2}, s{sSZ2}", f"s_mov_b32 s{sAo}, s{sT0}"])
        R = with_m0_nops(ea)
        done += [x for x in R if x.startswith('buffer')]
        L = stamp(STV); e = L.append
    dst = [x.replace(f"v{aL16},", f"v{T+1},") for x in dst]
    eatail = 0
    for st in range(NH, NST + 1):
        dm = []; rd = []
        if st < NST:
            if OPT['ea'] and st == NH: L += ["s_waitcnt vmcnt(%d) lgkmcnt(0)" % min(4*(OPT['a0']-1), eatail + 4*(OPT['a0']-1)), "s_barrier"]; free += [slot[('w', s_)] for s_ in staged[half:]]
            else: L += sync([f"a{st}", f"w{st}"] + (['pf'] if st == NST - 2 else []))
            if st > NH:
                free += [slot[('a', st-1)]] + ([slot[('w', st-1)]] if st-1 not in staged else [])
            rd = reads(st)
            def more():
                if st == NH: return sum('m0,' in x for x in dm) < OPT['a1']
                if min(nxt['a'], nxt['w']) <= st + OPT['la']: return True
                return sum('m0,' in x for x in dm) < OPT['gmax'] and (nxt['a'] + nxt['w'] - base) * 100 < OPT['pace'] * (st - NH)
            if st == NH + 1: base = nxt['a'] + nxt['w']
            while free and (nxt['a'] < NST or nxt['w'] < NST) and more():
                k = 'a' if (nxt['a'] <= nxt['w'] + OPT['alead'] or nxt['w'] >= NST) and nxt['a'] < NST else 'w'
                dm += dma(k)
            if st >= OPT['dst0'] and dst: dm += dst[:2]; dst = dst[2:]
            if st == NST - 3 and not OPT['xearly']: dm += [f"buffer_load_dwordx2 {v(XR+2*ct,2)}, v{aXO}, s[{P2X}:{P2X+3}], s{sXO} offen offset:{32*ct}" for ct in range(4)]
            if OPT['lpz'] and st == NST - 5: dm += [f_load(vPF, aPF, 2) + " ; @pf"]
            if OPT['lpz'] and st == NST - 2:
                L += [f_cmp(vPF), f"s_mov_b32 s{sCNT}, 0", "s_cbranch_vccnz P2_PFPOLL", "P2_PFOK:"]
            if st == NST - 2: dm += pld(rD, 1)
        else:
            L += ["s_waitcnt lgkmcnt(0)"]
        if (OPT['stamp'] == 5 and st % 2 == 0) or (OPT['stamp'] == 6 and st in (10, 14, 17, 19, 21)): L += stamp(STV)
        if st == NH: L += rd + with_m0_nops(dm)
        elif OL and st == NST:
            mf = mfmas(st - 1, (1, 2, 3)) + sum((mfmas(s_, (0,)) for s_ in range(NST - OL, NST)), [])
            L += body(mf, rd, dm, last=(SA, PKS, 0), ships=(1, 2, 3))
        elif OL and st > NST - OL: L += body(mfmas(st - 1, (1, 2, 3)), rd, dm)
        else: L += body(mfmas(st - 1), rd, dm, last=(SA, PKS, 0) if st == NST else False)
    L += stamp(STV)
    if not OL: L += pack(SA, PKS, 3) + pst(PKS, 3, 0)
    if OPT['searly'] == 1: L += pld(rS, 0)
    e(f"s_mov_b32 s{sCNT}, 0"); e(f"s_waitcnt vmcnt({12 if OPT['searly'] == 1 else 6})")
    L += pchk(rD); e("s_cbranch_vccz P2_DOK")
    XD = pld(rD, 1) + [f"s_add_u32 s{sCNT}, s{sCNT}, 1", "s_waitcnt vmcnt(0)"] + pchk(rD) + [f"s_cmp_gt_u32 s{sCNT}, {SPIN}", "s_cbranch_scc1 P2_DOK", "s_cbranch_vccnz P2_DPOLL"]
    M = []; e = M.append
    def accum(acc, rx, ct):
        for i in range(3):
            for h in range(2):
                p = rx(i, 2*ct + h)
                e(f"v_lshlrev_b32 v{T+2*h}, 16, v{p}"); e(f"v_and_b32 v{T+2*h+1}, s{sMASK}, v{p}")
            for h in range(2): e(f"v_pk_add_f32 {v(acc+ct*16+2*h,2)}, {v(acc+ct*16+2*h,2)}, {v(T+2*h,2)}")
    for ct in range(4): accum(DA, rD, ct)
    light = OPT['searly'] == 2
    LP = [f"buffer_load_dword v{T+4+i}, off, s[{P2PART}:{P2PART+3}], s{49+i} offset:2044 sc1" for i in range(3)]
    LC = [f"v_max3_u32 v{T+4}, v{T+4}, v{T+5}, v{T+6}", f"v_cmp_eq_u32 vcc, -1, v{T+4}"]
    if not OPT['searly']: M += pld(rS, 0)
    multi = OPT['searly'] == 3
    LP1 = lambda k: f"buffer_load_dword v{240+k}, v{aLP}, s[{P2PART}:{P2PART+3}], 0 offen offset:2044 sc1"
    for ct in range(4):
        if multi: e(LP1(ct))
        D_ = DA + ct*16; T_ = D_ + 4; X_ = D_ + 8
        for r in range(4): e(f"v_mul_f32 v{T_+r}, {f2u(-LOG2E)}, v{D_+r}")
        for r in range(4): e(f"v_exp_f32 v{T_+r}, v{T_+r}")
        e(f"v_lshlrev_b32 v{X_}, 16, v{XR+2*ct}"); e(f"v_and_b32 v{X_+1}, s{sMASK}, v{XR+2*ct}")
        for r in range(4): e(f"v_add_f32 v{T_+r}, 1.0, v{T_+r}")
        for r in range(4): e(f"v_rcp_f32 v{T_+r}, v{T_+r}")
        e(f"v_lshlrev_b32 v{X_+2}, 16, v{XR+1+2*ct}"); e(f"v_and_b32 v{X_+3}, s{sMASK}, v{XR+1+2*ct}")
        for h in (0, 2): e(f"v_pk_mul_f32 {v(T_+h,2)}, {v(T_+h,2)}, {v(D_+h,2)}")
    e(f"s_mov_b32 s{sCNT}, 0")
    if light:
        M += ["P2_LPOLL:"] + LP + [f"s_add_u32 s{sCNT}, s{sCNT}, 1"] + ([f"s_sleep {OPT['slp']}"] if OPT['slp'] else []) + ["s_waitcnt vmcnt(0)"] + LC
        M += [f"s_cmp_gt_u32 s{sCNT}, {SPIN}", "s_cbranch_scc1 P2_SPOLL", "s_cbranch_vccnz P2_LPOLL"]
    elif multi:
        M += ["P2_LPOLL:"]
        for k in range(4):
            M += ["s_waitcnt vmcnt(3)", f"v_cmp_eq_u32 vcc, -1, v{240+k}", "s_cbranch_vccz P2_SPOLL", LP1(k)]
        M += [f"s_add_u32 s{sCNT}, s{sCNT}, 1", f"s_cmp_gt_u32 s{sCNT}, {SPIN}", "s_cbranch_scc0 P2_LPOLL"]
    else:
        e("s_waitcnt vmcnt(0)")
        M += pchk(rS); e("s_cbranch_vccz P2_FIN")
    XS = pld(rS, 0) + [f"s_add_u32 s{sCNT}, s{sCNT}, 1", "s_waitcnt vmcnt(0)"] + pchk(rS) + [f"s_cmp_gt_u32 s{sCNT}, {SPIN}", "s_cbranch_scc1 P2_FIN", "s_cbranch_vccnz P2_SPOLL"]
    F = []; e = F.append
    F += stamp(STV)
    for ct in range(4):
        accum(SA, rS, ct)
        S_ = SA + ct*16; T_ = DA + ct*16 + 4; X_ = T_ + 4
        for h in (0, 2): e(f"v_pk_fma_f32 {v(X_+h,2)}, {v(S_+h,2)}, {v(T_+h,2)}, {v(X_+h,2)}")
        e(f"v_cvt_pk_bf16_f32 v{S_}, v{X_}, v{X_+1}"); e(f"v_cvt_pk_bf16_f32 v{S_+1}, v{X_+2}, v{X_+3}")
        e(f"buffer_store_dwordx2 {v(S_,2)}, v{aXO}, s[{P2OUT}:{P2OUT+3}], s{sXO} offen offset:{32*ct}" + ["", " sc1", " nt", " sc0 sc1"][OPT['outm']])
    if OPT['stamp']: F += ["s_waitcnt vmcnt(0)"] + stamp(STV, True)
    if OPT['echo']:
        F += ["s_waitcnt vmcnt(0)"] + stamp(STV) + ["s_memrealtime s[94:95]", "s_waitcnt lgkmcnt(0)", "s_sub_u32 s97, s97, s96", "s_mov_b32 s96, s94",
              "ECHO_LOOP:", "s_memrealtime s[94:95]", "s_waitcnt lgkmcnt(0)", "s_sub_u32 s94, s94, s96", "s_cmp_lt_u32 s94, s97", "s_cbranch_scc1 ECHO_LOOP"]
        print("; echo markers:", echo_n[0], file=sys.stderr)
    assert len(segs) == 3
    trace = segs[0] + segs[1] + L + M + (XS if light or multi else []) + F
    trace2 = segs[0] + S + segs[1] + segs[2] + P + P + R + L + XD + M + XS + F
    code = (segs[0] + S + ["P2_NOSIG:"] + segs[1] + segs[2] + ["P2_POLL:"] + P + ["P2_GO:"] + R + ["P2_RUN:"] + L
            + ["P2_DPOLL:"] + XD + ["P2_DOK:"] + M + ["P2_SPOLL:"] + XS + ["P2_FIN:"] + F + ["s_endpgm", "P2_PFPOLL:", f_load(vPF, aPF, 2), f"s_add_u32 s{sCNT}, s{sCNT}, 1", "s_waitcnt vmcnt(0)",
               f_cmp(vPF), f"s_cmp_gt_u32 s{sCNT}, {SPIN}", "s_cbranch_scc1 P2_PFOK", "s_cbranch_vccnz P2_PFPOLL", "s_branch P2_PFOK"])
    return trace, trace2, code

def kd(name, nv, acc, ns=102):
    return f""".amdhsa_kernel {name}
  .amdhsa_next_free_vgpr {nv}
  .amdhsa_next_free_sgpr {ns}
  .amdhsa_accum_offset {acc}
  .amdhsa_group_segment_fixed_size 0
  .amdhsa_kernarg_size 96
  .amdhsa_user_sgpr_count 2
  .amdhsa_user_sgpr_kernarg_segment_ptr 1
  .amdhsa_system_sgpr_workgroup_id_x 1
.end_amdhsa_kernel
"""
def fmt(L): return "\n".join(x if (x.endswith(':') or x.startswith('.')) else "    " + x for x in L)

NAME = "recurrent_scan__gqa_block_cached__glu_gated_glu__prompt_kernel"
HEAD = f"""; One persistent launch (256 workgroups, one per CU): LayerNorm + Q-projection + GLU-up, attention, out/down projection + gating.
; Kernarg layout (96 bytes): 0 A_x, 8 A_k_cache, 16 A_v_cache, 24 A_wq, 32 A_wo, 40 B_x, 48 B_w_gate, 56 B_w_up,
; @launch grid=(256,1,1) block=(256,1,1) lds=163840
.amdgcn_target "amdgcn-amd-amdhsa--gfx950"
.text
"""
def kern(name, L):
    return f".globl {name}\n.p2align 8\n.type {name},@function\n{name}:\n" + fmt(L) + "\n"
src = HEAD + kern(NAME, k1())
src += '.section .rodata,"a"\n.p2align 6\n' + kd(NAME, 512, 256)
open(sys.argv[1], "w").write(src)
```

```python
import sys, os, struct
sys.path.insert(0, os.path.dirname(os.path.abspath(__file__)))
from asmlib import *

OPT = dict(stamp=0, wgap=4, thr=40, cpf=1, rot=8, stpos=0, barg0=47, pois=45, sched=4, sq=1, opk=1, lcap=4, xw=60, xg=30, kvs=0, d0g=70, pstep=12, ecap=40, sigi=3, polli=6, dstart=2, searly=3, a0=4, a1=1, gmax=2, dst0=9, pace=175, aoff=0, poff=24, base=120, twice=0, wpf=1, spread=1, ea=1, xearly=0, fast0=1, xg0=56, pzq=1, lpz=1, outm=0, pre0=1, gub=15, w1late=0, gulate=1, st0=4, ownlast=4, guz=1, gsn=1, wnt=0, cpf2=0, w1e=0, bv=2, xrot=0, orot=0, omask=3, lay=2, xl=0, xlo=0, lal=0, tc=5, kvnt=0, xnt=0, kvpf=0, echo=0, la=3, slp=0, dmax=2, fearly=1, dlate=5, kvsc=1, wpre=8, nrs=4, alead=0)
for arg in sys.argv[2:]:
    k_, v_ = arg.split('='); OPT[k_] = int(v_)

MF = "v_mfma_f32_16x16x32_bf16"
TB, TC = 1, OPT['tc']
NKS = 171
ACT_RB = NKS * 4096
WT_OFF = 24 << 20
FLAG_OFF = 31 << 20
PART_OFF = 32 << 20
STAMP_OFF = 64 << 20
STAT_OFF = 30 << 20
CS_OFF = STAT_OFF + 65536
OOB = '0x40000000'
BASE = OPT['base'] << 20
ACT_OFF = BASE + (OPT['aoff'] << 10)
PART_OFF = BASE + (OPT['poff'] << 20)
STAT_OFF = BASE + (22 << 20); CS_OFF = STAT_OFF + 65536; FLAG_OFF = BASE + (23 << 20)
LOG2E = 1.4426950408889634
SCALE = LOG2E / (128 ** 0.5)
def f2u(x): return "0x%08x" % struct.unpack('<I', struct.pack('<f', x))[0]

sW, sHEAD, sQB = 3, 4, 5
SK, SV, SX, SWQ, SGU, SACT, SWO, SWD, SWT = 8, 12, 16, 20, 24, 28, 32, 36, 40
sX0, sX1, sWQo, sGUo, sKV = 44, 45, 46, 47, 48
sMX, sMWQ, sMGU, sMKV, sMW2 = 49, 50, 51, 52, 53
sCNT, sMASK, sT0, sT1, sT2, sPASS = 54, 55, 56, 57, 58, 59
sH0 = 60
sW2S = 63
SWS = 88
SDBG = 84
SST = SWS; sSTo = 92
sXP, sA2, sOUT = 64, 66, 82
sPS = 40
sAR = 53
sRL = 44
sPZ, sPZD = 46, 47
sNON = 62
sKV2 = 43; sINC2 = 58; sPFo = 68
sP2, sCSo, sSTAo = 70, 71, 93
sSP, sSZ2, sXO, sINC, sFQB = 74, 75, 76, 77, 78
P2ACT, P2WT, P2X, P2OUT = 12, 8, 16, 20
P2PART = SFLAG = SWS
sKVB = 98
CHK_LDS = 8*16384 + 8192
def srd(d, lo, hi, size):
    return [f"s_mov_b32 s{d}, s{lo}", f"s_mov_b32 s{d+1}, s{hi}", f"s_mov_b32 s{d+2}, {size}", f"s_mov_b32 s{d+3}, 0x00020000"]

stamp_n = [0]
echo_n = [0]
def stamp(tmpv, force=False):
    if OPT['echo']:
        echo_n[0] += 1
        return ["s_memrealtime s[94:95]", "s_waitcnt lgkmcnt(0)", "s_mov_b32 s97, s94"] if echo_n[0] == OPT['echo'] else []
    if not OPT['stamp'] or (OPT['stamp'] == 9 and not force): return []
    n = stamp_n[0]; stamp_n[0] += 1
    return ["s_memtime s[94:95]", "s_memrealtime s[96:97]", "s_waitcnt lgkmcnt(0)",
            f"v_mov_b32 v{tmpv}, s94", f"v_mov_b32 v{tmpv+1}, s96", "s_nop 1",
            f"buffer_store_dwordx2 v[{tmpv}:{tmpv+1}], off, s[{SST}:{SST+3}], s{sSTo} offset:{n*8}", "s_nop 1"]

def units(xs): return sum(UNITS[Ins(x).kind] for x in xs)
class Gaps:
    def __init__(self, n, cap=2):
        self.pre = [[] for _ in range(n)]
        self.post = [[] for _ in range(n)]
        self.cap = cap; self.n = n
    def used(self, g): return units(self.pre[g] + self.post[g])
    def put(self, g, text, force=False):
        k = Ins(text).kind
        assert force or self.used(g) + UNITS[k] <= self.cap, (g, text, self.pre[g], self.post[g])
        (self.post if k in ('valu', 'trans') else self.pre)[g].append(text)
    def fit(self, g0, text, g1=None):
        k = UNITS[Ins(text).kind]
        for g in range(g0, self.n if g1 is None else g1):
            if self.used(g) + k <= self.cap:
                self.put(g, text); return g
        return None
    def stream(self, g, q, g1=None):
        g1 = self.n if g1 is None else g1
        while q:
            k = 1
            while k < len(q) and q[k].split()[0] in ('s_addc_u32', 's_cselect_b32', 's_cselect_b64'): k += 1
            grp = q[:k]; u = units(grp)
            mem = Ins(grp[0]).kind in ('dsr', 'dsw', 'vld', 'vst', 'dma')
            while g < g1 and not ((self.used(g) + u <= self.cap or (u > self.cap and self.used(g) == 0))
                                  and not (mem and any(Ins(x).kind in ('valu', 'trans') for x in self.post[g]))): g += 1
            if g >= g1: return g
            self.post[g] += grp; del q[:k]
        return g
    def out(self): return [p + q for p, q in zip(self.pre, self.post)]

def vm_after(trace, tags):
    ops = [x for x in trace if Ins(x).kind in ('dma', 'vld', 'vst')]
    idx = [i for i, x in enumerate(ops) if any(x.endswith('@' + t) for t in tags)]
    return None if not idx else len(ops) - 1 - max(idx)

XF = 0
SXA = 64
TM = 80; aWQR = 88; ONES = 96
aXD = 100; aWQD = 104; aGUD = 108; aXR = 112; aWQC = 114; aGUR = 116; aGUC = 117
aL16 = 118; aCS = 112; aKD = 120; aVD = 124; vLANE = 126; aGUR2 = 127; vSP = 127
vD1 = 114; vIDX = 119
QACC = 128
GUA = 0; CSA = 96; WF = 128
def EFr(tl, ks): return (112 if tl < 2 else 224) + (tl*2+ks)*4
def gua(zt, qt): return GUA + (qt*6+zt)*4
QF = 0; KF = 128; SB = 192; PB = 208; NEGM = 224; LACC = 240
aKR = 100; aVR = 104; aW2R = 112; T2 = 64
OACC = 0; VF = 128
aPF = 114; vPF = 115
aA = 64; aW = 76; aXO = 112; XR = 100; aFL = 116; vFL = 117

def k1_setup():
    L = []; e = L.append
    e("s_cmp_ge_u32 s2, 256"); e("s_cbranch_scc1 K1_END")
    if OPT['stamp']: e("s_memtime s[98:99]"); e("s_memrealtime s[100:101]")
    if OPT['echo']: e("s_memrealtime s[96:97]")
    e("s_load_dwordx16 s[64:79], s[0:1], 0"); e("s_load_dwordx8 s[80:87], s[0:1], 64")
    l = vLANE
    e("v_lshrrev_b32 v1, 6, v0"); e(f"v_and_b32 v{l}, 63, v0"); e(f"v_readfirstlane_b32 s{sW}, v1")
    e("s_and_b32 s6, s2, 7"); e("s_lshr_b32 s7, s2, 3")
    e(f"s_lshl_b32 s{sHEAD}, s6, 2"); e(f"s_and_b32 s{sT0}, s7, 3"); e(f"s_add_u32 s{sHEAD}, s{sHEAD}, s{sT0}")
    e(f"s_lshr_b32 s{sQB}, s7, 2")
    if OPT['cpf']:
        e(f"s_getpc_b64 s[{SWO}:{SWO+1}]"); e("KPC:"); e(f"s_mov_b32 s{SWO+2}, K1_END-KPC"); e(f"s_mov_b32 s{SWO+3}, 0x00020000")
        e(f"s_lshl_b32 s{sT0}, s7, 2"); e(f"s_add_u32 s{sT0}, s{sT0}, s{sW}"); e(f"s_lshl_b32 s{sT0}, s{sT0}, 7")
        e(f"v_lshlrev_b32 v12, 14, v{l}")
        e(f"buffer_load_dword v16, v12, s[{SWO}:{SWO+3}], s{sT0} offen")
    e(f"v_and_b32 v1, 15, v{l}"); e(f"v_lshrrev_b32 v2, 4, v{l}"); e("v_lshrrev_b32 v3, 2, v1"); e(f"v_and_b32 v4, 3, v{l}")
    e(f"v_lshrrev_b32 v5, 3, v{l}"); e(f"v_and_b32 v6, 7, v{l}"); e(f"v_lshlrev_b32 v{aL16}, 4, v{l}")
    e("v_lshlrev_b32 v7, 1, v2"); e("v_xor_b32 v7, v7, v1")
    e(f"s_lshl_b32 s6, s{sW}, 4"); e("v_add_u32 v8, s6, v2"); e("v_lshlrev_b32 v9, 13, v8")
    for i in range(4):
        e(f"v_xor_b32 v10, {8*(i>>1)}, v7"); e("v_lshl_add_u32 v10, v10, 4, v9"); e(f"v_add_u32 v{aWQD+i}, {31744*i}, v10")
    e("v_lshrrev_b32 v7, 1, v5"); e("v_xor_b32 v7, v7, v6"); e("v_lshlrev_b32 v8, 10, v5")
    for i in range(4):
        e(f"v_xor_b32 v9, {4*(i&1)}, v7"); e("v_lshl_add_u32 v9, v9, 4, v8"); e(f"v_add_u32 v{aXD+i}, {7168*i}, v9")
    e(f"s_lshl_b32 s{sMX}, s{sW}, 13"); e(f"s_lshl_b32 s{sMKV}, s{sW}, 12"); e(f"s_add_u32 s{sMWQ}, s{sMKV}, 65536")
    e(f"s_add_u32 s{sMGU}, s{sMKV}, 81920")
    R = OPT['rot']
    e(f"s_and_b32 s6, s{sQB}, {R-1}"); e(f"s_mul_i32 s6, s6, {8//R}")
    if OPT['xrot']: e(f"s_lshl_b32 s7, s{sHEAD}, 1"); e("s_add_u32 s6, s6, s7"); e("s_and_b32 s6, s6, 7")
    e(f"s_lshl_b32 s{sX0}, s6, 7"); e(f"s_add_u32 s{sX1}, s{sX0}, 32768"); e(f"s_lshl_b32 s{sWQo}, s6, 19"); e(f"s_mul_i32 s{sGUo}, s6, {64*2752}")
    e(f"s_lshl_b32 s{sT1}, s{sQB}, 5"); e(f"s_add_u32 s{sT1}, s{sT1}, s{sHEAD}"); e(f"s_lshl_b32 s{sT1}, s{sT1}, 2"); e(f"s_add_u32 s{sT1}, s{sT1}, s{sW}")
    e(f"s_lshl_b32 s{sT2}, s{sT1}, 11")
    e("s_waitcnt lgkmcnt(0)")
    e(f"s_lshl_b32 s6, s{sHEAD}, 8"); e(f"s_add_u32 s{SWQ}, s70, s6"); e(f"s_addc_u32 s{SWQ+1}, s71, 0")
    e(f"s_sub_u32 s{SWQ+2}, {512*8192}, s6"); e(f"s_mov_b32 s{SWQ+3}, 0x00020000")
    L += with_m0_nops(dma_w(0, 0)[:5])
    e(f"s_lshl_b32 s6, s{sQB}, 2"); e(f"s_add_u32 s6, s6, s{sW}"); e("s_lshl_b32 s7, s6, 16")
    e(f"s_add_u32 s{SX}, s64, s7"); e(f"s_addc_u32 s{SX+1}, s65, 0"); e(f"s_mov_b32 s{SX+2}, 65536"); e(f"s_mov_b32 s{SX+3}, 0x00020000")
    L += with_m0_nops(dma_x(0, 0))
    e(f"s_and_b32 s6, s{sW}, 1"); e(f"s_mul_i32 s6, s6, {32*2752}"); e("s_movk_i32 s7, 2752")
    for par in range(2):
        e(f"v_subrev_u32 v9, {8*par}, v{l}"); e("v_cmp_gt_u32 vcc, 48, v9")
        e("v_mul_u32_u24 v10, 171, v9"); e("v_lshrrev_b32 v10, 10, v10")
        e("v_mul_u32_u24 v11, 6, v10"); e("v_sub_u32 v11, v9, v11"); e("v_lshlrev_b32 v11, 4, v11")
        e("v_mad_u32_u24 v11, v10, s7, v11"); e("v_add_u32 v11, s6, v11"); e(f"v_mov_b32 v10, {OOB}")
        e("v_cndmask_b32 v11, v10, v11, vcc")
        for i in (par, par+2): e(f"v_add_u32 v{aGUD+i}, {(8*2752-1024)*i}, v11")
    e(f"s_cmp_ge_u32 s{sW}, 2"); e("s_cselect_b32 s76, s78, s76"); e("s_cselect_b32 s77, s79, s77")
    e(f"s_mul_i32 s6, s{sHEAD}, 96"); e(f"s_add_u32 s{SGU}, s76, s6"); e(f"s_addc_u32 s{SGU+1}, s77, 0")
    e(f"s_sub_u32 s{SGU+2}, {512*2752}, s6"); e(f"s_mov_b32 s{SGU+3}, 0x00020000")
    if OPT['guz']: e(f"s_cmp_ge_u32 s{sHEAD}, 29"); e(f"s_cselect_b32 s{SGU+2}, 0, s{SGU+2}")
    if not OPT['gulate']: L += with_m0_nops(dma_w(0, 0)[5:])
    L += srd(SWD, 64, 65, 2048*1024)
    if OPT['stpos'] == 0 and not OPT['fast0']: L += st_loads()
    return L
def st_loads():
    b = 64 if OPT['fast0'] else 40
    return [f"buffer_load_dwordx4 {v(b,4)}, v{aL16}, s[{SWD}:{SWD+3}], s{sT2} offen", f"buffer_load_dwordx4 {v(b+4,4)}, v{aL16}, s[{SWD}:{SWD+3}], s{sT2} offen offset:1024 ; @st"]
def stats_stream():
    L = []; e = L.append
    for rw in range(2):
        s_, q_ = 72+2*rw, 73+2*rw
        for k in range(4):
            x = 64+4*rw+k; t = 76 + 2*(k & 1)
            e(f"v_lshlrev_b32 v{t}, 16, v{x}"); e(f"v_and_b32 v{t+1}, 0xffff0000, v{x}")
            if k == 0: e(f"v_add_f32 v{s_}, v{t}, v{t+1}"); e(f"v_mul_f32 v{q_}, v{t}, v{t}")
            else: e(f"v_add_f32 v{s_}, v{s_}, v{t}"); e(f"v_fmac_f32 v{q_}, v{t}, v{t}"); e(f"v_add_f32 v{s_}, v{s_}, v{t+1}")
            e(f"v_fmac_f32 v{q_}, v{t+1}, v{t+1}")
    for rot in (8, 4, 2, 1):
        for i in range(4): e(f"v_add_f32_dpp v{72+i}, v{72+i}, v{72+i} row_ror:{rot} {DPP}")
    L += xlane_reduce("v_add_f32", [72, 73, 74, 75], [76, 77, 78, 79])
    for rw in range(2):
        s_, q_ = 72+2*rw, 73+2*rw
        e(f"v_mul_f32 v{s_}, {f2u(-1/512)}, v{s_}"); e(f"v_mul_f32 v{q_}, {f2u(1/512)}, v{q_}")
        e(f"v_fma_f32 v{q_}, -v{s_}, v{s_}, v{q_}"); e(f"v_max_f32 v{q_}, 0, v{q_}"); e(f"v_add_f32 v{q_}, {f2u(1e-5)}, v{q_}")
    e(f"buffer_store_dwordx4 v[72:75], v{TM+3}, s[{SWS}:{SWS+3}], s{sT1} offen sc1 ; @pub")
    return L

def dma_w(buf, st):
    o = buf * 32768
    nt = " nt" if st < OPT['wnt'] else ""
    L = [f"s_add_u32 m0, s{sMWQ}, {o}"]
    for i in range(4): L.append(f"buffer_load_dwordx4 v{aWQD+i}, s[{SWQ}:{SWQ+3}], s{sWQo} offen offset:{1024*i}{nt} lds ; @W{st}")
    L.append(f"s_add_u32 m0, s{sMGU}, {o}")
    for i in range(4): L.append(f"buffer_load_dwordx4 v{aGUD+i}, s[{SGU}:{SGU+3}], s{sGUo} offen offset:{1024*i}{nt} lds ; @W{st}")
    L += [f"s_add_u32 s{sWQo}, s{sWQo}, {64*8192}", f"s_and_b32 s{sWQo}, s{sWQo}, {512*8192-1}",
          f"s_lshr_b32 s{sGUo}, s{sWQo}, 19", f"s_mul_i32 s{sGUo}, s{sGUo}, {64*2752}"]
    return L
def dma_x(buf, st):
    o = buf * 32768
    nt = " nt" if st < OPT['xnt'] else ""
    L = [f"s_add_u32 m0, s{sMX}, {o}"]
    for i in range(4): L.append(f"buffer_load_dwordx4 v{aXD+i}, s[{SX}:{SX+3}], s{sX0} offen offset:{1024*i}{nt} lds ; @X{st}")
    L.append(f"s_add_u32 m0, s{sMX}, {o+4096}")
    for i in range(4): L.append(f"buffer_load_dwordx4 v{aXD+i}, s[{SX}:{SX+3}], s{sX1} offen offset:{1024*i}{nt} lds ; @X{st}")
    L += [f"s_add_u32 s{sX0}, s{sX0}, 128", f"s_and_b32 s{sX0}, s{sX0}, 1023", f"s_add_u32 s{sX1}, s{sX0}, 32768"]
    return L
def with_m0_nops(L):
    out = []
    for x in L:
        out.append(x)
        if 'm0,' in x: out.append("s_nop 0")
    return out
def kv_dma(slot, tag="", loop=False):
    sc = (" sc1" if OPT['kvsc'] else "") + (" nt" if OPT['kvnt'] > (1 if loop else 0) else "")
    L = [f"s_add_u32 m0, s{sMKV}, {slot*16384}"]
    for i in range(4): L.append(f"buffer_load_dwordx4 v{aKD+i}, s[{SK}:{SK+3}], s{sKV} offen offset:{1024*i}{sc} lds{tag}")
    L.append(f"s_add_u32 m0, s{sMKV}, {65536+slot*16384}")
    for i in range(4): L.append(f"buffer_load_dwordx4 v{aVD+(i&1)}, s[{SV}:{SV+3}], s{sKV2} offen offset:{1024*i}{sc} lds{tag}")
    L.append(f"s_add_u32 s{sKV}, s{sKV}, s{sINC}"); L.append(f"s_add_u32 s{sKV2}, s{sKV2}, s{sINC2}")
    return L
def kv_voff(n, gg, t):
    L = []; e = L.append
    e(f"s_lshl_b32 s6, s{sW}, 4"); e(f"v_add_u32 v{t}, s6, v{gg}"); e(f"v_lshlrev_b32 v{t}, 8, v{t}")
    e(f"v_xor_b32 v{t+1}, v{n}, v{gg}")
    for i in range(4):
        e(f"v_xor_b32 v{t+2}, {4*i}, v{t+1}"); e(f"v_lshl_add_u32 v{aKD+i}, v{t+2}, 4, v{t}")
    e(f"v_lshlrev_b32 v{t+1}, 1, v{gg}"); e(f"v_xor_b32 v{t+1}, v{t+1}, v{n}")
    for i in range(2):
        e(f"v_xor_b32 v{t+2}, {8*i}, v{t+1}"); e(f"v_lshl_add_u32 v{aVD+i}, v{t+2}, 4, v{t}")
    return L

def xlane_reduce(op, xs, ts):
    L = []
    for sw in ("v_permlane32_swap_b32", "v_permlane16_swap_b32"):
        for x, t in zip(xs, ts): L.append(f"v_mov_b32 v{t}, v{x}")
        if len(xs) < 3: L.append("s_nop 1")
        for x, t in zip(xs, ts): L.append(f"{sw} v{x}, v{t}")
        for x, t in zip(xs, ts): L.append(f"{op} v{x}, v{x}, v{t}")
    return L
DPP = "row_mask:0xf bank_mask:0xf"

def k1_setup2(pre):
    L = []; e = L.append; l = vLANE
    e("v_lshrrev_b32 v7, 1, v1"); e("v_lshlrev_b32 v8, 7, v1"); e(f"v_add_u32 v8, s{sMX}, v8")
    for ks in range(2):
        e(f"v_add_u32 v9, {4*ks}, v2"); e("v_xor_b32 v9, v9, v7"); e(f"v_lshl_add_u32 v{aXR+ks}, v9, 4, v8")
    e("v_lshl_add_u32 v7, v2, 3, v3")
    e("v_lshlrev_b32 v8, 8, v7"); e("v_lshl_add_u32 v8, v4, 3, v8"); e("v_add_u32 v8, 65536, v8")
    e("v_and_b32 v10, 1, v2"); e("v_lshl_add_u32 v11, v10, 2, v3")
    for t in range(8):
        e(f"v_xor_b32 v9, {t}, v11"); e(f"v_lshl_add_u32 v{aWQR+t}, v9, 5, v8")
    e(f"s_lshl_b32 s6, s{sW}, 1"); e("v_xor_b32 v9, s6, v11"); e(f"v_lshl_add_u32 v{aWQC}, v9, 5, v8")
    e("v_xor_b32 v9, 1, v9"); e(f"v_lshl_add_u32 v{aWQC+1}, v9, 5, v8")
    e("v_mul_u32_u24 v8, 96, v3"); e("v_lshl_add_u32 v8, v4, 3, v8"); e("v_lshl_add_u32 v8, v2, 10, v8"); e("v_lshl_add_u32 v8, v10, 7, v8")
    e(f"s_and_b32 s6, s{sHEAD}, 1"); e("s_lshl_b32 s7, s6, 5"); e("s_add_u32 s7, s7, 81920"); e(f"v_add_u32 v{aGUR}, s7, v8")
    e("s_lshl_b32 s6, s6, 6"); e(f"s_sub_u32 s6, {81920+64}, s6"); e(f"v_add_u32 v{aGUR2}, s6, v8")
    e(f"s_lshl_b32 s{sT0}, s{sW}, 5"); e(f"s_add_u32 s7, s7, s{sT0}"); e(f"s_cmp_ge_u32 s{sW}, 2"); e("s_cselect_b32 s7, s6, s7"); e(f"v_add_u32 v{aGUC}, s7, v8")
    for i in range(4): e(f"v_mov_b32 v{ONES+i}, 0x3f803f80")
    L += srd(SWS, 86, 87, 1 << 28)
    e(f"s_movk_i32 s{SDBG+2}, 256"); e(f"s_mov_b32 s{SDBG+3}, 0x00020000")
    if OPT['stamp']:
        e("s_lshl_b32 s6, s2, 2"); e(f"s_add_u32 s6, s6, s{sW}"); e(f"s_lshl_b32 s{sSTo}, s6, 8"); e(f"s_add_u32 s{sSTo}, s{sSTo}, {STAMP_OFF}")
    e(f"v_mov_b32 v10, {OOB}"); e("v_lshlrev_b32 v9, 4, v1"); e("v_cmp_eq_u32 vcc, 0, v2"); e(f"v_cmp_eq_u32 s[6:7], 0, v{l}"); e("v_mov_b32 v12, 0")
    e(f"v_cndmask_b32 v{TM}, v10, v9, vcc"); e(f"v_cndmask_b32 v{TM+1}, v10, v12, s[6:7]"); e("v_cmp_eq_u32 vcc, 0, v0")
    for i in range(4): e(f"v_mov_b32 v{48+i}, 0")
    e(f"v_cndmask_b32 v{TM+2}, v10, v12, vcc"); e(f"v_mov_b32 v{TM+3}, v{TM+1}")
    e("s_memrealtime s[6:7]"); e(f"s_lshl_b32 s{sT0}, s2, 8"); e("s_waitcnt lgkmcnt(0)"); e("s_or_b32 s6, s6, 1"); e("v_mov_b32 v13, s6")
    e(f"buffer_store_dword v13, v{TM+2}, s[{SDBG}:{SDBG+3}], s{sT0} offen sc1")
    e(f"s_lshl_b32 s{sW2S}, s2, 7"); e(f"s_add_u32 s{sW2S}, s{sW2S}, {FLAG_OFF}")
    e(f"s_lshl_b32 s{sT1}, s{sT1}, 4"); e(f"s_add_u32 s{sT1}, s{sT1}, {STAT_OFF}")
    e(f"v_and_b32 v{vIDX}, 1, v{vLANE}"); e(f"v_mul_u32_u24 v{vIDX}, 0xaaaa, v{vIDX}"); e(f"v_add_u32 v{vIDX}, 0x4444, v{vIDX}"); e(f"v_lshl_or_b32 v{vIDX}, v{vIDX}, 16, v{vIDX}")
    for i in range(16): e(f"v_accvgpr_write_b32 a{CSA+i}, 0")
    return L

def k1_stats(pre):
    L = []; e = L.append
    e(f"s_waitcnt vmcnt({vm_after(pre, ['st'])})")
    for k in range(4):
        for rw in range(2):
            e(f"v_dot2c_f32_bf16 v{48+2*rw}, v{40+4*rw+k}, v{ONES}"); e(f"v_dot2c_f32_bf16 v{49+2*rw}, v{40+4*rw+k}, v{40+4*rw+k}")
    e("s_nop 1")
    for rot in (8, 4, 2, 1):
        for i in range(4): e(f"v_add_f32_dpp v{48+i}, v{48+i}, v{48+i} row_ror:{rot} {DPP}")
    L += xlane_reduce("v_add_f32", [48, 49, 50, 51], [40, 41, 42, 43])
    for rw in range(2):
        s_, q_ = 48+2*rw, 49+2*rw
        e(f"v_mul_f32 v{s_}, {f2u(-1/512)}, v{s_}"); e(f"v_mul_f32 v{q_}, {f2u(1/512)}, v{q_}")
        e(f"v_fma_f32 v{q_}, -v{s_}, v{s_}, v{q_}"); e(f"v_max_f32 v{q_}, 0, v{q_}"); e(f"v_add_f32 v{q_}, {f2u(1e-5)}, v{q_}")
    e(f"buffer_store_dwordx4 v[48:51], v{TM+1}, s[{SWS}:{SWS+3}], s{sT1} offen sc1 ; @pub")
    return L

def k1_setup3():
    L = []; e = L.append; l = vLANE
    e(f"s_lshl_b32 s6, s{sHEAD}, 19")
    e(f"s_add_u32 s{SK}, s66, s6"); e(f"s_addc_u32 s{SK+1}, s67, 0"); e(f"s_add_u32 s{SV}, s68, s6"); e(f"s_addc_u32 s{SV+1}, s69, 0")
    for d in (SK, SV): e(f"s_mov_b32 s{d+2}, 524288"); e(f"s_mov_b32 s{d+3}, 0x00020000")
    e(f"s_mov_b64 s[{sKVB}:{sKVB+1}], s[{SK}:{SK+1}]"); e(f"s_mov_b64 s[{sKVB+2}:{sKVB+3}], s[{SV}:{SV+1}]")
    for i in range(4): e(f"v_accvgpr_write_b32 a{CSA+i}, -1")
    c2, t = sT0, sCNT
    e("s_and_b32 s6, s2, 7"); e("s_lshr_b32 s7, s2, 3")
    if OPT['xl'] == 3:
        e(f"s_and_b32 s{sSP}, s7, 3"); e("s_lshl_b32 s79, s6, 1"); e(f"s_lshr_b32 s{t}, s7, 4"); e(f"s_add_u32 s79, s79, s{t}"); e(f"s_bfe_u32 s{c2}, s7, 0x20002")
        e("s_lshl_b32 s7, s7, 2"); e(f"s_add_u32 s7, s7, s{sW}")
        if OPT['xlo'] == 0: e(f"s_lshl_b32 s{sPFo}, s7, 15")
        else:
            e("s_and_b32 s6, s7, 3"); e("s_lshl_b32 s6, s6, 20"); e(f"s_lshr_b32 s{sPFo}, s7, 2"); e(f"s_lshl_b32 s{sPFo}, s{sPFo}, 11"); e(f"s_add_u32 s{sPFo}, s{sPFo}, s6")
        e(f"s_mul_i32 s{sPFo+1}, s7, {11*1024}")
    elif OPT['xl']:
        e(f"s_and_b32 s{sSP}, s7, 3"); e("s_lshr_b32 s79, s6, 1"); e("s_lshl_b32 s79, s79, 2"); e(f"s_bfe_u32 s{t}, s7, 0x20002"); e(f"s_add_u32 s79, s79, s{t}")
        e("s_and_b32 s6, s6, 1"); e(f"s_lshr_b32 s{c2}, s7, 4"); e(f"s_lshl_b32 s{t}, s6, 1"); e(f"s_add_u32 s{c2}, s{c2}, s{t}")
        e("s_lshl_b32 s7, s7, 2"); e(f"s_add_u32 s7, s7, s{sW}"); e("s_lshl_b32 s6, s6, 9")
        e(f"s_lshl_b32 s{sPFo}, s7, 15"); e(f"s_add_u32 s{sPFo}, s{sPFo}, s6")
        e(f"s_mul_i32 s{sPFo+1}, s7, {11*1024}"); e(f"s_add_u32 s{sPFo+1}, s{sPFo+1}, s6")
    else:
        e("s_lshr_b32 s79, s6, 2"); e(f"s_lshl_b32 s{sSP}, s79, 1"); e(f"s_add_u32 s{sSP}, s{sSP}, s6"); e(f"s_add_u32 s{sSP}, s{sSP}, 1"); e(f"s_and_b32 s{sSP}, s{sSP}, 3")
        e("s_lshl_b32 s79, s79, 3"); e("s_and_b32 s6, s7, 7"); e("s_add_u32 s79, s79, s6"); e(f"s_lshr_b32 s{c2}, s7, 3")
        e("s_lshl_b32 s7, s7, 2"); e(f"s_add_u32 s7, s7, s{sW}")
        e(f"s_lshl_b32 s{sPFo}, s{sSP}, 7"); e(f"s_add_u32 s{sPFo}, s{sPFo}, s7"); e(f"s_lshl_b32 s{sPFo}, s{sPFo}, 13")
        e(f"s_mul_i32 s{sPFo+1}, s{sSP}, 352"); e("s_mul_i32 s7, s7, 3"); e(f"s_add_u32 s{sPFo+1}, s{sPFo+1}, s7"); e(f"s_lshl_b32 s{sPFo+1}, s{sPFo+1}, 10")
    e(f"s_lshl_b32 s{t}, s79, 2"); e(f"s_add_u32 s{t}, s{t}, s{c2}"); e(f"s_lshl_b32 s{t}, s{t}, 18"); e(f"s_lshl_b32 s6, s{sW}, 12"); e(f"s_add_u32 s{t}, s{t}, s6")
    e(f"s_add_u32 s{sP2}, s{t}, {PART_OFF}")
    part_soff(e, sPS, True)
    e(f"s_lshr_b32 s7, s{sW}, 1"); e("s_lshl_b32 s6, s7, 12"); e(f"s_sub_u32 s{sSZ2}, {ACT_RB}, s6")
    e(f"s_and_b32 s7, s{sW}, 1")
    e(f"s_lshl_b32 s{t}, s79, 1"); e(f"s_add_u32 s{t}, s{t}, s7"); e(f"s_mul_i32 s{t}, s{t}, {ACT_RB}"); e(f"s_add_u32 s{t}, s{t}, s6"); e(f"s_add_u32 s{t}, s{t}, {ACT_OFF}")
    e(f"s_add_u32 s{sA2}, s{SWS}, s{t}"); e(f"s_addc_u32 s{sA2+1}, s{SWS+1}, 0")
    e(f"s_lshl_b32 s{t}, s{c2}, 1"); e(f"s_add_u32 s{t}, s{t}, s7"); e(f"s_lshl_b32 s{t}, s{t}, 7"); e("s_lshl_b32 s6, s6, 3"); e(f"s_add_u32 s6, s6, s{t}")
    e(f"s_add_u32 s{SWD}, s80, s6"); e(f"s_addc_u32 s{SWD+1}, s81, 0"); e(f"s_sub_u32 s{SWD+2}, {1376*1024}, s6"); e(f"s_mov_b32 s{SWD+3}, 0x00020000")
    e(f"s_lshl_b32 s7, s{sSP}, 20"); e("s_add_u32 s6, s6, s7")
    e(f"s_add_u32 s{SWO}, s72, s6"); e(f"s_addc_u32 s{SWO+1}, s73, 0"); e(f"s_sub_u32 s{SWO+2}, {4096*1024}, s6"); e(f"s_mov_b32 s{SWO+3}, 0x00020000")
    e("s_lshl_b32 s7, s79, 1"); e(f"s_lshr_b32 s6, s{sW}, 1"); e("s_add_u32 s7, s7, s6"); e("s_lshl_b32 s7, s7, 2"); e(f"s_add_u32 s7, s7, s{sSP}"); e("s_lshl_b32 s7, s7, 14")
    e(f"s_add_u32 s{sXO}, s7, s{t}")
    e(f"s_movk_i32 s{sINC}, 16384")
    e(f"s_lshr_b32 s{sFQB}, s79, 1")
    e(f"s_lshl_b32 s6, s{sQB}, 2"); e(f"s_add_u32 s6, s6, s{sW}")
    e(f"s_lshl_b32 s{sSTAo}, s6, 9"); e(f"s_add_u32 s{sSTAo}, s{sSTAo}, {STAT_OFF}")
    e(f"s_mul_i32 s7, s6, {ACT_RB}"); e(f"s_add_u32 s7, s7, {ACT_OFF}"); e(f"s_add_u32 s{SACT}, s{SWS}, s7"); e(f"s_addc_u32 s{SACT+1}, s{SWS+1}, 0")
    e(f"s_mov_b32 s{SACT+2}, {ACT_RB}"); e(f"s_mov_b32 s{SACT+3}, 0x00020000")
    e(f"s_add_u32 s{sMW2}, s{sMX}, 131072")
    e(f"v_and_b32 v{TM+3}, 15, v{l}"); e(f"v_lshrrev_b32 v{TM+4}, 4, v{l}")
    L += kv_voff(TM+3, TM+4, TM+5)
    e(f"s_mov_b32 s{sKV}, 0"); e(f"s_mov_b32 s{sKV2}, 0"); e(f"s_movk_i32 s{sINC2}, 16384"); e(f"s_mov_b32 s{sMASK}, 0xffff0000"); e(f"s_mov_b32 s{sPASS}, 0")
    e(f"s_mul_i32 s6, s{sHEAD}, 3"); e(f"s_and_b32 s7, s{sHEAD}, 1")
    e(f"s_add_u32 s{sH0}, s6, s7"); e(f"s_lshr_b32 s{sH0}, s{sH0}, 1"); e(f"s_add_u32 s{sH0}, s{sH0}, 128"); e(f"s_lshl_b32 s{sH0}, s{sH0}, 12")
    e("s_add_u32 s6, s6, 2"); e("s_lshl_b32 s7, s7, 1"); e("s_sub_u32 s6, s6, s7")
    e(f"s_lshr_b32 s{sH0+1}, s6, 1"); e(f"s_add_u32 s{sH0+1}, s{sH0+1}, 128"); e(f"s_lshl_b32 s{sH0+1}, s{sH0+1}, 12")
    e("s_and_b32 s6, s6, 1"); e("s_lshl_b32 s6, s6, 3"); e(f"s_add_u32 s{sH0+1}, s{sH0+1}, s6")
    return L

def rd_x(buf):
    return [f"ds_read_b128 {v(XF+buf*32+(qt*2+ks)*4,4)}, v{aXR+ks} offset:{buf*32768+2048*qt}" for qt in range(4) for ks in range(2)]
def rd_w(m, lb):
    L = []
    for ks in range(2):
        for hh in range(2):
            d = a(WF+(m*2+ks)*4+2*hh, 2)
            if m < 8: L.append(f"ds_read_b64_tr_b16 {d}, v{aWQR+m} offset:{lb*32768+ks*8192+hh*1024}")
            else:
                z, t = divmod(m-8, 3)
                L.append(f"ds_read_b64_tr_b16 {d}, v{aGUR if t < 2 else aGUR2} offset:{lb*32768+z*8192+ks*4096+hh*384+32*(t&1)}")
    return L
def rd_e(lb):
    L = []
    for tl in range(4):
        for ks in range(2):
            for hh in range(2):
                d = a(EFr(tl, ks)+2*hh, 2)
                if tl < 2: L.append(f"ds_read_b64_tr_b16 {d}, v{aWQC+tl} offset:{lb*32768+ks*8192+hh*1024}")
                else: L.append(f"ds_read_b64_tr_b16 {d}, v{aGUC} offset:{lb*32768+(tl-2)*8192+ks*4096+hh*384}")
    return L
def acc_m(m, qt):
    return v(QACC+(m*4+qt)*4, 4) if m < 8 else a(gua(m-8, qt), 4)

def loop_addr_setup(t):
    L = []; e = L.append; l = vLANE
    e(f"v_and_b32 v{t}, 15, v{l}"); e(f"v_lshrrev_b32 v{t+1}, 4, v{l}"); e(f"v_lshrrev_b32 v{t+2}, 2, v{t}"); e(f"v_and_b32 v{t+3}, 3, v{l}")
    e(f"v_lshlrev_b32 v{t+4}, 8, v{t}")
    e(f"v_and_b32 v{t+6}, 1, v{t+1}"); e(f"v_lshrrev_b32 v{t+7}, 1, v{t+1}"); e(f"v_lshl_add_u32 v{t+6}, v{t+6}, 1, v{t+7}")
    e(f"v_xor_b32 v{t+6}, v{t+6}, v{t}")
    for s_ in range(4):
        e(f"v_xor_b32 v{t+5}, {4*s_}, v{t+6}"); e(f"v_lshl_add_u32 v{aKR+s_}, v{t+5}, 4, v{t+4}")
    e(f"v_lshl_add_u32 v{t+4}, v{t+1}, 2, v{t+2}")
    e(f"v_and_b32 v{t+5}, 7, v{t+4}")
    e(f"v_lshlrev_b32 v{t+4}, 8, v{t+4}"); e(f"v_lshl_add_u32 v{t+4}, v{t+3}, 3, v{t+4}"); e(f"v_add_u32 v{t+4}, 65536, v{t+4}")
    for dt in range(8):
        e(f"v_xor_b32 v{t+6}, {dt}, v{t+5}"); e(f"v_lshl_add_u32 v{aVR+dt}, v{t+6}, 5, v{t+4}")
    return L

def place_dma(G, dm, g, step):
    last = g
    for x in dm:
        if x.startswith('buffer'):
            while g % 2 != 1 or G.used(g) > 0: g += 1
            G.put(g, x); last = g + 1; g += step - 1
        else:
            gg = G.fit(last, x); last = gg
            if 'm0,' in x: g = max(g, gg + 1)
    return max(g, last + 1)

def bid_of(dst, head, qb, t):
    return [f"v_and_b32 v{t}, 3, v{head}", f"v_lshl_add_u32 v{t}, {qb}, 2, v{t}", f"v_lshrrev_b32 v{dst}, 2, v{head}", f"v_lshl_add_u32 v{dst}, v{t}, 3, v{dst}",
            f"v_lshlrev_b32 v{dst}, 7, v{dst}", f"v_add_u32 v{dst}, {FLAG_OFF}, v{dst}"]
def d0_addr(dst, t):
    return [f"v_cmp_gt_u32 vcc, 32, v{vLANE}", f"v_and_b32 v{vD0}, 7, v{vLANE}", f"v_mov_b32 v{t}, s{sHEAD}", f"v_and_b32 v{t+1}, {OPT['rot']-1}, v{vLANE}",
            f"v_lshl_add_u32 v{vD0}, s{sW}, 3, v{vD0}", f"v_mov_b32 v{dst}, s{sQB}",
            f"v_cndmask_b32 v{t}, v{t}, v{vD0}, vcc", f"v_cndmask_b32 v{t+1}, v{t+1}, v{dst}, vcc"] + bid_of(dst, t, f"v{t+1}", vD0)
def d1_addr(dst, t):
    return ([f"v_and_b32 v{t}, 31, v{vLANE}"] + bid_of(dst, t, f"s{sFQB}", t+1)
            + ["s_and_b32 s6, s2, 0xe7" if OPT['xl'] else "s_and_b32 s6, s2, 0xfc", f"v_and_b32 v{t}, {0x18 if OPT['xl'] else 3}, v{vLANE}", f"v_add_u32 v{t}, s6, v{t}", f"v_cmp_gt_u32 vcc, 32, v{vLANE}",
               f"v_lshlrev_b32 v{t}, 7, v{t}", f"v_add_u32 v{t}, {FLAG_OFF}, v{t}", f"v_cndmask_b32 v{dst}, v{t}, v{dst}, vcc"])
def f_load(dst, addr, k): return f"buffer_load_dword v{dst}, v{addr}, s[{SWS}:{SWS+3}], 0 offen offset:{4*k} sc1"
def f_cmp(x): return f"v_cmp_ne_u32 vcc, s{sNON}, v{x}"
SPIN = 0x20000
WAITMARK = "s_waitcnt vmcnt(63) ; WAIT "
def resolve_waits(pre, ph):
    out = []
    for x in ph:
        if x.startswith(WAITMARK):
            tags, _, extra = x[len(WAITMARK):].partition('|')
            n = vm_after(pre + out, tags.split())
            x = "s_waitcnt " + " ".join(([f"vmcnt({n})"] if n is not None else []) + ([extra] if extra else []))
        out.append(x)
    return out

vD0 = 114; aSTA = 117; aCL = 115; aD0 = SXA + 14
def cs_mfmas(): return [f"v_smfmac_f32_16x16x64_bf16 {a(CSA+tl*4,4)}, {v(ONES,4)}, {a(EFr(tl,0),8)}, v{vIDX}" for tl in range(4)]
W_, X_ = (lambda s: ('W', s)), (lambda s: ('x', s))
SCHED = {
    0: [[W_(2), X_(2)], [W_(3), X_(3)], [W_(4), X_(4)], [W_(5), X_(5)], [W_(6), X_(6)], [W_(7), X_(7)], []],
    1: [[W_(2), X_(2)], [W_(3), X_(3), X_(4)], [W_(4), W_(5), X_(5)], [W_(6), X_(6)], [W_(7), X_(7)], [], []],
    2: [[W_(2), X_(2)], [W_(3), X_(3), X_(4)], [W_(4), X_(5)], [W_(5), X_(6)], [W_(6), X_(7)], [W_(7)], []],
    4: [[W_(2)], [X_(2), W_(3), X_(3)], [W_(4), X_(4)], [W_(5), X_(5)], [W_(6), X_(6)], [W_(7), X_(7)], []],
    5: [[W_(2)], [X_(2), W_(3), X_(3)], [W_(4), X_(4)], [W_(5), X_(5), W_(6)], [X_(6), W_(7)], [X_(7)], []],
    6: [[W_(2)], [X_(2), W_(3), X_(3)], [W_(4), X_(4), X_(5)], [W_(5), W_(6), X_(6)], [W_(7), X_(7)], [], []],
    3: [[W_(2), X_(2)], [W_(3), X_(3), W_(4)], [X_(4), W_(5)], [X_(5), W_(6)], [X_(6), W_(7)], [X_(7)], []],
}[OPT['sched']]
def gemm_phase(st, carry, bg):
    xb = st & 1; first = (st == 0); nb = (st + 1) & 1
    wb = (st + 1) % 3; wo = wb if wb < 2 else 0
    mf = []
    def C(acc, ks): return "0" if (first and ks == 0) else acc
    GB = OPT['gub'] if first else 0
    if first and not GB: mf += cs_mfmas()
    pos = {}; doE = first and OPT['rot'] == 4; SIGP = 3 if OPT['fast0'] else (1 if OPT['rot'] == 8 else 2)
    CSM = 12 if first else 8
    for m in range(14):
        if m == CSM and doE and not OPT['fast0']: csp = len(mf); mf += cs_mfmas()
        if m == 2 and st == 1 and OPT['rot'] == 4 and OPT['fast0']: mf += cs_mfmas()
        if m == 8 and GB: mf += cs_mfmas()
        pos[m] = len(mf)
        for i_, qt in enumerate(range(3, -1, -1) if (OPT['gsn'] and m & 1) else range(4)):
            for j_, ks in enumerate((1, 0) if (OPT['gsn'] and i_ & 1) else (0, 1)):
                d = acc_m(m, qt); mf.append(f"{MF} {d}, {a(WF+(m*2+ks)*4,4)}, {v(XF+xb*32+(qt*2+ks)*4,4)}, {C(d,j_)}")
    N = len(mf)
    G = Gaps(N)
    for i, r in enumerate(carry): G.put(i // 2, r)
    BARG = OPT['barg0'] if first else 7
    xsame = st < 7 and ('x', st+1) in SCHED[st]
    xlate = first or xsame or (st < 7 and ('x', st+1) in SCHED[st-1])
    tags = {1: "non st", 5: "d0", 6: "cs"}.get(st, "") + f" W{st+1}" + ("" if xlate else f" X{st+1}") + (" pub" if st == SIGP else "")
    G.put(BARG, WAITMARK + tags + "|lgkmcnt(0)", force=True); G.put(BARG, "s_barrier", force=True)
    if first and not GB:
        G.put(3, "s_waitcnt lgkmcnt(8)"); G.put(11, "s_waitcnt lgkmcnt(0)")
    if GB:
        G.put(7, "s_waitcnt lgkmcnt(0)")
        G.put(GB, WAITMARK + "W0|", force=True); G.put(GB, "s_barrier", force=True)
        g = GB + 1
        for r in rd_e(0) + sum((rd_w(m, 0) for m in range(8, 14)), []):
            while g % 4 == 3 or G.used(g) > 1: g += 1
            G.put(g, r)
        assert g < BARG, g
    if st == 5:
        G.put(BARG+1, f_cmp(vD0)); G.put(BARG+2, "s_cbranch_vccnz K1_D0POLL"); G.put(BARG+2, "K1_D0OK:"); G.put(BARG+3, f"s_add_u32 s{sCNT}, s{sCSo}, 4096")
    if st == 1:
        G.put(BARG+1, f"v_cmp_eq_u32 vcc, 0, v{TM+1}"); G.put(BARG+2, "s_cbranch_vccnz K1_NPOLL"); G.put(BARG+2, "K1_NOK:")
        G.put(BARG+3, f"v_readfirstlane_b32 s{sNON}, v{TM+1}")
    if st < 7: G.put(N - 1, "s_waitcnt lgkmcnt(4)")
    adj = []
    if st < 7 and (wb == 2 or (wb == 0 and st > 0)):
        op = "v_add_u32" if wb == 2 else "v_subrev_u32"
        adj = [f"{op} v{r}, 0x10000, v{r}" for r in list(range(aWQR, aWQR+8)) + [aGUR, aGUR2]]
        G.stream((len(carry) + 1) // 2, adj, BARG)
    newcarry = []
    if st < 7:
        g = BARG + 1
        for m in range(14):
            rs = rd_w(m, wo)
            if m == 13: newcarry = rs; break
            for i, r in enumerate(rs):
                g = max(g, pos[m] + 8 + 2*i)
                while (g % 2 != 0 and not (first and OPT['fast0'] and g % 4 == 1)) or G.used(g) > 1: g += 1
                G.put(g, r)
    dm = []
    if first: dm += [f"buffer_load_dword v{TM+1}, off, s[{SDBG}:{SDBG+3}], 0 sc1 ; @non"]
    if st == SIGP: dm += [f"buffer_store_dword v{TM+1}, v{TM+2}, s[{SWS}:{SWS+3}], s{sW2S} offen sc1"]
    if st == 5: dm += [f"buffer_load_dwordx4 {v(TM+4*j,4)}, v{aCL}, s[{SWS}:{SWS+3}], s{sCSo if j == 0 else sCNT} offen sc1 ; @cs" for j in range(OPT['rot']//4)]
    if st == 5: dm += [f"buffer_load_dwordx2 {v(SXA+4*qt,2)}, v{aSTA}, s[{SWS}:{SWS+3}], s{sSTAo} offen offset:{128*qt} sc1 ; @cs" for qt in range(4)]
    if st <= 5: pass
    elif st == 6:
        if OPT['kvs'] == 0: place_dma(G, kv_dma(0, " ; @KV0") + kv_dma(1), BARG + 1, 6)
        else: place_dma(G, kv_dma(0, " ; @KV0"), BARG + 1, 12)
    elif OPT['kvs'] == 0: place_dma(G, kv_dma(2) + kv_dma(3), BARG + 1, 6)
    elif OPT['kvs'] == 1: place_dma(G, kv_dma(1), BARG + 1, 12)
    else: place_dma(G, kv_dma(1) + kv_dma(2), BARG + 1, 6)
    if adj: G.stream(BARG + 1, adj, BARG + 30); assert not adj
    if st <= 5:
        grp = SCHED[st]
        if first and OPT['fast0']: grp = ([W_(1)] if GB and OPT['w1late'] else []) + ([] if OPT['w1e'] == 1 else [X_(1)]) + [('s', 0)] + grp
        early = [x for x in grp if x != ('x', st+3)]
        span = (N - 4 if len(early) == len(grp) else OPT['xw'] + 8)
        step = max(2, (span // max(1, 8*len(early) + len(dm))) & ~1); step = min(step, OPT['wgap'])
        if first and OPT['fast0']: step = OPT['st0']
        if len(early) == 3 and not first: step = 4 if not dm else 2
        g = 2; misc = list(dm)
        for kind, s_ in early:
            if (kind == 'W' and s_ == st + 3) or (g > BARG and misc):
                g = max(g, BARG + 3)
                g = place_dma(G, misc, g, step); misc = []
            g = place_dma(G, dma_w(s_ % 3, s_) if kind == 'W' else st_loads() if kind == 's' else dma_x(s_ & 1, s_), g, step)
        if misc: g = place_dma(G, misc, max(g, BARG + 3), step)
        gdma = g
    if st < 7:
        g = (OPT['xg0'] if OPT['fast0'] else 50) if first else 64 if xsame else OPT['xg'] if xlate else BARG + 2
        if xlate: g = G.fit(g, WAITMARK + f"X{st+1}|") + 1
        for r in rd_x(nb):
            while G.used(g) > 1 or G.post[g]: g += 1
            G.put(g, r); g += 2
        xdone = g
        g = BARG + 2
        if doE and OPT['fast0']:
            for r in rd_e(wo):
                while g < N - 1 and (G.used(g) > 1 or G.post[g]): g += 1
                if g < N - 1: G.put(g, r)
                else: newcarry = [r] + newcarry
            doE = False
        if doE:
            for r in rd_e(wo):
                while G.used(g) > 1 or G.post[g]: g += 1
                G.put(g, r); g += 1
            assert g < csp - 8, (st, g, csp)
        if doE or ('x', st+3) in SCHED[st]:
            w = G.fit(max(OPT['xw'], xdone + 8, g + 6), "s_waitcnt lgkmcnt(2)"); assert not doE or w < csp
        if st <= 5 and ('x', st+3) in SCHED[st]: place_dma(G, dma_x(nb, st+3), max(w + 1, gdma), 4)
    PZ = 3 if OPT['fast0'] else 2
    if st in (PZ, PZ+1, PZ+2) and OPT['pois'] and not OPT['lpz']:
        assert not any(f"s{sPS+st-PZ}," in x for x in bg)
        ps = [f"buffer_store_dwordx4 {a(CSA,4)}, v{aL16}, s[{SWS}:{SWS+3}], s{sPS+st-PZ} offen offset:{1024*j} sc1" for j in range(4)]
        g = OPT['pois']
        for x in ps:
            while g % 2 != 1 or G.used(g) > 0: g += 1
            G.put(g, x); g += OPT['pstep']
    if st == (1 if OPT['fast0'] else SIGP - 1):
        t = SXA
        q = stats_stream() if OPT['fast0'] else []
        q += [f"s_lshl_b32 s6, s{sHEAD}, 3", f"s_add_u32 s6, s6, s{sQB}", "s_lshl_b32 s6, s6, 2", f"s_add_u32 s6, s6, s{sW}", "s_lshl_b32 s6, s6, 8", f"s_add_u32 s{sCSo}, s6, {CS_OFF}"]
        for tl in range(4): q += [f"v_accvgpr_read_b32 v{t+tl}, a{CSA+4*tl}", f"v_accvgpr_read_b32 v{t+4+tl}, a{CSA+4*tl+1}"]
        for tl in range(4): q += [f"v_add_f32 v{t+tl}, v{t+tl}, v{t+4+tl}"]
        q += [f"buffer_store_dwordx4 {v(t,4)}, v{TM}, s[{SWS}:{SWS+3}], s{sCSo} offen sc1 ; @pub"]
        if OPT['fast0']: bg[:0] = q + ['s_nop 0']
        else: g0 = G.stream(12 if first else BARG + 4, q); assert not q
    if st in (1, 2, 3): G.stream((g0 + 1 if SIGP == 2 else BARG + 4) if st == 1 else 0, bg)
    if OPT['kvpf'] and st == OPT['kvpf'] // 1000:
        assert not any(f"s{SV+3}," in x for x in bg)
        q = [f"v_and_b32 v{aXD}, 15, v{vLANE}", f"v_lshlrev_b32 v{aXD}, 7, v{aXD}", f"s_lshl_b32 s{sT1}, s{sQB}, 2", f"s_add_u32 s{sT1}, s{sT1}, s{sW}", f"s_lshl_b32 s{sT1}, s{sT1}, 11",
             f"buffer_load_dword a{CSA+4}, v{aXD}, s[{SK}:{SK+3}], s{sT1} offen", f"buffer_load_dword a{CSA+5}, v{aXD}, s[{SV}:{SV+3}], s{sT1} offen"]
        G.stream(OPT['kvpf'] % 1000, q); assert not q
    if st == SIGP: assert not any('@pub' in x for x in bg)
    if st == 4:
        G.stream(0, bg, OPT['d0g']); assert not bg, len(bg)
        q = d0_addr(aD0, TM+6) + [f_load(vD0, aD0, 0) + " ; @d0", f"v_and_b32 v{aSTA}, 15, v{vLANE}",
             f"v_lshrrev_b32 v{aCL}, 4, v{vLANE}", f"v_lshlrev_b32 v{aCL}, 10, v{aCL}", f"v_lshl_add_u32 v{aCL}, v{aSTA}, 4, v{aCL}", f"v_lshlrev_b32 v{aSTA}, 3, v{aSTA}",
             f"s_lshl_b32 s6, s{sHEAD}, 13", f"s_lshl_b32 s7, s{sW}, 8", "s_add_u32 s6, s6, s7", f"s_add_u32 s{sCSo}, s6, {CS_OFF}"]
        G.stream(OPT['d0g'], q); assert not q
    if st == 6:
        q = []
        for qt in range(4): q += [f"v_rsq_f32 v{SXA+4*qt+2}, v{SXA+4*qt+1}"]
        for qt in range(4):
            q += [f"v_mul_f32 v{SXA+4*qt+3}, v{SXA+4*qt+1}, v{SXA+4*qt+2}", f"v_mul_f32 v{SXA+4*qt+1}, {f2u(SCALE)}, v{SXA+4*qt+2}",
                  f"v_mul_f32 v{SXA+4*qt+2}, {f2u(-LOG2E)}, v{SXA+4*qt+2}"]
        if OPT['rot'] == 8: q += [f"v_add_f32 v{TM+i}, v{TM+i}, v{TM+4+i}" for i in range(4)]
        q += xlane_reduce("v_add_f32", [TM+i for i in range(4)], [TM+4+i for i in range(4)])
        q += [f"v_lshrrev_b32 v{aCL}, 1, v{aSTA}", f"v_add_u32 v{aCL}, s{sMW2}, v{aCL}"]
        for tl in range(4): q += [f"ds_write_b32 v{aCL}, v{TM+tl} offset:{64*tl}"]
        q += loop_addr_setup(TM)
        g = G.stream(BARG + 1, q)
        q += [f"v_lshrrev_b32 v{aCS}, 4, v{vLANE}", f"v_lshlrev_b32 v{aCS}, 4, v{aCS}", f"v_add_u32 v{aCS}, 131072, v{aCS}"]
        G.stream(max(g, xdone), q)
        for x in q: G.post[N-1].append(x)
        if q: print(f"; phase 6: {len(q)} left over", file=sys.stderr)
    if st == 7:
        g = BARG + 1
        for m in range(8):
            g = G.fit(g, f"ds_read_b128 {v(4*m,4)}, v{aCS} offset:{(m>>1)*8192+(m&1)*64}")
        g = G.fit(g + 6, "s_waitcnt lgkmcnt(0)") + 1
        left = []
        for m in range(8):
            q = [f"v_fmac_f32 v{QACC+(m*4+qt)*4+r}, v{4*m+r}, v{SXA+4*qt}" for qt in (range(3, -1, -1) if (OPT['gsn'] and m & 1) else range(4)) for r in range(4)]
            g = G.stream(max(g, 8*m + 12), q); left += q
        for x in left: G.post[N-1].append(x)
        if left: print(f"; phase 7: {len(left)} left over", file=sys.stderr)
    return weave(mf, G.out()), newcarry

LO = "op_sel_hi:[1,0,1]"; HI = "op_sel:[0,1,0] op_sel_hi:[1,1,1]"
LO2 = "op_sel_hi:[1,0]"; HI2 = "op_sel:[0,1] op_sel_hi:[1,1]"
def zero_o(i): return f"v_mfma_f32_32x32x16_bf16 {a(16*i,16)}, {v(LACC,4)}, {v(LACC,4)}, 0"
def max_mfmas():
    return [f"{MF} {v(SB+4*qt,4)}, {v(KF+s_*4,4)}, {v(QF+(qt*4+s_)*4,4)}, {'0' if s_ == 0 else v(SB+4*qt,4)}" for qt in range(4) for s_ in range(4)]
def k1_post_gemm():
    L = []; e = L.append
    CSG = 208
    vr = rd_v(0, 0)
    pz = [] if OPT['pois'] or OPT['lpz'] else [f"buffer_store_dwordx4 {a(CSA,4)}, v{aL16}, s[{SWS}:{SWS+3}], s{sPS+i} offen offset:{1024*j} sc1" for i in range(3) for j in range(4)]
    for sp in (2, 3, 0, 1):
        for qt in range(4):
            if pz and (qt & 1 or OPT['pzq'] == 2) and OPT['pzq']: e(pz.pop(0))
            P0 = v(SXA+4*qt, 2)
            for b in range(2):
                m = 2*sp+b; x = QACC + (m*4+qt)*4
                for h in (0, 2): e(f"v_pk_mul_f32 {v(x+h,2)}, {v(x+h,2)}, {P0} {HI2}")
                for h in range(2): e(f"v_cvt_pk_bf16_f32 v{QF+(qt*4+sp)*4+2*b+h}, v{x+2*h}, v{x+2*h+1}")
        if sp == 3:
            for m in range(6):
                z, t = divmod(m, 3)
                e(f"ds_read_b128 {v(CSG+4*m,4)}, v{aCS} offset:{t*8192+(2+z)*64}")
        elif sp == 0:
            e(WAITMARK + "KV0|lgkmcnt(0)"); e("s_barrier")
            for f in range(8): e(rd_k(f, 0))
            L += vr[:16]
        elif sp == 1:
            for f in range(8, 16): e(rd_k(f, 0))
            L += vr[16:]
        else: e("s_nop 1")
        for qt in range(4):
            f = QF+(qt*4+sp)*4
            e(f"v_permlane16_swap_b32 v{f}, v{f+2}"); e(f"v_permlane16_swap_b32 v{f+1}, v{f+3}")
    for i in range(16): e(f"v_mov_b32 v{LACC+i}, 0")
    e("s_waitcnt lgkmcnt(15)")
    if OPT['stamp'] == 2: L += stamp(TM)
    mx = max_mfmas(); zs = [7]; zdone = []
    kv = with_m0_nops({0: [], 1: kv_dma(2) + kv_dma(3), 2: kv_dma(3)}[OPT['kvs']])
    def kv_next():
        while kv:
            x = kv.pop(0); e(x)
            if x.startswith('buffer'): break
    n = 0
    for qt in range(4):
        for t in (2, 0, 1):
            G_ = TM + (n % 2)*8; U_ = G_ + 4; n += 1
            H_ = 232 + (4 if t == 2 else 2*t)
            P0 = v(SXA+4*qt, 2); P1 = v(SXA+4*qt+2, 2)
            if mx: e(mx.pop(0))
            elif zs: e(zero_o(zs.pop(0)))
            kv_next()
            if pz: e(pz.pop(0))
            if not pz and 6 not in zdone: zs.append(6); zdone.append(6)
            for r in range(4): e(f"v_accvgpr_read_b32 v{G_+r}, a{gua(t, qt)+r}")
            if mx: e(mx.pop(0))
            for r in range(4): e(f"v_accvgpr_read_b32 v{U_+r}, a{gua(3+t, qt)+r}")
            for h in (0, 2): e(f"v_pk_fma_f32 {v(G_+h,2)}, {v(CSG+4*t+h,2)}, {P0}, {v(G_+h,2)} {LO}")
            for h in (0, 2): e(f"v_pk_mul_f32 {v(G_+h,2)}, {v(G_+h,2)}, {P1} {LO2}")
            if mx: e(mx.pop(0))
            elif zs: e(zero_o(zs.pop(0)))
            if t == 0 and OPT['kvs'] == 1: kv_next()
            for r in range(4): e(f"v_exp_f32 v{G_+r}, v{G_+r}")
            for h in (0, 2): e(f"v_pk_fma_f32 {v(G_+h,2)}, {v(G_+h,2)}, {P1}, {P1} op_sel:[0,1,1] op_sel_hi:[1,1,1]")
            if mx: e(mx.pop(0))
            for r in range(4): e(f"v_rcp_f32 v{G_+r}, v{G_+r}")
            for h in (0, 2): e(f"v_pk_fma_f32 {v(U_+h,2)}, {v(CSG+12+4*t+h,2)}, {P0}, {v(U_+h,2)} {LO}")
            for h in (0, 2): e(f"v_pk_mul_f32 {v(U_+h,2)}, {v(U_+h,2)}, {v(G_+h,2)}")
            for h in range(2): e(f"v_cvt_pk_bf16_f32 v{H_+h}, v{U_+2*h}, v{U_+2*h+1}")
            if t == 2: e(f"buffer_store_dwordx2 {v(H_,2)}, v{aL16}, s[{SACT}:{SACT+3}], s{sH0+1} offen offset:{1024*qt} sc1")
            if t == 1: e(f"buffer_store_dwordx4 {v(H_-2,4)}, v{aL16}, s[{SACT}:{SACT+3}], s{sH0} offen offset:{1024*qt} sc1")
        zs += {0: [0], 1: [1, 2], 2: [3], 3: [4, 5]}[qt]
    if OPT['stamp'] == 2: L += stamp(TM)
    L += kv
    for z in zs: e(zero_o(z))
    for qt in range(4):
        b = SB+4*qt
        e(f"v_max3_f32 v{b}, v{b}, v{b+1}, v{b+2}"); e(f"v_max_f32 v{b}, v{b}, v{b+3}")
    L += xlane_reduce("v_max_f32", [SB+4*q for q in range(4)], [SB+4*q+1 for q in range(4)])
    for qt in range(4):
        for r in range(4): e(f"v_sub_f32 v{NEGM+4*qt+r}, 0, v{SB+4*qt}")
    return L
def pf_lanes():
    L = [f"v_lshlrev_b32 v90, 7, v{vLANE}", f"v_min_u32 v91, 256, v90", f"v_min_u32 v90, 384, v90"]
    if OPT['xl']:
        L = [f"v_and_b32 v90, 3, v{vLANE}", f"v_bfe_u32 v91, v{vLANE}, 2, 1", "v_lshlrev_b32 v90, 7, v90", "v_lshl_add_u32 v90, v91, 10, v90", "v_mov_b32 v91, v90"]
    if OPT['xl'] == 3: L = [f"v_and_b32 v90, 15, v{vLANE}", "v_lshlrev_b32 v90, 7, v90", "v_mov_b32 v91, v90"]
    if OPT['wpf'] == 2:
        L = [f"v_lshlrev_b32 v90, 7, v{vLANE}", "v_min_u32 v90, 896, v90", f"v_add_u32 v91, s{sPFo}, v90", f"v_add_u32 v90, s{sPFo+1}, v90", f"s_mov_b32 s{sRL}, 0", f"s_mov_b32 s{sRL+1}, 0"]
    if OPT['lpz']:
        L += [f"v_mov_b32 v{80+i}, -1" for i in range(4)]
        L += [f"s_lshl_b32 s6, s{sSP}, 14", f"s_add_u32 s6, s6, s{sP2}", f"v_add_u32 v84, s6, v{aL16}",
              f"s_add_u32 s{sPZ}, s{sSP}, 1", f"s_and_b32 s{sPZ}, s{sPZ}, 3", f"s_lshl_b32 s{sPZ}, s{sPZ}, 16", f"s_movk_i32 s{sPZD}, 2048"]
    return L

def ks_of(p):
    kt, s_ = divmod(p, 4)
    return kt, (3 - s_ if (kt & 1 and OPT['sq']) else s_)
def rd_k(f, slot):
    kt, s_ = ks_of(f)
    return f"ds_read_b128 {v(KF+4*f,4)}, v{aKR+s_} offset:{slot*16384+kt*4096}"
def rd_v(buf, slot):
    return [f"ds_read_b64_tr_b16 {a(VF+buf*64+(dt*2+kk)*4+2*hh,2)}, v{aVR+dt} offset:{slot*16384+kk*8192+hh*4096}"
            for dt in range(8) for kk in range(2) for hh in range(2)]
def qk_mfmas(qt, zero=False):
    L = []
    for p in range(16):
        kt, s_ = ks_of(p)
        d = v(SB+4*kt, 4)
        c = ("0" if zero else v(NEGM+4*qt, 4)) if p % 4 == 0 else d
        L.append(f"{MF} {d}, {v(KF+p*4,4)}, {v(QF+(qt*4+s_)*4,4)}, {c}")
    return L
def pv_mfmas(qt, vb, pb):
    L = []
    for dt in range(8):
        d = a(OACC+(dt*4+qt)*4, 4)
        for kk in range(2): L.append(f"{MF} {d}, {a(VF+vb*64+(dt*2+kk)*4,4)}, {v(PB+pb*8+kk*4,4)}, {d}")
    L.append(f"v_smfmac_f32_16x16x64_bf16 {v(LACC+4*qt,4)}, {v(ONES,4)}, {v(PB+pb*8,8)}, v{vIDX}")
    return L
EXP = lambda e_: f"v_exp_f32 v{SB+e_}, v{SB+e_}"
CVT = lambda c, pb: f"v_cvt_pk_bf16_f32 v{PB+pb*8+c}, v{SB+2*c}, v{SB+2*c+1}"

def attn_step(jm, u):
    pb = u & 1
    mf = qk_mfmas((u+1) % 4) + pv_mfmas(u, jm & 1, pb)
    G = Gaps(33)
    for k, e_ in enumerate((13, 14, 15)): G.put(2*k+1, EXP(e_))
    G.put(2, CVT(6, pb)); G.put(6, CVT(7, pb))
    for e_ in range(13): G.put(8+2*e_, EXP(e_))
    for c in range(6): G.put(11+4*c, CVT(c, pb ^ 1))
    ns = (jm+1) % 4
    vr = rd_v((jm+1) & 1, ns)
    dm = kv_dma(jm, loop=True)
    if u == 0:
        if OPT['bv'] == 0:
            G.put(4, f"s_waitcnt vmcnt({18 if OPT['wpf'] else 16}) lgkmcnt(0)", force=True); G.put(4, "s_barrier", force=True)
            G.put(7, dm[0])
            for g, x in zip((9, 17, 21, 29), dm[1:5]): G.put(g, x)
            for g, x in zip((6, 7, 11, 13, 15, 19, 23, 25, 27, 31), vr[0:10]): G.put(g, x)
        elif OPT['bv'] == 1:
            G.put(2, f"s_waitcnt vmcnt({18 if OPT['wpf'] else 16}) lgkmcnt(0)"); G.put(4, "s_barrier")
            G.put(7, dm[0])
            for g, x in zip((9, 17, 21, 29), dm[1:5]): G.put(g, x)
            for g, x in zip((6, 7, 11, 13, 15, 19, 23, 25, 27, 31), vr[0:10]): G.put(g, x)
        else:
            G.put(4, f"s_waitcnt vmcnt({18 if OPT['wpf'] else 16}) lgkmcnt(0)"); G.put(4, dm[0]); G.put(7, "s_barrier")
            for g, x in zip((9, 17, 21, 29), dm[1:5]): G.put(g, x)
            for g, x in zip((11, 13, 13, 15, 19, 23, 25, 25, 27, 31), vr[0:10]): G.put(g, x)
    elif u == 1:
        G.put(0, dm[5])
        for g, x in zip((4, 13, 21, 29), dm[6:10]): G.put(g, x)
        for g, x in zip((0, 2, 6, 7, 9, 11, 15, 17, 19, 23, 25, 27, 31), vr[10:23]): G.put(g, x)
    elif u == 2:
        G.put(0, dm[10]); G.put(0, dm[11])
        for f, g in enumerate((2, 4, 4, 6, 7, 9, 11, 13, 15, 17, 19, 21, 23, 25, 27, 29)): G.put(g, rd_k(f, ns))
        G.put(31, "s_waitcnt lgkmcnt(3)")
    else:
        G.put(7, "s_waitcnt lgkmcnt(4)")
        for g, x in zip((0, 2, 4, 6, 9, 11, 13, 15, 17), vr[23:32]): G.put(g, x)
        if jm == 3:
            G.put(25, f"s_add_u32 s{sCNT}, s{sCNT}, 1"); G.put(29, f"s_cmp_lt_u32 s{sCNT}, s{sT0}")
        if jm == 2: G.put(29, f"s_cmp_eq_u32 s{sCNT}, 7")
        if OPT['lpz'] and jm in (0, 2):
            G.put(25, f"buffer_store_dwordx4 v[80:83], v84, s[{SWS}:{SWS+3}], s{sPZ} offen offset:{512*jm} sc1")
        if OPT['lpz'] and jm == 3:
            G.put(19, f"s_add_u32 s{sPZ}, s{sPZ}, s{sPZD}"); G.put(25, f"s_and_b32 s{sPZ}, s{sPZ}, 0x3ffff"); G.put(27, f"s_sub_u32 s{sPZD}, 0x10000, s{sPZD}")
        if OPT['wpf']:
            sr, so, st_ = (P2X, sPFo, 384) if jm < 3 else (P2OUT, sPFo+1, 512)
            if OPT['xl']: st_ = 2048 if jm != 1 else 0
            if OPT['xl'] == 3 and OPT['xlo'] and jm in (0, 2): st_ = 65536
            if OPT['wpf'] == 2:
                so = sRL + (jm == 3)
                G.put(21, f"buffer_load_dword v{72+jm}, v{91 if jm < 3 else 90}, s[{sr}:{sr+3}], s{so} offen"); G.put(23, f"s_add_u32 s{so}, s{so}, 1024")
                G.put(17, f"s_and_b32 s{so}, s{so}, {8191 if jm < 3 else 4095}")
            else:
                G.put(21, f"buffer_load_dword v{72+jm}, v{91 if jm < 3 else 90}, s[{sr}:{sr+3}], s{so} offen"); G.put(23, f"s_add_u32 s{so}, s{so}, {st_}")
    if jm == 3 and u == 0: G.put(0, "s_cbranch_scc1 K1_LAST")
    return weave(mf, G.out())

def l_fin(qt): return [f"v_add_f32 v{LACC+4*qt}, v{LACC+4*qt}, v{LACC+4*qt+1}", f"v_rcp_f32 v{LACC+4*qt+2}, v{LACC+4*qt}"]
def o_stream(qt):
    L = []; e = L.append
    l = LACC + 4*qt
    for i in range(4):
        t = 88; p = 100 + 4*((qt*4+i) % 3)
        for b in range(2):
            for r in range(4): e(f"v_accvgpr_read_b32 v{t+4*b+r}, a{OACC+((2*i+b)*4+qt)*4+r}")
        if i == 0 and qt < 3: L += l_fin(qt)
        e(f"s_add_u32 s{sT1}, s{sT0}, {4096*i}")
        if OPT['opk']:
            for k in range(4): e(f"v_pk_mul_f32 {v(t+2*k,2)}, {v(t+2*k,2)}, {v(l+2,2)} {LO2}")
        else:
            for k in range(8): e(f"v_mul_f32 v{t+k}, v{t+k}, v{l+2}")
        for k in range(4): e(f"v_cvt_pk_bf16_f32 v{p+k}, v{t+2*k}, v{t+2*k+1}")
        e(f"buffer_store_dwordx4 {v(p,4)}, v{aL16}, s[{SACT}:{SACT+3}], s{sT1} offen offset:{1024*qt} sc1 ; @o")
    return L

def fill(gaps, q, g0, cap):
    for gi in range(g0, len(gaps)):
        u = units(gaps[gi])
        if q and Ins(q[0]).kind == 'vst': gaps[gi].insert(0, q.pop(0)); u += 2
        while q:
            k = Ins(q[0]).kind
            if u + UNITS[k] > cap or k == 'vst': break
            gaps[gi].append(q.pop(0)); u += UNITS[k]

def p2_reads0():
    X = []
    for kk in range(2):
        for i in range(4):
            for hh in range(2): X.append(f"ds_read_b64_tr_b16 {a(128+kk*32+4*i+2*hh,2)}, v{aW+i} offset:{kk*8192+2048*hh}")
            X.append(f"ds_read_b128 {a(128+kk*32+16+4*i,4)}, v{aA+4+i} offset:{kk*8192}")
    return X
def p2_mfmas0():
    return [f"{MF} {v(128+(ct*4+qt)*4,4)}, {a(128+kk*32+4*ct,4)}, {a(128+kk*32+16+4*qt,4)}, {'0' if kk == 0 else v(128+(ct*4+qt)*4,4)}"
            for qt in (1, 2, 3, 0) for ct in range(4) for kk in range(2)]
def attn_last():
    L = []
    r0 = p2_reads0() if OPT['pre0'] else []
    for u in range(4):
        pb = u & 1
        q = o_stream(u - 1) if u else []
        if u < 3:
            mf = qk_mfmas(u + 1) + pv_mfmas(u, 1, pb)
            G = Gaps(33)
            for k, e_ in enumerate((13, 14, 15)): G.put(2*k+1, EXP(e_))
            G.put(2, CVT(6, pb)); G.put(6, CVT(7, pb))
            for e_ in range(13): G.put(8+2*e_, EXP(e_))
            for c in range(6): G.put(11+4*c, CVT(c, pb ^ 1))
            if u == 0:
                dm = [x.replace(" nt", "") for x in kv_dma(3, " ; @a3")]
                G.put(4, "s_waitcnt vmcnt(16) lgkmcnt(0)", force=True); G.put(4, "s_barrier", force=True)
                G.put(6, dm[0])
                for g, x in zip((7, 9, 13, 17), dm[1:5]): G.put(g, x)
                G.put(19, dm[5])
                for g, x in zip((21, 25, 29), dm[6:9]): G.put(g, x)
                G.put(31, dm[9], force=True); G.put(11, f"s_lshl_b32 s{sT0}, s{sHEAD}, 14")
                tail = dm[10:] + [f"s_cmp_ge_u32 s{sW}, 2", f"s_cselect_b32 s6, 0x3000, s{sMKV}", f"s_cselect_b32 s{sPZ}, {OOB}, s{sKV}", f"s_cselect_b32 s{sPZD}, {OOB}, s{sKV2}",
                                  f"s_add_u32 m0, s6, {8*16384}"]
                x4 = [f"buffer_load_dwordx4 v{aKD+i}, s[{P2WT}:{P2WT+3}], s{sPZ} offen offset:{1024*i} lds" for i in range(4)] + [f"s_add_u32 m0, s{sMKV}, {9*16384}"]
                x4 += [f"buffer_load_dwordx4 v{aL16}, s[{P2ACT}:{P2ACT+3}], s{sPZD} offen offset:{1024*i} sc1 lds ; @a3" for i in range(4)]
            gaps = G.out()
            if u == 0: gaps[32] += tail
            if u == 1:
                for g_, x in zip((0, 1, 2, 3, 4, 5, 6, 7, 8), x4): gaps[g_].insert(0, x)
            if u in (1, 2):
                for g_ in range(9 if u == 1 else 1, 33, 2):
                    if r0 and (u == 2 or len(r0) > 12): gaps[g_].insert(0, r0.pop(0))
            fill(gaps, q, 0, OPT['lcap'])
            w = weave(mf, gaps)
            L += (w[1:] if u == 0 else w) + q
        else:
            mf = pv_mfmas(3, 1, pb)
            L += [EXP(13), EXP(14), EXP(15), CVT(6, pb), CVT(7, pb)]
            if OPT['pre0'] == 2:
                head = L[-5:]; del L[-5:]
                h0 = p2_mfmas0()
                mf = h0[:8] + mf + h0[8:]
                L += ["s_waitcnt lgkmcnt(0)"]
                gaps = [[] for _ in mf]
                for g_, x in zip((0, 1, 2, 3, 4), head): gaps[g_].append(x)
                fill(gaps, q, 3, 2)
            else:
                k = 2
                L += q[:k]; q = q[k:]
                gaps = [[] for _ in mf]
                fill(gaps, q, 0, OPT['lcap'])
            L += weave(mf, gaps) + q
    return L

def attn_entry():
    A = []; e = A.append
    e("s_waitcnt vmcnt(0)"); e("s_barrier")
    for f in range(16): e(rd_k(f, 0))
    A += rd_v(0, 0)
    for i in range(16): e(f"v_mov_b32 v{LACC+i}, 0")
    for i in range(8): e(zero_o(i))
    C_ = []; e = C_.append
    e("s_waitcnt lgkmcnt(0)")
    mf = qk_mfmas(0)
    G = Gaps(16)
    G.put(0, f"s_mov_b32 s{sCNT}, 0"); G.put(1, f"s_cmp_lg_u32 s{sPASS}, 0"); G.put(1, f"s_cselect_b32 s{sT0}, 7, 1")
    q = srd(P2X, 72, 73, 4096*1024) + srd(P2OUT, 80, 81, 1376*1024) + pf_lanes()
    G.stream(2, q, 8); C_[:0] = q[:0]; rest = list(q)
    for e_ in range(8): G.put(8 + e_, EXP(e_))
    C_ += weave(mf, G.out())
    for c in range(4): e(CVT(c, 0))
    for e_ in range(8, 13): e(EXP(e_))
    for c in range(4, 6): e(CVT(c, 0))
    C_ += rest
    return A, C_

def part_soff(e, dst, store):
    for i in range(1, 4):
        e(f"s_add_u32 s6, s{sSP}, {i}"); e("s_and_b32 s6, s6, 3")
        if store: e("s_lshl_b32 s6, s6, 2"); e(f"s_add_u32 s6, s6, s{sSP}")
        else: e(f"s_lshl_b32 s7, s{sSP}, 2"); e("s_add_u32 s6, s6, s7")
        e("s_lshl_b32 s6, s6, 14"); e(f"s_add_u32 s{dst+i-1}, s6, s{sP2}")

def block_b():
    L = []; e = L.append
    e(f"s_mov_b32 s{sT0}, {TC}")
    e(f"s_cmp_lg_u32 s{sW}, 0"); e("s_cbranch_scc1 K1_LOOP")
    e(f"v_mov_b32 v{vSP}, s{sNON}")
    e("s_mov_b64 exec, 1")
    e(f"buffer_store_dword v{vSP}, off, s[{SWS}:{SWS+3}], s{sW2S} offset:4 sc1")
    e("s_mov_b64 exec, -1")
    return L

def block_c():
    L = []
    if OPT['cpf2']:
        L += [f"s_getpc_b64 s[{SGU}:{SGU+1}]", "KPC2:", f"s_mov_b32 s{SGU+2}, K1_END-KPC2", f"s_mov_b32 s{SGU+3}, 0x00020000",
              "s_lshr_b32 s6, s2, 3", "s_lshl_b32 s6, s6, 2", f"s_add_u32 s6, s6, s{sW}", "s_lshl_b32 s6, s6, 7",
              f"v_lshlrev_b32 v{T2}, 14, v{vLANE}", f"buffer_load_dword v{T2+1}, v{T2}, s[{SGU}:{SGU+3}], s6 offen"]
    return L + d1_addr(vD1+1, T2+4) + [f_load(vD1, vD1+1, 1), f"s_mov_b32 s{sT0}, 7"]
def block_l():
    A = [f_cmp(vD1), f"s_mov_b32 s{sT1}, 0", "s_cbranch_vccz K1_D1OK"]
    D1 = [f_load(vD1, vD1+1, 1), f"s_add_u32 s{sT1}, s{sT1}, 1", "s_sleep 8", "s_waitcnt vmcnt(0)", f_cmp(vD1),
          f"s_cmp_gt_u32 s{sT1}, {SPIN}", "s_cbranch_scc1 K1_D1OK", "s_cbranch_vccnz K1_D1POLL"]
    B = []; e = B.append
    B += srd(P2ACT, sA2, sA2+1, 0); e(f"s_mov_b32 s{P2ACT+2}, s{sSZ2}")
    if OPT['orot']: e(f"s_lshr_b32 s{sAR}, s2, 6"); e(f"s_and_b32 s{sAR}, s{sAR}, {OPT['omask']}"); e(f"s_lshl_b32 s{sAR}, s{sAR}, {12 + OPT['orot']}")
    else: e(f"s_mov_b32 s{sAR}, 0")
    for i in range(3): e(f"s_mov_b32 s{P2WT+i}, s{SWD+i}")
    t = 85
    e(f"v_lshrrev_b32 v{t}, 3, v{vLANE}"); e(f"v_and_b32 v{t+1}, 7, v{vLANE}"); e(f"v_and_b32 v{t+2}, 6, v{t}"); e(f"v_xor_b32 v{t+1}, v{t+1}, v{t+2}")
    e(f"v_lshlrev_b32 v{t}, 10, v{t}"); e(f"v_lshl_add_u32 v{aKD}, v{t+1}, 4, v{t}")
    for i in range(1, 4): e(f"v_add_u32 v{aKD+i}, {7168*i}, v{aKD}")
    for r in (aVD, aVD+1): e(f"v_mov_b32 v{r}, v{aL16}")
    e(f"s_mul_i32 s{sKV}, s{sSP}, {11*32768}"); e(f"s_mov_b32 s{sINC}, 65536")
    e(f"s_mul_i32 s{sKV2}, s{sSP}, {11*4096}"); e(f"s_add_u32 s{sKV2}, s{sKV2}, {128*4096}"); e(f"s_movk_i32 s{sINC2}, 8192")
    e(f"s_lshr_b32 s6, s{sW}, 1"); e("s_lshl_b32 s6, s6, 12"); e("s_add_u32 s6, s6, 65536"); e(f"s_lshl_b32 s7, s{sSP}, 10"); e(f"v_add_u32 v{t}, s6, v{aL16}")
    for i in range(4):
        e(f"v_add_u32 v{aA+4+i}, s7, v{t}")
        if i < 3: e("s_add_u32 s7, s7, 1024"); e("s_and_b32 s7, s7, 0xc00")
    e(f"s_and_b32 s6, s{sW}, 1"); e("s_lshl_b32 s6, s6, 12")
    e(f"v_lshrrev_b32 v{t}, 2, v{vLANE}"); e(f"v_and_b32 v{t+1}, 3, v{vLANE}"); e(f"v_bfe_u32 v{t+2}, v{vLANE}, 3, 2")
    e(f"v_lshlrev_b32 v{t}, 7, v{t}"); e(f"v_lshl_add_u32 v{t}, v{t+1}, 3, v{t}"); e(f"v_add_u32 v{t}, s6, v{t}")
    for ct in range(4):
        e(f"v_xor_b32 v{t+1}, {ct}, v{t+2}"); e(f"v_lshl_add_u32 v{aW+ct}, v{t+1}, 5, v{t}")
    e(f"s_mov_b32 s{sT0}, 8")
    return A, D1, B

def attn_check():
    L = []; e = L.append
    if OPT['pre0'] != 2: e("s_nop 11")
    t = 88
    L += l_fin(3)
    e(f"v_mov_b32 v{t}, {f2u(2.0**OPT['thr'])}")
    e(f"v_cmp_nle_f32 vcc, v{LACC}, v{t}"); e(f"v_cmp_nle_f32 s[6:7], v{LACC+4}, v{t}")
    e(f"v_cmp_nle_f32 s[44:45], v{LACC+8}, v{t}"); e(f"v_cmp_nle_f32 s[46:47], v{LACC+12}, v{t}")
    e("s_nop 1")
    e("s_or_b64 s[6:7], s[6:7], vcc"); e("s_or_b64 s[44:45], s[44:45], s[46:47]"); e("s_or_b64 s[6:7], s[6:7], s[44:45]")
    e("s_cselect_b32 s6, 1, 0")
    e(f"v_mov_b32 v{t}, s6"); e(f"s_lshl_b32 s7, s{sW}, 2"); e(f"s_add_u32 s7, s7, {CHK_LDS}"); e(f"v_mov_b32 v{t+1}, s7"); e(f"v_mov_b32 v{t+2}, {CHK_LDS}")
    e(f"ds_write_b32 v{t+1}, v{t}"); e(WAITMARK + "a3|lgkmcnt(0)"); e("s_barrier")
    e(f"ds_read_b128 {v(t+4,4)}, v{t+2}"); e("s_waitcnt lgkmcnt(0)")
    e(f"v_or_b32 v{t+4}, v{t+4}, v{t+5}"); e(f"v_or3_b32 v{t+4}, v{t+4}, v{t+6}, v{t+7}"); e("s_nop 0")
    e(f"v_readfirstlane_b32 s6, v{t+4}"); e("s_nop 1")
    if OPT['twice']: e("s_mov_b32 s6, 1")
    e(f"s_cmp_gt_u32 s6, s{sPASS}"); e("s_cbranch_scc1 K1_SLOW")
    return L

def attn_slow():
    P = []; e = P.append
    MX = T2
    for qt in range(4): e(f"v_mov_b32 v{MX+qt}, 0xff800000")
    e(f"s_mov_b32 s{sKV}, 0"); e("s_waitcnt vmcnt(0)")
    P += srd(SK, sKVB, sKVB+1, 524288) + srd(SV, sKVB+2, sKVB+3, 524288)
    e(f"s_movk_i32 s{sINC}, 16384"); e(f"s_movk_i32 s{sINC2}, 16384"); e(f"s_mov_b32 s{sKV2}, 0")
    e(f"v_and_b32 v{T2+8}, 15, v{vLANE}"); e(f"v_lshrrev_b32 v{T2+9}, 4, v{vLANE}")
    P += kv_voff(T2+8, T2+9, T2+10) + loop_addr_setup(T2+8)
    B = []; e = B.append
    e("s_barrier")
    e(f"s_mov_b32 m0, s{sMKV}"); e("s_nop 0")
    for i in range(4): e(f"buffer_load_dwordx4 v{aKD+i}, s[{SK}:{SK+3}], s{sKV} offen offset:{1024*i} lds")
    e("s_waitcnt vmcnt(0)"); e("s_barrier")
    for f in range(16): e(rd_k(f, 0))
    e("s_waitcnt lgkmcnt(0)")
    for qt in range(4):
        B += qk_mfmas(qt, zero=True)
        e("s_nop 7")
        for i in range(8): e(f"v_max3_f32 v{MX+qt}, v{MX+qt}, v{SB+2*i}, v{SB+2*i+1}")
        e("s_nop 3")
    e(f"s_add_u32 s{sKV}, s{sKV}, 16384"); e(f"s_cmp_lt_u32 s{sKV}, 524288")
    Q = []; e = Q.append
    Q += xlane_reduce("v_max_f32", [MX+q for q in range(4)], [MX+4+q for q in range(4)])
    for qt in range(4):
        for r in range(4): e(f"v_sub_f32 v{NEGM+4*qt+r}, 0, v{MX+qt}")
    e(f"s_mov_b32 s{sPASS}, 1"); e(f"s_mov_b32 s{sKV}, 0"); e("s_barrier")
    for s_ in range(4): Q += with_m0_nops(kv_dma(s_))
    if OPT['twice']:
        B = ["s_cmp_lg_u32 s2, s2"]; Q = Q[Q.index(f"s_mov_b32 s{sPASS}, 1"):]
    return P, B, Q

def k1():
    pre = k1_setup()
    pre += k1_setup2(pre)
    if OPT['gulate']: pre += with_m0_nops(dma_w(0, 0)[5:])
    if OPT['stamp']:
        pre += ["v_mov_b32 v8, s98", "v_mov_b32 v9, s100", "s_nop 1", f"buffer_store_dwordx2 v[8:9], off, s[{SST}:{SST+3}], s{sSTo}", "s_nop 1"]
        stamp_n[0] = 1
    if not OPT['fast0']:
        pre += with_m0_nops(dma_w(1, 1))
        if OPT['stpos'] == 1: pre += st_loads()
    if OPT['w1e']: pre += with_m0_nops(dma_w(1, 1)[:5 if OPT['w1e'] == 2 else 99])
    pre += stamp(8)
    pre += [f"s_waitcnt vmcnt({vm_after(pre, ['X0'] if OPT['gub'] else ['W0', 'X0'])})", "s_barrier"]
    pre += stamp(8)
    rw = rd_e(0) + rd_x(0) + sum((rd_w(m, 0) for m in range(14)), [])
    dx = dma_x(1, 1) if not OPT['fast0'] else dma_w(1, 1)
    n_ = 3 if not OPT['fast0'] else 5
    if OPT['gub']:
        rw = rd_x(0) + sum((rd_w(m, 0) for m in range(8)), []); n_ = 3
        if OPT['w1late']: dx = []
        if OPT['w1e'] == 1: dx = dma_x(1, 1)
        if OPT['w1e'] == 2: dx = dma_w(1, 1)[5:]; n_ = 4
    for i, x in enumerate(dx): pre += rw[n_*i:n_*i+n_] + [x]
    pre += rw[n_*len(dx):]
    if not OPT['fast0']: pre += k1_stats(pre)
    pre += ["s_waitcnt lgkmcnt(15)"]
    carry = []; bg = k1_setup3()
    for st in range(8):
        ph, carry = gemm_phase(st, carry, bg)
        ph = resolve_waits(pre, ph)
        n, over, bad = gap_report(ph)
        if over > 1 or bad: print(f"; gemm phase {st}: gaps {n} over {over} bad {bad}", file=sys.stderr)
        pre += ph
        if OPT['stamp'] == 2 and st < 7: pre += stamp(TM+6 if st == 0 or st == 1 else SXA+6 if st < 6 else TM)
    pre += stamp(TM)
    pre += resolve_waits(pre, k1_post_gemm())
    pre += stamp(T2+24)
    eA, eC = attn_entry()
    eC += stamp(T2+24)
    d0 = [f"s_mov_b32 s{sCNT}, 0", "K1_D0LOOP:", f_load(vD0, aD0, 0), f"s_add_u32 s{sCNT}, s{sCNT}, 1", "s_sleep 4", "s_waitcnt vmcnt(0)", f_cmp(vD0),
          f"s_cmp_gt_u32 s{sCNT}, {SPIN}", "s_cbranch_scc1 K1_D0OK", "s_cbranch_vccnz K1_D0LOOP", "s_branch K1_D0OK",
          "K1_NPOLL:", f"s_mov_b32 s{sCNT}, 0", "K1_NLOOP:", f"buffer_load_dword v{TM+1}, off, s[{SDBG}:{SDBG+3}], 0 sc1", f"s_add_u32 s{sCNT}, s{sCNT}, 1",
          "s_sleep 4", "s_waitcnt vmcnt(0)", f"v_cmp_eq_u32 vcc, 0, v{TM+1}", f"s_cmp_gt_u32 s{sCNT}, {SPIN}", "s_cbranch_scc1 K1_NOK", "s_cbranch_vccnz K1_NLOOP", "s_branch K1_NOK"]
    body = []
    for jm in range(4):
        for u in range(4): body += attn_step(jm, u)
    n, over, bad = gap_report(body)
    print(f"; attn loop: gaps {n} over {over} bad {bad}", file=sys.stderr)
    bB, bC = block_b(), block_c()
    last = attn_last()
    chk = stamp(T2+24+6, True) + attn_check()
    chk = resolve_waits(last, chk)
    sP, sB_, sQ = attn_slow()
    post = stamp(98)
    p2t, p2t2, p2c = phase2(o_stream(3), last + chk + post)
    lA, lD, lB = block_l()
    if OPT['stamp'] == 4:
        body += ["s_cselect_b32 s93, 1, 0", "s_memtime s[94:95]", "s_memrealtime s[96:97]", "s_waitcnt lgkmcnt(0)", "v_mov_b32 v88, s94", "v_mov_b32 v89, s96",
                 f"s_lshl_b32 s6, s{sCNT}, 3", f"s_add_u32 s6, s6, s{sSTo}", f"buffer_store_dwordx2 v[88:89], off, s[{SST}:{SST+3}], s6 offset:160", "s_cmp_lg_u32 s93, 0"]
    m0_ = body[0]; body = body[1:] + [m0_]; eC = eC + [m0_]
    cut = body.index("s_cbranch_scc1 K1_LAST") + 1
    br = ["s_cbranch_scc1 K1_LOOP"]
    mid = [f"s_cmp_eq_u32 s{sCNT}, 7", "s_cbranch_scc1 K1_BLKL", f"s_cmp_eq_u32 s{sCNT}, {TC}", "s_cbranch_scc1 K1_BLKC"]
    J = ["s_branch K1_LOOP"]
    errs = check(pre + eC + body + br + mid + bB + J + body + br + mid + bC + J + body + br + mid[:2] + lA + lD + lB + J + body[:cut] + last + chk + post + p2t, 'k1')
    errs += check(body[:cut] + last + chk + sP + sB_ + ["s_cbranch_scc1 X"] + sB_ + ["s_cbranch_scc1 X"] + sQ + ["s_branch X"] + eA + eC + body + br + mid[:2] + lA + lB + J + body[:cut] + last + chk + post + p2t2, 'k1slow')
    assert not errs
    return (pre + ["K1_HAVEMAX:"] + eC + [".p2align 6"] + ["s_nop 0"]*OPT["lal"] + ["K1_LOOP:"] + body + br + mid + bB + J
            + ["K1_BLKC:"] + bC + J + ["K1_BLKL:"] + lA + ["K1_D1POLL:"] + lD + ["K1_D1OK:"] + lB + J
            + ["K1_SLOW:"] + sP + ["K1_SLOWLOOP:"] + sB_ + ["s_cbranch_scc1 K1_SLOWLOOP"] + sQ + eA + ["s_branch K1_HAVEMAX"] + ["K1_D0POLL:"] + d0
            + ["K1_LAST:"] + last + chk + post + p2c + ["K1_END:", "s_endpgm"])

def phase2(epi, before):
    NH = 6; NST = 22
    FR = 128
    SA = 0; DA = 128
    T = 88; STV = 98
    PKD = 192; RXD = 216; PKS = 192; RXS = 216
    sAo, sWo = sX0, sX1
    SIGI, POLLI = OPT['sigi'], OPT['polli']
    nk = lambda st: 1 if st == 4 else 2
    slot = {}
    for st in range(4): slot[('w', st)] = st; slot[('a', st)] = 4 + st
    slot[('w', 4)] = 8; slot[('a', 4)] = 9
    free = []
    nxt = {'w': 5, 'a': 5}
    def dma(kind):
        st = nxt[kind]; nxt[kind] += 1
        sl = free.pop(0); slot[(kind, st)] = sl
        X = [f"s_add_u32 m0, s{sMKV}, {sl*16384}"]
        if kind == 'a':
            for i in range(4): X.append(f"buffer_load_dwordx4 v{aL16}, s[{P2ACT}:{P2ACT+3}], s{sAo} offen offset:{1024*i} sc1 lds ; @{kind}{st}")
            if st == NH - 1: X += [f"s_mov_b32 s{sAo}, s{sAR}", f"s_lshl_b32 s{sKV2}, s{sSP}, 17", f"s_add_u32 s{P2ACT}, s{P2ACT}, s{sKV2}", f"s_addc_u32 s{P2ACT+1}, s{P2ACT+1}, 0"]
            else: X += [f"s_xor_b32 s{sAo}, s{sAR}, {(st + 1 - NH)*8192}"]
        else:
            sr = SWD if st < NH else SWO
            for i in range(4): X.append(f"buffer_load_dwordx4 v{aKD+i}, s[{sr}:{sr+3}], s{sWo} offen offset:{1024*i} lds ; @{kind}{st}")
            if st == NH - 1: X += [f"s_lshl_b32 s{sWo}, s{sAR}, 3", f"s_lshl_b32 s{sKV}, s{sAR}, 3"]
            else: X += [f"s_xor_b32 s{sWo}, s{sKV}, {(st + 1 - NH)*65536}"]
        return X
    done = list(before)
    S = ["s_mov_b64 exec, 1", f"buffer_store_dword v{T}, off, s[{SWS}:{SWS+3}], s{sW2S} offset:8 sc1", "s_mov_b64 exec, -1"]
    FLD = f_load(vFL, aFL, 2)
    P = [FLD, f"s_add_u32 s{sCNT}, s{sCNT}, 1", "s_waitcnt vmcnt(0)",
         f_cmp(vFL), f"s_cmp_gt_u32 s{sCNT}, {SPIN}", "s_cbranch_scc1 P2_GO", "s_cbranch_vccnz P2_POLL"]
    q = list(epi); e = q.append
    q2 = []; e = q2.append
    for i in range(4):
        e(f"v_add_u32 v{aA+8+i}, 65536, v{aA+4+i}"); e(f"v_add_u32 v{aW+8+i}, 131072, v{aW+i}")
    for i in range(4):
        e(f"v_subrev_u32 v{aA+i}, 65536, v{aA+4+i}"); e(f"v_add_u32 v{aW+4+i}, 65536, v{aW+i}")
    e(f"v_and_b32 v{T+1}, 7, v{vLANE}"); e(f"v_lshl_add_u32 v{T+1}, s{sSP}, 3, v{T+1}")
    q2 += bid_of(aFL, T+1, f"s{sFQB}", T+2)
    if OPT['lpz']:
        q2 += ["s_and_b32 s6, s2, 0xe7" if OPT['xl'] else "s_and_b32 s6, s2, 0xfc", f"v_and_b32 v{T+1}, {0x18 if OPT['xl'] else 3}, v{vLANE}", f"v_add_u32 v{T+1}, s6, v{T+1}", f"v_lshlrev_b32 v{T+1}, 7, v{T+1}", f"v_add_u32 v{aPF}, {FLAG_OFF}, v{T+1}"]
    q2 += srd(P2X, sXP, sXP+1, 2048*1024) + srd(P2OUT, sOUT, sOUT+1, 2048*1024)
    e(f"v_and_b32 v{T+1}, 15, v{vLANE}"); e(f"v_lshrrev_b32 v{T+2}, 4, v{vLANE}"); e(f"v_lshlrev_b32 v{T+1}, 10, v{T+1}"); e(f"v_lshl_add_u32 v{aXO}, v{T+2}, 3, v{T+1}")
    part_soff(e, 49, False)
    aLP = 113
    e(f"v_mov_b32 v{aLP}, s49"); e(f"v_writelane_b32 v{aLP}, s50, 1"); e(f"v_writelane_b32 v{aLP}, s51, 2")
    e(f"v_mov_b32 v{T}, s{sNON}")
    L = []; e = L.append
    e(f"s_add_u32 s{sAo}, s{sKV2}, 4096"); e(f"s_add_u32 s{sWo}, s{sKV}, 32768")
    OL = OPT['ownlast']
    fbase = lambda st: (st & 1)*64 + (0 if OL > 2 and st in (NST-4, NST-3) else FR)
    def reads(st):
        X = []
        for kk in range(nk(st)):
            b = fbase(st) + kk*32
            hw, lw = divmod(slot[('w', st)]*16384 + kk*8192, 65536)
            ha, la = divmod(slot[('a', st)]*16384 + kk*8192, 65536)
            for i in range(4):
                if not (NH <= st < NH + OPT['nrs']):
                    for hh in range(2): X.append(f"ds_read_b64_tr_b16 {a(b+4*i+2*hh,2)}, v{aW+4*hw+i} offset:{lw+2048*hh}")
                X.append(f"ds_read_b128 {a(b+16+4*i,4)}, v{aA+4*ha+i} offset:{la}")
        return X
    def mfmas(st, qts=(1, 2, 3, 0)):
        X = []
        b = fbase(st); acc = DA if st < NH else SA
        for qt in qts:
            for ct in range(4):
                d = v(acc+(ct*4+qt)*4, 4)
                for j_, kk in enumerate(range(nk(st)) if not (OPT['gsn'] and ct & 1) else range(nk(st)-1, -1, -1)):
                    wf = (st-NH)*32 + kk*16 + 4*ct if NH <= st < NH + OPT['nrs'] else b+kk*32+4*ct
                    X.append(f"{MF} {d}, {a(wf,4)}, {a(b+kk*32+16+4*qt,4)}, {'0' if (st in (0, NH) and j_ == 0) else d}")
        return X
    def pack(acc, pk, i):
        X = []
        for ct in range(4):
            x = acc + (ct*4+i)*4; d = pk + (i-1)*8 + 2*ct
            X += [f"v_cvt_pk_bf16_f32 v{d}, v{x}, v{x+1}", f"v_cvt_pk_bf16_f32 v{d+1}, v{x+2}, v{x+3}"]
        return X
    def pst(pk, i, half): return [f"buffer_store_dwordx4 {v(pk+(i-1)*8+4*j,4)}, v{aL16}, s[{P2PART}:{P2PART+3}], s{sPS+i-1} offen offset:{2048*half+1024*j}" + ("" if OPT['xl'] >= 2 else " sc1") for j in range(2)]
    rD = lambda i, k: RXD + i*8 + k
    rS = lambda i, k: SA + ((k >> 2)*4 + i + 1)*4 + (k & 3)
    def pld(rx, half): return [f"buffer_load_dwordx4 {v(rx(i, 4*j),4)}, v{aL16}, s[{P2PART}:{P2PART+3}], s{49+i} offen offset:{2048*half+1024*j} sc1" for i in range(3) for j in range(2)]
    def pchk(rx):
        R = [rx(i, k) for i in range(3) for k in range(8)]
        X = [f"v_max3_u32 v{T}, v{R[0]}, v{R[1]}, v{R[2]}", f"v_max3_u32 v{T+1}, v{R[3]}, v{R[4]}, v{R[5]}"]
        for k in range(6, 24, 2): X.append(f"v_max3_u32 v{T+(k//2)%2}, v{T+(k//2)%2}, v{R[k]}, v{R[k+1]}")
        return X + [f"v_max_u32 v{T}, v{T}, v{T+1}", f"v_cmp_eq_u32 vcc, -1, v{T}"]
    segs = []
    NRS = OPT['nrs']
    staged = list(range(NH, NH + NRS)); half = (NRS + 1) // 2
    def stage_reads(st):
        X = []
        for kk in range(2):
            hw, lw = divmod(slot[('w', st)]*16384 + kk*8192, 65536)
            for i in range(4):
                for hh in range(2): X.append(f"ds_read_b64_tr_b16 {a((st-NH)*32+kk*16+4*i+2*hh,2)}, v{aW+4*hw+i} offset:{lw+2048*hh}")
        return X
    def body(mf, rd, dm, last=False, ships=(1, 2)):
        nonlocal q
        n = len(mf); gaps = [[] for _ in mf]
        ev = list(range(0, n - 6, 2)); od = list(range(1, n, 2))
        if OPT['lay'] == 1 and n == 32 and len(rd) <= 24: ev = list(range(0, 12)); od = list(range(12, 32, 2))
        if OPT['lay'] == 2 and n == 32 and len(rd) <= 24: ev = [g_ for g_ in range(0, 26) if g_ % 4 != 3]; od = list(range(1, n, 2))
        per = -(-len(rd) // len(ev)) if rd else 0
        per = max(per, 2)
        if OPT['lay'] == 2 and n == 32 and len(rd) <= 24:
            for k, x in enumerate(rd): gaps[ev[(k * len(ev)) // len(rd)]].append(x)
        else:
            for k, x in enumerate(rd): gaps[ev[k // per]].append(x)
        nv = sum(x.startswith('buffer') for x in dm)
        if OPT['spread'] and 0 < nv <= len(od) - 1:
            ps = [1 + (k * (len(od) - 1)) // nv for k in range(nv)]
            k = 0; pend = []
            for x in dm:
                if x.startswith('buffer'):
                    p = ps[k]; k += 1
                    if pend:
                        if p - 1 not in ps: gaps[od[p-1]] += pend
                        else: gaps[od[p] - 1] += pend
                        pend = []
                    gaps[od[p]].append(x)
                else: pend.append(x)
            gaps[min(od[ps[-1]] + 1, n - 1)] += pend
        else:
            ng = sum('m0,' in x for x in dm)
            roomy = nv + ng <= len(od)
            pv = 1 if roomy else -(-nv // len(od))
            gi = 0; cnt = 0
            for x in dm:
                if x.startswith('buffer'):
                    gaps[od[gi]].append(x); cnt += 1
                    if cnt == pv: gi = min(gi + 1, len(od) - 1); cnt = 0
                else:
                    gaps[od[gi]].append(x)
                    if 'm0,' in x:
                        if roomy: gi += 1
                        else: gaps[od[gi]].append("s_nop 0")
        if last:
            for i in ships:
                for k, x in enumerate(pack(last[0], last[1], i)): gaps[8*i + 4 + k//2].append(x)
                if last[2] is not None:
                    for k, x in enumerate(pst(last[1], i, last[2])): gaps[8*i + 8 + k].insert(0, x)
        if q: fill(gaps, q, 0, OPT['ecap'])
        elif q2: fill(gaps, q2, 0, 2)
        return weave(mf, gaps)
    def sync(tags):
        n = vm_after(done + L, tags)
        return ["s_waitcnt " + (f"vmcnt({n}) " if n is not None else "") + "lgkmcnt(0)", "s_barrier"]
    if not OPT['pre0']:
        L += reads(0)
        while Ins(q[0]).kind != 'vst': L.append(q.pop(0))
    for st in range(1, NH + 1):
        if st == min(SIGI, 4): L += q + q2; q = []; del q2[:]
        sr = staged[:half] if st == NH - 1 else staged[half:] if st == NH else []
        if not (st == 1 and OPT['pre0']): L += sync(([f"a{st}", f"w{st}"] if st < NH else []) + (['o'] if st == SIGI else []) + [f"w{s_}" for s_ in sr] + (['f'] if st == NH and OPT['ea'] else []))
        free += [slot[('w', st-1)], slot[('a', st-1)]]
        if st == NH: free += [slot[('w', s_)] for s_ in staged[:half]]
        if st == SIGI:
            L += [f"s_cmp_lg_u32 s{sW}, 0", "s_cbranch_scc1 P2_NOSIG"]
            segs.append(L); done += L; L = stamp(STV); e = L.append
        rd = (reads(st) if st < NH else []) + sum((stage_reads(s_) for s_ in sr), [])
        dm = []
        if st == 1 and OPT['pre0'] == 2:
            d5 = dma('w') + dma('a')
            L += rd
            while q:
                x = q.pop(0); L.append(x)
                if Ins(x).kind == 'vst': L += with_m0_nops(d5[:3]); d5 = d5[3:]
            L += with_m0_nops(d5)
            continue
        if st == 1:
            if OPT['pre0']: dm = dma('w') + dma('a')
            else: L += with_m0_nops(dma('w') + dma('a'))
        elif st >= OPT['dstart']:
            while len(free) > 0 and nxt['w'] < NH + OPT['wpre'] and sum('m0,' in x for x in dm) < OPT['dmax']: dm += dma('w')
        EA = OPT['ea']
        if st == NH - (1 if EA else 0): dm = [FLD + " ; @f"] + dm
        if st == NH and EA:
            L += [f_cmp(vFL), f"s_mov_b32 s{sT0}, s{sAo}", "s_cmp_eq_u64 vcc, 0", f"s_cselect_b32 s{P2ACT+2}, s{sSZ2}, 0"]
            ea = []
            for _ in range(OPT['a0']): ea += dma('a')
            dm = [x.split(' ; @')[0] for x in ea] + dm
        if st == NH and OPT['xearly']: dm += [f"buffer_load_dwordx2 {v(XR+2*ct,2)}, v{aXO}, s[{P2X}:{P2X+3}], s{sXO} offen offset:{32*ct}" for ct in range(4)]
        assert not (q and sr)
        L += body(mfmas(st - 1), rd, dm, last=(DA, PKD, None) if st == NH else False)
    L += pack(DA, PKD, 3)
    dst = pst(PKD, 1, 1) + pst(PKD, 2, 1) + pst(PKD, 3, 1)
    if not EA:
        L += sync(['f'])
        free += [slot[('w', s_)] for s_ in staged[half:]]
        L += [f_cmp(vFL), f"s_mov_b32 s{sCNT}, 0", f"v_mov_b32 v{T+1}, v{aL16}", "s_cbranch_vccz P2_GO"]
        segs.append(L); done += L
        segs.append(dst + [f"v_mov_b32 v{T+1}, {OOB}"])
        R = []
        L = stamp(STV); e = L.append
        for _ in range(OPT['a0']): L += with_m0_nops(dma('a'))
    else:
        if OPT['dst0'] == 0: L += dst; dst = []
        L += [f"s_mov_b32 s{sCNT}, 0", f"v_mov_b32 v{T+1}, v{aL16}", f"s_cmp_lg_u32 s{P2ACT+2}, 0", "s_cbranch_scc1 P2_RUN"]
        segs.append(L); done += L
        segs.append(dst + [f"v_mov_b32 v{T+1}, {OOB}", f"s_mov_b32 s{P2ACT+2}, s{sSZ2}", f"s_mov_b32 s{sAo}, s{sT0}"])
        R = with_m0_nops(ea)
        done += [x for x in R if x.startswith('buffer')]
        L = stamp(STV); e = L.append
    dst = [x.replace(f"v{aL16},", f"v{T+1},") for x in dst]
    eatail = 0
    for st in range(NH, NST + 1):
        dm = []; rd = []
        if st < NST:
            if OPT['ea'] and st == NH: L += ["s_waitcnt vmcnt(%d) lgkmcnt(0)" % min(4*(OPT['a0']-1), eatail + 4*(OPT['a0']-1)), "s_barrier"]; free += [slot[('w', s_)] for s_ in staged[half:]]
            else: L += sync([f"a{st}", f"w{st}"] + (['pf'] if st == NST - 2 else []))
            if st > NH:
                free += [slot[('a', st-1)]] + ([slot[('w', st-1)]] if st-1 not in staged else [])
            rd = reads(st)
            def more():
                if st == NH: return sum('m0,' in x for x in dm) < OPT['a1']
                if min(nxt['a'], nxt['w']) <= st + OPT['la']: return True
                return sum('m0,' in x for x in dm) < OPT['gmax'] and (nxt['a'] + nxt['w'] - base) * 100 < OPT['pace'] * (st - NH)
            if st == NH + 1: base = nxt['a'] + nxt['w']
            while free and (nxt['a'] < NST or nxt['w'] < NST) and more():
                k = 'a' if (nxt['a'] <= nxt['w'] + OPT['alead'] or nxt['w'] >= NST) and nxt['a'] < NST else 'w'
                dm += dma(k)
            if st >= OPT['dst0'] and dst: dm += dst[:2]; dst = dst[2:]
            if st == NST - 3 and not OPT['xearly']: dm += [f"buffer_load_dwordx2 {v(XR+2*ct,2)}, v{aXO}, s[{P2X}:{P2X+3}], s{sXO} offen offset:{32*ct}" for ct in range(4)]
            if OPT['lpz'] and st == NST - 5: dm += [f_load(vPF, aPF, 2) + " ; @pf"]
            if OPT['lpz'] and st == NST - 2:
                L += [f_cmp(vPF), f"s_mov_b32 s{sCNT}, 0", "s_cbranch_vccnz P2_PFPOLL", "P2_PFOK:"]
            if st == NST - 2: dm += pld(rD, 1)
        else:
            L += ["s_waitcnt lgkmcnt(0)"]
        if (OPT['stamp'] == 5 and st % 2 == 0) or (OPT['stamp'] == 6 and st in (10, 14, 17, 19, 21)): L += stamp(STV)
        if st == NH: L += rd + with_m0_nops(dm)
        elif OL and st == NST:
            mf = mfmas(st - 1, (1, 2, 3)) + sum((mfmas(s_, (0,)) for s_ in range(NST - OL, NST)), [])
            L += body(mf, rd, dm, last=(SA, PKS, 0), ships=(1, 2, 3))
        elif OL and st > NST - OL: L += body(mfmas(st - 1, (1, 2, 3)), rd, dm)
        else: L += body(mfmas(st - 1), rd, dm, last=(SA, PKS, 0) if st == NST else False)
    L += stamp(STV)
    if not OL: L += pack(SA, PKS, 3) + pst(PKS, 3, 0)
    if OPT['searly'] == 1: L += pld(rS, 0)
    e(f"s_mov_b32 s{sCNT}, 0"); e(f"s_waitcnt vmcnt({12 if OPT['searly'] == 1 else 6})")
    L += pchk(rD); e("s_cbranch_vccz P2_DOK")
    XD = pld(rD, 1) + [f"s_add_u32 s{sCNT}, s{sCNT}, 1", "s_waitcnt vmcnt(0)"] + pchk(rD) + [f"s_cmp_gt_u32 s{sCNT}, {SPIN}", "s_cbranch_scc1 P2_DOK", "s_cbranch_vccnz P2_DPOLL"]
    M = []; e = M.append
    def accum(acc, rx, ct):
        for i in range(3):
            for h in range(2):
                p = rx(i, 2*ct + h)
                e(f"v_lshlrev_b32 v{T+2*h}, 16, v{p}"); e(f"v_and_b32 v{T+2*h+1}, s{sMASK}, v{p}")
            for h in range(2): e(f"v_pk_add_f32 {v(acc+ct*16+2*h,2)}, {v(acc+ct*16+2*h,2)}, {v(T+2*h,2)}")
    for ct in range(4): accum(DA, rD, ct)
    light = OPT['searly'] == 2
    LP = [f"buffer_load_dword v{T+4+i}, off, s[{P2PART}:{P2PART+3}], s{49+i} offset:2044 sc1" for i in range(3)]
    LC = [f"v_max3_u32 v{T+4}, v{T+4}, v{T+5}, v{T+6}", f"v_cmp_eq_u32 vcc, -1, v{T+4}"]
    if not OPT['searly']: M += pld(rS, 0)
    multi = OPT['searly'] == 3
    LP1 = lambda k: f"buffer_load_dword v{240+k}, v{aLP}, s[{P2PART}:{P2PART+3}], 0 offen offset:2044 sc1"
    for ct in range(4):
        if multi: e(LP1(ct))
        D_ = DA + ct*16; T_ = D_ + 4; X_ = D_ + 8
        for r in range(4): e(f"v_mul_f32 v{T_+r}, {f2u(-LOG2E)}, v{D_+r}")
        for r in range(4): e(f"v_exp_f32 v{T_+r}, v{T_+r}")
        e(f"v_lshlrev_b32 v{X_}, 16, v{XR+2*ct}"); e(f"v_and_b32 v{X_+1}, s{sMASK}, v{XR+2*ct}")
        for r in range(4): e(f"v_add_f32 v{T_+r}, 1.0, v{T_+r}")
        for r in range(4): e(f"v_rcp_f32 v{T_+r}, v{T_+r}")
        e(f"v_lshlrev_b32 v{X_+2}, 16, v{XR+1+2*ct}"); e(f"v_and_b32 v{X_+3}, s{sMASK}, v{XR+1+2*ct}")
        for h in (0, 2): e(f"v_pk_mul_f32 {v(T_+h,2)}, {v(T_+h,2)}, {v(D_+h,2)}")
    e(f"s_mov_b32 s{sCNT}, 0")
    if light:
        M += ["P2_LPOLL:"] + LP + [f"s_add_u32 s{sCNT}, s{sCNT}, 1"] + ([f"s_sleep {OPT['slp']}"] if OPT['slp'] else []) + ["s_waitcnt vmcnt(0)"] + LC
        M += [f"s_cmp_gt_u32 s{sCNT}, {SPIN}", "s_cbranch_scc1 P2_SPOLL", "s_cbranch_vccnz P2_LPOLL"]
    elif multi:
        M += ["P2_LPOLL:"]
        for k in range(4):
            M += ["s_waitcnt vmcnt(3)", f"v_cmp_eq_u32 vcc, -1, v{240+k}", "s_cbranch_vccz P2_SPOLL", LP1(k)]
        M += [f"s_add_u32 s{sCNT}, s{sCNT}, 1", f"s_cmp_gt_u32 s{sCNT}, {SPIN}", "s_cbranch_scc0 P2_LPOLL"]
    else:
        e("s_waitcnt vmcnt(0)")
        M += pchk(rS); e("s_cbranch_vccz P2_FIN")
    XS = pld(rS, 0) + [f"s_add_u32 s{sCNT}, s{sCNT}, 1", "s_waitcnt vmcnt(0)"] + pchk(rS) + [f"s_cmp_gt_u32 s{sCNT}, {SPIN}", "s_cbranch_scc1 P2_FIN", "s_cbranch_vccnz P2_SPOLL"]
    F = []; e = F.append
    F += stamp(STV)
    for ct in range(4):
        accum(SA, rS, ct)
        S_ = SA + ct*16; T_ = DA + ct*16 + 4; X_ = T_ + 4
        for h in (0, 2): e(f"v_pk_fma_f32 {v(X_+h,2)}, {v(S_+h,2)}, {v(T_+h,2)}, {v(X_+h,2)}")
        e(f"v_cvt_pk_bf16_f32 v{S_}, v{X_}, v{X_+1}"); e(f"v_cvt_pk_bf16_f32 v{S_+1}, v{X_+2}, v{X_+3}")
        e(f"buffer_store_dwordx2 {v(S_,2)}, v{aXO}, s[{P2OUT}:{P2OUT+3}], s{sXO} offen offset:{32*ct}" + ["", " sc1", " nt", " sc0 sc1"][OPT['outm']])
    if OPT['stamp']: F += ["s_waitcnt vmcnt(0)"] + stamp(STV, True)
    if OPT['echo']:
        F += ["s_waitcnt vmcnt(0)"] + stamp(STV) + ["s_memrealtime s[94:95]", "s_waitcnt lgkmcnt(0)", "s_sub_u32 s97, s97, s96", "s_mov_b32 s96, s94",
              "ECHO_LOOP:", "s_memrealtime s[94:95]", "s_waitcnt lgkmcnt(0)", "s_sub_u32 s94, s94, s96", "s_cmp_lt_u32 s94, s97", "s_cbranch_scc1 ECHO_LOOP"]
        print("; echo markers:", echo_n[0], file=sys.stderr)
    assert len(segs) == 3
    trace = segs[0] + segs[1] + L + M + (XS if light or multi else []) + F
    trace2 = segs[0] + S + segs[1] + segs[2] + P + P + R + L + XD + M + XS + F
    code = (segs[0] + S + ["P2_NOSIG:"] + segs[1] + segs[2] + ["P2_POLL:"] + P + ["P2_GO:"] + R + ["P2_RUN:"] + L
            + ["P2_DPOLL:"] + XD + ["P2_DOK:"] + M + ["P2_SPOLL:"] + XS + ["P2_FIN:"] + F + ["s_endpgm", "P2_PFPOLL:", f_load(vPF, aPF, 2), f"s_add_u32 s{sCNT}, s{sCNT}, 1", "s_waitcnt vmcnt(0)",
               f_cmp(vPF), f"s_cmp_gt_u32 s{sCNT}, {SPIN}", "s_cbranch_scc1 P2_PFOK", "s_cbranch_vccnz P2_PFPOLL", "s_branch P2_PFOK"])
    return trace, trace2, code

def kd(name, nv, acc, ns=102):
    return f""".amdhsa_kernel {name}
  .amdhsa_next_free_vgpr {nv}
  .amdhsa_next_free_sgpr {ns}
  .amdhsa_accum_offset {acc}
  .amdhsa_group_segment_fixed_size 0
  .amdhsa_kernarg_size 96
  .amdhsa_user_sgpr_count 2
  .amdhsa_user_sgpr_kernarg_segment_ptr 1
  .amdhsa_system_sgpr_workgroup_id_x 1
.end_amdhsa_kernel
"""
def fmt(L): return "\n".join(x if (x.endswith(':') or x.startswith('.')) else "    " + x for x in L)

NAME = "recurrent_scan__gqa_block_cached__glu_gated_glu__prompt_kernel"
HEAD = f"""; out = x + (softmax(q k^T / sqrt(128)) v wo) * silu((sigmoid(xn wg) * (xn wu)) wd),  xn = LayerNorm(x), q = xn wq
; One launch, 256 workgroups (one per CU, all co-resident), 4 waves of 64 queries; workgroup = (head, 256-query block).
;  2. attention, S^T = K Q^T - m as one MFMA chain, P = exp2(S), O^T += V^T P^T, row sums by a sparse MFMA.
; Hand-offs: write-through (sc1) stores, drained, then a flag holding this launch's tag (chosen by workgroup 0, passed
; through d_debug); readers poll the flag and load with sc1. Every poll is bounded.
; Kernarg layout (96 bytes): 0 A_x, 8 A_k_cache, 16 A_v_cache, 24 A_wq, 32 A_wo, 40 B_x, 48 B_w_gate, 56 B_w_up,
; @launch grid=(256,1,1) block=(256,1,1) lds=163840
.amdgcn_target "amdgcn-amd-amdhsa--gfx950"
.text
"""
def kern(name, L):
    return f".globl {name}\n.p2align 8\n.type {name},@function\n{name}:\n" + fmt(L) + "\n"
src = HEAD + kern(NAME, k1())
src += '.section .rodata,"a"\n.p2align 6\n' + kd(NAME, 512, 256)
open(sys.argv[1], "w").write(src)
```
